```python
import torch

def _softmax(x, axis=-1):
    return torch.softmax(x, dim=axis)
def _gelu(x):
    return torch.nn.functional.gelu(x, approximate="tanh")
def _silu(x):
    return torch.nn.functional.silu(x)
def _sigmoid(x):
    return torch.sigmoid(x)
def _layernorm(x, axis=-1, eps=1e-5):
    m = x.mean(dim=axis, keepdim=True)
    v = x.var(dim=axis, keepdim=True, unbiased=False)
    return (x - m) / torch.sqrt(v + eps)
def _scatter_add(tgt, idx, src, axis=0):
    return tgt.clone().index_add_(axis, idx, src)
def _segment_sum(src, seg, n):
    out = torch.zeros((n,) + src.shape[1:], dtype=src.dtype)
    return out.index_add_(0, seg, src)
def _pad(x, pw):
    flat = tuple(v for pair in reversed(pw) for v in pair)
    return torch.nn.functional.pad(x, flat)

kernel_name = 'gated_mix__sliding_block_cached__sliding_block_cached__decode'

def setup_inputs():

    _w = (lambda a: (lambda t: t.to(torch.bfloat16) if t.is_floating_point() else t)(torch.as_tensor(a)))
    def _A_setup():
        B, Sq, D = 4, 1, 512
        Hq, Hkv, Sk, Dh = 32, 8, 8192, 128
        assert Hq % Hkv == 0, (Hq, Hkv)
        return {
            "x": _w((lambda *s: torch.randn(*s, dtype=torch.bfloat16) * 0.05)(B, Sq, D)),
            "k_cache": _w((lambda *s: torch.randn(*s, dtype=torch.bfloat16) * 6.4)(B, Hkv, Sk, Dh)),
            "v_cache": _w((lambda *s: torch.randn(*s, dtype=torch.bfloat16) * 0.05)(B, Hkv, Sk, Dh)),
            "wq": _w((lambda *s: torch.randn(*s, dtype=torch.bfloat16) * 6.4)(D, Hq * Dh) * (D ** -0.5)),
            "wo": _w((lambda *s: torch.randn(*s, dtype=torch.bfloat16) * 0.05)(Hq * Dh, D) * ((Hq * Dh) ** -0.5)),
        }
    _A_in = _A_setup()

    def _B_setup():
        B, Sq, D = 4, 1, 512
        Hq, Hkv, Sk, Dh = 32, 8, 8192, 128
        assert Hq % Hkv == 0, (Hq, Hkv)
        return {
            "x": _w((lambda *s: torch.randn(*s, dtype=torch.bfloat16) * 0.05)(B, Sq, D)),
            "k_cache": _w((lambda *s: torch.randn(*s, dtype=torch.bfloat16) * 6.4)(B, Hkv, Sk, Dh)),
            "v_cache": _w((lambda *s: torch.randn(*s, dtype=torch.bfloat16) * 0.05)(B, Hkv, Sk, Dh)),
            "wq": _w((lambda *s: torch.randn(*s, dtype=torch.bfloat16) * 6.4)(D, Hq * Dh) * (D ** -0.5)),
            "wo": _w((lambda *s: torch.randn(*s, dtype=torch.bfloat16) * 0.05)(Hq * Dh, D) * ((Hq * Dh) ** -0.5)),
        }
    _B_in = _B_setup()

    return {
        "A_x": _A_in["x"],
        "A_k_cache": _A_in["k_cache"],
        "A_v_cache": _A_in["v_cache"],
        "A_wq": _A_in["wq"],
        "A_wo": _A_in["wo"],
        "B_x": _B_in["x"],
        "B_k_cache": _B_in["k_cache"],
        "B_v_cache": _B_in["v_cache"],
        "B_wq": _B_in["wq"],
        "B_wo": _B_in["wo"],
        "gate_w": _w((lambda *s: torch.randn(*s, dtype=torch.bfloat16) * 0.05)(512) * 16.0),
    }

def reference(A_x, A_k_cache, A_v_cache, A_wq, A_wo, B_x, B_k_cache, B_v_cache, B_wq, B_wo, gate_w):
    def _A_ref(x, k_cache, v_cache, wq, wo):
        B, Sq, D = x.shape
        Hq, Dh = 32, 128
        Hkv, Sk = k_cache.shape[1], k_cache.shape[2]
        W = min(4096, max(256, Sk // 4))
        rep = Hq // Hkv
        q = (lambda x, *d: x.permute(*d))((x @ wq).reshape(B, Sq, Hq, Dh), 0, 2, 1, 3)
        k = (lambda x, n, axis: torch.repeat_interleave(x, n, dim=axis))(k_cache[:, :, Sk - W:, :], rep, axis=1)
        v = (lambda x, n, axis: torch.repeat_interleave(x, n, dim=axis))(v_cache[:, :, Sk - W:, :], rep, axis=1)
        scores = torch.einsum("bhqd,bhkd->bhqk", q, k) * (Dh ** -0.5)
        p = _softmax(scores, axis=-1)
        o = torch.einsum("bhqk,bhkd->bhqd", p, v)
        return (lambda x, *d: x.permute(*d))(o, 0, 2, 1, 3).reshape(B, Sq, Hq * Dh) @ wo

    def _B_ref(x, k_cache, v_cache, wq, wo):
        B, Sq, D = x.shape
        Hq, Dh = 32, 128
        Hkv, Sk = k_cache.shape[1], k_cache.shape[2]
        W = min(4096, max(256, Sk // 4))
        rep = Hq // Hkv
        q = (lambda x, *d: x.permute(*d))((x @ wq).reshape(B, Sq, Hq, Dh), 0, 2, 1, 3)
        k = (lambda x, n, axis: torch.repeat_interleave(x, n, dim=axis))(k_cache[:, :, Sk - W:, :], rep, axis=1)
        v = (lambda x, n, axis: torch.repeat_interleave(x, n, dim=axis))(v_cache[:, :, Sk - W:, :], rep, axis=1)
        scores = torch.einsum("bhqd,bhkd->bhqk", q, k) * (Dh ** -0.5)
        p = _softmax(scores, axis=-1)
        o = torch.einsum("bhqk,bhkd->bhqd", p, v)
        return (lambda x, *d: x.permute(*d))(o, 0, 2, 1, 3).reshape(B, Sq, Hq * Dh) @ wo

    x = A_x
    g = _sigmoid((x * gate_w).sum(-1, keepdims=True))
    a = _A_ref(x, A_k_cache, A_v_cache, A_wq, A_wo)
    b = _B_ref(x, B_k_cache, B_v_cache, B_wq, B_wo)
    return g * a + (1 - g) * b
```

```python
import sys, argparse
KN = 'gated_mix__sliding_block_cached__sliding_block_cached__decode'
HEADER = open('cdna_kernels/' + KN + '.s.ref').read().split('; Override launch')[0]

WS_EPOCH = 0x0
WS_Q = 0x1000
WS_ML = 0x21000
WS_O = 0x40000
WS_P = 0xC0000
WS_BYTES = 285221888
STAMP_OFF = 64 << 20
TAGC = 0x9E3779B1
KL = 0
QL = 131072
ZL = QL + 4096
PX = ZL + 1024
ML = PX + 4096
LL = ML + 64
CNT = LL + 64
GL = CNT + 64
OX = GL + 64
OL = OX + 1024
PL = OL + 8192
LDS_BYTES = PL + 8192
QR = OL
LOG2E = 0x3FB8AA3B
SCALE = 0x3DB504F3

class G:
    def __init__(s): s.L = []
    def __call__(s, t): s.L.append('  ' + t)
    def lab(s, t): s.L.append(t + ':')
    def c(s, t): s.L.append('  ; ' + t)

def vr(a, n=1):
    return f'v{a}' if n == 1 else f'v[{a}:{a+n-1}]'

def gen(stamps=False, pol='nt', wpol='nt', spin=200000, prefetch=True, thr=0, sleep=1, touch=1, vfirst=1, kprio=1, vprio=3, rotmul=4, ackfirst=1):
    A = G()
    P = (' ' + pol) if pol else ''
    WP = (' ' + wpol) if wpol else ''
    out = [HEADER.rstrip('\n'),
           '; Override launch geometry by editing the next line (default: block=256,',
           '; grid=ceil(out_elems/256), lds=0). Harness parses it; keep it on one line.',
           f'; @launch grid=(256,1,1) block=(512,1,1) lds={LDS_BYTES}',
           '.amdgcn_target "amdgcn-amd-amdhsa--gfx950"', '.text', f'.globl {KN}_kernel', '.p2align 8',
           f'.type {KN}_kernel,@function', f'{KN}_kernel:']
    SLO, SHI = 's60', 's61'
    def stamp(i):
        if stamps: A(f's_memrealtime s[{64+2*i}:{65+2*i}]')
    def allred(op, r, t, quad=False):
        if quad:
            A('s_nop 1'); A(f'{op}_dpp v{r}, v{r}, v{r} quad_perm:[1,0,3,2] row_mask:0xf bank_mask:0xf')
            A('s_nop 1'); A(f'{op}_dpp v{r}, v{r}, v{r} quad_perm:[2,3,0,1] row_mask:0xf bank_mask:0xf')
        A('s_nop 1'); A(f'{op}_dpp v{r}, v{r}, v{r} row_ror:4 row_mask:0xf bank_mask:0xf')
        A('s_nop 1'); A(f'{op}_dpp v{r}, v{r}, v{r} row_ror:8 row_mask:0xf bank_mask:0xf')
        A(f'v_mov_b32 v{t}, v{r}'); A('s_nop 1'); A(f'v_permlane16_swap_b32 v{r}, v{t}'); A('s_nop 1'); A(f'{op} v{r}, v{r}, v{t}')
        A(f'v_mov_b32 v{t}, v{r}'); A('s_nop 1'); A(f'v_permlane32_swap_b32 v{r}, v{t}'); A('s_nop 1'); A(f'{op} v{r}, v{r}, v{t}')
    def perm_mfma(src, T, mf):
        for dp in range(4):
            for d in range(4):
                A(f'v_perm_b32 v{T+4*(2*dp)+d}, v{src+4*(2*d+1)+dp}, v{src+4*(2*d)+dp}, {SLO}')
            if dp > 0 and mf: mf(2 * dp - 1)
            for d in range(4):
                A(f'v_perm_b32 v{T+4*(2*dp+1)+d}, v{src+4*(2*d+1)+dp}, v{src+4*(2*d)+dp}, {SHI}')
            if mf: mf(2 * dp)
        if mf:
            A('s_nop 1'); mf(7)
    def dump_stamps(lo, hi):
        A('s_waitcnt lgkmcnt(0)')
        A('s_lshl_b32 s59, s2, 7'); A(f's_add_u32 s59, s59, 0x{STAMP_OFF:x}')
        A('v_mov_b32 v7, 0')
        for i in range(lo, hi):
            for u in range(2): A(f'v_mov_b32 v{8+u}, s{64+2*i+u}')
            A(f'buffer_store_dwordx2 v[8:9], v7, s[20:23], s59 offen offset:{8*i}')
            A('s_nop 1')

    A('s_cmp_ge_u32 s2, 256')
    A('s_cbranch_scc1 L_end')
    stamp(0)
    A('s_and_b32 s3, s2, 7')
    A('s_lshl_b32 s3, s3, 1')
    A('s_bfe_u32 s4, s2, 0x10003')
    A('s_or_b32 s3, s3, s4')
    A('s_lshr_b32 s48, s3, 3')
    A('s_mul_i32 s48, s48, 40')
    A('s_add_u32 s50, s0, s48')
    A('s_addc_u32 s51, s1, 0')
    A('s_load_dwordx4 s[32:35], s[50:51], 8')
    A('s_load_dwordx4 s[36:39], s[50:51], 24')
    A('s_load_dwordx2 s[40:41], s[0:1], 0')
    A('s_load_dwordx4 s[44:47], s[0:1], 80')
    A('s_load_dwordx2 s[42:43], s[0:1], 104')
    A('v_lshrrev_b32 v1, 6, v0')
    A('v_and_b32 v0, 63, v0')
    A('s_and_b32 s4, s3, 7')
    A('v_readfirstlane_b32 s6, v1')
    A('s_lshr_b32 s5, s2, 4')
    A('v_lshlrev_b32 v14, 4, v0')
    CODE_KB = 8
    if prefetch:
        A.c("warm L2 with this kernel's own code: one dword per 32 bytes")
        A('s_getpc_b64 s[52:53]')
        A.lab('L_pc')
        A(f's_sub_u32 s52, s52, L_pc-{KN}_kernel')
        A('s_subb_u32 s53, s53, 0')
        A('v_lshlrev_b32 v2, 11, v1')
        A('v_lshl_add_u32 v2, v0, 5, v2')
        A(f'v_min_u32 v2, L_code_end-{KN}_kernel-4, v2')
        A('v_mov_b32 v3, s53')
        A('v_add_co_u32 v2, vcc, s52, v2')
        A('s_nop 1')
        A('v_addc_co_u32 v3, vcc, 0, v3, vcc')
        A('global_load_dword v40, v[2:3], off')
    NPF = 1 if prefetch else 0
    A(f's_mov_b32 {SLO}, 0x05040100')
    A(f's_mov_b32 {SHI}, 0x07060302')
    A('s_mov_b32 s10, 0x4000000')
    A('s_mov_b32 s11, 0x20000')
    A('s_mov_b32 s18, 0x400000')
    A('s_mov_b32 s19, 0x20000')
    A(f's_mov_b32 s22, {WS_BYTES}')
    A('s_mov_b32 s23, 0x20000')
    A('s_mov_b32 s26, 4096')
    A('s_mov_b32 s27, 0x20000')
    A('s_lshr_b32 s48, s5, 2')
    A('s_and_b32 s49, s5, 3')
    A('s_and_b32 s62, s6, 4')
    A('s_and_b32 s6, s6, 3')
    A('s_lshl_b32 s54, s48, 24')
    A('s_lshl_b32 s55, s4, 21')
    A('s_add_u32 s54, s54, s55')
    A('s_lshl_b32 s55, s49, 17')
    A('s_add_u32 s54, s54, s55')
    A('s_lshl_b32 s55, s6, 15')
    A('s_add_u32 s54, s54, 0x180000')
    A(f's_mul_i32 s96, s2, {rotmul}')
    A('s_add_u32 s96, s96, s6')
    A('s_lshl_b32 s96, s96, 12')
    A('v_lshrrev_b32 v1, 4, v0')
    A('v_and_b32 v2, 15, v0')
    A('v_bfe_u32 v5, v0, 2, 2')
    A('v_and_b32 v16, 3, v0')
    A('s_cmp_eq_u32 s62, %d' % (4 if vfirst else 0))
    A('s_cbranch_scc1 L_kwave')

    issued = [0]
    def thro():
        issued[0] += 1
        if thr and issued[0] > thr: A(f's_waitcnt vmcnt({thr})')

    V0 = 128; PB = 64; T = 32; ACC = 24
    WQ = 64; XR = 20; QA = 96
    if vprio: A(f's_setprio {vprio}')
    A('v_lshrrev_b32 v3, 2, v0')
    A('v_lshlrev_b32 v9, 16, v3')
    A('v_lshl_add_u32 v9, v16, 4, v9')
    A('v_lshlrev_b32 v8, 4, v3')
    A('v_lshl_add_u32 v8, v16, 10, v8')
    A('s_lshl_b32 s56, s4, 10'); A('s_lshl_b32 s57, s5, 6'); A('s_add_u32 s56, s56, s57')
    A('s_lshl_b32 s57, s6, 20'); A('s_add_u32 s56, s56, s57')
    A('s_lshl_b32 s57, s6, 8')
    A('s_waitcnt lgkmcnt(0)')
    A('s_mov_b32 s16, s36'); A('s_mov_b32 s17, s37')
    A('s_mov_b32 s24, s40'); A('s_mov_b32 s25, s41')
    for i in range(8):
        A(f'buffer_load_dwordx4 {vr(WQ+4*i,4)}, v9, s[16:19], s56 offen{WP}')
        if i < 7: A('s_add_u32 s56, s56, 8192')
    A(f'buffer_load_dwordx4 {vr(XR,4)}, v8, s[24:27], s57 offen')
    A('s_load_dword s7, s[42:43], 0x%x' % WS_EPOCH)
    A('s_barrier')
    A('s_mov_b32 s20, s42'); A('s_mov_b32 s21, s43')
    A('s_mov_b32 s8, s34'); A('s_mov_b32 s9, s35')
    A('v_lshlrev_b32 v12, 9, v1')
    A('v_lshl_add_u32 v12, v16, 7, v12')
    A('s_lshl_b32 s57, s6, 11'); A(f's_add_u32 s57, s57, {QR}')
    A('v_add_u32 v12, s57, v12')
    A('v_bfe_u32 v13, v0, 3, 2')
    A('v_lshlrev_b32 v15, 11, v13')
    A('v_lshlrev_b32 v13, 7, v13')
    A('v_and_b32 v10, 1, v0')
    A('v_lshl_add_u32 v13, v10, 6, v13')
    A('v_bfe_u32 v10, v0, 1, 2')
    A('v_lshl_add_u32 v13, v10, 2, v13')
    A('v_lshrrev_b32 v10, 5, v0')
    A('v_lshl_add_u32 v13, v10, 12, v13')
    A(f'v_add_u32 v13, {QR}, v13')
    A('v_and_b32 v10, 7, v0')
    A('v_lshl_add_u32 v15, v10, 4, v15')
    A(f'v_mov_b32 v10, {CNT}')
    A('v_mov_b32 v11, 1')
    A('s_waitcnt vmcnt(0)')
    stamp(12)
    perm_mfma(WQ, T, lambda e: A(f'v_mfma_f32_16x16x32_bf16 {vr(QA+4*e,4)}, {vr(T+4*e,4)}, {vr(XR,4)}, 0'))
    A('s_nop 5')
    A('s_mov_b32 exec_lo, 0x00F0000F')
    A('s_mov_b32 exec_hi, 0xF0000F00')
    for e in range(8): A(f'ds_write_b128 v12, {vr(QA+4*e,4)} offset:{16*e}')
    A('s_mov_b64 exec, 1')
    A('s_waitcnt lgkmcnt(0)')
    A('ds_add_rtn_u32 v11, v10, v11')
    A('s_mov_b64 exec, -1')
    A(f's_add_u32 s7, s7, 0x{TAGC:x}')
    A('s_waitcnt lgkmcnt(0)')
    A('v_readfirstlane_b32 s57, v11')
    A('s_cmp_lg_u32 s57, 3')
    A('s_cbranch_scc1 L_vgo')
    for q in range(3): A(f'v_add_u32 v{17+q}, {1024*(q+1)}, v13')
    bases = [13, 17, 18, 19]
    for pi in range(8):
        base = bases[pi >> 1]; o = (pi & 1) * 128
        A(f'ds_read2_b32 v[{T+4*pi}:{T+4*pi+1}], v{base} offset0:{o} offset1:{o+4}')
        A(f'ds_read2_b32 v[{T+4*pi+2}:{T+4*pi+3}], v{base} offset0:{o+8} offset1:{o+12}')
        if pi == 3:
            A('s_lshl_b32 s56, s3, 13'); A(f's_add_u32 s56, s56, 0x{WS_Q:x}')
            A('s_lshl_b32 s57, s5, 7'); A('s_add_u32 s57, s57, s56')
            A('s_waitcnt lgkmcnt(0)')
    for u in range(4):
        A(f'v_add_f32 v{T+u}, v{T+u}, v{T+4+u}'); A(f'v_add_f32 v{T+8+u}, v{T+8+u}, v{T+12+u}')
    for u in range(4): A(f'v_add_f32 v{T+u}, v{T+u}, v{T+8+u}')
    A('s_waitcnt lgkmcnt(0)')
    for u in range(4):
        A(f'v_add_f32 v{T+16+u}, v{T+16+u}, v{T+20+u}'); A(f'v_add_f32 v{T+24+u}, v{T+24+u}, v{T+28+u}')
    for u in range(4): A(f'v_add_f32 v{T+16+u}, v{T+16+u}, v{T+24+u}')
    for u in range(4): A(f'v_add_f32 v{T+u}, v{T+u}, v{T+16+u}')
    for u in range(4): A(f'v_mov_b32 v{T+4+u}, v{T+u}')
    A('s_nop 1')
    for u in range(4): A(f'v_permlane32_swap_b32 v{T+u}, v{T+4+u}')
    A('v_mov_b32 v21, s7'); A('v_mov_b32 v23, s7')
    for u in range(4): A(f'v_add_f32 v{T+u}, v{T+u}, v{T+4+u}')
    A(f'v_cvt_pk_bf16_f32 v20, v{T}, v{T+1}')
    A(f'v_cvt_pk_bf16_f32 v22, v{T+2}, v{T+3}')
    A('s_mov_b32 exec_hi, 0')
    A('buffer_store_dwordx4 v[20:23], v15, s[20:23], s57 offen sc1')
    A('s_mov_b64 exec, -1')
    A.lab('L_vgo')
    stamp(13)
    if touch:
        A.c('first touch of the pages that are needed late')
        A('s_mov_b32 s24, s46'); A('s_mov_b32 s25, s47')
        A('s_lshl_b32 s57, s6, 19')
        A('buffer_load_dword v17, v14, s[20:23], s57 offen')
        A('buffer_load_dword v18, v14, s[24:27], 0 offen')
    A('v_lshl_add_u32 v8, v1, 2, v16')
    A('s_lshl_b32 s57, s6, 10'); A(f's_add_u32 s57, s57, {PX}')
    A('v_lshlrev_b32 v8, 4, v8')
    A('v_add_u32 v8, s57, v8')
    A(f'v_mov_b32 v9, {ZL}')
    A('v_mov_b32 v10, v5')
    for e in range(4):
        A(f'v_cmp_eq_u32 vcc, {e}, v10')
        A('s_nop 1')
        A(f'v_cndmask_b32 v{4+e}, v9, v8, vcc')
    A('s_lshl_b32 s59, s6, 11'); A(f's_add_u32 s59, s59, {OL}')
    A('v_add_u32 v19, s59, v14')
    if vprio: A('s_setprio 0')
    A('s_barrier')
    issued[0] = 0
    for n in range(32):
        if n % 4 == 0:
            A('s_and_b32 s56, s96, 0x1ffff'); A('s_add_u32 s56, s56, s54'); A('s_add_u32 s96, s96, 16384')
        A(f'buffer_load_dwordx4 {vr(V0+4*n,4)}, v14, s[8:11], s56 offen offset:{(n%4)*1024}{P}')
        thro()
    stamp(14)
    A('s_barrier')
    stamp(15)
    for G_ in range(4):
        for e in range(4): A(f'ds_read_b128 {vr(PB+16*G_+4*e,4)}, v{4+e} offset:{256*G_}')
        if G_ == 1: A('s_waitcnt lgkmcnt(0)')
    for G_ in range(4):
        if G_ == 2: A(f's_waitcnt vmcnt({8*(3-G_)}) lgkmcnt(0)')
        else: A(f's_waitcnt vmcnt({8*(3-G_)})')
        if G_ == 3: stamp(6)
        def mf(e):
            idx = e >> 2
            c = '0' if (G_ == 0 and (e & 3) == 0) else vr(ACC + 4 * idx, 4)
            A(f'v_mfma_f32_16x16x32_bf16 {vr(ACC+4*idx,4)}, {vr(T+4*e,4)}, {vr(PB+16*G_+4*(e&3),4)}, {c}')
        perm_mfma(V0 + 32 * G_, T, mf)
    A('s_nop 6')
    A(f'ds_write_b128 v19, {vr(ACC,4)}')
    A(f'ds_write_b128 v19, {vr(ACC+4,4)} offset:1024')
    A('s_waitcnt lgkmcnt(0)')
    A('s_barrier')
    if stamps:
        A('s_cmp_lg_u32 s6, 0'); A('s_cbranch_scc1 L_end')
        dump_stamps(12, 16); dump_stamps(6, 7)
    A('s_endpgm')

    A.lab('L_kwave')
    R1 = 64; PB = 48; ACC = 40; WO = 128; WT = 160; XG = 192
    if kprio: A(f's_setprio {kprio}')
    A('v_lshlrev_b32 v3, 2, v1')
    A('v_xor_b32 v3, v3, v2')
    A('v_lshlrev_b32 v8, 8, v1')
    for n in range(4):
        A(f'v_xor_b32 v9, {n}, v3')
        A(f'v_lshl_add_u32 v{10+n}, v9, 4, v8')
    A('s_lshl_b32 s57, s6, 8'); A(f's_add_u32 s57, s57, {ZL}')
    A('v_lshlrev_b32 v4, 2, v0'); A('v_add_u32 v4, s57, v4')
    A('v_mov_b32 v6, 0'); A(f'v_mov_b32 v7, {CNT}')
    A('ds_write_b32 v4, v6')
    A('ds_write_b32 v7, v6')
    A('s_lshl_b32 s53, s6, 10')
    A('s_mov_b32 s57, s55')
    A('s_waitcnt lgkmcnt(0)')
    A('s_mov_b32 s8, s32'); A('s_mov_b32 s9, s33')
    A('s_mov_b32 s24, s40'); A('s_mov_b32 s25, s41')
    A('s_mov_b32 s28, s44'); A('s_mov_b32 s29, s45'); A('s_mov_b32 s30, 1024'); A('s_mov_b32 s31, 0x20000')
    A('s_load_dword s7, s[42:43], 0x%x' % WS_EPOCH)
    A('s_barrier')
    issued[0] = 0
    A(f'buffer_load_dwordx4 {vr(XG,4)}, v14, s[24:27], s53 offen')
    A(f'buffer_load_dwordx4 {vr(XG+4,4)}, v14, s[28:31], 0 offen')
    for n in range(32):
        if n % 4 == 0:
            A('s_mov_b32 m0, s57')
            A('s_add_u32 s57, s57, 4096')
            A('s_and_b32 s56, s96, 0x1ffff'); A('s_add_u32 s56, s56, s54'); A('s_add_u32 s96, s96, 16384')
        A(f'buffer_load_dwordx4 v{10+n%4}, s[8:11], s56 offen offset:{(n%4)*1024}{P} lds')
        thro()
    stamp(1)
    A('s_barrier')
    A('s_mov_b32 s20, s42'); A('s_mov_b32 s21, s43')
    A('s_lshl_b32 s57, s3, 13'); A('s_lshl_b32 s56, s48, 11'); A('s_add_u32 s57, s57, s56'); A(f's_add_u32 s57, s57, 0x{WS_Q:x}')
    def pollq():
        A('buffer_load_dwordx4 v[24:27], v14, s[20:23], s57 offen sc1')
        A('buffer_load_dwordx4 v[28:31], v14, s[20:23], s57 offen offset:1024 sc1')
    pollq()
    A('s_mov_b32 s16, s38'); A('s_mov_b32 s17, s39')
    A('s_mov_b32 s24, s46'); A('s_mov_b32 s25, s47')
    A('s_lshl_b32 s58, s4, 19'); A('s_lshl_b32 s59, s48, 17'); A('s_add_u32 s58, s58, s59')
    A('s_add_u32 s58, s58, s55'); A('s_lshl_b32 s59, s49, 8'); A('s_add_u32 s58, s58, s59')
    A('v_lshlrev_b32 v15, 10, v1')
    A('v_lshl_add_u32 v15, v2, 4, v15')
    A('v_lshl_add_u32 v4, v16, 2, v5')
    A('v_lshlrev_b32 v4, 8, v4')
    A('v_add_u32 v4, s55, v4')
    A('v_xor_b32 v6, v1, v2')
    A('v_lshlrev_b32 v6, 4, v6')
    for t in range(4):
        A(f'v_xor_b32 v7, {64*t}, v6')
        A(f'v_add_u32 v{20+t}, v4, v7')
    A('s_lshl_b32 s59, s6, 10'); A(f's_add_u32 s59, s59, {QL}')
    A('v_lshlrev_b32 v7, 8, v16')
    A('v_lshl_add_u32 v7, v1, 4, v7')
    A('v_add_u32 v7, s59, v7')
    A(f'v_mov_b32 v8, {ZL}')
    for x in range(4):
        A(f'v_cmp_eq_u32 vcc, {x}, v5')
        A('s_nop 1')
        A(f'v_cndmask_b32 v{32+x}, v8, v7, vcc')
    A('v_lshlrev_b32 v9, 3, v0'); A('v_add_u32 v9, s59, v9')
    A('v_lshlrev_b32 v18, 4, v16')
    A('s_lshl_b32 s59, s6, 2'); A(f's_add_u32 s59, s59, {ML}')
    A('v_add_u32 v18, s59, v18')
    A('v_lshl_add_u32 v17, v1, 2, v16')
    A('v_lshlrev_b32 v17, 4, v17')
    A('v_lshrrev_b32 v8, 1, v5'); A('v_lshl_add_u32 v17, v8, 8, v17')
    A('v_and_b32 v8, 1, v5'); A('v_lshl_add_u32 v17, v8, 3, v17')
    A('s_lshl_b32 s59, s6, 10'); A(f's_add_u32 s59, s59, {PX}')
    A('v_add_u32 v17, s59, v17')
    A(f's_mov_b32 s62, 0x{SCALE:x}')
    A(f's_mov_b32 s63, 0x{LOG2E:x}')
    A('s_waitcnt vmcnt(34) lgkmcnt(0)')
    stamp(2)
    A(f's_add_u32 s7, s7, 0x{TAGC:x}')
    for i in range(4):
        x = XG + i; g = XG + 4 + i
        A(f'v_lshlrev_b32 v36, 16, v{x}'); A(f'v_and_b32 v37, 0xffff0000, v{x}')
        A(f'v_lshlrev_b32 v38, 16, v{g}'); A(f'v_and_b32 v39, 0xffff0000, v{g}')
        A('v_mul_f32 v36, v36, v38'); A('v_mul_f32 v37, v37, v39')
        A('v_cvt_pk_bf16_f32 v36, v36, v37')
        if i == 0:
            A(f'v_lshlrev_b32 v{XG+8}, 16, v36'); A(f'v_and_b32 v{XG+9}, 0xffff0000, v36')
        else:
            A('v_lshlrev_b32 v38, 16, v36'); A('v_and_b32 v39, 0xffff0000, v36')
            A(f'v_add_f32 v{XG+8}, v{XG+8}, v38'); A(f'v_add_f32 v{XG+9}, v{XG+9}, v39')
    GA = XG + 8
    A(f'v_add_f32 v{GA}, v{GA}, v{GA+1}')
    allred('v_add_f32', GA, GA + 1, quad=True)
    A(f'v_cvt_pk_bf16_f32 v{GA}, v{GA}, v{GA}')
    A(f'v_lshlrev_b32 v{GA}, 16, v{GA}')
    A(f'v_mul_f32 v{GA}, 0x{LOG2E ^ 0x80000000:x}, v{GA}')
    A(f'v_exp_f32 v{GA}, v{GA}')
    A('s_nop 0')
    A(f'v_add_f32 v{GA}, 1.0, v{GA}')
    A(f'v_rcp_f32 v{GA}, v{GA}')
    A('s_nop 0')
    A(f'v_cvt_pk_bf16_f32 v{GA}, v{GA}, v{GA}')
    A(f'v_lshlrev_b32 v{GA}, 16, v{GA}')
    A(f'v_sub_f32 v{GA+1}, 1.0, v{GA}')
    A(f'v_cvt_pk_bf16_f32 v{GA+1}, v{GA+1}, v{GA+1}')
    A(f'v_lshlrev_b32 v{GA+1}, 16, v{GA+1}')
    A('s_lshl_b32 s59, s6, 3'); A(f's_add_u32 s59, s59, {GL}'); A('v_mov_b32 v6, s59')
    A(f'ds_write_b64 v6, v[{GA}:{GA+1}]')
    A(f's_mov_b32 s59, {spin}')
    A.lab('L_pollq')
    A('s_waitcnt vmcnt(0)')
    A('v_xor_b32 v6, s7, v25'); A('v_xor_b32 v7, s7, v27')
    A('v_bitop3_b32 v6, v29, s7, v6 bitop3:0xbe'); A('v_bitop3_b32 v7, v31, s7, v7 bitop3:0xbe')
    A('v_or_b32 v6, v6, v7')
    A('v_cmp_ne_u32 vcc, 0, v6')
    A('s_cbranch_vccz L_gotq')
    A('s_sub_u32 s59, s59, 1')
    A('s_cbranch_scc1 L_gotq')
    pollq()
    A('s_branch L_pollq')
    A.lab('L_gotq')
    stamp(3)
    A('s_waitcnt lgkmcnt(0)')
    A('ds_write2_b32 v9, v24, v26 offset0:0 offset1:1')
    A('ds_write2_b32 v9, v28, v30 offset0:128 offset1:129')
    Qb = [R1, R1 + 16]; Kb = [R1 + 32, R1 + 48]
    def rdq(x):
        for t in range(4): A(f'ds_read_b128 {vr(Qb[x&1]+4*t,4)}, v{32+x} offset:{64*t}')
    def rdk(T_, buf):
        for t in range(4): A(f'ds_read_b128 {vr(Kb[buf]+4*t,4)}, v{20+t} offset:{4096*T_}')
    def mm(T_, buf):
        x = T_ & 3; a = T_ >> 2
        for t in range(4):
            c = '0' if (x == 0 and t == 0) else vr(ACC+4*a, 4)
            A(f'v_mfma_f32_16x16x32_bf16 {vr(ACC+4*a,4)}, {vr(Kb[buf]+4*t,4)}, {vr(Qb[x&1]+4*t,4)}, {c}')
    rdq(0); rdk(0, 0); rdk(4, 1)
    for x in range(4):
        A('s_waitcnt lgkmcnt(4)')
        mm(x, 0)
        if x < 3:
            rdq(x + 1)
            A('s_waitcnt lgkmcnt(4)')
        else:
            A('s_waitcnt lgkmcnt(0)')
        mm(x + 4, 1)
        if x < 3:
            rdk(x + 1, 0); rdk(x + 5, 1)
    A('s_nop 7')
    S = ACC
    for p in range(4): A(f'v_cvt_pk_bf16_f32 v{28+p}, v{S+2*p}, v{S+2*p+1}')
    for p in range(4):
        A(f'v_lshlrev_b32 v{S+2*p}, 16, v{28+p}'); A(f'v_and_b32 v{S+2*p+1}, 0xffff0000, v{28+p}')
    for i in range(8): A(f'v_mul_f32 v{S+i}, s62, v{S+i}')
    for p in range(4): A(f'v_cvt_pk_bf16_f32 v{28+p}, v{S+2*p}, v{S+2*p+1}')
    for p in range(4):
        A(f'v_lshlrev_b32 v{S+2*p}, 16, v{28+p}'); A(f'v_and_b32 v{S+2*p+1}, 0xffff0000, v{28+p}')
    A(f'v_max3_f32 v28, v{S}, v{S+1}, v{S+2}')
    A(f'v_max3_f32 v29, v{S+3}, v{S+4}, v{S+5}')
    A(f'v_max3_f32 v28, v28, v{S+6}, v{S+7}')
    A('v_max_f32 v28, v28, v29')
    allred('v_max_f32', 28, 29)
    A('v_mul_f32 v36, s63, v28')
    for i in range(8): A(f'v_fma_f32 v{S+i}, v{S+i}, s63, -v36')
    for i in range(8): A(f'v_exp_f32 v{S+i}, v{S+i}')
    A('ds_write_b32 v18, v36')
    for p in range(4): A(f'v_cvt_pk_bf16_f32 v{32+p}, v{S+2*p}, v{S+2*p+1}')
    A('ds_write_b64 v17, v[32:33]')
    A('ds_write_b64 v17, v[34:35] offset:512')
    A(f'v_add_f32 v28, v{S}, v{S+1}'); A(f'v_add_f32 v29, v{S+2}, v{S+3}')
    A(f'v_add_f32 v30, v{S+4}, v{S+5}'); A(f'v_add_f32 v31, v{S+6}, v{S+7}')
    A('v_add_f32 v28, v28, v29'); A('v_add_f32 v30, v30, v31'); A('v_add_f32 v28, v28, v30')
    allred('v_add_f32', 28, 29)
    A('ds_write_b32 v18, v28 offset:64')
    A('s_lshl_b32 s59, s6, 4'); A(f's_add_u32 s59, s59, {ML}')
    A('v_mov_b32 v6, s59')
    A('v_lshlrev_b32 v7, 4, v16'); A(f'v_add_u32 v7, {ML}, v7')
    A('v_bfe_u32 v4, v0, 3, 2'); A('v_lshlrev_b32 v4, 2, v4')
    A('v_bfe_u32 v8, v0, 1, 2'); A('v_add_u32 v4, v4, v8')
    A('v_lshlrev_b32 v4, 2, v4'); A('v_add_u32 v4, s6, v4'); A('v_lshlrev_b32 v4, 4, v4')
    A('v_and_b32 v8, 1, v0'); A('v_lshl_add_u32 v4, v8, 10, v4')
    A(f'v_add_u32 v4, {OL}, v4')
    A('s_lshl_b32 s59, s49, 2'); A('s_add_u32 s59, s59, s48')
    A('s_lshl_b32 s56, s3, 4'); A('s_add_u32 s56, s56, s59')
    A('s_lshl_b32 s57, s56, 11'); A('s_lshl_b32 s59, s6, 9'); A('s_add_u32 s57, s57, s59'); A(f's_add_u32 s57, s57, 0x{WS_O:x}')
    A('s_lshl_b32 s56, s56, 7'); A(f's_add_u32 s56, s56, 0x{WS_ML:x}')
    A('v_lshrrev_b32 v13, 3, v0'); A('v_lshlrev_b32 v12, 11, v13'); A('v_and_b32 v8, 7, v0'); A('v_lshl_add_u32 v12, v8, 4, v12')
    A('v_lshlrev_b32 v13, 7, v13')
    A('s_lshl_b32 s50, s3, 15'); A('s_lshl_b32 s59, s48, 9'); A('s_add_u32 s50, s50, s59'); A('s_lshl_b32 s59, s6, 7'); A('s_add_u32 s50, s50, s59')
    A(f's_add_u32 s50, s50, 0x{WS_O:x}'); A('s_add_u32 s51, s50, 16384')
    A('s_lshl_b32 s52, s3, 11'); A('s_lshl_b32 s59, s48, 4'); A('s_add_u32 s52, s52, s59'); A(f's_add_u32 s52, s52, 0x{WS_ML:x}')
    A('s_lshl_b32 s59, s6, 8'); A(f's_add_u32 s59, s59, {OX}')
    A('v_and_b32 v17, 31, v0'); A('v_lshlrev_b32 v17, 3, v17'); A('v_add_u32 v17, s59, v17')
    A('v_lshlrev_b32 v8, 6, v16'); A('v_lshl_add_u32 v8, v1, 4, v8'); A('v_add_u32 v8, s59, v8')
    A(f'v_mov_b32 v9, {ZL}')
    for x in range(4):
        A(f'v_cmp_eq_u32 vcc, {x}, v5')
        A('s_nop 1')
        A(f'v_cndmask_b32 v{208+x}, v9, v8, vcc')
    A('s_lshl_b32 s59, s6, 11'); A(f's_add_u32 s59, s59, {PL}')
    A('v_add_u32 v19, s59, v14')
    A('s_lshl_b32 s59, s6, 9'); A(f's_add_u32 s59, s59, {PL}')
    A('v_lshlrev_b32 v18, 3, v0'); A('v_add_u32 v18, s59, v18')
    A('v_mov_b32 v37, s7'); A('v_mov_b32 v39, s7')
    A('v_mov_b32 v9, s7'); A('v_mov_b32 v11, s7')
    A('s_waitcnt lgkmcnt(0)')
    stamp(4)
    A('s_barrier')
    A('ds_read_b128 v[20:23], v7')
    A('ds_read_b128 v[24:27], v7 offset:64')
    A('ds_read_b128 v[28:31], v6')
    A('s_waitcnt lgkmcnt(1)')
    A('v_max3_f32 v36, v20, v21, v22'); A('v_max_f32 v36, v36, v23')
    for w in range(4): A(f'v_sub_f32 v{20+w}, v{20+w}, v36')
    for w in range(4): A(f'v_exp_f32 v{20+w}, v{20+w}')
    A('s_nop 0')
    A('v_mul_f32 v38, v20, v24')
    for w in range(1, 4): A(f'v_fmac_f32 v38, v{20+w}, v{24+w}')
    A('s_cmp_lg_u32 s6, 0')
    A('s_cbranch_scc1 L_noml')
    A('s_mov_b64 exec, 15')
    A('buffer_store_dwordx4 v[36:39], v14, s[20:23], s56 offen sc1')
    A('s_mov_b64 exec, -1')
    A.lab('L_noml')
    MLR = 216
    def pollml():
        A(f'buffer_load_dwordx4 v[{MLR}:{MLR+3}], v13, s[20:23], s52 offen sc1')
        A(f'buffer_load_dwordx4 v[{MLR+4}:{MLR+7}], v13, s[20:23], s52 offen offset:1024 sc1')
    pollml()
    for n in range(8):
        ro = 8 * (n & 3) + 4 * (n >> 2)
        A(f's_add_u32 s59, s58, {ro*1024}')
        A(f'buffer_load_dwordx4 {vr(WO+4*n,4)}, v15, s[16:19], s59 offen{WP}')
    stamp(5)
    A('s_waitcnt lgkmcnt(0)')
    A('v_max3_f32 v6, v28, v29, v30'); A('v_max_f32 v6, v6, v31')
    for w in range(4): A(f'v_sub_f32 v{28+w}, v{28+w}, v6')
    for w in range(4): A(f'v_exp_f32 v{28+w}, v{28+w}')
    A('s_lshl_b32 s56, s3, 2'); A('s_add_u32 s56, s56, s48')
    A('s_lshl_b32 s53, s49, 6'); A('s_add_u32 s53, s53, s56'); A('s_lshl_b32 s53, s53, 12')
    A('s_lshl_b32 s59, s6, 10'); A('s_add_u32 s53, s53, s59'); A(f's_add_u32 s53, s53, 0x{WS_P:x}')
    A('s_and_b32 s56, s2, 7'); A('s_lshl_b32 s59, s5, 3'); A('s_add_u32 s56, s56, s59')
    A('s_lshr_b32 s58, s56, 5')
    A('s_and_b32 s56, s56, 31'); A('s_lshl_b32 s56, s56, 3'); A('s_bfe_u32 s59, s2, 0x10003'); A('s_lshl_b32 s59, s59, 2'); A('s_add_u32 s56, s56, s59')
    A('s_lshl_b32 s97, s58, 18'); A('s_lshl_b32 s59, s56, 4'); A('s_add_u32 s97, s97, s59'); A(f's_add_u32 s97, s97, 0x{WS_P:x}')
    A('s_add_u32 s98, s97, 65536'); A('s_add_u32 s99, s98, 65536'); A('s_add_u32 s100, s99, 65536')
    A('v_lshrrev_b32 v212, 2, v0'); A('v_lshlrev_b32 v212, 12, v212'); A('v_lshl_add_u32 v212, v16, 4, v212')
    A('v_add_u32 v6, s56, v16')
    A('v_bfe_u32 v7, v6, 1, 2')
    A('v_lshlrev_b32 v214, 3, v7'); A(f'v_add_u32 v214, {GL}, v214')
    A('ds_read_b64 v[214:215], v214')
    A('v_lshlrev_b32 v213, 9, v7')
    A('s_lshl_b32 s58, s58, 7'); A('v_add_u32 v213, s58, v213')
    A('v_bfe_u32 v7, v6, 5, 2'); A('v_lshl_add_u32 v213, v7, 5, v213')
    A('v_and_b32 v7, 1, v6'); A('v_lshl_add_u32 v213, v7, 4, v213')
    A('v_and_b32 v7, 1, v1'); A('v_lshl_add_u32 v213, v7, 3, v213')
    A('v_lshrrev_b32 v7, 7, v6'); A('v_lshl_add_u32 v213, v7, 2, v213')
    A('v_bfe_u32 v7, v6, 3, 2'); A('v_add_u32 v213, v213, v7')
    A('v_lshlrev_b32 v213, 1, v213')
    FA = 224
    def mlcheck():
        A(f'v_xor_b32 v6, s7, v{MLR+1}'); A(f'v_xor_b32 v7, s7, v{MLR+3}')
        A(f'v_bitop3_b32 v6, v{MLR+5}, s7, v6 bitop3:0xbe'); A(f'v_bitop3_b32 v7, v{MLR+7}, s7, v7 bitop3:0xbe')
        A('v_or_b32 v6, v6, v7')
        A('v_cmp_ne_u32 vcc, 0, v6')
    def mlfactors():
        A(f'v_max_f32 v6, v{MLR}, v{MLR+4}')
        A('v_mov_b32 v7, v6'); A('s_nop 1'); A('v_permlane32_swap_b32 v6, v7'); A('s_nop 1'); A('v_max_f32 v6, v6, v7')
        A(f'v_sub_f32 v{FA}, v{MLR}, v6'); A(f'v_sub_f32 v{FA+1}, v{MLR+4}, v6')
        A(f'v_exp_f32 v{FA}, v{FA}'); A(f'v_exp_f32 v{FA+1}, v{FA+1}')
        A('s_nop 0')
        A(f'v_mul_f32 v6, v{FA}, v{MLR+2}'); A(f'v_fmac_f32 v6, v{FA+1}, v{MLR+6}')
        A('v_mov_b32 v7, v6'); A('s_nop 1'); A('v_permlane32_swap_b32 v6, v7'); A('s_nop 1'); A('v_add_f32 v6, v6, v7')
        A('v_rcp_f32 v6, v6')
        A('s_nop 0')
        A(f'v_mul_f32 v{FA}, v{FA}, v6'); A(f'v_mul_f32 v{FA+1}, v{FA+1}, v6')
    A('s_waitcnt vmcnt(8) lgkmcnt(0)')
    mlcheck()
    A('s_mov_b32 s62, 0')
    A('s_cbranch_vccnz L_mllate')
    mlfactors()
    A('s_mov_b32 s62, 1')
    A.lab('L_mllate')
    A('s_barrier')
    for w in range(4): A(f'ds_read_b128 v[{64+4*w}:{67+4*w}], v4 offset:{2048*w}')
    A('s_waitcnt lgkmcnt(3)')
    for r in range(4): A(f'v_mul_f32 v{20+r}, v28, v{64+r}')
    for w in range(1, 4):
        A(f's_waitcnt lgkmcnt({3-w})')
        for r in range(4): A(f'v_fmac_f32 v{20+r}, v{28+w}, v{64+4*w+r}')
    A('v_cvt_pk_bf16_f32 v8, v20, v21'); A('v_cvt_pk_bf16_f32 v10, v22, v23')
    A('s_mov_b32 exec_hi, 0')
    A('buffer_store_dwordx4 v[8:11], v14, s[20:23], s57 offen sc1')
    A('s_mov_b32 exec_hi, -1')
    stamp(7)
    H = 20
    def poll1():
        A(f'buffer_load_dwordx4 v[20:23], v12, s[20:23], s50 offen sc1')
        A(f'buffer_load_dwordx4 v[24:27], v12, s[20:23], s51 offen sc1')
    poll1()
    A('s_waitcnt vmcnt(3)')
    perm_mfma(WO, WT, None)
    A(f's_mov_b32 s59, {spin}')
    A('s_cmp_eq_u32 s62, 1')
    A('s_cbranch_scc1 L_poll1')
    A.lab('L_pollml')
    pollml()
    A('s_waitcnt vmcnt(0)')
    mlcheck()
    A('s_cbranch_vccz L_gotml')
    A('s_sub_u32 s59, s59, 1')
    A('s_cbranch_scc1 L_gotml')
    if sleep: A(f's_sleep {sleep}')
    A('s_branch L_pollml')
    A.lab('L_gotml')
    mlfactors()
    A.lab('L_poll1')
    A('s_waitcnt vmcnt(0)')
    A('v_xor_b32 v6, s7, v21'); A('v_xor_b32 v7, s7, v23')
    A('v_bitop3_b32 v6, v25, s7, v6 bitop3:0xbe'); A('v_bitop3_b32 v7, v27, s7, v7 bitop3:0xbe')
    A('v_or_b32 v6, v6, v7')
    A('v_cmp_ne_u32 vcc, 0, v6')
    A('s_cbranch_vccz L_got1')
    A('s_sub_u32 s59, s59, 1')
    A('s_cbranch_scc1 L_got1')
    if sleep: A(f's_sleep {sleep}')
    poll1()
    A('s_branch L_poll1')
    A.lab('L_got1')
    stamp(8)
    A('v_lshlrev_b32 v28, 16, v20'); A('v_and_b32 v29, 0xffff0000, v20'); A('v_lshlrev_b32 v30, 16, v22'); A('v_and_b32 v31, 0xffff0000, v22')
    A('v_lshlrev_b32 v32, 16, v24'); A('v_and_b32 v33, 0xffff0000, v24'); A('v_lshlrev_b32 v34, 16, v26'); A('v_and_b32 v35, 0xffff0000, v26')
    for r in range(4): A(f'v_mul_f32 v{28+r}, v{FA}, v{28+r}')
    for r in range(4): A(f'v_fmac_f32 v{28+r}, v{FA+1}, v{32+r}')
    for r in range(4): A(f'v_mov_b32 v{32+r}, v{28+r}')
    A('s_nop 0')
    for r in range(4): A(f'v_permlane32_swap_b32 v{28+r}, v{32+r}')
    A('s_nop 0')
    for r in range(4): A(f'v_add_f32 v{28+r}, v{28+r}, v{32+r}')
    A('v_cvt_pk_bf16_f32 v20, v28, v29'); A('v_cvt_pk_bf16_f32 v21, v30, v31')
    A('ds_write_b64 v17, v[20:21]')
    for e in range(4): A(f'ds_read_b128 {vr(PB+4*e,4)}, v{208+e}')
    for e in range(4):
        A(f's_waitcnt lgkmcnt({3-e})')
        for idx in range(2):
            c = '0' if e == 0 else vr(ACC + 4 * idx, 4)
            A(f'v_mfma_f32_16x16x32_bf16 {vr(ACC+4*idx,4)}, {vr(WT+4*(4*idx+e),4)}, {vr(PB+4*e,4)}, {c}')
    A('s_nop 6')
    A(f'ds_write_b128 v19, {vr(ACC,4)}')
    A(f'ds_write_b128 v19, {vr(ACC+4,4)} offset:1024')
    A('s_waitcnt lgkmcnt(0)')
    A('s_barrier')
    for w in range(4): A(f'ds_read_b64 v[{20+2*w}:{21+2*w}], v18 offset:{2048*w}')
    A('s_waitcnt lgkmcnt(2)')
    A('v_add_f32 v20, v20, v22'); A('v_add_f32 v21, v21, v23')
    A('s_waitcnt lgkmcnt(0)')
    A('v_add_f32 v24, v24, v26'); A('v_add_f32 v25, v25, v27')
    A('v_add_f32 v8, v20, v24'); A('v_add_f32 v10, v21, v25')
    A('buffer_store_dwordx4 v[8:11], v14, s[20:23], s53 offen sc1')
    stamp(9)
    A('s_cmp_lg_u32 s6, 0')
    A('s_cbranch_scc1 L_end')
    if ackfirst: A('s_waitcnt vmcnt(0)')
    A(f's_mov_b32 s59, {spin}')
    A.lab('L_poll2')
    for k in range(4): A(f'buffer_load_dwordx4 v[{20+4*k}:{23+4*k}], v212, s[20:23], s{97+k} offen sc1')
    A('s_waitcnt vmcnt(0)')
    A('v_xor_b32 v6, s7, v21'); A('v_xor_b32 v7, s7, v23')
    for k in range(1, 4):
        A(f'v_bitop3_b32 v6, v{21+4*k}, s7, v6 bitop3:0xbe'); A(f'v_bitop3_b32 v7, v{23+4*k}, s7, v7 bitop3:0xbe')
    A('v_or_b32 v6, v6, v7')
    A('v_cmp_ne_u32 vcc, 0, v6')
    A('s_cbranch_vccz L_got2')
    A('s_sub_u32 s59, s59, 1')
    A('s_cbranch_scc1 L_got2')
    if sleep: A(f's_sleep {sleep}')
    A('s_branch L_poll2')
    A.lab('L_got2')
    stamp(10)
    A('v_add_f32 v20, v20, v24'); A('v_add_f32 v28, v28, v32')
    A('v_add_f32 v22, v22, v26'); A('v_add_f32 v30, v30, v34')
    A('s_nop 0')
    A('v_permlane32_swap_b32 v20, v28'); A('v_permlane32_swap_b32 v22, v30')
    A('s_nop 0')
    A('v_add_f32 v20, v20, v28'); A('v_add_f32 v22, v22, v30')
    A('s_nop 1')
    A('v_permlane16_swap_b32 v20, v22')
    A('s_nop 1')
    A('v_add_f32 v20, v20, v22')
    A('s_nop 1'); A('v_add_f32_dpp v20, v20, v20 row_ror:4 row_mask:0xf bank_mask:0xf')
    A('s_nop 1'); A('v_add_f32_dpp v20, v20, v20 row_ror:8 row_mask:0xf bank_mask:0xf')
    A('v_mov_b32 v21, v20'); A('s_nop 1'); A('v_permlane32_swap_b32 v20, v21')
    A('s_nop 1')
    A('v_cvt_pk_bf16_f32 v20, v20, v21')
    A('v_lshlrev_b32 v21, 16, v20'); A('v_and_b32 v22, 0xffff0000, v20')
    A('v_mul_f32 v21, v21, v214'); A('v_mul_f32 v22, v22, v215')
    A('v_cvt_pk_bf16_f32 v20, v21, v22')
    A('v_lshlrev_b32 v21, 16, v20'); A('v_and_b32 v22, 0xffff0000, v20')
    A('v_add_f32 v21, v21, v22')
    A('v_cvt_pk_bf16_f32 v20, v21, v21')
    A('s_mov_b64 exec, 0x000f000f')
    A('buffer_store_short v20, v213, s[24:27], 0 offen')
    A('s_cmp_lg_u32 s2, 0')
    A('s_cbranch_scc1 L_fin')
    A('s_mov_b64 exec, 1')
    A('v_mov_b32 v6, s7')
    A(f'buffer_store_dword v6, v14, s[20:23], 0 offen offset:{WS_EPOCH}')
    A.lab('L_fin')
    if stamps:
        stamp(11)
        A('s_mov_b64 exec, -1')
        A('s_cmp_lg_u32 s6, 0'); A('s_cbranch_scc1 L_end')
        dump_stamps(0, 6); dump_stamps(7, 12)
    A.lab('L_end')
    A('s_endpgm')
    A.lab('L_code_end')
    out += A.L
    out += ['.section .rodata,"a"', '.p2align 6', f'.amdhsa_kernel {KN}_kernel',
            '  .amdhsa_next_free_vgpr 256', '  .amdhsa_next_free_sgpr 102', '  .amdhsa_accum_offset 256',
            '  .amdhsa_group_segment_fixed_size 0', '  .amdhsa_kernarg_size 112', '  .amdhsa_user_sgpr_count 2',
            '  .amdhsa_user_sgpr_kernarg_segment_ptr 1', '  .amdhsa_system_sgpr_workgroup_id_x 1', '.end_amdhsa_kernel']
    return '\n'.join(out) + '\n'

if __name__ == '__main__':
    ap = argparse.ArgumentParser()
    ap.add_argument('-o', default='k.s')
    ap.add_argument('--set', action='append', default=[])
    a = ap.parse_args()
    kw = {}
    for s in a.set:
        k, v = s.split('=')
        try: v = int(v)
        except ValueError: pass
        kw[k] = v
    open(a.o, 'w').write(gen(**kw))
```

```python
import sys, argparse
KN = 'gated_mix__sliding_block_cached__sliding_block_cached__decode'
HEADER = open('cdna_kernels/' + KN + '.s.ref').read().split('; Override launch')[0]

WS_EPOCH = 0x0
WS_Q = 0x1C0000
WS_ML = 0x1000
WS_O = 0x40000
WS_P = 0xC0000
WS_BYTES = 285221888
STAMP_OFF = 64 << 20
TAGC = 0x9E3779B1
KL = 0
QL = 131072
ZL = QL + 1024
PX = ZL + 1024
ML = PX + 4096
LL = ML + 64
CNT = LL + 64
GL = CNT + 64
OX = GL + 64
OL = OX + 1024
PL = OL + 8192
LDS_BYTES = PL + 8192
QR = OL
LOG2E = 0x3FB8AA3B
SCALE = 0x3DB504F3

class G:
    def __init__(s): s.L = []
    def __call__(s, t): s.L.append('  ' + t)
    def lab(s, t): s.L.append(t + ':')
    def c(s, t): s.L.append('  ; ' + t)

def vr(a, n=1):
    return f'v{a}' if n == 1 else f'v[{a}:{a+n-1}]'

def gen(stamps=False, pol='nt', wpol='nt', spin=200000, prefetch=True, thr=0, sleep=1, touch=1, vfirst=1, kprio=1, vprio=3, rotmul=4, ackfirst=1, bvpos=32, mix=1):
    A = G()
    P = (' ' + pol) if pol else ''
    WP = (' ' + wpol) if wpol else ''
    out = [HEADER.rstrip('\n'),
           '; Override launch geometry by editing the next line (default: block=256,',
           '; grid=ceil(out_elems/256), lds=0). Harness parses it; keep it on one line.',
           f'; @launch grid=(256,1,1) block=(512,1,1) lds={LDS_BYTES}',
           '.amdgcn_target "amdgcn-amd-amdhsa--gfx950"', '.text', f'.globl {KN}_kernel', '.p2align 8',
           f'.type {KN}_kernel,@function', f'{KN}_kernel:']
    SLO, SHI = 's60', 's61'
    def stamp(i):
        if stamps: A(f's_memrealtime s[{64+2*i}:{65+2*i}]')
    def allred(op, r, t, quad=False):
        if quad:
            A('s_nop 1'); A(f'{op}_dpp v{r}, v{r}, v{r} quad_perm:[1,0,3,2] row_mask:0xf bank_mask:0xf')
            A('s_nop 1'); A(f'{op}_dpp v{r}, v{r}, v{r} quad_perm:[2,3,0,1] row_mask:0xf bank_mask:0xf')
        A('s_nop 1'); A(f'{op}_dpp v{r}, v{r}, v{r} row_ror:4 row_mask:0xf bank_mask:0xf')
        A('s_nop 1'); A(f'{op}_dpp v{r}, v{r}, v{r} row_ror:8 row_mask:0xf bank_mask:0xf')
        A(f'v_mov_b32 v{t}, v{r}'); A('s_nop 1'); A(f'v_permlane16_swap_b32 v{r}, v{t}'); A('s_nop 1'); A(f'{op} v{r}, v{r}, v{t}')
        A(f'v_mov_b32 v{t}, v{r}'); A('s_nop 1'); A(f'v_permlane32_swap_b32 v{r}, v{t}'); A('s_nop 1'); A(f'{op} v{r}, v{r}, v{t}')
    def perm_mfma(src, T, mf):
        for dp in range(4):
            for d in range(4):
                A(f'v_perm_b32 v{T+4*(2*dp)+d}, v{src+4*(2*d+1)+dp}, v{src+4*(2*d)+dp}, {SLO}')
            if dp > 0 and mf: mf(2 * dp - 1)
            for d in range(4):
                A(f'v_perm_b32 v{T+4*(2*dp+1)+d}, v{src+4*(2*d+1)+dp}, v{src+4*(2*d)+dp}, {SHI}')
            if mf: mf(2 * dp)
        if mf:
            A('s_nop 1'); mf(7)
    def dump_stamps(lo, hi):
        A('s_waitcnt lgkmcnt(0)')
        A('s_lshl_b32 s59, s2, 7'); A(f's_add_u32 s59, s59, 0x{STAMP_OFF:x}')
        A('v_mov_b32 v7, 0')
        for i in range(lo, hi):
            for u in range(2): A(f'v_mov_b32 v{8+u}, s{64+2*i+u}')
            A(f'buffer_store_dwordx2 v[8:9], v7, s[20:23], s59 offen offset:{8*i}')
            A('s_nop 1')

    A('s_cmp_ge_u32 s2, 256')
    A('s_cbranch_scc1 L_end')
    stamp(0)
    if mix:
        A('s_and_b32 s3, s2, 15')
    else:
        A('s_and_b32 s3, s2, 7')
        A('s_lshl_b32 s3, s3, 1')
        A('s_bfe_u32 s4, s2, 0x10003')
        A('s_or_b32 s3, s3, s4')
    A('s_lshr_b32 s48, s3, 3')
    A('s_mul_i32 s48, s48, 40')
    A('s_add_u32 s50, s0, s48')
    A('s_addc_u32 s51, s1, 0')
    A('s_load_dwordx4 s[32:35], s[50:51], 8')
    A('s_load_dwordx4 s[36:39], s[50:51], 24')
    A('s_load_dwordx2 s[40:41], s[0:1], 0')
    A('s_load_dwordx4 s[44:47], s[0:1], 80')
    A('s_load_dwordx2 s[42:43], s[0:1], 104')
    A('v_lshrrev_b32 v1, 6, v0')
    A('v_and_b32 v0, 63, v0')
    A('s_and_b32 s4, s3, 7')
    A('v_readfirstlane_b32 s6, v1')
    A('s_lshr_b32 s5, s2, 4')
    A('v_lshlrev_b32 v14, 4, v0')
    CODE_KB = 8
    if prefetch:
        A.c("warm L2 with this kernel's own code: one dword per 32 bytes")
        A('s_getpc_b64 s[52:53]')
        A.lab('L_pc')
        A(f's_sub_u32 s52, s52, L_pc-{KN}_kernel')
        A('s_subb_u32 s53, s53, 0')
        A('v_lshlrev_b32 v2, 11, v1')
        A('v_lshl_add_u32 v2, v0, 5, v2')
        A(f'v_min_u32 v2, L_code_end-{KN}_kernel-4, v2')
        A('v_mov_b32 v3, s53')
        A('v_add_co_u32 v2, vcc, s52, v2')
        A('s_nop 1')
        A('v_addc_co_u32 v3, vcc, 0, v3, vcc')
        A('global_load_dword v40, v[2:3], off')
    NPF = 1 if prefetch else 0
    A(f's_mov_b32 {SLO}, 0x05040100')
    A(f's_mov_b32 {SHI}, 0x07060302')
    A('s_mov_b32 s10, 0x4000000')
    A('s_mov_b32 s11, 0x20000')
    A('s_mov_b32 s18, 0x400000')
    A('s_mov_b32 s19, 0x20000')
    A(f's_mov_b32 s22, {WS_BYTES}')
    A('s_mov_b32 s23, 0x20000')
    A('s_mov_b32 s26, 4096')
    A('s_mov_b32 s27, 0x20000')
    A('s_lshr_b32 s48, s5, 2')
    A('s_and_b32 s49, s5, 3')
    A('s_and_b32 s62, s6, 4')
    A('s_and_b32 s6, s6, 3')
    A('s_lshl_b32 s54, s48, 24')
    A('s_lshl_b32 s55, s4, 21')
    A('s_add_u32 s54, s54, s55')
    A('s_lshl_b32 s55, s49, 17')
    A('s_add_u32 s54, s54, s55')
    A('s_lshl_b32 s55, s6, 15')
    A('s_add_u32 s54, s54, 0x180000')
    A(f's_mul_i32 s96, s2, {rotmul}')
    A('s_add_u32 s96, s96, s6')
    A('s_lshl_b32 s96, s96, 12')
    A('v_lshrrev_b32 v1, 4, v0')
    A('v_and_b32 v2, 15, v0')
    A('v_bfe_u32 v5, v0, 2, 2')
    A('v_and_b32 v16, 3, v0')
    A('s_cmp_eq_u32 s62, %d' % (4 if vfirst else 0))
    A('s_cbranch_scc1 L_kwave')

    issued = [0]
    def thro():
        issued[0] += 1
        if thr and issued[0] > thr: A(f's_waitcnt vmcnt({thr})')

    V0 = 128; PB = 64; T = 32; ACC = 24
    WQ = 64; XB = 96
    if vprio: A(f's_setprio {vprio}')
    A('v_lshlrev_b32 v9, 16, v1')
    A('v_lshl_add_u32 v9, v2, 4, v9')
    A('v_lshlrev_b32 v8, 4, v1')
    A('v_lshl_add_u32 v8, v16, 10, v8')
    A('v_bfrev_b32 v10, 1')
    for e in range(4):
        A(f'v_cmp_eq_u32 vcc, {e}, v5')
        A('s_nop 1')
        A(f'v_cndmask_b32 v{20+e}, v10, v8, vcc')
    A('s_lshl_b32 s57, s49, 2'); A('s_add_u32 s57, s57, s6')
    A('s_lshl_b32 s56, s57, 18'); A('s_lshl_b32 s59, s4, 10'); A('s_add_u32 s56, s56, s59')
    A('s_lshl_b32 s59, s48, 8'); A('s_add_u32 s56, s56, s59')
    A('s_lshl_b32 s57, s57, 6')
    A('s_waitcnt lgkmcnt(0)')
    A('s_mov_b32 s16, s36'); A('s_mov_b32 s17, s37')
    A('s_mov_b32 s24, s40'); A('s_mov_b32 s25, s41')
    for i in range(8):
        A(f'buffer_load_dwordx4 {vr(WQ+4*i,4)}, v9, s[16:19], s56 offen{WP}')
        if i < 7: A('s_add_u32 s56, s56, 8192')
    for e in range(4): A(f'buffer_load_dwordx4 {vr(XB+4*e,4)}, v{20+e}, s[24:27], s57 offen')
    A('s_load_dword s7, s[42:43], 0x%x' % WS_EPOCH)
    A('s_barrier')
    A('s_mov_b32 s20, s42'); A('s_mov_b32 s21, s43')
    A('s_mov_b32 s8, s34'); A('s_mov_b32 s9, s35')
    A('s_lshl_b32 s59, s6, 11'); A(f's_add_u32 s59, s59, {OL}')
    A('v_add_u32 v19, s59, v14')
    A('v_lshrrev_b32 v13, 5, v0'); A('v_lshlrev_b32 v13, 10, v13')
    A('v_bfe_u32 v10, v0, 1, 4'); A('v_lshl_add_u32 v13, v10, 6, v13')
    A('v_and_b32 v10, 1, v0'); A('v_lshl_add_u32 v13, v10, 3, v13')
    A(f'v_add_u32 v13, {OL}, v13')
    A(f'v_mov_b32 v10, {CNT}')
    A('v_mov_b32 v11, 1')
    A('s_lshl_b32 s57, s3, 16'); A('s_lshl_b32 s59, s5, 10'); A('s_add_u32 s57, s57, s59'); A(f's_add_u32 s57, s57, 0x{WS_Q:x}')
    A('s_waitcnt vmcnt(0)')
    def mfq(e):
        idx = e >> 2
        c = '0' if (e & 3) == 0 else vr(ACC + 4 * idx, 4)
        A(f'v_mfma_f32_16x16x32_bf16 {vr(ACC+4*idx,4)}, {vr(T+4*e,4)}, {vr(XB+4*(e&3),4)}, {c}')
    perm_mfma(WQ, T, mfq)
    A('s_nop 6')
    A(f'ds_write_b128 v19, {vr(ACC,4)}')
    A(f'ds_write_b128 v19, {vr(ACC+4,4)} offset:1024')
    A('s_mov_b64 exec, 1')
    A('s_waitcnt lgkmcnt(0)')
    A('ds_add_rtn_u32 v11, v10, v11')
    A('s_mov_b64 exec, -1')
    A(f's_add_u32 s7, s7, 0x{TAGC:x}')
    A('s_waitcnt lgkmcnt(0)')
    A('v_readfirstlane_b32 s59, v11')
    A('s_cmp_lg_u32 s59, 3')
    A('s_cbranch_scc1 L_vgo')
    for b in range(4):
        for w in range(4): A(f'ds_read_b64 v[{T+8*b+2*w}:{T+8*b+2*w+1}], v13 offset:{2048*w+16*b}')
        if b == 1: A('s_waitcnt lgkmcnt(4)')
    for b in range(4):
        A(f'v_mov_b32 v{65+4*b}, s7'); A(f'v_mov_b32 v{67+4*b}, s7')
    for b in range(4):
        A(f's_waitcnt lgkmcnt({4*(3-b)})')
        r = T + 8 * b
        A(f'v_add_f32 v{r}, v{r}, v{r+2}'); A(f'v_add_f32 v{r+1}, v{r+1}, v{r+3}')
        A(f'v_add_f32 v{r+4}, v{r+4}, v{r+6}'); A(f'v_add_f32 v{r+5}, v{r+5}, v{r+7}')
        A(f'v_add_f32 v{64+4*b}, v{r}, v{r+4}'); A(f'v_add_f32 v{66+4*b}, v{r+1}, v{r+5}')
        A(f'buffer_store_dwordx4 v[{64+4*b}:{67+4*b}], v14, s[20:23], s57 offen sc1')
        if b < 3: A('s_add_u32 s57, s57, 16384')
    A.lab('L_vgo')
    if touch:
        A.c('first touch of the pages that are needed late')
        A('s_mov_b32 s24, s46'); A('s_mov_b32 s25, s47')
        A('s_lshl_b32 s57, s6, 20')
        A('buffer_load_dword v17, v14, s[20:23], s57 offen')
        A('buffer_load_dword v18, v14, s[24:27], 0 offen')
    A('v_lshl_add_u32 v8, v1, 2, v16')
    A('s_lshl_b32 s57, s6, 10'); A(f's_add_u32 s57, s57, {PX}')
    A('v_lshlrev_b32 v8, 4, v8')
    A('v_add_u32 v8, s57, v8')
    A(f'v_mov_b32 v9, {ZL}')
    A('v_mov_b32 v10, v5')
    for e in range(4):
        A(f'v_cmp_eq_u32 vcc, {e}, v10')
        A('s_nop 1')
        A(f'v_cndmask_b32 v{4+e}, v9, v8, vcc')
    A('v_bfe_u32 v12, v0, 3, 2'); A('v_lshlrev_b32 v12, 2, v12')
    A('v_bfe_u32 v8, v0, 1, 2'); A('v_add_u32 v12, v12, v8')
    A('v_lshlrev_b32 v12, 2, v12'); A('v_add_u32 v12, s6, v12'); A('v_lshlrev_b32 v12, 4, v12')
    A('v_and_b32 v8, 1, v0'); A('v_lshl_add_u32 v12, v8, 10, v12')
    A(f'v_add_u32 v12, {OL}, v12')
    A('s_lshl_b32 s59, s6, 4'); A(f's_add_u32 s59, s59, {ML}')
    A('v_mov_b32 v13, s59')
    A('s_lshl_b32 s59, s49, 2'); A('s_add_u32 s59, s59, s48')
    A('s_lshl_b32 s57, s3, 4'); A('s_add_u32 s57, s57, s59')
    A('s_lshl_b32 s57, s57, 11'); A('s_lshl_b32 s59, s6, 9'); A('s_add_u32 s57, s57, s59'); A(f's_add_u32 s57, s57, 0x{WS_O:x}')
    A(f'v_mov_b32 v2, {CNT+8}'); A('v_mov_b32 v3, 1')
    A('v_mov_b32 v9, s7'); A('v_mov_b32 v11, s7')
    if vprio: A('s_setprio 0')
    A('s_barrier')
    issued[0] = 0
    def after_bv():
        stamp(14)
        A('s_barrier')
        A('ds_read_b128 v[20:23], v13')
        for G_ in range(4):
            for e in range(4): A(f'ds_read_b128 {vr(PB+16*G_+4*e,4)}, v{4+e} offset:{256*G_}')
            if G_ == 1: A('s_waitcnt lgkmcnt(0)')
    for n in range(32):
        if n == bvpos: after_bv()
        if n % 4 == 0:
            A('s_and_b32 s56, s96, 0x1ffff'); A('s_add_u32 s56, s56, s54'); A('s_add_u32 s96, s96, 16384')
        A(f'buffer_load_dwordx4 {vr(V0+4*n,4)}, v14, s[8:11], s56 offen offset:{(n%4)*1024}{P}')
        thro()
    if bvpos == 32: after_bv()
    A('v_max3_f32 v8, v20, v21, v22'); A('v_max_f32 v8, v8, v23')
    for w in range(4): A(f'v_sub_f32 v{20+w}, v{20+w}, v8')
    for w in range(4): A(f'v_exp_f32 v{20+w}, v{20+w}')
    for G_ in range(4):
        if G_ == 2: A(f's_waitcnt vmcnt({8*(3-G_)}) lgkmcnt(0)')
        else: A(f's_waitcnt vmcnt({8*(3-G_)})')
        if G_ == 3: stamp(6)
        def mf(e):
            idx = e >> 2
            c = '0' if (G_ == 0 and (e & 3) == 0) else vr(ACC + 4 * idx, 4)
            A(f'v_mfma_f32_16x16x32_bf16 {vr(ACC+4*idx,4)}, {vr(T+4*e,4)}, {vr(PB+16*G_+4*(e&3),4)}, {c}')
        perm_mfma(V0 + 32 * G_, T, mf)
    stamp(12)
    A(f's_mov_b32 s59, {spin}')
    A('s_nop 5')
    A(f'ds_write_b128 v19, {vr(ACC,4)}')
    A(f'ds_write_b128 v19, {vr(ACC+4,4)} offset:1024')
    A('s_mov_b64 exec, 1')
    A('ds_add_u32 v2, v3')
    A('s_mov_b64 exec, -1')
    A.lab('L_ospin')
    A('ds_read_b32 v3, v2')
    for w in range(4): A(f'ds_read_b128 v[{64+4*w}:{67+4*w}], v12 offset:{2048*w}')
    A('s_waitcnt lgkmcnt(4)')
    A('v_readfirstlane_b32 s56, v3')
    A('s_cmp_eq_u32 s56, 4')
    A('s_cbranch_scc1 L_oall')
    A('s_sub_u32 s59, s59, 1')
    A('s_cbranch_scc0 L_ospin')
    A.lab('L_oall')
    stamp(13)
    A('s_waitcnt lgkmcnt(3)')
    for r in range(4): A(f'v_mul_f32 v{24+r}, v20, v{64+r}')
    for w in range(1, 4):
        A(f's_waitcnt lgkmcnt({3-w})')
        for r in range(4): A(f'v_fmac_f32 v{24+r}, v{20+w}, v{64+4*w+r}')
    A('v_cvt_pk_bf16_f32 v8, v24, v25'); A('v_cvt_pk_bf16_f32 v10, v26, v27')
    A('s_mov_b32 exec_hi, 0')
    A('buffer_store_dwordx4 v[8:11], v14, s[20:23], s57 offen sc1')
    A('s_mov_b32 exec_hi, -1')
    stamp(7)
    if stamps:
        A('s_cmp_lg_u32 s6, 0'); A('s_cbranch_scc1 L_end')
        dump_stamps(12, 15); dump_stamps(6, 8)
    A('s_endpgm')

    A.lab('L_kwave')
    R1 = 64; PB = 48; ACC = 40; WO = 128; WT = 160; XG = 192
    if kprio: A(f's_setprio {kprio}')
    A('v_lshlrev_b32 v3, 2, v1')
    A('v_xor_b32 v3, v3, v2')
    A('v_lshlrev_b32 v8, 8, v1')
    for n in range(4):
        A(f'v_xor_b32 v9, {n}, v3')
        A(f'v_lshl_add_u32 v{10+n}, v9, 4, v8')
    A('s_lshl_b32 s57, s6, 8'); A(f's_add_u32 s57, s57, {ZL}')
    A('v_lshlrev_b32 v4, 2, v0'); A('v_add_u32 v4, s57, v4')
    A('v_mov_b32 v6, 0'); A(f'v_mov_b32 v7, {CNT}')
    A('ds_write_b32 v4, v6')
    A('ds_write_b32 v7, v6')
    A('ds_write_b32 v7, v6 offset:4')
    A('ds_write_b32 v7, v6 offset:8')
    A('ds_write_b32 v7, v6 offset:12')
    A('s_lshl_b32 s53, s6, 10')
    A('s_mov_b32 s57, s55')
    A('s_waitcnt lgkmcnt(0)')
    A('s_mov_b32 s8, s32'); A('s_mov_b32 s9, s33')
    A('s_mov_b32 s24, s40'); A('s_mov_b32 s25, s41')
    A('s_mov_b32 s28, s44'); A('s_mov_b32 s29, s45'); A('s_mov_b32 s30, 1024'); A('s_mov_b32 s31, 0x20000')
    A('s_load_dword s7, s[42:43], 0x%x' % WS_EPOCH)
    A('s_barrier')
    issued[0] = 0
    A(f'buffer_load_dwordx4 {vr(XG,4)}, v14, s[24:27], s53 offen')
    A(f'buffer_load_dwordx4 {vr(XG+4,4)}, v14, s[28:31], 0 offen')
    for n in range(32):
        if n % 4 == 0:
            A('s_mov_b32 m0, s57')
            A('s_add_u32 s57, s57, 4096')
            A('s_and_b32 s56, s96, 0x1ffff'); A('s_add_u32 s56, s56, s54'); A('s_add_u32 s96, s96, 16384')
        A(f'buffer_load_dwordx4 v{10+n%4}, s[8:11], s56 offen offset:{(n%4)*1024}{P} lds')
        thro()
    stamp(1)
    A('s_barrier')
    A('s_mov_b32 s20, s42'); A('s_mov_b32 s21, s43')
    A('s_lshl_b32 s57, s3, 16'); A('s_lshl_b32 s56, s48, 14'); A('s_add_u32 s57, s57, s56')
    A('s_lshl_b32 s56, s6, 12'); A('s_add_u32 s57, s57, s56'); A(f's_add_u32 s57, s57, 0x{WS_Q:x}')
    QP = 64
    def pollq():
        for k in range(4): A(f'buffer_load_dwordx4 {vr(QP+4*k,4)}, v14, s[20:23], s57 offen offset:{1024*k} sc1')
    pollq()
    A('s_mov_b32 s16, s38'); A('s_mov_b32 s17, s39')
    A('s_mov_b32 s24, s46'); A('s_mov_b32 s25, s47')
    A('s_lshl_b32 s58, s4, 19'); A('s_lshl_b32 s59, s48, 17'); A('s_add_u32 s58, s58, s59')
    A('s_add_u32 s58, s58, s55'); A('s_lshl_b32 s59, s49, 8'); A('s_add_u32 s58, s58, s59')
    A('v_lshlrev_b32 v15, 10, v1')
    A('v_lshl_add_u32 v15, v2, 4, v15')
    A('v_lshl_add_u32 v4, v16, 2, v5')
    A('v_lshlrev_b32 v4, 8, v4')
    A('v_add_u32 v4, s55, v4')
    A('v_xor_b32 v6, v1, v2')
    A('v_lshlrev_b32 v6, 4, v6')
    for t in range(4):
        A(f'v_xor_b32 v7, {64*t}, v6')
        A(f'v_add_u32 v{20+t}, v4, v7')
    A('v_lshlrev_b32 v7, 8, v16')
    A('v_lshl_add_u32 v7, v1, 4, v7')
    A(f'v_add_u32 v7, {QL}, v7')
    A(f'v_mov_b32 v8, {ZL}')
    for x in range(4):
        A(f'v_cmp_eq_u32 vcc, {x}, v5')
        A('s_nop 1')
        A(f'v_cndmask_b32 v{32+x}, v8, v7, vcc')
    A('s_lshl_b32 s59, s6, 8'); A(f's_add_u32 s59, s59, {QL}')
    A('v_bfe_u32 v9, v0, 3, 2'); A('v_lshlrev_b32 v9, 6, v9')
    A('v_and_b32 v8, 1, v0'); A('v_lshl_add_u32 v9, v8, 5, v9')
    A('v_lshrrev_b32 v8, 5, v0'); A('v_lshl_add_u32 v9, v8, 3, v9')
    A('v_bfe_u32 v8, v0, 1, 2'); A('v_lshl_add_u32 v9, v8, 1, v9')
    A('v_add_u32 v9, s59, v9')
    A('v_lshlrev_b32 v18, 4, v16')
    A('s_lshl_b32 s59, s6, 2'); A(f's_add_u32 s59, s59, {ML}')
    A('v_add_u32 v18, s59, v18')
    A('v_lshl_add_u32 v17, v1, 2, v16')
    A('v_lshlrev_b32 v17, 4, v17')
    A('v_lshrrev_b32 v8, 1, v5'); A('v_lshl_add_u32 v17, v8, 8, v17')
    A('v_and_b32 v8, 1, v5'); A('v_lshl_add_u32 v17, v8, 3, v17')
    A('s_lshl_b32 s59, s6, 10'); A(f's_add_u32 s59, s59, {PX}')
    A('v_add_u32 v17, s59, v17')
    A(f's_mov_b32 s62, 0x{SCALE:x}')
    A(f's_mov_b32 s63, 0x{LOG2E:x}')
    A('s_waitcnt vmcnt(36) lgkmcnt(0)')
    A(f's_add_u32 s7, s7, 0x{TAGC:x}')
    for i in range(4):
        x = XG + i; g = XG + 4 + i
        A(f'v_lshlrev_b32 v36, 16, v{x}'); A(f'v_and_b32 v37, 0xffff0000, v{x}')
        A(f'v_lshlrev_b32 v38, 16, v{g}'); A(f'v_and_b32 v39, 0xffff0000, v{g}')
        A('v_mul_f32 v36, v36, v38'); A('v_mul_f32 v37, v37, v39')
        A('v_cvt_pk_bf16_f32 v36, v36, v37')
        if i == 0:
            A(f'v_lshlrev_b32 v{XG+8}, 16, v36'); A(f'v_and_b32 v{XG+9}, 0xffff0000, v36')
        else:
            A('v_lshlrev_b32 v38, 16, v36'); A('v_and_b32 v39, 0xffff0000, v36')
            A(f'v_add_f32 v{XG+8}, v{XG+8}, v38'); A(f'v_add_f32 v{XG+9}, v{XG+9}, v39')
    GA = XG + 8
    A(f'v_add_f32 v{GA}, v{GA}, v{GA+1}')
    allred('v_add_f32', GA, GA + 1, quad=True)
    A(f'v_cvt_pk_bf16_f32 v{GA}, v{GA}, v{GA}')
    A(f'v_lshlrev_b32 v{GA}, 16, v{GA}')
    A(f'v_mul_f32 v{GA}, 0x{LOG2E ^ 0x80000000:x}, v{GA}')
    A(f'v_exp_f32 v{GA}, v{GA}')
    A('s_nop 0')
    A(f'v_add_f32 v{GA}, 1.0, v{GA}')
    A(f'v_rcp_f32 v{GA}, v{GA}')
    A('s_nop 0')
    A(f'v_cvt_pk_bf16_f32 v{GA}, v{GA}, v{GA}')
    A(f'v_lshlrev_b32 v{GA}, 16, v{GA}')
    A(f'v_sub_f32 v{GA+1}, 1.0, v{GA}')
    A(f'v_cvt_pk_bf16_f32 v{GA+1}, v{GA+1}, v{GA+1}')
    A(f'v_lshlrev_b32 v{GA+1}, 16, v{GA+1}')
    A('s_lshl_b32 s59, s6, 3'); A(f's_add_u32 s59, s59, {GL}'); A('v_mov_b32 v6, s59')
    A(f'ds_write_b64 v6, v[{GA}:{GA+1}]')
    A(f's_mov_b32 s59, {spin}')
    A.lab('L_pollq')
    A('s_waitcnt vmcnt(0)')
    A(f'v_xor_b32 v6, s7, v{QP+1}'); A(f'v_xor_b32 v7, s7, v{QP+3}')
    for k in range(1, 4):
        A(f'v_bitop3_b32 v6, v{QP+4*k+1}, s7, v6 bitop3:0xbe'); A(f'v_bitop3_b32 v7, v{QP+4*k+3}, s7, v7 bitop3:0xbe')
    A('v_or_b32 v6, v6, v7')
    A('v_cmp_ne_u32 vcc, 0, v6')
    A('s_cbranch_vccz L_gotq')
    A('s_sub_u32 s59, s59, 1')
    A('s_cbranch_scc1 L_gotq')
    pollq()
    A('s_branch L_pollq')
    A.lab('L_gotq')
    stamp(3)
    A(f'v_add_f32 v24, v{QP}, v{QP+4}'); A(f'v_add_f32 v25, v{QP+2}, v{QP+6}')
    A(f'v_add_f32 v26, v{QP+8}, v{QP+12}'); A(f'v_add_f32 v27, v{QP+10}, v{QP+14}')
    A('v_add_f32 v24, v24, v26'); A('v_add_f32 v25, v25, v27')
    A('v_cvt_pk_bf16_f32 v24, v24, v25')
    A(f'v_mov_b32 v6, {CNT+4}'); A('v_mov_b32 v7, 1')
    A('ds_write_b16 v9, v24')
    A('ds_write_b16_d16_hi v9, v24 offset:16')
    A('s_mov_b64 exec, 1')
    A('s_waitcnt lgkmcnt(0)')
    A('ds_add_u32 v6, v7')
    A('s_mov_b64 exec, -1')
    rdk_first = True
    Qb = [R1, R1 + 16]; Kb = [R1 + 32, R1 + 48]
    def rdq(x):
        for t in range(4): A(f'ds_read_b128 {vr(Qb[x&1]+4*t,4)}, v{32+x} offset:{64*t}')
    def rdk(T_, buf):
        for t in range(4): A(f'ds_read_b128 {vr(Kb[buf]+4*t,4)}, v{20+t} offset:{4096*T_}')
    def mm(T_, buf):
        x = T_ & 3; a = T_ >> 2
        for t in range(4):
            c = '0' if (x == 0 and t == 0) else vr(ACC+4*a, 4)
            A(f'v_mfma_f32_16x16x32_bf16 {vr(ACC+4*a,4)}, {vr(Kb[buf]+4*t,4)}, {vr(Qb[x&1]+4*t,4)}, {c}')
    rdk(0, 0); rdk(4, 1)
    A(f's_mov_b32 s59, {spin}')
    A.lab('L_qspin')
    A('ds_read_b32 v7, v6')
    A('s_waitcnt lgkmcnt(0)')
    A('v_readfirstlane_b32 s56, v7')
    A('s_cmp_eq_u32 s56, 4')
    A('s_cbranch_scc1 L_qall')
    A('s_sub_u32 s59, s59, 1')
    A('s_cbranch_scc0 L_qspin')
    A.lab('L_qall')
    rdq(0)
    for x in range(4):
        A('s_waitcnt lgkmcnt(%d)' % (0 if x == 0 else 4))
        mm(x, 0)
        if x < 3:
            rdq(x + 1)
            A('s_waitcnt lgkmcnt(4)')
        else:
            A('s_waitcnt lgkmcnt(0)')
        mm(x + 4, 1)
        if x < 3:
            rdk(x + 1, 0); rdk(x + 5, 1)
    A('s_nop 7')
    S = ACC
    for p in range(4): A(f'v_cvt_pk_bf16_f32 v{28+p}, v{S+2*p}, v{S+2*p+1}')
    for p in range(4):
        A(f'v_lshlrev_b32 v{S+2*p}, 16, v{28+p}'); A(f'v_and_b32 v{S+2*p+1}, 0xffff0000, v{28+p}')
    for i in range(8): A(f'v_mul_f32 v{S+i}, s62, v{S+i}')
    for p in range(4): A(f'v_cvt_pk_bf16_f32 v{28+p}, v{S+2*p}, v{S+2*p+1}')
    for p in range(4):
        A(f'v_lshlrev_b32 v{S+2*p}, 16, v{28+p}'); A(f'v_and_b32 v{S+2*p+1}, 0xffff0000, v{28+p}')
    A(f'v_max3_f32 v28, v{S}, v{S+1}, v{S+2}')
    A(f'v_max3_f32 v29, v{S+3}, v{S+4}, v{S+5}')
    A(f'v_max3_f32 v28, v28, v{S+6}, v{S+7}')
    A('v_max_f32 v28, v28, v29')
    allred('v_max_f32', 28, 29)
    A('v_mul_f32 v36, s63, v28')
    for i in range(8): A(f'v_fma_f32 v{S+i}, v{S+i}, s63, -v36')
    for i in range(8): A(f'v_exp_f32 v{S+i}, v{S+i}')
    A('ds_write_b32 v18, v36')
    for p in range(4): A(f'v_cvt_pk_bf16_f32 v{32+p}, v{S+2*p}, v{S+2*p+1}')
    A('ds_write_b64 v17, v[32:33]')
    A('ds_write_b64 v17, v[34:35] offset:512')
    A(f'v_add_f32 v28, v{S}, v{S+1}'); A(f'v_add_f32 v29, v{S+2}, v{S+3}')
    A(f'v_add_f32 v30, v{S+4}, v{S+5}'); A(f'v_add_f32 v31, v{S+6}, v{S+7}')
    A('v_add_f32 v28, v28, v29'); A('v_add_f32 v30, v30, v31'); A('v_add_f32 v28, v28, v30')
    allred('v_add_f32', 28, 29)
    A('ds_write_b32 v18, v28 offset:64')
    A('v_lshlrev_b32 v7, 4, v16'); A(f'v_add_u32 v7, {ML}, v7')
    A('s_lshl_b32 s59, s49, 2'); A('s_add_u32 s59, s59, s48')
    A('s_lshl_b32 s56, s3, 4'); A('s_add_u32 s56, s56, s59')
    A('s_lshl_b32 s56, s56, 7'); A(f's_add_u32 s56, s56, 0x{WS_ML:x}')
    A('v_lshrrev_b32 v13, 3, v0'); A('v_lshlrev_b32 v12, 11, v13'); A('v_and_b32 v8, 7, v0'); A('v_lshl_add_u32 v12, v8, 4, v12')
    A('v_lshlrev_b32 v13, 7, v13')
    A('s_lshl_b32 s50, s3, 15'); A('s_lshl_b32 s59, s48, 9'); A('s_add_u32 s50, s50, s59'); A('s_lshl_b32 s59, s6, 7'); A('s_add_u32 s50, s50, s59')
    A(f's_add_u32 s50, s50, 0x{WS_O:x}'); A('s_add_u32 s51, s50, 16384')
    A('s_lshl_b32 s52, s3, 11'); A('s_lshl_b32 s59, s48, 4'); A('s_add_u32 s52, s52, s59'); A(f's_add_u32 s52, s52, 0x{WS_ML:x}')
    A('s_lshl_b32 s59, s6, 8'); A(f's_add_u32 s59, s59, {OX}')
    A('v_and_b32 v17, 31, v0'); A('v_lshlrev_b32 v17, 3, v17'); A('v_add_u32 v17, s59, v17')
    A('v_lshlrev_b32 v8, 6, v16'); A('v_lshl_add_u32 v8, v1, 4, v8'); A('v_add_u32 v8, s59, v8')
    A(f'v_mov_b32 v9, {ZL}')
    for x in range(4):
        A(f'v_cmp_eq_u32 vcc, {x}, v5')
        A('s_nop 1')
        A(f'v_cndmask_b32 v{208+x}, v9, v8, vcc')
    A('s_lshl_b32 s59, s6, 11'); A(f's_add_u32 s59, s59, {PL}')
    A('v_add_u32 v19, s59, v14')
    A('s_lshl_b32 s59, s6, 9'); A(f's_add_u32 s59, s59, {PL}')
    A('v_lshlrev_b32 v18, 3, v0'); A('v_add_u32 v18, s59, v18')
    A('v_mov_b32 v37, s7'); A('v_mov_b32 v39, s7')
    A('v_mov_b32 v9, s7'); A('v_mov_b32 v11, s7')
    A(f'v_mov_b32 v6, {CNT+12}'); A('v_mov_b32 v8, 1')
    A('s_mov_b64 exec, 1')
    A('ds_add_rtn_u32 v8, v6, v8')
    A('s_mov_b64 exec, -1')
    A('ds_read_b128 v[20:23], v7')
    A('ds_read_b128 v[24:27], v7 offset:64')
    A('s_waitcnt lgkmcnt(0)')
    A('v_readfirstlane_b32 s59, v8')
    A('s_cmp_lg_u32 s59, 3')
    A('s_cbranch_scc1 L_noml')
    A('v_max3_f32 v36, v20, v21, v22'); A('v_max_f32 v36, v36, v23')
    for w in range(4): A(f'v_sub_f32 v{20+w}, v{20+w}, v36')
    for w in range(4): A(f'v_exp_f32 v{20+w}, v{20+w}')
    A('s_nop 0')
    A('v_mul_f32 v38, v20, v24')
    for w in range(1, 4): A(f'v_fmac_f32 v38, v{20+w}, v{24+w}')
    A('s_mov_b64 exec, 15')
    A('buffer_store_dwordx4 v[36:39], v14, s[20:23], s56 offen sc1')
    A('s_mov_b64 exec, -1')
    A.lab('L_noml')
    stamp(4)
    A('s_barrier')
    MLR = 216
    def pollml():
        A(f'buffer_load_dwordx4 v[{MLR}:{MLR+3}], v13, s[20:23], s52 offen sc1')
        A(f'buffer_load_dwordx4 v[{MLR+4}:{MLR+7}], v13, s[20:23], s52 offen offset:1024 sc1')
    def woloads():
        for n in range(8):
            ro = 8 * (n & 3) + 4 * (n >> 2)
            A(f's_add_u32 s59, s58, {ro*1024}')
            A(f'buffer_load_dwordx4 {vr(WO+4*n,4)}, v15, s[16:19], s59 offen{WP}')
    pollml()
    woloads()
    stamp(5)
    A('s_lshl_b32 s56, s3, 2'); A('s_add_u32 s56, s56, s48')
    A('s_lshl_b32 s53, s49, 6'); A('s_add_u32 s53, s53, s56'); A('s_lshl_b32 s53, s53, 12')
    A('s_lshl_b32 s59, s6, 10'); A('s_add_u32 s53, s53, s59'); A(f's_add_u32 s53, s53, 0x{WS_P:x}')
    A('s_and_b32 s56, s2, 7'); A('s_lshl_b32 s59, s5, 3'); A('s_add_u32 s56, s56, s59')
    A('s_lshr_b32 s58, s56, 5')
    A('s_and_b32 s56, s56, 31'); A('s_lshl_b32 s56, s56, 3'); A('s_bfe_u32 s59, s2, 0x10003'); A('s_lshl_b32 s59, s59, 2'); A('s_add_u32 s56, s56, s59')
    A('s_lshl_b32 s97, s58, 18'); A('s_lshl_b32 s59, s56, 4'); A('s_add_u32 s97, s97, s59'); A(f's_add_u32 s97, s97, 0x{WS_P:x}')
    A('s_add_u32 s98, s97, 65536'); A('s_add_u32 s99, s98, 65536'); A('s_add_u32 s100, s99, 65536')
    A('v_lshrrev_b32 v212, 2, v0'); A('v_lshlrev_b32 v212, 12, v212'); A('v_lshl_add_u32 v212, v16, 4, v212')
    A('v_add_u32 v6, s56, v16')
    A('v_bfe_u32 v7, v6, 1, 2')
    A('v_lshlrev_b32 v214, 3, v7'); A(f'v_add_u32 v214, {GL}, v214')
    A('ds_read_b64 v[214:215], v214')
    A('v_lshlrev_b32 v213, 9, v7')
    A('s_lshl_b32 s58, s58, 7'); A('v_add_u32 v213, s58, v213')
    A('v_bfe_u32 v7, v6, 5, 2'); A('v_lshl_add_u32 v213, v7, 5, v213')
    A('v_and_b32 v7, 1, v6'); A('v_lshl_add_u32 v213, v7, 4, v213')
    A('v_and_b32 v7, 1, v1'); A('v_lshl_add_u32 v213, v7, 3, v213')
    A('v_lshrrev_b32 v7, 7, v6'); A('v_lshl_add_u32 v213, v7, 2, v213')
    A('v_bfe_u32 v7, v6, 3, 2'); A('v_add_u32 v213, v213, v7')
    A('v_lshlrev_b32 v213, 1, v213')
    FA = 224
    def mlcheck():
        A(f'v_xor_b32 v6, s7, v{MLR+1}'); A(f'v_xor_b32 v7, s7, v{MLR+3}')
        A(f'v_bitop3_b32 v6, v{MLR+5}, s7, v6 bitop3:0xbe'); A(f'v_bitop3_b32 v7, v{MLR+7}, s7, v7 bitop3:0xbe')
        A('v_or_b32 v6, v6, v7')
        A('v_cmp_ne_u32 vcc, 0, v6')
    def mlfactors():
        A(f'v_max_f32 v6, v{MLR}, v{MLR+4}')
        A('v_mov_b32 v7, v6'); A('s_nop 1'); A('v_permlane32_swap_b32 v6, v7'); A('s_nop 1'); A('v_max_f32 v6, v6, v7')
        A(f'v_sub_f32 v{FA}, v{MLR}, v6'); A(f'v_sub_f32 v{FA+1}, v{MLR+4}, v6')
        A(f'v_exp_f32 v{FA}, v{FA}'); A(f'v_exp_f32 v{FA+1}, v{FA+1}')
        A('s_nop 0')
        A(f'v_mul_f32 v6, v{FA}, v{MLR+2}'); A(f'v_fmac_f32 v6, v{FA+1}, v{MLR+6}')
        A('v_mov_b32 v7, v6'); A('s_nop 1'); A('v_permlane32_swap_b32 v6, v7'); A('s_nop 1'); A('v_add_f32 v6, v6, v7')
        A('v_rcp_f32 v6, v6')
        A('s_nop 0')
        A(f'v_mul_f32 v{FA}, v{FA}, v6'); A(f'v_mul_f32 v{FA+1}, v{FA+1}, v6')
    H = 20
    def poll1():
        A(f'buffer_load_dwordx4 v[20:23], v12, s[20:23], s50 offen sc1')
        A(f'buffer_load_dwordx4 v[24:27], v12, s[20:23], s51 offen sc1')
    A('s_waitcnt vmcnt(8) lgkmcnt(0)')
    mlcheck()
    A('s_mov_b32 s62, 0')
    A('s_cbranch_vccnz L_mllate')
    mlfactors()
    A('s_mov_b32 s62, 1')
    A.lab('L_mllate')
    A('s_waitcnt vmcnt(0)')
    stamp(2)
    poll1()
    perm_mfma(WO, WT, None)
    A(f's_mov_b32 s59, {spin}')
    A('s_cmp_eq_u32 s62, 1')
    A('s_cbranch_scc1 L_poll1')
    A.lab('L_pollml')
    pollml()
    A('s_waitcnt vmcnt(0)')
    mlcheck()
    A('s_cbranch_vccz L_gotml')
    A('s_sub_u32 s59, s59, 1')
    A('s_cbranch_scc1 L_gotml')
    if sleep: A(f's_sleep {sleep}')
    A('s_branch L_pollml')
    A.lab('L_gotml')
    mlfactors()
    A.lab('L_poll1')
    A('s_waitcnt vmcnt(0)')
    A('v_xor_b32 v6, s7, v21'); A('v_xor_b32 v7, s7, v23')
    A('v_bitop3_b32 v6, v25, s7, v6 bitop3:0xbe'); A('v_bitop3_b32 v7, v27, s7, v7 bitop3:0xbe')
    A('v_or_b32 v6, v6, v7')
    A('v_cmp_ne_u32 vcc, 0, v6')
    A('s_cbranch_vccz L_got1')
    A('s_sub_u32 s59, s59, 1')
    A('s_cbranch_scc1 L_got1')
    if sleep: A(f's_sleep {sleep}')
    poll1()
    A('s_branch L_poll1')
    A.lab('L_got1')
    stamp(8)
    A('v_lshlrev_b32 v28, 16, v20'); A('v_and_b32 v29, 0xffff0000, v20'); A('v_lshlrev_b32 v30, 16, v22'); A('v_and_b32 v31, 0xffff0000, v22')
    A('v_lshlrev_b32 v32, 16, v24'); A('v_and_b32 v33, 0xffff0000, v24'); A('v_lshlrev_b32 v34, 16, v26'); A('v_and_b32 v35, 0xffff0000, v26')
    for r in range(4): A(f'v_mul_f32 v{28+r}, v{FA}, v{28+r}')
    for r in range(4): A(f'v_fmac_f32 v{28+r}, v{FA+1}, v{32+r}')
    for r in range(4): A(f'v_mov_b32 v{32+r}, v{28+r}')
    A('s_nop 0')
    for r in range(4): A(f'v_permlane32_swap_b32 v{28+r}, v{32+r}')
    A('s_nop 0')
    for r in range(4): A(f'v_add_f32 v{28+r}, v{28+r}, v{32+r}')
    A('v_cvt_pk_bf16_f32 v20, v28, v29'); A('v_cvt_pk_bf16_f32 v21, v30, v31')
    A('ds_write_b64 v17, v[20:21]')
    for e in range(4): A(f'ds_read_b128 {vr(PB+4*e,4)}, v{208+e}')
    for e in range(4):
        A(f's_waitcnt lgkmcnt({3-e})')
        for idx in range(2):
            c = '0' if e == 0 else vr(ACC + 4 * idx, 4)
            A(f'v_mfma_f32_16x16x32_bf16 {vr(ACC+4*idx,4)}, {vr(WT+4*(4*idx+e),4)}, {vr(PB+4*e,4)}, {c}')
    A('s_nop 6')
    A(f'ds_write_b128 v19, {vr(ACC,4)}')
    A(f'ds_write_b128 v19, {vr(ACC+4,4)} offset:1024')
    A('s_waitcnt lgkmcnt(0)')
    stamp(15)
    A('s_barrier')
    for w in range(4): A(f'ds_read_b64 v[{20+2*w}:{21+2*w}], v18 offset:{2048*w}')
    A('s_waitcnt lgkmcnt(2)')
    A('v_add_f32 v20, v20, v22'); A('v_add_f32 v21, v21, v23')
    A('s_waitcnt lgkmcnt(0)')
    A('v_add_f32 v24, v24, v26'); A('v_add_f32 v25, v25, v27')
    A('v_add_f32 v8, v20, v24'); A('v_add_f32 v10, v21, v25')
    A('buffer_store_dwordx4 v[8:11], v14, s[20:23], s53 offen sc1')
    stamp(9)
    A('s_cmp_lg_u32 s6, 0')
    A('s_cbranch_scc1 L_end')
    if ackfirst: A('s_waitcnt vmcnt(0)')
    A(f's_mov_b32 s59, {spin}')
    A.lab('L_poll2')
    for k in range(4): A(f'buffer_load_dwordx4 v[{20+4*k}:{23+4*k}], v212, s[20:23], s{97+k} offen sc1')
    A('s_waitcnt vmcnt(0)')
    A('v_xor_b32 v6, s7, v21'); A('v_xor_b32 v7, s7, v23')
    for k in range(1, 4):
        A(f'v_bitop3_b32 v6, v{21+4*k}, s7, v6 bitop3:0xbe'); A(f'v_bitop3_b32 v7, v{23+4*k}, s7, v7 bitop3:0xbe')
    A('v_or_b32 v6, v6, v7')
    A('v_cmp_ne_u32 vcc, 0, v6')
    A('s_cbranch_vccz L_got2')
    A('s_sub_u32 s59, s59, 1')
    A('s_cbranch_scc1 L_got2')
    if sleep: A(f's_sleep {sleep}')
    A('s_branch L_poll2')
    A.lab('L_got2')
    stamp(10)
    A('v_add_f32 v20, v20, v24'); A('v_add_f32 v28, v28, v32')
    A('v_add_f32 v22, v22, v26'); A('v_add_f32 v30, v30, v34')
    A('s_nop 0')
    A('v_permlane32_swap_b32 v20, v28'); A('v_permlane32_swap_b32 v22, v30')
    A('s_nop 0')
    A('v_add_f32 v20, v20, v28'); A('v_add_f32 v22, v22, v30')
    A('s_nop 1')
    A('v_permlane16_swap_b32 v20, v22')
    A('s_nop 1')
    A('v_add_f32 v20, v20, v22')
    A('s_nop 1'); A('v_add_f32_dpp v20, v20, v20 row_ror:4 row_mask:0xf bank_mask:0xf')
    A('s_nop 1'); A('v_add_f32_dpp v20, v20, v20 row_ror:8 row_mask:0xf bank_mask:0xf')
    A('v_mov_b32 v21, v20'); A('s_nop 1'); A('v_permlane32_swap_b32 v20, v21')
    A('s_nop 1')
    A('v_cvt_pk_bf16_f32 v20, v20, v21')
    A('v_lshlrev_b32 v21, 16, v20'); A('v_and_b32 v22, 0xffff0000, v20')
    A('v_mul_f32 v21, v21, v214'); A('v_mul_f32 v22, v22, v215')
    A('v_cvt_pk_bf16_f32 v20, v21, v22')
    A('v_lshlrev_b32 v21, 16, v20'); A('v_and_b32 v22, 0xffff0000, v20')
    A('v_add_f32 v21, v21, v22')
    A('v_cvt_pk_bf16_f32 v20, v21, v21')
    A('s_mov_b64 exec, 0x000f000f')
    A('buffer_store_short v20, v213, s[24:27], 0 offen')
    A('s_cmp_lg_u32 s2, 0')
    A('s_cbranch_scc1 L_fin')
    A('s_mov_b64 exec, 1')
    A('v_mov_b32 v6, s7')
    A(f'buffer_store_dword v6, v14, s[20:23], 0 offen offset:{WS_EPOCH}')
    A.lab('L_fin')
    if stamps:
        stamp(11)
        A('s_mov_b64 exec, -1')
        A('s_cmp_lg_u32 s6, 0'); A('s_cbranch_scc1 L_end')
        dump_stamps(0, 6); dump_stamps(8, 12); dump_stamps(15, 16)
    A.lab('L_end')
    A('s_endpgm')
    A.lab('L_code_end')
    out += A.L
    out += ['.section .rodata,"a"', '.p2align 6', f'.amdhsa_kernel {KN}_kernel',
            '  .amdhsa_next_free_vgpr 256', '  .amdhsa_next_free_sgpr 102', '  .amdhsa_accum_offset 256',
            '  .amdhsa_group_segment_fixed_size 0', '  .amdhsa_kernarg_size 112', '  .amdhsa_user_sgpr_count 2',
            '  .amdhsa_user_sgpr_kernarg_segment_ptr 1', '  .amdhsa_system_sgpr_workgroup_id_x 1', '.end_amdhsa_kernel']
    return '\n'.join(out) + '\n'

if __name__ == '__main__':
    ap = argparse.ArgumentParser()
    ap.add_argument('-o', default='k.s')
    ap.add_argument('--set', action='append', default=[])
    a = ap.parse_args()
    kw = {}
    for s in a.set:
        k, v = s.split('=')
        try: v = int(v)
        except ValueError: pass
        kw[k] = v
    open(a.o, 'w').write(gen(**kw))
```

```python
import sys, argparse
KN = 'gated_mix__sliding_block_cached__sliding_block_cached__decode'
HEADER = open('cdna_kernels/' + KN + '.s.ref').read().split('; Override launch')[0]

WS_EPOCH = 0x0
WS_Q = 0x1C0000
WS_ML = 0x1000
WS_O = 0x40000
WS_P = 0xC0000
WS_BYTES = 285221888
STAMP_OFF = 64 << 20
TAGC = 0x9E3779B1
KL = 0
QL = 131072
ZL = QL + 1024
PX = ZL + 1024
ML = PX + 4096
LL = ML + 64
CNT = LL + 64
GL = CNT + 64
OX = GL + 64
OL = OX + 1024
PL = OL + 8192
LDS_BYTES = PL + 8192
QR = OL
LOG2E = 0x3FB8AA3B
SCALE = 0x3DB504F3

class G:
    def __init__(s): s.L = []
    def __call__(s, t): s.L.append('  ' + t)
    def lab(s, t): s.L.append(t + ':')
    def c(s, t): s.L.append('  ; ' + t)

def vr(a, n=1):
    return f'v{a}' if n == 1 else f'v[{a}:{a+n-1}]'

def gen(stamps=False, pol='nt', wpol='nt', spin=200000, prefetch=True, thr=0, sleep=1, touch=1, vfirst=1, kprio=1, vprio=3, rotmul=4, ackfirst=1, bvpos=32, mix=1, dbg=0):
    A = G()
    P = (' ' + pol) if pol else ''
    WP = (' ' + wpol) if wpol else ''
    out = [HEADER.rstrip('\n'),
           '; Override launch geometry by editing the next line (default: block=256,',
           '; grid=ceil(out_elems/256), lds=0). Harness parses it; keep it on one line.',
           f'; @launch grid=(256,1,1) block=(512,1,1) lds={LDS_BYTES}',
           '.amdgcn_target "amdgcn-amd-amdhsa--gfx950"', '.text', f'.globl {KN}_kernel', '.p2align 8',
           f'.type {KN}_kernel,@function', f'{KN}_kernel:']
    SLO, SHI = 's60', 's61'
    def stamp(i):
        if stamps: A(f's_memrealtime s[{64+2*i}:{65+2*i}]')
    def allred(op, r, t, quad=False):
        if quad:
            A('s_nop 1'); A(f'{op}_dpp v{r}, v{r}, v{r} quad_perm:[1,0,3,2] row_mask:0xf bank_mask:0xf')
            A('s_nop 1'); A(f'{op}_dpp v{r}, v{r}, v{r} quad_perm:[2,3,0,1] row_mask:0xf bank_mask:0xf')
        A('s_nop 1'); A(f'{op}_dpp v{r}, v{r}, v{r} row_ror:4 row_mask:0xf bank_mask:0xf')
        A('s_nop 1'); A(f'{op}_dpp v{r}, v{r}, v{r} row_ror:8 row_mask:0xf bank_mask:0xf')
        A(f'v_mov_b32 v{t}, v{r}'); A('s_nop 1'); A(f'v_permlane16_swap_b32 v{r}, v{t}'); A('s_nop 1'); A(f'{op} v{r}, v{r}, v{t}')
        A(f'v_mov_b32 v{t}, v{r}'); A('s_nop 1'); A(f'v_permlane32_swap_b32 v{r}, v{t}'); A('s_nop 1'); A(f'{op} v{r}, v{r}, v{t}')
    def perm_mfma(src, T, mf):
        for dp in range(4):
            for d in range(4):
                A(f'v_perm_b32 v{T+4*(2*dp)+d}, v{src+4*(2*d+1)+dp}, v{src+4*(2*d)+dp}, {SLO}')
            if dp > 0 and mf: mf(2 * dp - 1)
            for d in range(4):
                A(f'v_perm_b32 v{T+4*(2*dp+1)+d}, v{src+4*(2*d+1)+dp}, v{src+4*(2*d)+dp}, {SHI}')
            if mf: mf(2 * dp)
        if mf:
            A('s_nop 1'); mf(7)
    def dump_stamps(lo, hi):
        A('s_waitcnt lgkmcnt(0)')
        A('s_lshl_b32 s59, s2, 7'); A(f's_add_u32 s59, s59, 0x{STAMP_OFF:x}')
        A('v_mov_b32 v7, 0')
        for i in range(lo, hi):
            for u in range(2): A(f'v_mov_b32 v{8+u}, s{64+2*i+u}')
            A(f'buffer_store_dwordx2 v[8:9], v7, s[20:23], s59 offen offset:{8*i}')
            A('s_nop 1')

    A('s_cmp_ge_u32 s2, 256')
    A('s_cbranch_scc1 L_end')
    stamp(0)
    if dbg: A('s_memrealtime s[64:65]')
    if mix:
        A('s_and_b32 s3, s2, 15')
    else:
        A('s_and_b32 s3, s2, 7')
        A('s_lshl_b32 s3, s3, 1')
        A('s_bfe_u32 s4, s2, 0x10003')
        A('s_or_b32 s3, s3, s4')
    A('s_lshr_b32 s48, s3, 3')
    A('s_mul_i32 s48, s48, 40')
    A('s_add_u32 s50, s0, s48')
    A('s_addc_u32 s51, s1, 0')
    A('s_load_dwordx4 s[32:35], s[50:51], 8')
    A('s_load_dwordx4 s[36:39], s[50:51], 24')
    A('s_load_dwordx2 s[40:41], s[0:1], 0')
    A('s_load_dwordx4 s[44:47], s[0:1], 80')
    A('s_load_dwordx2 s[42:43], s[0:1], 104')
    A('v_lshrrev_b32 v1, 6, v0')
    A('v_and_b32 v0, 63, v0')
    A('s_and_b32 s4, s3, 7')
    A('v_readfirstlane_b32 s6, v1')
    A('s_lshr_b32 s5, s2, 4')
    A('v_lshlrev_b32 v14, 4, v0')
    CODE_KB = 8
    if prefetch:
        A.c("warm L2 with this kernel's own code: one dword per 32 bytes")
        A('s_getpc_b64 s[52:53]')
        A.lab('L_pc')
        A(f's_sub_u32 s52, s52, L_pc-{KN}_kernel')
        A('s_subb_u32 s53, s53, 0')
        A('v_lshlrev_b32 v2, 11, v1')
        A('v_lshl_add_u32 v2, v0, 5, v2')
        A(f'v_min_u32 v2, L_code_end-{KN}_kernel-4, v2')
        A('v_mov_b32 v3, s53')
        A('v_add_co_u32 v2, vcc, s52, v2')
        A('s_nop 1')
        A('v_addc_co_u32 v3, vcc, 0, v3, vcc')
        A('global_load_dword v40, v[2:3], off')
    NPF = 1 if prefetch else 0
    A(f's_mov_b32 {SLO}, 0x05040100')
    A(f's_mov_b32 {SHI}, 0x07060302')
    A('s_mov_b32 s10, 0x4000000')
    A('s_mov_b32 s11, 0x20000')
    A('s_mov_b32 s18, 0x400000')
    A('s_mov_b32 s19, 0x20000')
    A(f's_mov_b32 s22, {WS_BYTES}')
    A('s_mov_b32 s23, 0x20000')
    A('s_mov_b32 s26, 4096')
    A('s_mov_b32 s27, 0x20000')
    A('s_lshr_b32 s48, s5, 2')
    A('s_and_b32 s49, s5, 3')
    A('s_and_b32 s62, s6, 4')
    A('s_and_b32 s6, s6, 3')
    A('s_lshl_b32 s54, s48, 24')
    A('s_lshl_b32 s55, s4, 21')
    A('s_add_u32 s54, s54, s55')
    A('s_lshl_b32 s55, s49, 17')
    A('s_add_u32 s54, s54, s55')
    A('s_lshl_b32 s55, s6, 15')
    A('s_add_u32 s54, s54, 0x180000')
    A(f's_mul_i32 s96, s2, {rotmul}')
    A('s_add_u32 s96, s96, s6')
    A('s_lshl_b32 s96, s96, 12')
    A('v_lshrrev_b32 v1, 4, v0')
    A('v_and_b32 v2, 15, v0')
    A('v_bfe_u32 v5, v0, 2, 2')
    A('v_and_b32 v16, 3, v0')
    A('s_cmp_eq_u32 s62, %d' % (4 if vfirst else 0))
    A('s_cbranch_scc1 L_kwave')

    issued = [0]
    def thro():
        issued[0] += 1
        if thr and issued[0] > thr: A(f's_waitcnt vmcnt({thr})')

    V0 = 128; PB = 64; T = 32; ACC = 24
    WQ = 64; XB = 96
    if vprio: A(f's_setprio {vprio}')
    A('v_lshlrev_b32 v9, 16, v1')
    A('v_lshl_add_u32 v9, v2, 4, v9')
    A('v_lshlrev_b32 v8, 4, v1')
    A('v_lshl_add_u32 v8, v16, 10, v8')
    A('v_bfrev_b32 v10, 1')
    for e in range(4):
        A(f'v_cmp_eq_u32 vcc, {e}, v5')
        A('s_nop 1')
        A(f'v_cndmask_b32 v{20+e}, v10, v8, vcc')
    A('s_lshl_b32 s57, s49, 2'); A('s_add_u32 s57, s57, s6')
    A('s_lshl_b32 s56, s57, 18'); A('s_lshl_b32 s59, s4, 10'); A('s_add_u32 s56, s56, s59')
    A('s_lshl_b32 s59, s48, 8'); A('s_add_u32 s56, s56, s59')
    A('s_lshl_b32 s57, s57, 6')
    A('s_waitcnt lgkmcnt(0)')
    A('s_mov_b32 s16, s36'); A('s_mov_b32 s17, s37')
    A('s_mov_b32 s24, s40'); A('s_mov_b32 s25, s41')
    for i in range(8):
        A(f'buffer_load_dwordx4 {vr(WQ+4*i,4)}, v9, s[16:19], s56 offen{WP}')
        if i < 7: A('s_add_u32 s56, s56, 8192')
    for e in range(4): A(f'buffer_load_dwordx4 {vr(XB+4*e,4)}, v{20+e}, s[24:27], s57 offen')
    A('s_load_dword s7, s[42:43], 0x%x' % WS_EPOCH)
    A('s_barrier')
    A('s_mov_b32 s20, s42'); A('s_mov_b32 s21, s43')
    A('s_mov_b32 s8, s34'); A('s_mov_b32 s9, s35')
    A('s_lshl_b32 s59, s6, 11'); A(f's_add_u32 s59, s59, {OL}')
    A('v_add_u32 v19, s59, v14')
    A('v_lshrrev_b32 v13, 5, v0'); A('v_lshlrev_b32 v13, 10, v13')
    A('v_bfe_u32 v10, v0, 1, 4'); A('v_lshl_add_u32 v13, v10, 6, v13')
    A('v_and_b32 v10, 1, v0'); A('v_lshl_add_u32 v13, v10, 3, v13')
    A(f'v_add_u32 v13, {OL}, v13')
    A(f'v_mov_b32 v10, {CNT}')
    A('v_mov_b32 v11, 1')
    A('s_lshl_b32 s57, s3, 16'); A('s_lshl_b32 s59, s5, 10'); A('s_add_u32 s57, s57, s59'); A(f's_add_u32 s57, s57, 0x{WS_Q:x}')
    A('s_waitcnt vmcnt(0)')
    def mfq(e):
        idx = e >> 2
        c = '0' if (e & 3) == 0 else vr(ACC + 4 * idx, 4)
        A(f'v_mfma_f32_16x16x32_bf16 {vr(ACC+4*idx,4)}, {vr(T+4*e,4)}, {vr(XB+4*(e&3),4)}, {c}')
    perm_mfma(WQ, T, mfq)
    A('s_nop 6')
    A(f'ds_write_b128 v19, {vr(ACC,4)}')
    A(f'ds_write_b128 v19, {vr(ACC+4,4)} offset:1024')
    A('s_mov_b64 exec, 1')
    A('s_waitcnt lgkmcnt(0)')
    A('ds_add_rtn_u32 v11, v10, v11')
    A('s_mov_b64 exec, -1')
    A(f's_add_u32 s7, s7, 0x{TAGC:x}')
    A('s_waitcnt lgkmcnt(0)')
    A('v_readfirstlane_b32 s59, v11')
    A('s_cmp_lg_u32 s59, 3')
    A('s_cbranch_scc1 L_vgo')
    for b in range(4):
        for w in range(4): A(f'ds_read_b64 v[{T+8*b+2*w}:{T+8*b+2*w+1}], v13 offset:{2048*w+16*b}')
        if b == 1: A('s_waitcnt lgkmcnt(4)')
    for b in range(4):
        A(f'v_mov_b32 v{65+4*b}, s7'); A(f'v_mov_b32 v{67+4*b}, s7')
    for b in range(4):
        A(f's_waitcnt lgkmcnt({4*(3-b)})')
        r = T + 8 * b
        A(f'v_add_f32 v{r}, v{r}, v{r+2}'); A(f'v_add_f32 v{r+1}, v{r+1}, v{r+3}')
        A(f'v_add_f32 v{r+4}, v{r+4}, v{r+6}'); A(f'v_add_f32 v{r+5}, v{r+5}, v{r+7}')
        A(f'v_add_f32 v{64+4*b}, v{r}, v{r+4}'); A(f'v_add_f32 v{66+4*b}, v{r+1}, v{r+5}')
        A(f'buffer_store_dwordx4 v[{64+4*b}:{67+4*b}], v14, s[20:23], s57 offen sc1')
        if b < 3: A('s_add_u32 s57, s57, 16384')
    A.lab('L_vgo')
    if touch:
        A.c('first touch of the pages that are needed late')
        A('s_mov_b32 s24, s46'); A('s_mov_b32 s25, s47')
        A('s_lshl_b32 s57, s6, 20')
        A('buffer_load_dword v17, v14, s[20:23], s57 offen')
        A('buffer_load_dword v18, v14, s[24:27], 0 offen')
    A('v_lshl_add_u32 v8, v1, 2, v16')
    A('s_lshl_b32 s57, s6, 10'); A(f's_add_u32 s57, s57, {PX}')
    A('v_lshlrev_b32 v8, 4, v8')
    A('v_add_u32 v8, s57, v8')
    A(f'v_mov_b32 v9, {ZL}')
    A('v_mov_b32 v10, v5')
    for e in range(4):
        A(f'v_cmp_eq_u32 vcc, {e}, v10')
        A('s_nop 1')
        A(f'v_cndmask_b32 v{4+e}, v9, v8, vcc')
    A('v_bfe_u32 v12, v0, 3, 2'); A('v_lshlrev_b32 v12, 2, v12')
    A('v_bfe_u32 v8, v0, 1, 2'); A('v_add_u32 v12, v12, v8')
    A('v_lshlrev_b32 v12, 2, v12'); A('v_add_u32 v12, s6, v12'); A('v_lshlrev_b32 v12, 4, v12')
    A('v_and_b32 v8, 1, v0'); A('v_lshl_add_u32 v12, v8, 10, v12')
    A(f'v_add_u32 v12, {OL}, v12')
    A('s_lshl_b32 s59, s6, 4'); A(f's_add_u32 s59, s59, {ML}')
    A('v_mov_b32 v13, s59')
    A('s_lshl_b32 s59, s49, 2'); A('s_add_u32 s59, s59, s48')
    A('s_lshl_b32 s57, s3, 4'); A('s_add_u32 s57, s57, s59')
    A('s_lshl_b32 s57, s57, 11'); A('s_lshl_b32 s59, s6, 9'); A('s_add_u32 s57, s57, s59'); A(f's_add_u32 s57, s57, 0x{WS_O:x}')
    A(f'v_mov_b32 v2, {CNT+8}'); A('v_mov_b32 v3, 1')
    A('v_mov_b32 v9, s7'); A('v_mov_b32 v11, s7')
    if vprio: A('s_setprio 0')
    A('s_barrier')
    issued[0] = 0
    def after_bv():
        stamp(14)
        A('s_barrier')
        A('ds_read_b128 v[20:23], v13')
        for G_ in range(4):
            for e in range(4): A(f'ds_read_b128 {vr(PB+16*G_+4*e,4)}, v{4+e} offset:{256*G_}')
            if G_ == 1: A('s_waitcnt lgkmcnt(0)')
    for n in range(32):
        if n == bvpos: after_bv()
        if n % 4 == 0:
            A('s_and_b32 s56, s96, 0x1ffff'); A('s_add_u32 s56, s56, s54'); A('s_add_u32 s96, s96, 16384')
        A(f'buffer_load_dwordx4 {vr(V0+4*n,4)}, v14, s[8:11], s56 offen offset:{(n%4)*1024}{P}')
        thro()
    if bvpos == 32: after_bv()
    A('v_max3_f32 v8, v20, v21, v22'); A('v_max_f32 v8, v8, v23')
    for w in range(4): A(f'v_sub_f32 v{20+w}, v{20+w}, v8')
    for w in range(4): A(f'v_exp_f32 v{20+w}, v{20+w}')
    for G_ in range(4):
        if G_ == 2: A(f's_waitcnt vmcnt({8*(3-G_)}) lgkmcnt(0)')
        else: A(f's_waitcnt vmcnt({8*(3-G_)})')
        if G_ == 3: stamp(6)
        def mf(e):
            idx = e >> 2
            c = '0' if (G_ == 0 and (e & 3) == 0) else vr(ACC + 4 * idx, 4)
            A(f'v_mfma_f32_16x16x32_bf16 {vr(ACC+4*idx,4)}, {vr(T+4*e,4)}, {vr(PB+16*G_+4*(e&3),4)}, {c}')
        perm_mfma(V0 + 32 * G_, T, mf)
    stamp(12)
    A(f's_mov_b32 s59, {spin}')
    A('s_nop 5')
    A(f'ds_write_b128 v19, {vr(ACC,4)}')
    A(f'ds_write_b128 v19, {vr(ACC+4,4)} offset:1024')
    A('s_mov_b64 exec, 1')
    A('ds_add_u32 v2, v3')
    A('s_mov_b64 exec, -1')
    A.lab('L_ospin')
    A('ds_read_b32 v3, v2')
    for w in range(4): A(f'ds_read_b128 v[{64+4*w}:{67+4*w}], v12 offset:{2048*w}')
    A('s_waitcnt lgkmcnt(4)')
    A('v_readfirstlane_b32 s56, v3')
    A('s_cmp_eq_u32 s56, 4')
    A('s_cbranch_scc1 L_oall')
    A('s_sub_u32 s59, s59, 1')
    A('s_cbranch_scc0 L_ospin')
    A.lab('L_oall')
    stamp(13)
    A('s_waitcnt lgkmcnt(3)')
    for r in range(4): A(f'v_mul_f32 v{24+r}, v20, v{64+r}')
    for w in range(1, 4):
        A(f's_waitcnt lgkmcnt({3-w})')
        for r in range(4): A(f'v_fmac_f32 v{24+r}, v{20+w}, v{64+4*w+r}')
    A('v_cvt_pk_bf16_f32 v8, v24, v25'); A('v_cvt_pk_bf16_f32 v10, v26, v27')
    A('s_mov_b32 exec_hi, 0')
    A('buffer_store_dwordx4 v[8:11], v14, s[20:23], s57 offen sc1')
    A('s_mov_b32 exec_hi, -1')
    stamp(7)
    if stamps:
        A('s_cmp_lg_u32 s6, 0'); A('s_cbranch_scc1 L_end')
        dump_stamps(12, 15); dump_stamps(6, 8)
    A('s_endpgm')

    A.lab('L_kwave')
    R1 = 64; PB = 48; ACC = 40; WO = 128; WT = 160; XG = 192
    if kprio: A(f's_setprio {kprio}')
    A('v_lshlrev_b32 v3, 2, v1')
    A('v_xor_b32 v3, v3, v2')
    A('v_lshlrev_b32 v8, 8, v1')
    for n in range(4):
        A(f'v_xor_b32 v9, {n}, v3')
        A(f'v_lshl_add_u32 v{10+n}, v9, 4, v8')
    A('s_lshl_b32 s57, s6, 8'); A(f's_add_u32 s57, s57, {ZL}')
    A('v_lshlrev_b32 v4, 2, v0'); A('v_add_u32 v4, s57, v4')
    A('v_mov_b32 v6, 0'); A(f'v_mov_b32 v7, {CNT}')
    A('ds_write_b32 v4, v6')
    A('ds_write_b32 v7, v6')
    A('ds_write_b32 v7, v6 offset:4')
    A('ds_write_b32 v7, v6 offset:8')
    A('ds_write_b32 v7, v6 offset:12')
    A('s_lshl_b32 s53, s6, 10')
    A('s_mov_b32 s57, s55')
    A('s_waitcnt lgkmcnt(0)')
    A('s_mov_b32 s8, s32'); A('s_mov_b32 s9, s33')
    A('s_mov_b32 s24, s40'); A('s_mov_b32 s25, s41')
    A('s_mov_b32 s28, s44'); A('s_mov_b32 s29, s45'); A('s_mov_b32 s30, 1024'); A('s_mov_b32 s31, 0x20000')
    A('s_load_dword s7, s[42:43], 0x%x' % WS_EPOCH)
    A('s_barrier')
    issued[0] = 0
    A(f'buffer_load_dwordx4 {vr(XG,4)}, v14, s[24:27], s53 offen')
    A(f'buffer_load_dwordx4 {vr(XG+4,4)}, v14, s[28:31], 0 offen')
    for n in range(32):
        if n % 4 == 0:
            A('s_mov_b32 m0, s57')
            A('s_add_u32 s57, s57, 4096')
            A('s_and_b32 s56, s96, 0x1ffff'); A('s_add_u32 s56, s56, s54'); A('s_add_u32 s96, s96, 16384')
        A(f'buffer_load_dwordx4 v{10+n%4}, s[8:11], s56 offen offset:{(n%4)*1024}{P} lds')
        thro()
    stamp(1)
    A('s_barrier')
    A('s_mov_b32 s20, s42'); A('s_mov_b32 s21, s43')
    A('s_lshl_b32 s57, s3, 16'); A('s_lshl_b32 s56, s48, 14'); A('s_add_u32 s57, s57, s56')
    A('s_lshl_b32 s56, s6, 12'); A('s_add_u32 s57, s57, s56'); A(f's_add_u32 s57, s57, 0x{WS_Q:x}')
    QP = 64
    def pollq():
        for k in range(4): A(f'buffer_load_dwordx4 {vr(QP+4*k,4)}, v14, s[20:23], s57 offen offset:{1024*k} sc1')
    pollq()
    A('s_mov_b32 s16, s38'); A('s_mov_b32 s17, s39')
    A('s_mov_b32 s24, s46'); A('s_mov_b32 s25, s47')
    A('s_lshl_b32 s58, s4, 19'); A('s_lshl_b32 s59, s48, 17'); A('s_add_u32 s58, s58, s59')
    A('s_add_u32 s58, s58, s55'); A('s_lshl_b32 s59, s49, 8'); A('s_add_u32 s58, s58, s59')
    A('v_lshlrev_b32 v15, 10, v1')
    A('v_lshl_add_u32 v15, v2, 4, v15')
    A('v_lshl_add_u32 v4, v16, 2, v5')
    A('v_lshlrev_b32 v4, 8, v4')
    A('v_add_u32 v4, s55, v4')
    A('v_xor_b32 v6, v1, v2')
    A('v_lshlrev_b32 v6, 4, v6')
    for t in range(4):
        A(f'v_xor_b32 v7, {64*t}, v6')
        A(f'v_add_u32 v{20+t}, v4, v7')
    A('v_lshlrev_b32 v7, 8, v16')
    A('v_lshl_add_u32 v7, v1, 4, v7')
    A(f'v_add_u32 v7, {QL}, v7')
    A(f'v_mov_b32 v8, {ZL}')
    for x in range(4):
        A(f'v_cmp_eq_u32 vcc, {x}, v5')
        A('s_nop 1')
        A(f'v_cndmask_b32 v{32+x}, v8, v7, vcc')
    A('s_lshl_b32 s59, s6, 8'); A(f's_add_u32 s59, s59, {QL}')
    A('v_bfe_u32 v9, v0, 3, 2'); A('v_lshlrev_b32 v9, 6, v9')
    A('v_and_b32 v8, 1, v0'); A('v_lshl_add_u32 v9, v8, 5, v9')
    A('v_lshrrev_b32 v8, 5, v0'); A('v_lshl_add_u32 v9, v8, 3, v9')
    A('v_bfe_u32 v8, v0, 1, 2'); A('v_lshl_add_u32 v9, v8, 1, v9')
    A('v_add_u32 v9, s59, v9')
    A('v_lshlrev_b32 v18, 4, v16')
    A('s_lshl_b32 s59, s6, 2'); A(f's_add_u32 s59, s59, {ML}')
    A('v_add_u32 v18, s59, v18')
    A('v_lshl_add_u32 v17, v1, 2, v16')
    A('v_lshlrev_b32 v17, 4, v17')
    A('v_lshrrev_b32 v8, 1, v5'); A('v_lshl_add_u32 v17, v8, 8, v17')
    A('v_and_b32 v8, 1, v5'); A('v_lshl_add_u32 v17, v8, 3, v17')
    A('s_lshl_b32 s59, s6, 10'); A(f's_add_u32 s59, s59, {PX}')
    A('v_add_u32 v17, s59, v17')
    A(f's_mov_b32 s62, 0x{SCALE:x}')
    A(f's_mov_b32 s63, 0x{LOG2E:x}')
    A('s_waitcnt vmcnt(36) lgkmcnt(0)')
    A(f's_add_u32 s7, s7, 0x{TAGC:x}')
    for i in range(4):
        x = XG + i; g = XG + 4 + i
        A(f'v_lshlrev_b32 v36, 16, v{x}'); A(f'v_and_b32 v37, 0xffff0000, v{x}')
        A(f'v_lshlrev_b32 v38, 16, v{g}'); A(f'v_and_b32 v39, 0xffff0000, v{g}')
        A('v_mul_f32 v36, v36, v38'); A('v_mul_f32 v37, v37, v39')
        A('v_cvt_pk_bf16_f32 v36, v36, v37')
        if i == 0:
            A(f'v_lshlrev_b32 v{XG+8}, 16, v36'); A(f'v_and_b32 v{XG+9}, 0xffff0000, v36')
        else:
            A('v_lshlrev_b32 v38, 16, v36'); A('v_and_b32 v39, 0xffff0000, v36')
            A(f'v_add_f32 v{XG+8}, v{XG+8}, v38'); A(f'v_add_f32 v{XG+9}, v{XG+9}, v39')
    GA = XG + 8
    A(f'v_add_f32 v{GA}, v{GA}, v{GA+1}')
    allred('v_add_f32', GA, GA + 1, quad=True)
    A(f'v_cvt_pk_bf16_f32 v{GA}, v{GA}, v{GA}')
    A(f'v_lshlrev_b32 v{GA}, 16, v{GA}')
    A(f'v_mul_f32 v{GA}, 0x{LOG2E ^ 0x80000000:x}, v{GA}')
    A(f'v_exp_f32 v{GA}, v{GA}')
    A('s_nop 0')
    A(f'v_add_f32 v{GA}, 1.0, v{GA}')
    A(f'v_rcp_f32 v{GA}, v{GA}')
    A('s_nop 0')
    A(f'v_cvt_pk_bf16_f32 v{GA}, v{GA}, v{GA}')
    A(f'v_lshlrev_b32 v{GA}, 16, v{GA}')
    A(f'v_sub_f32 v{GA+1}, 1.0, v{GA}')
    A(f'v_cvt_pk_bf16_f32 v{GA+1}, v{GA+1}, v{GA+1}')
    A(f'v_lshlrev_b32 v{GA+1}, 16, v{GA+1}')
    A('s_lshl_b32 s59, s6, 3'); A(f's_add_u32 s59, s59, {GL}'); A('v_mov_b32 v6, s59')
    A(f'ds_write_b64 v6, v[{GA}:{GA+1}]')
    A(f's_mov_b32 s59, {spin}')
    A.lab('L_pollq')
    A('s_waitcnt vmcnt(0)')
    A(f'v_xor_b32 v6, s7, v{QP+1}'); A(f'v_xor_b32 v7, s7, v{QP+3}')
    for k in range(1, 4):
        A(f'v_bitop3_b32 v6, v{QP+4*k+1}, s7, v6 bitop3:0xbe'); A(f'v_bitop3_b32 v7, v{QP+4*k+3}, s7, v7 bitop3:0xbe')
    A('v_or_b32 v6, v6, v7')
    A('v_cmp_ne_u32 vcc, 0, v6')
    A('s_cbranch_vccz L_gotq')
    A('s_sub_u32 s59, s59, 1')
    A('s_cbranch_scc1 L_gotq')
    pollq()
    A('s_branch L_pollq')
    A.lab('L_gotq')
    stamp(3)
    A(f'v_add_f32 v24, v{QP}, v{QP+4}'); A(f'v_add_f32 v25, v{QP+2}, v{QP+6}')
    A(f'v_add_f32 v26, v{QP+8}, v{QP+12}'); A(f'v_add_f32 v27, v{QP+10}, v{QP+14}')
    A('v_add_f32 v24, v24, v26'); A('v_add_f32 v25, v25, v27')
    A('v_cvt_pk_bf16_f32 v24, v24, v25')
    A(f'v_mov_b32 v6, {CNT+4}'); A('v_mov_b32 v7, 1')
    A('ds_write_b16 v9, v24')
    A('ds_write_b16_d16_hi v9, v24 offset:16')
    A('s_mov_b64 exec, 1')
    A('s_waitcnt lgkmcnt(0)')
    A('ds_add_u32 v6, v7')
    A('s_mov_b64 exec, -1')
    rdk_first = True
    Qb = [R1, R1 + 16]; Kb = [R1 + 32, R1 + 48]
    def rdq(x):
        for t in range(4): A(f'ds_read_b128 {vr(Qb[x&1]+4*t,4)}, v{32+x} offset:{64*t}')
    def rdk(T_, buf):
        for t in range(4): A(f'ds_read_b128 {vr(Kb[buf]+4*t,4)}, v{20+t} offset:{4096*T_}')
    def mm(T_, buf):
        x = T_ & 3; a = T_ >> 2
        for t in range(4):
            c = '0' if (x == 0 and t == 0) else vr(ACC+4*a, 4)
            A(f'v_mfma_f32_16x16x32_bf16 {vr(ACC+4*a,4)}, {vr(Kb[buf]+4*t,4)}, {vr(Qb[x&1]+4*t,4)}, {c}')
    rdk(0, 0); rdk(4, 1)
    A(f's_mov_b32 s59, {spin}')
    A.lab('L_qspin')
    A('ds_read_b32 v7, v6')
    A('s_waitcnt lgkmcnt(0)')
    A('v_readfirstlane_b32 s56, v7')
    A('s_cmp_eq_u32 s56, 4')
    A('s_cbranch_scc1 L_qall')
    A('s_sub_u32 s59, s59, 1')
    A('s_cbranch_scc0 L_qspin')
    A.lab('L_qall')
    rdq(0)
    for x in range(4):
        A('s_waitcnt lgkmcnt(%d)' % (0 if x == 0 else 4))
        mm(x, 0)
        if x < 3:
            rdq(x + 1)
            A('s_waitcnt lgkmcnt(4)')
        else:
            A('s_waitcnt lgkmcnt(0)')
        mm(x + 4, 1)
        if x < 3:
            rdk(x + 1, 0); rdk(x + 5, 1)
    A('s_nop 7')
    S = ACC
    for p in range(4): A(f'v_cvt_pk_bf16_f32 v{28+p}, v{S+2*p}, v{S+2*p+1}')
    for p in range(4):
        A(f'v_lshlrev_b32 v{S+2*p}, 16, v{28+p}'); A(f'v_and_b32 v{S+2*p+1}, 0xffff0000, v{28+p}')
    for i in range(8): A(f'v_mul_f32 v{S+i}, s62, v{S+i}')
    for p in range(4): A(f'v_cvt_pk_bf16_f32 v{28+p}, v{S+2*p}, v{S+2*p+1}')
    for p in range(4):
        A(f'v_lshlrev_b32 v{S+2*p}, 16, v{28+p}'); A(f'v_and_b32 v{S+2*p+1}, 0xffff0000, v{28+p}')
    A(f'v_max3_f32 v28, v{S}, v{S+1}, v{S+2}')
    A(f'v_max3_f32 v29, v{S+3}, v{S+4}, v{S+5}')
    A(f'v_max3_f32 v28, v28, v{S+6}, v{S+7}')
    A('v_max_f32 v28, v28, v29')
    allred('v_max_f32', 28, 29)
    A('v_mul_f32 v36, s63, v28')
    for i in range(8): A(f'v_fma_f32 v{S+i}, v{S+i}, s63, -v36')
    for i in range(8): A(f'v_exp_f32 v{S+i}, v{S+i}')
    A('ds_write_b32 v18, v36')
    for p in range(4): A(f'v_cvt_pk_bf16_f32 v{32+p}, v{S+2*p}, v{S+2*p+1}')
    A('ds_write_b64 v17, v[32:33]')
    A('ds_write_b64 v17, v[34:35] offset:512')
    A(f'v_add_f32 v28, v{S}, v{S+1}'); A(f'v_add_f32 v29, v{S+2}, v{S+3}')
    A(f'v_add_f32 v30, v{S+4}, v{S+5}'); A(f'v_add_f32 v31, v{S+6}, v{S+7}')
    A('v_add_f32 v28, v28, v29'); A('v_add_f32 v30, v30, v31'); A('v_add_f32 v28, v28, v30')
    allred('v_add_f32', 28, 29)
    A('ds_write_b32 v18, v28 offset:64')
    A('v_lshlrev_b32 v7, 4, v16'); A(f'v_add_u32 v7, {ML}, v7')
    A('s_lshl_b32 s59, s49, 2'); A('s_add_u32 s59, s59, s48')
    A('s_lshl_b32 s56, s3, 4'); A('s_add_u32 s56, s56, s59')
    A('s_lshl_b32 s56, s56, 7'); A(f's_add_u32 s56, s56, 0x{WS_ML:x}')
    A('v_lshrrev_b32 v13, 3, v0'); A('v_lshlrev_b32 v12, 11, v13'); A('v_and_b32 v8, 7, v0'); A('v_lshl_add_u32 v12, v8, 4, v12')
    A('v_lshlrev_b32 v13, 7, v13')
    A('s_lshl_b32 s50, s3, 15'); A('s_lshl_b32 s59, s48, 9'); A('s_add_u32 s50, s50, s59'); A('s_lshl_b32 s59, s6, 7'); A('s_add_u32 s50, s50, s59')
    A(f's_add_u32 s50, s50, 0x{WS_O:x}'); A('s_add_u32 s51, s50, 16384')
    A('s_lshl_b32 s52, s3, 11'); A('s_lshl_b32 s59, s48, 4'); A('s_add_u32 s52, s52, s59'); A(f's_add_u32 s52, s52, 0x{WS_ML:x}')
    A('s_lshl_b32 s59, s6, 8'); A(f's_add_u32 s59, s59, {OX}')
    A('v_and_b32 v17, 31, v0'); A('v_lshlrev_b32 v17, 3, v17'); A('v_add_u32 v17, s59, v17')
    A('v_lshlrev_b32 v8, 6, v16'); A('v_lshl_add_u32 v8, v1, 4, v8'); A('v_add_u32 v8, s59, v8')
    A(f'v_mov_b32 v9, {ZL}')
    for x in range(4):
        A(f'v_cmp_eq_u32 vcc, {x}, v5')
        A('s_nop 1')
        A(f'v_cndmask_b32 v{208+x}, v9, v8, vcc')
    A('s_lshl_b32 s59, s6, 11'); A(f's_add_u32 s59, s59, {PL}')
    A('v_add_u32 v19, s59, v14')
    A('s_lshl_b32 s59, s6, 9'); A(f's_add_u32 s59, s59, {PL}')
    A('v_lshlrev_b32 v18, 3, v0'); A('v_add_u32 v18, s59, v18')
    A('v_mov_b32 v37, s7'); A('v_mov_b32 v39, s7')
    A('v_mov_b32 v9, s7'); A('v_mov_b32 v11, s7')
    A(f'v_mov_b32 v6, {CNT+12}'); A('v_mov_b32 v8, 1')
    A('s_mov_b64 exec, 1')
    A('ds_add_rtn_u32 v8, v6, v8')
    A('s_mov_b64 exec, -1')
    A('ds_read_b128 v[20:23], v7')
    A('ds_read_b128 v[24:27], v7 offset:64')
    A('s_waitcnt lgkmcnt(0)')
    A('v_readfirstlane_b32 s59, v8')
    A('s_cmp_lg_u32 s59, 3')
    A('s_cbranch_scc1 L_noml')
    A('v_max3_f32 v36, v20, v21, v22'); A('v_max_f32 v36, v36, v23')
    for w in range(4): A(f'v_sub_f32 v{20+w}, v{20+w}, v36')
    for w in range(4): A(f'v_exp_f32 v{20+w}, v{20+w}')
    A('s_nop 0')
    A('v_mul_f32 v38, v20, v24')
    for w in range(1, 4): A(f'v_fmac_f32 v38, v{20+w}, v{24+w}')
    A('s_mov_b64 exec, 15')
    A('buffer_store_dwordx4 v[36:39], v14, s[20:23], s56 offen sc1')
    A('s_mov_b64 exec, -1')
    A.lab('L_noml')
    stamp(4)
    A('s_barrier')
    MLR = 216
    def pollml():
        A(f'buffer_load_dwordx4 v[{MLR}:{MLR+3}], v13, s[20:23], s52 offen sc1')
        A(f'buffer_load_dwordx4 v[{MLR+4}:{MLR+7}], v13, s[20:23], s52 offen offset:1024 sc1')
    def woloads():
        for n in range(8):
            ro = 8 * (n & 3) + 4 * (n >> 2)
            A(f's_add_u32 s59, s58, {ro*1024}')
            A(f'buffer_load_dwordx4 {vr(WO+4*n,4)}, v15, s[16:19], s59 offen{WP}')
    pollml()
    woloads()
    stamp(5)
    A('s_lshl_b32 s56, s3, 2'); A('s_add_u32 s56, s56, s48')
    A('s_lshl_b32 s53, s49, 6'); A('s_add_u32 s53, s53, s56'); A('s_lshl_b32 s53, s53, 12')
    A('s_lshl_b32 s59, s6, 10'); A('s_add_u32 s53, s53, s59'); A(f's_add_u32 s53, s53, 0x{WS_P:x}')
    A('s_and_b32 s56, s2, 7'); A('s_lshl_b32 s59, s5, 3'); A('s_add_u32 s56, s56, s59')
    A('s_lshr_b32 s58, s56, 5')
    A('s_and_b32 s56, s56, 31'); A('s_lshl_b32 s56, s56, 3'); A('s_bfe_u32 s59, s2, 0x10003'); A('s_lshl_b32 s59, s59, 2'); A('s_add_u32 s56, s56, s59')
    A('s_lshl_b32 s97, s58, 18'); A('s_lshl_b32 s59, s56, 4'); A('s_add_u32 s97, s97, s59'); A(f's_add_u32 s97, s97, 0x{WS_P:x}')
    A('s_add_u32 s98, s97, 65536'); A('s_add_u32 s99, s98, 65536'); A('s_add_u32 s100, s99, 65536')
    A('v_lshrrev_b32 v212, 2, v0'); A('v_lshlrev_b32 v212, 12, v212'); A('v_lshl_add_u32 v212, v16, 4, v212')
    A('v_add_u32 v6, s56, v16')
    A('v_bfe_u32 v7, v6, 1, 2')
    A('v_lshlrev_b32 v214, 3, v7'); A(f'v_add_u32 v214, {GL}, v214')
    A('ds_read_b64 v[214:215], v214')
    A('v_lshlrev_b32 v213, 9, v7')
    A('s_lshl_b32 s58, s58, 7'); A('v_add_u32 v213, s58, v213')
    A('v_bfe_u32 v7, v6, 5, 2'); A('v_lshl_add_u32 v213, v7, 5, v213')
    A('v_and_b32 v7, 1, v6'); A('v_lshl_add_u32 v213, v7, 4, v213')
    A('v_and_b32 v7, 1, v1'); A('v_lshl_add_u32 v213, v7, 3, v213')
    A('v_lshrrev_b32 v7, 7, v6'); A('v_lshl_add_u32 v213, v7, 2, v213')
    A('v_bfe_u32 v7, v6, 3, 2'); A('v_add_u32 v213, v213, v7')
    A('v_lshlrev_b32 v213, 1, v213')
    FA = 224
    def mlcheck():
        A(f'v_xor_b32 v6, s7, v{MLR+1}'); A(f'v_xor_b32 v7, s7, v{MLR+3}')
        A(f'v_bitop3_b32 v6, v{MLR+5}, s7, v6 bitop3:0xbe'); A(f'v_bitop3_b32 v7, v{MLR+7}, s7, v7 bitop3:0xbe')
        A('v_or_b32 v6, v6, v7')
        A('v_cmp_ne_u32 vcc, 0, v6')
    def mlfactors():
        A(f'v_max_f32 v6, v{MLR}, v{MLR+4}')
        A('v_mov_b32 v7, v6'); A('s_nop 1'); A('v_permlane32_swap_b32 v6, v7'); A('s_nop 1'); A('v_max_f32 v6, v6, v7')
        A(f'v_sub_f32 v{FA}, v{MLR}, v6'); A(f'v_sub_f32 v{FA+1}, v{MLR+4}, v6')
        A(f'v_exp_f32 v{FA}, v{FA}'); A(f'v_exp_f32 v{FA+1}, v{FA+1}')
        A('s_nop 0')
        A(f'v_mul_f32 v6, v{FA}, v{MLR+2}'); A(f'v_fmac_f32 v6, v{FA+1}, v{MLR+6}')
        A('v_mov_b32 v7, v6'); A('s_nop 1'); A('v_permlane32_swap_b32 v6, v7'); A('s_nop 1'); A('v_add_f32 v6, v6, v7')
        A('v_rcp_f32 v6, v6')
        A('s_nop 0')
        A(f'v_mul_f32 v{FA}, v{FA}, v6'); A(f'v_mul_f32 v{FA+1}, v{FA+1}, v6')
    H = 20
    def poll1():
        A(f'buffer_load_dwordx4 v[20:23], v12, s[20:23], s50 offen sc1')
        A(f'buffer_load_dwordx4 v[24:27], v12, s[20:23], s51 offen sc1')
    A('s_waitcnt vmcnt(8) lgkmcnt(0)')
    mlcheck()
    A('s_mov_b32 s62, 0')
    A('s_cbranch_vccnz L_mllate')
    mlfactors()
    A('s_mov_b32 s62, 1')
    A.lab('L_mllate')
    A('s_waitcnt vmcnt(0)')
    stamp(2)
    poll1()
    perm_mfma(WO, WT, None)
    A(f's_mov_b32 s59, {spin}')
    A('s_cmp_eq_u32 s62, 1')
    A('s_cbranch_scc1 L_poll1')
    A.lab('L_pollml')
    pollml()
    A('s_waitcnt vmcnt(0)')
    mlcheck()
    A('s_cbranch_vccz L_gotml')
    A('s_sub_u32 s59, s59, 1')
    A('s_cbranch_scc1 L_gotml')
    if sleep: A(f's_sleep {sleep}')
    A('s_branch L_pollml')
    A.lab('L_gotml')
    mlfactors()
    A.lab('L_poll1')
    A('s_waitcnt vmcnt(0)')
    A('v_xor_b32 v6, s7, v21'); A('v_xor_b32 v7, s7, v23')
    A('v_bitop3_b32 v6, v25, s7, v6 bitop3:0xbe'); A('v_bitop3_b32 v7, v27, s7, v7 bitop3:0xbe')
    A('v_or_b32 v6, v6, v7')
    A('v_cmp_ne_u32 vcc, 0, v6')
    A('s_cbranch_vccz L_got1')
    A('s_sub_u32 s59, s59, 1')
    A('s_cbranch_scc1 L_got1')
    if sleep: A(f's_sleep {sleep}')
    poll1()
    A('s_branch L_poll1')
    A.lab('L_got1')
    stamp(8)
    A('v_lshlrev_b32 v28, 16, v20'); A('v_and_b32 v29, 0xffff0000, v20'); A('v_lshlrev_b32 v30, 16, v22'); A('v_and_b32 v31, 0xffff0000, v22')
    A('v_lshlrev_b32 v32, 16, v24'); A('v_and_b32 v33, 0xffff0000, v24'); A('v_lshlrev_b32 v34, 16, v26'); A('v_and_b32 v35, 0xffff0000, v26')
    for r in range(4): A(f'v_mul_f32 v{28+r}, v{FA}, v{28+r}')
    for r in range(4): A(f'v_fmac_f32 v{28+r}, v{FA+1}, v{32+r}')
    for r in range(4): A(f'v_mov_b32 v{32+r}, v{28+r}')
    A('s_nop 0')
    for r in range(4): A(f'v_permlane32_swap_b32 v{28+r}, v{32+r}')
    A('s_nop 0')
    for r in range(4): A(f'v_add_f32 v{28+r}, v{28+r}, v{32+r}')
    A('v_cvt_pk_bf16_f32 v20, v28, v29'); A('v_cvt_pk_bf16_f32 v21, v30, v31')
    A('ds_write_b64 v17, v[20:21]')
    for e in range(4): A(f'ds_read_b128 {vr(PB+4*e,4)}, v{208+e}')
    for e in range(4):
        A(f's_waitcnt lgkmcnt({3-e})')
        for idx in range(2):
            c = '0' if e == 0 else vr(ACC + 4 * idx, 4)
            A(f'v_mfma_f32_16x16x32_bf16 {vr(ACC+4*idx,4)}, {vr(WT+4*(4*idx+e),4)}, {vr(PB+4*e,4)}, {c}')
    A('s_nop 6')
    A(f'ds_write_b128 v19, {vr(ACC,4)}')
    A(f'ds_write_b128 v19, {vr(ACC+4,4)} offset:1024')
    A('s_waitcnt lgkmcnt(0)')
    stamp(15)
    A('s_barrier')
    for w in range(4): A(f'ds_read_b64 v[{20+2*w}:{21+2*w}], v18 offset:{2048*w}')
    A('s_waitcnt lgkmcnt(2)')
    A('v_add_f32 v20, v20, v22'); A('v_add_f32 v21, v21, v23')
    A('s_waitcnt lgkmcnt(0)')
    A('v_add_f32 v24, v24, v26'); A('v_add_f32 v25, v25, v27')
    A('v_add_f32 v8, v20, v24'); A('v_add_f32 v10, v21, v25')
    A('buffer_store_dwordx4 v[8:11], v14, s[20:23], s53 offen sc1')
    stamp(9)
    A('s_cmp_lg_u32 s6, 0')
    A('s_cbranch_scc1 L_end')
    if ackfirst: A('s_waitcnt vmcnt(0)')
    A(f's_mov_b32 s59, {spin}')
    A.lab('L_poll2')
    for k in range(4): A(f'buffer_load_dwordx4 v[{20+4*k}:{23+4*k}], v212, s[20:23], s{97+k} offen sc1')
    A('s_waitcnt vmcnt(0)')
    A('v_xor_b32 v6, s7, v21'); A('v_xor_b32 v7, s7, v23')
    for k in range(1, 4):
        A(f'v_bitop3_b32 v6, v{21+4*k}, s7, v6 bitop3:0xbe'); A(f'v_bitop3_b32 v7, v{23+4*k}, s7, v7 bitop3:0xbe')
    A('v_or_b32 v6, v6, v7')
    A('v_cmp_ne_u32 vcc, 0, v6')
    A('s_cbranch_vccz L_got2')
    A('s_sub_u32 s59, s59, 1')
    A('s_cbranch_scc1 L_got2')
    if sleep: A(f's_sleep {sleep}')
    A('s_branch L_poll2')
    A.lab('L_got2')
    stamp(10)
    A('v_add_f32 v20, v20, v24'); A('v_add_f32 v28, v28, v32')
    A('v_add_f32 v22, v22, v26'); A('v_add_f32 v30, v30, v34')
    A('s_nop 0')
    A('v_permlane32_swap_b32 v20, v28'); A('v_permlane32_swap_b32 v22, v30')
    A('s_nop 0')
    A('v_add_f32 v20, v20, v28'); A('v_add_f32 v22, v22, v30')
    A('s_nop 1')
    A('v_permlane16_swap_b32 v20, v22')
    A('s_nop 1')
    A('v_add_f32 v20, v20, v22')
    A('s_nop 1'); A('v_add_f32_dpp v20, v20, v20 row_ror:4 row_mask:0xf bank_mask:0xf')
    A('s_nop 1'); A('v_add_f32_dpp v20, v20, v20 row_ror:8 row_mask:0xf bank_mask:0xf')
    A('v_mov_b32 v21, v20'); A('s_nop 1'); A('v_permlane32_swap_b32 v20, v21')
    A('s_nop 1')
    A('v_cvt_pk_bf16_f32 v20, v20, v21')
    A('v_lshlrev_b32 v21, 16, v20'); A('v_and_b32 v22, 0xffff0000, v20')
    A('v_mul_f32 v21, v21, v214'); A('v_mul_f32 v22, v22, v215')
    A('v_cvt_pk_bf16_f32 v20, v21, v22')
    A('v_lshlrev_b32 v21, 16, v20'); A('v_and_b32 v22, 0xffff0000, v20')
    A('v_add_f32 v21, v21, v22')
    A('v_cvt_pk_bf16_f32 v20, v21, v21')
    A('s_mov_b64 exec, 0x000f000f')
    A('buffer_store_short v20, v213, s[24:27], 0 offen')
    A('s_cmp_lg_u32 s2, 0')
    A('s_cbranch_scc1 L_fin')
    A('s_mov_b64 exec, 1')
    A('v_mov_b32 v6, s7')
    A(f'buffer_store_dword v6, v14, s[20:23], 0 offen offset:{WS_EPOCH}')
    A.lab('L_fin')
    if dbg:
        A('s_memrealtime s[66:67]')
        A('s_load_dwordx2 s[68:69], s[0:1], 96')
        A('s_getreg_b32 s70, hwreg(HW_REG_XCC_ID)')
        A('s_and_b32 s70, s70, 7'); A('s_lshl_b32 s70, s70, 2')
        A('s_mov_b64 exec, 1')
        A('s_waitcnt lgkmcnt(0)')
        A('s_not_b32 s64, s64')
        A('v_mov_b32 v6, s70'); A('v_mov_b32 v7, s64'); A('v_mov_b32 v8, s66')
        A('global_atomic_umax v6, v7, s[68:69] sc1')
        A('global_atomic_umax v6, v8, s[68:69] offset:32 sc1')
    if stamps:
        stamp(11)
        A('s_mov_b64 exec, -1')
        A('s_cmp_lg_u32 s6, 0'); A('s_cbranch_scc1 L_end')
        dump_stamps(0, 6); dump_stamps(8, 12); dump_stamps(15, 16)
    A.lab('L_end')
    A('s_endpgm')
    A.lab('L_code_end')
    out += A.L
    out += ['.section .rodata,"a"', '.p2align 6', f'.amdhsa_kernel {KN}_kernel',
            '  .amdhsa_next_free_vgpr 256', '  .amdhsa_next_free_sgpr 102', '  .amdhsa_accum_offset 256',
            '  .amdhsa_group_segment_fixed_size 0', '  .amdhsa_kernarg_size 112', '  .amdhsa_user_sgpr_count 2',
            '  .amdhsa_user_sgpr_kernarg_segment_ptr 1', '  .amdhsa_system_sgpr_workgroup_id_x 1', '.end_amdhsa_kernel']
    return '\n'.join(out) + '\n'

if __name__ == '__main__':
    ap = argparse.ArgumentParser()
    ap.add_argument('-o', default='k.s')
    ap.add_argument('--set', action='append', default=[])
    a = ap.parse_args()
    kw = {}
    for s in a.set:
        k, v = s.split('=')
        try: v = int(v)
        except ValueError: pass
        kw[k] = v
    open(a.o, 'w').write(gen(**kw))
```

```python
import sys, argparse
KN = 'gated_mix__sliding_block_cached__sliding_block_cached__decode'
HEADER = open('cdna_kernels/' + KN + '.s.ref').read().split('; Override launch')[0]

WS_EPOCH = 0x0
WS_ML = 0x1000
WS_O = 0x40000
WS_P = 0xC0000
WS_Q = 0x1C0000
WS_LOC = 0x300000
WS_BYTES = 285221888
STAMP_OFF = 64 << 20
TAGC = 0x9E3779B1
KL = 0
QL = 131072
ZL = QL + 1024
PX = ZL + 1024
ML = PX + 4096
LL = ML + 64
CNT = LL + 64
GL = CNT + 64
OX = GL + 64
OL = OX + 1024
LDS_BYTES = OL + 8192
LOG2E = 0x3FB8AA3B
SCALE = 0x3DB504F3

class G:
    def __init__(s): s.L = []
    def __call__(s, *ts):
        for t in ts: s.L.append('  ' + t)
    def lab(s, t): s.L.append(t + ':')
    def c(s, t): s.L.append('  ; ' + t)

def vr(a, n=1):
    return f'v{a}' if n == 1 else f'v[{a}:{a+n-1}]'

def gen(stamps=False, pol='nt', wpol='nt', spin=200000, prefetch=True, thr=0, sleep=1, touch=1, kprio=1, vprio=3,
        rotmul=4, ackfirst=1, n2=48, dyn=0, xq=0, xml=0, gran=4, xpoll=0, masked=0, sleep2=-1, x2=0, dual=1, dq=1, fb=64):
    A = G()
    P = (' ' + pol) if pol else ''
    WP = (' ' + wpol) if wpol else ''
    out = [HEADER.rstrip('\n'),
           '; Override launch geometry by editing the next line (default: block=256,',
           '; grid=ceil(out_elems/256), lds=0). Harness parses it; keep it on one line.',
           f'; @launch grid=(256,1,1) block=(512,1,1) lds={LDS_BYTES}',
           '.amdgcn_target "amdgcn-amd-amdhsa--gfx950"', '.text', f'.globl {KN}_kernel', '.p2align 8',
           f'.type {KN}_kernel,@function', f'{KN}_kernel:']
    SLO, SHI = 's60', 's61'
    if sleep2 < 0: sleep2 = sleep
    def stamp(i):
        if stamps: A(f's_memrealtime s[{64+2*i}:{65+2*i}]')
    def allred(op, r, t, quad=False):
        if quad:
            A('s_nop 1', f'{op}_dpp v{r}, v{r}, v{r} quad_perm:[1,0,3,2] row_mask:0xf bank_mask:0xf')
            A('s_nop 1', f'{op}_dpp v{r}, v{r}, v{r} quad_perm:[2,3,0,1] row_mask:0xf bank_mask:0xf')
        A('s_nop 1', f'{op}_dpp v{r}, v{r}, v{r} row_ror:4 row_mask:0xf bank_mask:0xf')
        A('s_nop 1', f'{op}_dpp v{r}, v{r}, v{r} row_ror:8 row_mask:0xf bank_mask:0xf')
        A(f'v_mov_b32 v{t}, v{r}', 's_nop 1', f'v_permlane16_swap_b32 v{r}, v{t}', 's_nop 1', f'{op} v{r}, v{r}, v{t}')
        A(f'v_mov_b32 v{t}, v{r}', 's_nop 1', f'v_permlane32_swap_b32 v{r}, v{t}', 's_nop 1', f'{op} v{r}, v{r}, v{t}')
    def perm_mfma(src, T, mf):
        for dp in range(4):
            for d in range(4):
                A(f'v_perm_b32 v{T+4*(2*dp)+d}, v{src+4*(2*d+1)+dp}, v{src+4*(2*d)+dp}, {SLO}')
            if dp > 0 and mf: mf(2 * dp - 1)
            for d in range(4):
                A(f'v_perm_b32 v{T+4*(2*dp+1)+d}, v{src+4*(2*d+1)+dp}, v{src+4*(2*d)+dp}, {SHI}')
            if mf: mf(2 * dp)
        if mf:
            A('s_nop 1'); mf(7)
    def tagcheck(regs):
        A(f'v_xor_b32 v6, s7, v{regs[0]+1}', f'v_xor_b32 v7, s7, v{regs[0]+3}')
        for r in regs[1:]:
            A(f'v_bitop3_b32 v6, v{r+1}, s7, v6 bitop3:0xbe', f'v_bitop3_b32 v7, v{r+3}, s7, v7 bitop3:0xbe')
        A('v_or_b32 v6, v6, v7', 'v_cmp_ne_u32 vcc, 0, v6')
    def versions(dst, good, bad):
        for e in range(4):
            A(f'v_cmp_eq_u32 vcc, {e}, v5', 's_nop 1', f'v_cndmask_b32 v{dst+e}, v{bad}, v{good}, vcc')
    def fallback(n, regs):
        A(f's_cmp_eq_u32 s59, {spin - n}', f's_cselect_b32 s101, 0x{WS_LOC:x}, 0')
        for r in regs: A(f's_sub_u32 {r}, {r}, s101')
    def dump_stamps(idx):
        A('s_waitcnt lgkmcnt(0)')
        A('s_lshl_b32 s59, s2, 7', f's_add_u32 s59, s59, 0x{STAMP_OFF:x}', 'v_mov_b32 v7, 0')
        for i in idx:
            A(f'v_mov_b32 v8, s{64+2*i}', f'v_mov_b32 v9, s{65+2*i}')
            A(f'buffer_store_dwordx2 v[8:9], v7, s[20:23], s59 offen offset:{8*i}', 's_nop 1')

    A('s_cmp_ge_u32 s2, 256', 's_cbranch_scc1 L_end')
    stamp(0)
    A('s_and_b32 s3, s2, 15')
    A('s_lshr_b32 s48, s3, 3', 's_mul_i32 s48, s48, 40')
    A('s_add_u32 s50, s0, s48', 's_addc_u32 s51, s1, 0')
    A('s_load_dwordx4 s[32:35], s[50:51], 8')
    A('s_load_dwordx2 s[36:37], s[50:51], 24')
    A('s_load_dwordx2 s[40:41], s[0:1], 0')
    A('s_load_dwordx8 s[44:51], s[0:1], 80')
    A('s_load_dwordx2 s[38:39], s[0:1], 32')
    A('s_load_dwordx2 s[42:43], s[0:1], 72')
    A('v_lshrrev_b32 v1, 6, v0', 'v_and_b32 v0, 63, v0', 's_and_b32 s4, s3, 7')
    A('v_readfirstlane_b32 s6, v1', 's_lshr_b32 s5, s2, 4', 'v_lshlrev_b32 v14, 4, v0')
    if prefetch:
        A.c("warm L2 with this kernel's own code: one dword per 32 bytes")
        A('s_getpc_b64 s[52:53]')
        A.lab('L_pc')
        A(f's_sub_u32 s52, s52, L_pc-{KN}_kernel', 's_subb_u32 s53, s53, 0')
        A('v_lshlrev_b32 v2, 11, v1', 'v_lshl_add_u32 v2, v0, 5, v2')
        A(f'v_min_u32 v2, L_code_end-{KN}_kernel-4, v2')
        A('v_mov_b32 v3, s53', 'v_add_co_u32 v2, vcc, s52, v2', 's_nop 1', 'v_addc_co_u32 v3, vcc, 0, v3, vcc')
        A('global_load_dword v40, v[2:3], off')
    A(f's_mov_b32 {SLO}, 0x05040100', f's_mov_b32 {SHI}, 0x07060302')
    A('s_mov_b32 s10, 0x4000000', 's_mov_b32 s11, 0x20000')
    A('s_mov_b32 s18, 0x400000', 's_mov_b32 s19, 0x20000')
    A(f's_mov_b32 s22, {WS_BYTES}', 's_mov_b32 s23, 0x20000')
    A('s_mov_b32 s26, 4096', 's_mov_b32 s27, 0x20000')
    A('s_lshr_b32 s58, s5, 2', 's_and_b32 s59, s5, 3')
    A('s_and_b32 s62, s6, 4', 's_and_b32 s6, s6, 3')
    A('s_lshl_b32 s54, s58, 24', 's_lshl_b32 s55, s4, 21', 's_add_u32 s54, s54, s55')
    A('s_lshl_b32 s55, s59, 17', 's_add_u32 s54, s54, s55', 's_add_u32 s54, s54, 0x180000')
    A('s_lshl_b32 s55, s6, 15')
    A('s_lshl_b32 s63, s59, 2', 's_add_u32 s63, s63, s58', 's_lshl_b32 s56, s3, 4', 's_add_u32 s63, s63, s56')
    A(f's_mul_i32 s96, s2, {rotmul}', 's_add_u32 s96, s96, s6', 's_lshl_b32 s96, s96, 12')
    A('v_lshrrev_b32 v1, 4, v0')
    A('v_and_b32 v2, 15, v0')
    A('v_bfe_u32 v5, v0, 2, 2')
    A('v_and_b32 v16, 3, v0')
    A('s_cmp_eq_u32 s62, 4', 's_cbranch_scc1 L_kwave')

    issued = [0]
    def thro():
        issued[0] += 1
        if thr and issued[0] > thr: A(f's_waitcnt vmcnt({thr})')
    def nextblock():
        A('s_and_b32 s56, s96, 0x1ffff', 's_add_u32 s56, s56, s54', 's_add_u32 s96, s96, 16384')

    V0 = 128; PB = 64; T = 32; ACC = 24
    WQ = 64; XB = 96
    if vprio: A(f's_setprio {vprio}')
    A('v_lshlrev_b32 v9, 16, v1', 'v_lshl_add_u32 v9, v2, 4, v9')
    A('v_lshlrev_b32 v8, 4, v1', 'v_lshl_add_u32 v8, v16, 10, v8')
    A('v_bfrev_b32 v10, 1')
    versions(20, 8, 10)
    A('s_lshl_b32 s57, s59, 2', 's_add_u32 s57, s57, s6')
    A('s_lshl_b32 s56, s57, 18', 's_lshl_b32 s59, s4, 10', 's_add_u32 s56, s56, s59')
    A('s_lshl_b32 s59, s58, 8', 's_add_u32 s56, s56, s59')
    A('s_lshl_b32 s57, s57, 6')
    A('s_waitcnt lgkmcnt(0)')
    A('s_mov_b32 s16, s36', 's_mov_b32 s17, s37', 's_mov_b32 s24, s40', 's_mov_b32 s25, s41')
    for i in range(8):
        A(f'buffer_load_dwordx4 {vr(WQ+4*i,4)}, v9, s[16:19], s56 offen{WP}')
        if i < 7: A('s_add_u32 s56, s56, 8192')
    for e in range(4): A(f'buffer_load_dwordx4 {vr(XB+4*e,4)}, v{20+e}, s[24:27], s57 offen')
    A('s_load_dword s7, s[50:51], 0x%x' % WS_EPOCH)
    A('s_barrier')
    A('s_mov_b32 s20, s50', 's_mov_b32 s21, s51', 's_mov_b32 s8, s34', 's_mov_b32 s9, s35')
    A('s_lshl_b32 s59, s6, 11', f's_add_u32 s59, s59, {OL}', 'v_add_u32 v19, s59, v14')
    A('v_lshrrev_b32 v13, 5, v0', 'v_lshlrev_b32 v13, 10, v13')
    A('v_bfe_u32 v10, v0, 1, 4', 'v_lshl_add_u32 v13, v10, 6, v13')
    A('v_and_b32 v10, 1, v0', 'v_lshl_add_u32 v13, v10, 3, v13')
    A(f'v_add_u32 v13, {OL}, v13')
    A(f'v_mov_b32 v10, {CNT}', 'v_mov_b32 v11, 1')
    A('s_lshl_b32 s57, s3, 16', 's_lshl_b32 s59, s5, 10', 's_add_u32 s57, s57, s59', f's_add_u32 s57, s57, 0x{WS_Q:x}')
    A('s_waitcnt vmcnt(0)')
    def mfq(e):
        idx = e >> 2
        c = '0' if (e & 3) == 0 else vr(ACC + 4 * idx, 4)
        A(f'v_mfma_f32_16x16x32_bf16 {vr(ACC+4*idx,4)}, {vr(T+4*e,4)}, {vr(XB+4*(e&3),4)}, {c}')
    perm_mfma(WQ, T, mfq)
    A('s_nop 6')
    A(f'ds_write_b128 v19, {vr(ACC,4)}', f'ds_write_b128 v19, {vr(ACC+4,4)} offset:1024')
    A('s_mov_b64 exec, 1', 'ds_add_rtn_u32 v11, v10, v11', 's_mov_b64 exec, -1')
    A('s_waitcnt lgkmcnt(0)')
    A(f's_add_u32 s7, s7, 0x{TAGC:x}')
    A('v_readfirstlane_b32 s59, v11', 's_cmp_lg_u32 s59, 3', 's_cbranch_scc1 L_vgo')
    A.c("last arriver: add the four waves' partials and publish them")
    for b in range(4):
        for w in range(4): A(f'ds_read_b64 v[{T+8*b+2*w}:{T+8*b+2*w+1}], v13 offset:{2048*w+16*b}')
        if b == 1: A('s_waitcnt lgkmcnt(4)')
    for b in range(4): A(f'v_mov_b32 v{65+4*b}, s7', f'v_mov_b32 v{67+4*b}, s7')
    for b in range(4):
        A(f's_waitcnt lgkmcnt({4*(3-b)})')
        r = T + 8 * b
        A(f'v_add_f32 v{r}, v{r}, v{r+2}', f'v_add_f32 v{r+1}, v{r+1}, v{r+3}')
        A(f'v_add_f32 v{r+4}, v{r+4}, v{r+6}', f'v_add_f32 v{r+5}, v{r+5}, v{r+7}')
        A(f'v_add_f32 v{64+4*b}, v{r}, v{r+4}', f'v_add_f32 v{66+4*b}, v{r+1}, v{r+5}')
        if dual and dq:
            A(f's_add_u32 s59, s57, 0x{WS_LOC:x}', f'buffer_store_dwordx4 v[{64+4*b}:{67+4*b}], v14, s[20:23], s59 offen')
        if not xq: A(f'buffer_store_dwordx4 v[{64+4*b}:{67+4*b}], v14, s[20:23], s57 offen sc1')
        if b < 3: A('s_add_u32 s57, s57, 16384')
    A.lab('L_vgo')
    if touch:
        A.c('first touch of the pages that are needed late')
        A('s_mov_b32 s24, s46', 's_mov_b32 s25, s47', 's_lshl_b32 s57, s6, 21' if dual else 's_lshl_b32 s57, s6, 20')
        A('buffer_load_dword v17, v14, s[20:23], s57 offen', 'buffer_load_dword v18, v14, s[24:27], 0 offen')
    A('v_lshl_add_u32 v8, v1, 2, v16', 's_lshl_b32 s57, s6, 10', f's_add_u32 s57, s57, {PX}')
    A('v_lshlrev_b32 v8, 4, v8', 'v_add_u32 v8, s57, v8', f'v_mov_b32 v9, {ZL}')
    versions(20, 8, 9)
    A('v_bfe_u32 v12, v0, 3, 2', 'v_lshlrev_b32 v12, 2, v12', 'v_bfe_u32 v8, v0, 1, 2', 'v_add_u32 v12, v12, v8')
    A('v_lshlrev_b32 v12, 2, v12', 'v_add_u32 v12, s6, v12', 'v_lshlrev_b32 v12, 4, v12')
    A('v_and_b32 v8, 1, v0', 'v_lshl_add_u32 v12, v8, 10, v12', f'v_add_u32 v12, {OL}, v12')
    A('s_lshl_b32 s59, s6, 4', f's_add_u32 s59, s59, {ML}', 'v_mov_b32 v13, s59')
    A('s_lshl_b32 s57, s63, 11', 's_lshl_b32 s59, s6, 9', 's_add_u32 s57, s57, s59', f's_add_u32 s57, s57, 0x{WS_O:x}')
    A(f's_add_u32 s58, s57, 0x{WS_LOC:x}')
    A(f'v_mov_b32 v2, {CNT+8}', 'v_mov_b32 v3, 1', 'v_mov_b32 v9, s7', 'v_mov_b32 v11, s7')
    if vprio: A('s_setprio 0')
    A('s_barrier')
    issued[0] = 0
    for n in range(32):
        if n % 4 == 0: nextblock()
        A(f'buffer_load_dwordx4 {vr(V0+4*n,4)}, v14, s[8:11], s56 offen offset:{(n%4)*1024}{P}')
        thro()
    stamp(14)
    A('s_barrier')
    A('ds_read_b128 v[4:7], v13')
    for G_ in range(4):
        for e in range(4): A(f'ds_read_b128 {vr(PB+16*G_+4*e,4)}, v{20+e} offset:{256*G_}')
        if G_ == 1: A('s_waitcnt lgkmcnt(0)')
    A('v_max3_f32 v8, v4, v5, v6', 'v_max_f32 v8, v8, v7')
    for w in range(4): A(f'v_sub_f32 v{4+w}, v{4+w}, v8')
    for w in range(4): A(f'v_exp_f32 v{4+w}, v{4+w}')
    for G_ in range(4):
        if G_ == 2: A(f's_waitcnt vmcnt({8*(3-G_)}) lgkmcnt(0)')
        else: A(f's_waitcnt vmcnt({8*(3-G_)})')
        if G_ == 3: stamp(6)
        def mf(e):
            idx = e >> 2
            c = '0' if (G_ == 0 and (e & 3) == 0) else vr(ACC + 4 * idx, 4)
            A(f'v_mfma_f32_16x16x32_bf16 {vr(ACC+4*idx,4)}, {vr(T+4*e,4)}, {vr(PB+16*G_+4*(e&3),4)}, {c}')
        perm_mfma(V0 + 32 * G_, T, mf)
    stamp(12)
    A(f's_mov_b32 s59, {spin}', 's_nop 5')
    A(f'ds_write_b128 v19, {vr(ACC,4)}', f'ds_write_b128 v19, {vr(ACC+4,4)} offset:1024')
    A('s_mov_b64 exec, 1', 'ds_add_u32 v2, v3', 's_mov_b64 exec, -1')
    A.lab('L_ospin')
    A('ds_read_b32 v3, v2')
    for w in range(4): A(f'ds_read_b128 v[{64+4*w}:{67+4*w}], v12 offset:{2048*w}')
    A('s_waitcnt lgkmcnt(4)')
    A('v_readfirstlane_b32 s56, v3', 's_cmp_eq_u32 s56, 4', 's_cbranch_scc1 L_oall')
    A('s_sub_u32 s59, s59, 1', 's_cbranch_scc0 L_ospin')
    A.lab('L_oall')
    stamp(13)
    A('s_waitcnt lgkmcnt(3)')
    for r in range(4): A(f'v_mul_f32 v{24+r}, v4, v{64+r}')
    for w in range(1, 4):
        A(f's_waitcnt lgkmcnt({3-w})')
        for r in range(4): A(f'v_fmac_f32 v{24+r}, v{4+w}, v{64+4*w+r}')
    A('v_cvt_pk_bf16_f32 v8, v24, v25', 'v_cvt_pk_bf16_f32 v10, v26, v27')
    A('s_mov_b32 exec_hi, 0')
    if dual: A('buffer_store_dwordx4 v[8:11], v14, s[20:23], s58 offen')
    A('buffer_store_dwordx4 v[8:11], v14, s[20:23], s57 offen sc1')
    if stamps:
        A('s_mov_b32 exec_hi, -1')
        stamp(7)
        A('s_cmp_lg_u32 s6, 0', 's_cbranch_scc1 L_end')
        dump_stamps([6, 7, 12, 13, 14])
    A('s_endpgm')

    A.lab('L_kwave')
    R1 = 64; PB = 48; ACC = 40; WO = 128; WT = 160; XG = 192; WO2 = 64; WT2 = 96; ACC2 = 228
    if kprio: A(f's_setprio {kprio}')
    for i in (2, 5, 8, 9, 15): stamp(i)
    A('v_lshlrev_b32 v3, 2, v1', 'v_xor_b32 v3, v3, v2', 'v_lshlrev_b32 v8, 8, v1')
    for n in range(4): A(f'v_xor_b32 v9, {n}, v3', f'v_lshl_add_u32 v{10+n}, v9, 4, v8')
    A('s_lshl_b32 s57, s6, 8', f's_add_u32 s57, s57, {ZL}', 'v_lshlrev_b32 v4, 2, v0', 'v_add_u32 v4, s57, v4')
    A('v_mov_b32 v6, 0', 'v_lshlrev_b32 v7, 2, v16', f'v_add_u32 v7, {CNT}, v7')
    A('ds_write_b32 v4, v6', 'ds_write_b32 v7, v6')
    A('s_lshl_b32 s53, s6, 10', 's_mov_b32 s57, s55')
    A('s_waitcnt lgkmcnt(0)')
    A('s_mov_b32 s8, s32', 's_mov_b32 s9, s33', 's_mov_b32 s24, s40', 's_mov_b32 s25, s41')
    A('s_mov_b32 s28, s44', 's_mov_b32 s29, s45', 's_mov_b32 s30, 1024', 's_mov_b32 s31, 0x20000')
    A('s_load_dword s7, s[50:51], 0x%x' % WS_EPOCH)
    A('s_barrier')
    issued[0] = 0
    A(f'buffer_load_dwordx4 {vr(XG,4)}, v14, s[24:27], s53 offen')
    A(f'buffer_load_dwordx4 {vr(XG+4,4)}, v14, s[28:31], 0 offen')
    for n in range(32):
        if n % 4 == 0:
            A('s_mov_b32 m0, s57', 's_add_u32 s57, s57, 4096'); nextblock()
        A(f'buffer_load_dwordx4 v{10+n%4}, s[8:11], s56 offen offset:{(n%4)*1024}{P} lds')
        thro()
    stamp(1)
    A('s_barrier')
    if dyn:
        A.c('K wave 0 draws the arrival number that picks this workgroup\'s share of the out-projection')
        A('v_mov_b32 v236, 1', 'v_mov_b32 v237, 0', 's_cmp_lg_u32 s6, 0', 's_cbranch_scc1 L_noclaim')
        A('s_mov_b64 exec, 1', 'global_atomic_add v236, v237, v236, s[48:49] sc0 sc1', 's_mov_b64 exec, -1')
        A.lab('L_noclaim')
    A('s_mov_b32 s20, s50', 's_mov_b32 s21, s51')
    A('s_lshl_b32 s57, s3, 16', 's_lshl_b32 s56, s58, 14', 's_add_u32 s57, s57, s56')
    A('s_lshl_b32 s56, s6, 12', 's_add_u32 s57, s57, s56', f's_add_u32 s57, s57, 0x{WS_Q + (WS_LOC if dual and dq else 0):x}')
    QP = 64
    def pollq():
        if xq: return
        for k in range(4): A(f'buffer_load_dwordx4 {vr(QP+4*k,4)}, v14, s[20:23], s57 offen offset:{1024*k} sc1')
    pollq()
    A('s_mov_b32 s24, s46', 's_mov_b32 s25, s47')
    A('v_lshlrev_b32 v15, 10, v1', 'v_lshl_add_u32 v15, v2, 4, v15')
    A('v_lshl_add_u32 v4, v16, 2, v5', 'v_lshlrev_b32 v4, 8, v4', 'v_add_u32 v4, s55, v4')
    A('v_xor_b32 v6, v1, v2', 'v_lshlrev_b32 v6, 4, v6')
    for t in range(4): A(f'v_xor_b32 v7, {64*t}, v6', f'v_add_u32 v{20+t}, v4, v7')
    A('v_lshlrev_b32 v7, 8, v16', 'v_lshl_add_u32 v7, v1, 4, v7', f'v_add_u32 v7, {QL}, v7', f'v_mov_b32 v8, {ZL}')
    versions(32, 7, 8)
    A('s_lshl_b32 s59, s6, 8', f's_add_u32 s59, s59, {QL}')
    A('v_bfe_u32 v9, v0, 3, 2', 'v_lshlrev_b32 v9, 6, v9', 'v_and_b32 v8, 1, v0', 'v_lshl_add_u32 v9, v8, 5, v9')
    A('v_lshrrev_b32 v8, 5, v0', 'v_lshl_add_u32 v9, v8, 3, v9', 'v_bfe_u32 v8, v0, 1, 2', 'v_lshl_add_u32 v9, v8, 1, v9')
    A('v_add_u32 v9, s59, v9')
    A('v_lshlrev_b32 v18, 4, v16', 's_lshl_b32 s59, s6, 2', f's_add_u32 s59, s59, {ML}', 'v_add_u32 v18, s59, v18')
    A('v_lshl_add_u32 v17, v1, 2, v16', 'v_lshlrev_b32 v17, 4, v17')
    A('v_lshrrev_b32 v8, 1, v5', 'v_lshl_add_u32 v17, v8, 8, v17', 'v_and_b32 v8, 1, v5', 'v_lshl_add_u32 v17, v8, 3, v17')
    A('s_lshl_b32 s59, s6, 10', f's_add_u32 s59, s59, {PX}', 'v_add_u32 v17, s59, v17')
    A(f's_mov_b32 s62, 0x{SCALE:x}', f's_mov_b32 s58, 0x{LOG2E:x}')
    A('s_waitcnt vmcnt(%d) lgkmcnt(0)' % (32 if xq else 36))
    A(f's_add_u32 s7, s7, 0x{TAGC:x}')
    GA = XG + 8
    for i in range(4):
        x = XG + i; g = XG + 4 + i
        A(f'v_lshlrev_b32 v36, 16, v{x}', f'v_and_b32 v37, 0xffff0000, v{x}', f'v_lshlrev_b32 v38, 16, v{g}', f'v_and_b32 v39, 0xffff0000, v{g}')
        A('v_mul_f32 v36, v36, v38', 'v_mul_f32 v37, v37, v39', 'v_cvt_pk_bf16_f32 v36, v36, v37')
        if i == 0:
            A(f'v_lshlrev_b32 v{GA}, 16, v36', f'v_and_b32 v{GA+1}, 0xffff0000, v36')
        else:
            A('v_lshlrev_b32 v38, 16, v36', 'v_and_b32 v39, 0xffff0000, v36', f'v_add_f32 v{GA}, v{GA}, v38', f'v_add_f32 v{GA+1}, v{GA+1}, v39')
    A(f'v_add_f32 v{GA}, v{GA}, v{GA+1}')
    allred('v_add_f32', GA, GA + 1, quad=True)
    A(f'v_cvt_pk_bf16_f32 v{GA}, v{GA}, v{GA}', f'v_lshlrev_b32 v{GA}, 16, v{GA}')
    A(f'v_mul_f32 v{GA}, 0x{LOG2E ^ 0x80000000:x}, v{GA}', f'v_exp_f32 v{GA}, v{GA}', 's_nop 0')
    A(f'v_add_f32 v{GA}, 1.0, v{GA}', f'v_rcp_f32 v{GA}, v{GA}', 's_nop 0')
    A(f'v_cvt_pk_bf16_f32 v{GA}, v{GA}, v{GA}', f'v_lshlrev_b32 v{GA}, 16, v{GA}')
    A(f'v_sub_f32 v{GA+1}, 1.0, v{GA}', f'v_cvt_pk_bf16_f32 v{GA+1}, v{GA+1}, v{GA+1}', f'v_lshlrev_b32 v{GA+1}, 16, v{GA+1}')
    A('s_lshl_b32 s59, s6, 3', f's_add_u32 s59, s59, {GL}', 'v_mov_b32 v6, s59', f'ds_write_b64 v6, v[{GA}:{GA+1}]')
    A(f's_mov_b32 s59, {spin}')
    A.lab('L_pollq')
    A('s_waitcnt vmcnt(0)')
    tagcheck([QP + 4 * k for k in range(4)])
    if xq: A('s_branch L_gotq')
    A('s_cbranch_vccz L_gotq', 's_sub_u32 s59, s59, 1', 's_cbranch_scc1 L_gotq')
    if dual and dq: fallback(8, ['s57'])
    pollq()
    A('s_branch L_pollq')
    A.lab('L_gotq')
    stamp(3)
    A(f'v_add_f32 v24, v{QP}, v{QP+4}', f'v_add_f32 v25, v{QP+2}, v{QP+6}', f'v_add_f32 v26, v{QP+8}, v{QP+12}', f'v_add_f32 v27, v{QP+10}, v{QP+14}')
    A('v_add_f32 v24, v24, v26', 'v_add_f32 v25, v25, v27', 'v_cvt_pk_bf16_f32 v24, v24, v25')
    A(f'v_mov_b32 v6, {CNT+4}', 'v_mov_b32 v7, 1')
    A('ds_write_b16 v9, v24', 'ds_write_b16_d16_hi v9, v24 offset:16')
    A('s_mov_b64 exec, 1')
    if dyn:
        A('s_cmp_lg_u32 s6, 0', 's_cbranch_scc1 L_nojobw', 'ds_write_b32 v6, v236 offset:12')
        A.lab('L_nojobw')
    A('ds_add_u32 v6, v7', 's_mov_b64 exec, -1')
    Qb = [R1, R1 + 16]; Kb = [R1 + 32, R1 + 48]
    def rdq(x):
        for t in range(4): A(f'ds_read_b128 {vr(Qb[x&1]+4*t,4)}, v{32+x} offset:{64*t}')
    def rdk(T_, buf):
        for t in range(4): A(f'ds_read_b128 {vr(Kb[buf]+4*t,4)}, v{20+t} offset:{4096*T_}')
    def mm(T_, buf):
        x = T_ & 3; a = T_ >> 2
        for t in range(4):
            c = '0' if (x == 0 and t == 0) else vr(ACC+4*a, 4)
            A(f'v_mfma_f32_16x16x32_bf16 {vr(ACC+4*a,4)}, {vr(Kb[buf]+4*t,4)}, {vr(Qb[x&1]+4*t,4)}, {c}')
    rdk(0, 0); rdk(4, 1)
    A(f's_mov_b32 s59, {spin}')
    A.lab('L_qspin')
    A('ds_read_b32 v7, v6', 's_waitcnt lgkmcnt(0)', 'v_readfirstlane_b32 s56, v7', 's_cmp_eq_u32 s56, 4', 's_cbranch_scc1 L_qall')
    A('s_sub_u32 s59, s59, 1', 's_cbranch_scc0 L_qspin')
    A.lab('L_qall')
    rdq(0)
    for x in range(4):
        A('s_waitcnt lgkmcnt(%d)' % (0 if x == 0 else 4))
        mm(x, 0)
        if x < 3:
            rdq(x + 1)
            A('s_waitcnt lgkmcnt(4)')
        else:
            A('s_waitcnt lgkmcnt(0)')
        mm(x + 4, 1)
        if x < 3:
            rdk(x + 1, 0); rdk(x + 5, 1)
    A('s_nop 7')
    S = ACC
    for p in range(4): A(f'v_cvt_pk_bf16_f32 v{28+p}, v{S+2*p}, v{S+2*p+1}')
    for p in range(4): A(f'v_lshlrev_b32 v{S+2*p}, 16, v{28+p}', f'v_and_b32 v{S+2*p+1}, 0xffff0000, v{28+p}')
    for i in range(8): A(f'v_mul_f32 v{S+i}, s62, v{S+i}')
    for p in range(4): A(f'v_cvt_pk_bf16_f32 v{28+p}, v{S+2*p}, v{S+2*p+1}')
    for p in range(4): A(f'v_lshlrev_b32 v{S+2*p}, 16, v{28+p}', f'v_and_b32 v{S+2*p+1}, 0xffff0000, v{28+p}')
    A(f'v_max3_f32 v28, v{S}, v{S+1}, v{S+2}', f'v_max3_f32 v29, v{S+3}, v{S+4}, v{S+5}', f'v_max3_f32 v28, v28, v{S+6}, v{S+7}', 'v_max_f32 v28, v28, v29')
    allred('v_max_f32', 28, 29)
    A('v_mul_f32 v36, s58, v28')
    for i in range(8): A(f'v_fma_f32 v{S+i}, v{S+i}, s58, -v36')
    for i in range(8): A(f'v_exp_f32 v{S+i}, v{S+i}')
    A('ds_write_b32 v18, v36')
    for p in range(4): A(f'v_cvt_pk_bf16_f32 v{32+p}, v{S+2*p}, v{S+2*p+1}')
    A('ds_write_b64 v17, v[32:33]', 'ds_write_b64 v17, v[34:35] offset:512')
    A(f'v_add_f32 v28, v{S}, v{S+1}', f'v_add_f32 v29, v{S+2}, v{S+3}', f'v_add_f32 v30, v{S+4}, v{S+5}', f'v_add_f32 v31, v{S+6}, v{S+7}')
    A('v_add_f32 v28, v28, v29', 'v_add_f32 v30, v30, v31', 'v_add_f32 v28, v28, v30')
    allred('v_add_f32', 28, 29)
    A('ds_write_b32 v18, v28 offset:64')
    A('v_lshlrev_b32 v7, 4, v16', f'v_add_u32 v7, {ML}, v7', f'v_mov_b32 v6, {CNT+12}', 'v_mov_b32 v8, 1')
    A('s_mov_b64 exec, 1', 'ds_add_rtn_u32 v8, v6, v8', 's_mov_b64 exec, -1')
    A('ds_read_b128 v[20:23], v7', 'ds_read_b128 v[24:27], v7 offset:64')
    A('v_mov_b32 v37, s7', 'v_mov_b32 v39, s7')
    A('s_lshl_b32 s56, s63, 7', f's_add_u32 s56, s56, 0x{WS_ML:x}')
    A('s_waitcnt lgkmcnt(0)')
    A('v_readfirstlane_b32 s59, v8', 's_cmp_lg_u32 s59, 3', 's_cbranch_scc1 L_noml')
    A.c('last K wave to finish its softmax publishes (m, l) of this workgroup')
    A('v_max3_f32 v36, v20, v21, v22', 'v_max_f32 v36, v36, v23')
    for w in range(4): A(f'v_sub_f32 v{20+w}, v{20+w}, v36')
    for w in range(4): A(f'v_exp_f32 v{20+w}, v{20+w}')
    A('s_nop 0', 'v_mul_f32 v38, v20, v24')
    for w in range(1, 4): A(f'v_fmac_f32 v38, v{20+w}, v{24+w}')
    A('s_mov_b64 exec, 15')
    if dual: A(f's_add_u32 s59, s56, 0x{WS_LOC:x}', 'buffer_store_dwordx4 v[36:39], v14, s[20:23], s59 offen')
    if not xml: A('buffer_store_dwordx4 v[36:39], v14, s[20:23], s56 offen sc1')
    A('s_mov_b64 exec, -1')
    A.lab('L_noml')
    A('v_lshrrev_b32 v13, 3, v0', 'v_lshlrev_b32 v12, 11, v13', 'v_and_b32 v8, 7, v0', 'v_lshl_add_u32 v12, v8, 4, v12', 'v_lshlrev_b32 v13, 7, v13')
    A('s_lshl_b32 s59, s6, 8', f's_add_u32 s59, s59, {OX}')
    A('v_and_b32 v17, 31, v0', 'v_lshlrev_b32 v17, 3, v17', 'v_add_u32 v17, s59, v17')
    A('v_lshlrev_b32 v8, 6, v16', 'v_lshl_add_u32 v8, v1, 4, v8', 'v_add_u32 v8, s59, v8', f'v_mov_b32 v9, {ZL}')
    versions(208, 8, 9)
    A('s_lshl_b32 s59, s6, 11', 'v_add_u32 v19, s59, v14')
    A('s_lshl_b32 s59, s6, 9', 'v_lshlrev_b32 v18, 3, v0', 'v_add_u32 v18, s59, v18')
    A('v_mov_b32 v9, s7', 'v_mov_b32 v11, s7', 'v_mov_b32 v33, s7', 'v_mov_b32 v35, s7')
    A('s_and_b32 s56, s2, 7', 's_lshl_b32 s59, s5, 3', 's_add_u32 s56, s56, s59', 's_lshr_b32 s58, s56, 5')
    A('s_and_b32 s56, s56, 31', 's_lshl_b32 s56, s56, 3', 's_bfe_u32 s59, s2, 0x10003', 's_lshl_b32 s59, s59, 2', 's_add_u32 s56, s56, s59')
    A('s_lshl_b32 s97, s58, 18', 's_lshl_b32 s59, s56, 4', 's_add_u32 s97, s97, s59', f's_add_u32 s97, s97, 0x{WS_P:x}')
    A('s_add_u32 s98, s97, 65536', 's_add_u32 s99, s98, 65536', 's_add_u32 s100, s99, 65536')
    A('v_lshrrev_b32 v212, 2, v0', 'v_lshlrev_b32 v212, 12, v212', 'v_lshl_add_u32 v212, v16, 4, v212')
    A('v_add_u32 v4, s56, v16', 'v_bfe_u32 v7, v4, 1, 2', 'v_lshlrev_b32 v214, 3, v7', f'v_add_u32 v214, {GL}, v214')
    A('v_lshlrev_b32 v213, 9, v7', 's_lshl_b32 s58, s58, 7', 'v_add_u32 v213, s58, v213')
    A('v_bfe_u32 v7, v4, 5, 2', 'v_lshl_add_u32 v213, v7, 5, v213', 'v_and_b32 v7, 1, v4', 'v_lshl_add_u32 v213, v7, 4, v213')
    A('v_and_b32 v7, 1, v1', 'v_lshl_add_u32 v213, v7, 3, v213', 'v_lshrrev_b32 v7, 7, v4', 'v_lshl_add_u32 v213, v7, 2, v213')
    A('v_bfe_u32 v7, v4, 3, 2', 'v_add_u32 v213, v213, v7', 'v_lshlrev_b32 v213, 1, v213')
    A('s_waitcnt lgkmcnt(0)')
    stamp(4)
    A('s_barrier')
    A('ds_read_b64 v[214:215], v214')
    if dyn:
        A('ds_read_b32 v7, v6 offset:4', 's_waitcnt lgkmcnt(0)', 'v_readfirstlane_b32 s56, v7')
        A(f's_cmp_ge_u32 s56, {256-n2}', 's_cbranch_scc1 L_reduce')
        A('s_lshl_b32 s57, s56, 1', f's_add_u32 s58, s56, {n2}', f's_cmp_lt_u32 s56, {n2}')
        A('s_cselect_b32 s56, s57, s58', 's_cselect_b32 s62, 1, 0')
    else:
        A('s_lshl_b32 s56, s3, 4', 's_add_u32 s56, s56, s5', 's_mov_b32 s62, 0')
    A('s_cmp_lt_u32 s56, 128', 's_cselect_b32 s16, s38, s42', 's_cselect_b32 s17, s39, s43')
    A('s_lshr_b32 s57, s56, 2')
    A('s_lshr_b32 s58, s56, 4')
    A('s_and_b32 s59, s57, 3')
    A('s_lshl_b32 s52, s58, 11', 's_lshl_b32 s53, s59, 4', 's_add_u32 s52, s52, s53', f's_add_u32 s52, s52, 0x{WS_ML + (WS_LOC if dual else 0):x}')
    MLR = 216; FA = 224
    def pollml():
        A(f'buffer_load_dwordx4 v[{MLR}:{MLR+3}], v13, s[20:23], s52 offen sc1')
        A(f'buffer_load_dwordx4 v[{MLR+4}:{MLR+7}], v13, s[20:23], s52 offen offset:1024 sc1')
    if not xml: pollml()
    A('s_lshl_b32 s50, s58, 15', 's_lshl_b32 s53, s59, 9', 's_add_u32 s50, s50, s53', 's_lshl_b32 s53, s6, 7', 's_add_u32 s50, s50, s53')
    A(f's_add_u32 s50, s50, 0x{WS_O + (WS_LOC if dual else 0):x}', 's_add_u32 s51, s50, 16384')
    A('s_and_b32 s59, s56, 3')
    A('s_and_b32 s58, s57, 31', 's_lshl_b32 s58, s58, 17', 's_add_u32 s58, s58, s55', 's_lshl_b32 s53, s59, 8', 's_add_u32 s58, s58, s53')
    A('s_lshl_b32 s53, s59, 6', 's_add_u32 s53, s53, s57', 's_lshl_b32 s53, s53, 12')
    A('s_lshl_b32 s59, s6, 10', 's_add_u32 s53, s53, s59', f's_add_u32 s53, s53, 0x{WS_P:x}')
    def woloads(dst, off):
        for n in range(8):
            ro = 8 * (n & 3) + 4 * (n >> 2)
            A(f's_add_u32 s59, s58, {ro*1024}', f'buffer_load_dwordx4 {vr(dst+4*n,4)}, v15, s[16:19], s59 offen offset:{off}{WP}')
    def mlfactors():
        A(f'v_max_f32 v6, v{MLR}, v{MLR+4}')
        A('v_mov_b32 v7, v6', 's_nop 1', 'v_permlane32_swap_b32 v6, v7', 's_nop 1', 'v_max_f32 v6, v6, v7')
        A(f'v_sub_f32 v{FA}, v{MLR}, v6', f'v_sub_f32 v{FA+1}, v{MLR+4}, v6', f'v_exp_f32 v{FA}, v{FA}', f'v_exp_f32 v{FA+1}, v{FA+1}', 's_nop 0')
        A(f'v_mul_f32 v6, v{FA}, v{MLR+2}', f'v_fmac_f32 v6, v{FA+1}, v{MLR+6}')
        A('v_mov_b32 v7, v6', 's_nop 1', 'v_permlane32_swap_b32 v6, v7', 's_nop 1', 'v_add_f32 v6, v6, v7')
        A('v_rcp_f32 v6, v6', 's_nop 0', f'v_mul_f32 v{FA}, v{FA}, v6', f'v_mul_f32 v{FA+1}, v{FA+1}, v6')
    def poll1():
        A('buffer_load_dwordx4 v[20:23], v12, s[20:23], s50 offen sc1', 'buffer_load_dwordx4 v[24:27], v12, s[20:23], s51 offen sc1')
    woloads(WO, 0)
    if dyn:
        A('s_cmp_eq_u32 s62, 0', 's_cbranch_scc1 L_one')
        woloads(WO2, 256)
        A('s_waitcnt vmcnt(8)')
        perm_mfma(WO, WT, None)
        A('s_waitcnt vmcnt(0)')
        perm_mfma(WO2, WT2, None)
        A('s_branch L_woready')
        A.lab('L_one')
    stamp(5)
    A('s_waitcnt vmcnt(0)')
    perm_mfma(WO, WT, None)
    A.lab('L_woready')
    stamp(2)
    if xpoll: A('s_cmp_lg_u32 s6, 0', 's_cbranch_scc1 L_end', 's_branch L_fin')
    poll1()
    A(f's_mov_b32 s59, {spin}')
    A.lab('L_pollml')
    tagcheck([MLR, MLR + 4])
    A('s_cbranch_vccz L_gotml', 's_sub_u32 s59, s59, 1', 's_cbranch_scc1 L_gotml')
    if dual: fallback(fb, ['s52', 's50', 's51'])
    pollml()
    A('s_waitcnt vmcnt(0)', 's_branch L_pollml')
    A.lab('L_gotml')
    mlfactors()
    A.lab('L_poll1')
    A('s_waitcnt vmcnt(0)')
    if masked:
        A('v_xor_b32 v6, s7, v21', 'v_xor_b32 v7, s7, v25', 'v_bitop3_b32 v6, v23, s7, v6 bitop3:0xbe', 'v_bitop3_b32 v7, v27, s7, v7 bitop3:0xbe')
        A('v_cmp_ne_u32 s[56:57], 0, v6', 'v_cmp_ne_u32 vcc, 0, v7', 's_or_b64 s[62:63], s[56:57], vcc')
        A('s_cbranch_scc0 L_got1', 's_sub_u32 s59, s59, 1', 's_cbranch_scc1 L_got1')
        if sleep: A(f's_sleep {sleep}')
        A('s_mov_b64 exec, s[56:57]', 's_cbranch_execz L_p1b')
        A('buffer_load_dwordx4 v[20:23], v12, s[20:23], s50 offen sc1')
        A.lab('L_p1b')
        A('s_mov_b64 exec, vcc', 's_cbranch_execz L_p1c')
        A('buffer_load_dwordx4 v[24:27], v12, s[20:23], s51 offen sc1')
        A.lab('L_p1c')
        A('s_mov_b64 exec, -1')
    else:
        tagcheck([20, 24])
        A('s_cbranch_vccz L_got1', 's_sub_u32 s59, s59, 1', 's_cbranch_scc1 L_got1')
        if dual: fallback(fb, ['s50', 's51'])
        if sleep: A(f's_sleep {sleep}')
        poll1()
    A('s_branch L_poll1')
    A.lab('L_got1')
    stamp(8)
    A('v_lshlrev_b32 v28, 16, v20', 'v_and_b32 v29, 0xffff0000, v20', 'v_lshlrev_b32 v30, 16, v22', 'v_and_b32 v31, 0xffff0000, v22')
    A('v_lshlrev_b32 v36, 16, v24', 'v_and_b32 v37, 0xffff0000, v24', 'v_lshlrev_b32 v38, 16, v26', 'v_and_b32 v39, 0xffff0000, v26')
    for r in range(4): A(f'v_mul_f32 v{28+r}, v{FA}, v{28+r}')
    for r in range(4): A(f'v_fmac_f32 v{28+r}, v{FA+1}, v{36+r}')
    for r in range(4): A(f'v_mov_b32 v{36+r}, v{28+r}')
    A('s_nop 0')
    for r in range(4): A(f'v_permlane32_swap_b32 v{28+r}, v{36+r}')
    A('s_nop 0')
    for r in range(4): A(f'v_add_f32 v{28+r}, v{28+r}, v{36+r}')
    A('v_cvt_pk_bf16_f32 v20, v28, v29', 'v_cvt_pk_bf16_f32 v21, v30, v31')
    A('ds_write_b64 v17, v[20:21]')
    for e in range(4): A(f'ds_read_b128 {vr(PB+4*e,4)}, v{208+e}')
    for e in range(4):
        A(f's_waitcnt lgkmcnt({3-e})')
        for idx in range(2):
            c = '0' if e == 0 else vr(ACC + 4 * idx, 4)
            A(f'v_mfma_f32_16x16x32_bf16 {vr(ACC+4*idx,4)}, {vr(WT+4*(4*idx+e),4)}, {vr(PB+4*e,4)}, {c}')
    def combine(off, dst, base):
        for w in range(4): A(f'ds_read_b64 v[{base+2*w}:{base+1+2*w}], v18 offset:{off+2048*w}')
    def combine2(dst, base, n_after):
        A(f's_waitcnt lgkmcnt({n_after+2})')
        A(f'v_add_f32 v{base}, v{base}, v{base+2}', f'v_add_f32 v{base+1}, v{base+1}, v{base+3}')
        A(f's_waitcnt lgkmcnt({n_after})')
        A(f'v_add_f32 v{base+4}, v{base+4}, v{base+6}', f'v_add_f32 v{base+5}, v{base+5}, v{base+7}')
        A(f'v_add_f32 v{dst}, v{base}, v{base+4}', f'v_add_f32 v{dst+2}, v{base+1}, v{base+5}')
    if dyn:
        A('s_cmp_eq_u32 s62, 0', 's_cbranch_scc1 L_single')
        for e in range(4):
            for idx in range(2):
                c = '0' if e == 0 else vr(ACC2 + 4 * idx, 4)
                A(f'v_mfma_f32_16x16x32_bf16 {vr(ACC2+4*idx,4)}, {vr(WT2+4*(4*idx+e),4)}, {vr(PB+4*e,4)}, {c}')
        A(f'ds_write_b128 v19, {vr(ACC,4)}', f'ds_write_b128 v19, {vr(ACC+4,4)} offset:1024')
        A('s_nop 4')
        A(f'ds_write_b128 v19, {vr(ACC2,4)} offset:8192', f'ds_write_b128 v19, {vr(ACC2+4,4)} offset:9216')
        A('s_add_u32 s59, s53, 0x40000')
        A('s_waitcnt lgkmcnt(0)', 's_barrier')
        combine(0, 8, 20); combine(8192, 32, 40)
        combine2(8, 20, 4)
        A('buffer_store_dwordx4 v[8:11], v14, s[20:23], s53 offen sc1')
        combine2(32, 40, 0)
        A('buffer_store_dwordx4 v[32:35], v14, s[20:23], s59 offen sc1')
        A('s_branch L_published')
        A.lab('L_single')
        A('s_nop 4')
    else:
        A('s_nop 6')
    A(f'ds_write_b128 v19, {vr(ACC,4)}', f'ds_write_b128 v19, {vr(ACC+4,4)} offset:1024')
    A('s_waitcnt lgkmcnt(0)')
    stamp(15)
    A('s_barrier')
    combine(0, 8, 20); combine2(8, 20, 0)
    A('buffer_store_dwordx4 v[8:11], v14, s[20:23], s53 offen sc1')
    A.lab('L_published')
    stamp(9)
    A.lab('L_reduce')
    A('s_cmp_lg_u32 s6, 0', 's_cbranch_scc1 L_end')
    if ackfirst: A('s_waitcnt vmcnt(0)')
    A(f's_mov_b32 s59, {spin}')
    if x2: A('s_branch L_fin')
    if masked:
        for k in range(4): A(f'buffer_load_dwordx4 v[{20+4*k}:{23+4*k}], v212, s[20:23], s{97+k} offen sc1')
        A.lab('L_poll2')
        A('s_waitcnt vmcnt(0)')
        for k in range(4): A(f'v_xor_b32 v{36+k}, s7, v{21+4*k}')
        for k in range(4): A(f'v_bitop3_b32 v{36+k}, v{23+4*k}, s7, v{36+k} bitop3:0xbe')
        A('v_or3_b32 v6, v36, v37, v38', 'v_or_b32 v6, v6, v39', 'v_cmp_ne_u32 vcc, 0, v6')
        A('s_cbranch_vccz L_got2', 's_sub_u32 s59, s59, 1', 's_cbranch_scc1 L_got2')
        for k in range(4): A(f'v_cmp_ne_u32 s[{50+2*k}:{51+2*k}], 0, v{36+k}')
        if sleep2: A(f's_sleep {sleep2}')
        for k in range(4):
            A(f's_mov_b64 exec, s[{50+2*k}:{51+2*k}]', f's_cbranch_execz L_p2{k}')
            A(f'buffer_load_dwordx4 v[{20+4*k}:{23+4*k}], v212, s[20:23], s{97+k} offen sc1')
            A.lab(f'L_p2{k}')
        A('s_mov_b64 exec, -1', 's_branch L_poll2')
    else:
        A.lab('L_poll2')
        for k in range(4): A(f'buffer_load_dwordx4 v[{20+4*k}:{23+4*k}], v212, s[20:23], s{97+k} offen sc1')
        A('s_waitcnt vmcnt(0)')
        tagcheck([20, 24, 28, 32])
        A('s_cbranch_vccz L_got2', 's_sub_u32 s59, s59, 1', 's_cbranch_scc1 L_got2')
        if sleep2: A(f's_sleep {sleep2}')
        A('s_branch L_poll2')
    A.lab('L_got2')
    stamp(10)
    A('v_add_f32 v20, v20, v24', 'v_add_f32 v28, v28, v32', 'v_add_f32 v22, v22, v26', 'v_add_f32 v30, v30, v34')
    A('s_nop 0', 'v_permlane32_swap_b32 v20, v28', 'v_permlane32_swap_b32 v22, v30', 's_nop 0')
    A('v_add_f32 v20, v20, v28', 'v_add_f32 v22, v22, v30')
    A('s_nop 1', 'v_permlane16_swap_b32 v20, v22', 's_nop 1', 'v_add_f32 v20, v20, v22')
    A('s_nop 1', 'v_add_f32_dpp v20, v20, v20 row_ror:4 row_mask:0xf bank_mask:0xf')
    A('s_nop 1', 'v_add_f32_dpp v20, v20, v20 row_ror:8 row_mask:0xf bank_mask:0xf')
    A('v_mov_b32 v21, v20', 's_nop 1', 'v_permlane32_swap_b32 v20, v21', 's_nop 1')
    A('v_cvt_pk_bf16_f32 v20, v20, v21')
    A('v_lshlrev_b32 v21, 16, v20', 'v_and_b32 v22, 0xffff0000, v20')
    A('v_mul_f32 v21, v21, v214', 'v_mul_f32 v22, v22, v215')
    A('v_cvt_pk_bf16_f32 v20, v21, v22')
    A('v_lshlrev_b32 v21, 16, v20', 'v_and_b32 v22, 0xffff0000, v20', 'v_add_f32 v21, v21, v22')
    A('v_cvt_pk_bf16_f32 v20, v21, v21')
    A('s_mov_b64 exec, 0x000f000f', 'buffer_store_short v20, v213, s[24:27], 0 offen')
    A('s_cmp_lg_u32 s2, 0', 's_cbranch_scc1 L_fin')
    A('s_mov_b64 exec, 1', 'v_mov_b32 v6, s7', f'buffer_store_dword v6, v14, s[20:23], 0 offen offset:{WS_EPOCH}')
    A.lab('L_fin')
    if stamps:
        stamp(11)
        A('s_mov_b64 exec, -1')
        dump_stamps([0, 1, 2, 3, 4, 5, 8, 9, 10, 11, 15])
    A.lab('L_end')
    A('s_endpgm')
    A.lab('L_code_end')
    out += A.L
    out += ['.section .rodata,"a"', '.p2align 6', f'.amdhsa_kernel {KN}_kernel',
            '  .amdhsa_next_free_vgpr 256', '  .amdhsa_next_free_sgpr 102', '  .amdhsa_accum_offset 256',
            '  .amdhsa_group_segment_fixed_size 0', '  .amdhsa_kernarg_size 112', '  .amdhsa_user_sgpr_count 2',
            '  .amdhsa_user_sgpr_kernarg_segment_ptr 1', '  .amdhsa_system_sgpr_workgroup_id_x 1', '.end_amdhsa_kernel']
    return '\n'.join(out) + '\n'

if __name__ == '__main__':
    ap = argparse.ArgumentParser()
    ap.add_argument('-o', default='k.s')
    ap.add_argument('--set', action='append', default=[])
    a = ap.parse_args()
    kw = {}
    for s in a.set:
        k, v = s.split('=')
        try: v = int(v)
        except ValueError: pass
        kw[k] = v
    open(a.o, 'w').write(gen(**kw))
```

```python
import sys, argparse
KN = 'gated_mix__sliding_block_cached__sliding_block_cached__decode'
HEADER = open('cdna_kernels/' + KN + '.s.ref').read().split('; Override launch')[0]

WS_EPOCH = 0x0
WS_ML = 0x1000
WS_O = 0x40000
WS_P = 0xC0000
WS_Q = 0x1C0000
WS_LOC = 0x300000
WS_BYTES = 285221888
STAMP_OFF = 64 << 20
TAGC = 0x9E3779B1
KL = 0
QL = 131072
ZL = QL + 1024
PX = ZL + 1024
ML = PX + 4096
LL = ML + 64
CNT = LL + 64
GL = CNT + 64
OX = GL + 64
OL = OX + 1024
LDS_BYTES = OL + 8192
LOG2E = 0x3FB8AA3B
SCALE = 0x3DB504F3

class G:
    def __init__(s): s.L = []
    def __call__(s, *ts):
        for t in ts: s.L.append('  ' + t)
    def lab(s, t): s.L.append(t + ':')
    def c(s, t): s.L.append('  ; ' + t)

def vr(a, n=1):
    return f'v{a}' if n == 1 else f'v[{a}:{a+n-1}]'

def gen(stamps=False, pol='nt', wpol='nt', spin=200000, prefetch=True, thr=0, sleep=1, touch=1, kprio=1, vprio=3,
        rotmul=4, ackfirst=1, n2=48, dyn=0, xq=0, xml=0, gran=4, xpoll=0, masked=0, sleep2=-1, x2=0, dual=1, dq=0, fb=64, echo=-1):
    A = G()
    P = (' ' + pol) if pol else ''
    WP = (' ' + wpol) if wpol else ''
    out = [HEADER.rstrip('\n'),
           '; Override launch geometry by editing the next line (default: block=256,',
           '; grid=ceil(out_elems/256), lds=0). Harness parses it; keep it on one line.',
           f'; @launch grid=(256,1,1) block=(512,1,1) lds={LDS_BYTES}',
           '.amdgcn_target "amdgcn-amd-amdhsa--gfx950"', '.text', f'.globl {KN}_kernel', '.p2align 8',
           f'.type {KN}_kernel,@function', f'{KN}_kernel:']
    SLO, SHI = 's60', 's61'
    if sleep2 < 0: sleep2 = sleep
    def stamp(i):
        if stamps or (echo >= 0 and i in (0, echo)): A(f's_memrealtime s[{64+2*i}:{65+2*i}]')
    def allred(op, r, t, quad=False):
        if quad:
            A('s_nop 1', f'{op}_dpp v{r}, v{r}, v{r} quad_perm:[1,0,3,2] row_mask:0xf bank_mask:0xf')
            A('s_nop 1', f'{op}_dpp v{r}, v{r}, v{r} quad_perm:[2,3,0,1] row_mask:0xf bank_mask:0xf')
        A('s_nop 1', f'{op}_dpp v{r}, v{r}, v{r} row_ror:4 row_mask:0xf bank_mask:0xf')
        A('s_nop 1', f'{op}_dpp v{r}, v{r}, v{r} row_ror:8 row_mask:0xf bank_mask:0xf')
        A(f'v_mov_b32 v{t}, v{r}', 's_nop 1', f'v_permlane16_swap_b32 v{r}, v{t}', 's_nop 1', f'{op} v{r}, v{r}, v{t}')
        A(f'v_mov_b32 v{t}, v{r}', 's_nop 1', f'v_permlane32_swap_b32 v{r}, v{t}', 's_nop 1', f'{op} v{r}, v{r}, v{t}')
    def perm_mfma(src, T, mf):
        for dp in range(4):
            for d in range(4):
                A(f'v_perm_b32 v{T+4*(2*dp)+d}, v{src+4*(2*d+1)+dp}, v{src+4*(2*d)+dp}, {SLO}')
            if dp > 0 and mf: mf(2 * dp - 1)
            for d in range(4):
                A(f'v_perm_b32 v{T+4*(2*dp+1)+d}, v{src+4*(2*d+1)+dp}, v{src+4*(2*d)+dp}, {SHI}')
            if mf: mf(2 * dp)
        if mf:
            A('s_nop 1'); mf(7)
    def tagcheck(regs):
        A(f'v_xor_b32 v6, s7, v{regs[0]+1}', f'v_xor_b32 v7, s7, v{regs[0]+3}')
        for r in regs[1:]:
            A(f'v_bitop3_b32 v6, v{r+1}, s7, v6 bitop3:0xbe', f'v_bitop3_b32 v7, v{r+3}, s7, v7 bitop3:0xbe')
        A('v_or_b32 v6, v6, v7', 'v_cmp_ne_u32 vcc, 0, v6')
    def versions(dst, good, bad):
        for e in range(4):
            A(f'v_cmp_eq_u32 vcc, {e}, v5', 's_nop 1', f'v_cndmask_b32 v{dst+e}, v{bad}, v{good}, vcc')
    def fallback(n, regs):
        A(f's_cmp_eq_u32 s59, {spin - n}', f's_cselect_b32 s101, 0x{WS_LOC:x}, 0')
        for r in regs: A(f's_sub_u32 {r}, {r}, s101')
    def dump_stamps(idx):
        A('s_waitcnt lgkmcnt(0)')
        A('s_lshl_b32 s59, s2, 7', f's_add_u32 s59, s59, 0x{STAMP_OFF:x}', 'v_mov_b32 v7, 0')
        for i in idx:
            A(f'v_mov_b32 v8, s{64+2*i}', f'v_mov_b32 v9, s{65+2*i}')
            A(f'buffer_store_dwordx2 v[8:9], v7, s[20:23], s59 offen offset:{8*i}', 's_nop 1')

    A('s_cmp_ge_u32 s2, 256', 's_cbranch_scc1 L_end')
    stamp(0)
    A('s_and_b32 s3, s2, 15')
    A('s_lshr_b32 s48, s3, 3', 's_mul_i32 s48, s48, 40')
    A('s_add_u32 s50, s0, s48', 's_addc_u32 s51, s1, 0')
    A('s_load_dwordx4 s[32:35], s[50:51], 8')
    A('s_load_dwordx2 s[36:37], s[50:51], 24')
    A('s_load_dwordx2 s[40:41], s[0:1], 0')
    A('s_load_dwordx8 s[44:51], s[0:1], 80')
    A('s_load_dwordx2 s[38:39], s[0:1], 32')
    A('s_load_dwordx2 s[42:43], s[0:1], 72')
    A('v_lshrrev_b32 v1, 6, v0', 'v_and_b32 v0, 63, v0', 's_and_b32 s4, s3, 7')
    A('v_readfirstlane_b32 s6, v1', 's_lshr_b32 s5, s2, 4', 'v_lshlrev_b32 v14, 4, v0')
    if prefetch:
        A.c("warm L2 with this kernel's own code: one dword per 32 bytes")
        A('s_getpc_b64 s[52:53]')
        A.lab('L_pc')
        A(f's_sub_u32 s52, s52, L_pc-{KN}_kernel', 's_subb_u32 s53, s53, 0')
        A('v_lshlrev_b32 v2, 11, v1', 'v_lshl_add_u32 v2, v0, 5, v2')
        A(f'v_min_u32 v2, L_code_end-{KN}_kernel-4, v2')
        A('v_mov_b32 v3, s53', 'v_add_co_u32 v2, vcc, s52, v2', 's_nop 1', 'v_addc_co_u32 v3, vcc, 0, v3, vcc')
        A('global_load_dword v40, v[2:3], off')
    A(f's_mov_b32 {SLO}, 0x05040100', f's_mov_b32 {SHI}, 0x07060302')
    A('s_mov_b32 s10, 0x4000000', 's_mov_b32 s11, 0x20000')
    A('s_mov_b32 s18, 0x400000', 's_mov_b32 s19, 0x20000')
    A(f's_mov_b32 s22, {WS_BYTES}', 's_mov_b32 s23, 0x20000')
    A('s_mov_b32 s26, 4096', 's_mov_b32 s27, 0x20000')
    A('s_lshr_b32 s58, s5, 2', 's_and_b32 s59, s5, 3')
    A('s_and_b32 s62, s6, 4', 's_and_b32 s6, s6, 3')
    A('s_lshl_b32 s54, s58, 24', 's_lshl_b32 s55, s4, 21', 's_add_u32 s54, s54, s55')
    A('s_lshl_b32 s55, s59, 17', 's_add_u32 s54, s54, s55', 's_add_u32 s54, s54, 0x180000')
    A('s_lshl_b32 s55, s6, 15')
    A('s_lshl_b32 s63, s59, 2', 's_add_u32 s63, s63, s58', 's_lshl_b32 s56, s3, 4', 's_add_u32 s63, s63, s56')
    A(f's_mul_i32 s96, s2, {rotmul}', 's_add_u32 s96, s96, s6', 's_lshl_b32 s96, s96, 12')
    A('v_lshrrev_b32 v1, 4, v0')
    A('v_and_b32 v2, 15, v0')
    A('v_bfe_u32 v5, v0, 2, 2')
    A('v_and_b32 v16, 3, v0')
    A('s_cmp_eq_u32 s62, 4', 's_cbranch_scc1 L_kwave')

    issued = [0]
    def thro():
        issued[0] += 1
        if thr and issued[0] > thr: A(f's_waitcnt vmcnt({thr})')
    def nextblock():
        A('s_and_b32 s56, s96, 0x1ffff', 's_add_u32 s56, s56, s54', 's_add_u32 s96, s96, 16384')

    V0 = 128; PB = 64; T = 32; ACC = 24
    WQ = 64; XB = 96
    if vprio: A(f's_setprio {vprio}')
    A('v_lshlrev_b32 v9, 16, v1', 'v_lshl_add_u32 v9, v2, 4, v9')
    A('v_lshlrev_b32 v8, 4, v1', 'v_lshl_add_u32 v8, v16, 10, v8')
    A('v_bfrev_b32 v10, 1')
    versions(20, 8, 10)
    A('s_lshl_b32 s57, s59, 2', 's_add_u32 s57, s57, s6')
    A('s_lshl_b32 s56, s57, 18', 's_lshl_b32 s59, s4, 10', 's_add_u32 s56, s56, s59')
    A('s_lshl_b32 s59, s58, 8', 's_add_u32 s56, s56, s59')
    A('s_lshl_b32 s57, s57, 6')
    A('s_waitcnt lgkmcnt(0)')
    A('s_mov_b32 s16, s36', 's_mov_b32 s17, s37', 's_mov_b32 s24, s40', 's_mov_b32 s25, s41')
    for i in range(8):
        A(f'buffer_load_dwordx4 {vr(WQ+4*i,4)}, v9, s[16:19], s56 offen{WP}')
        if i < 7: A('s_add_u32 s56, s56, 8192')
    for e in range(4): A(f'buffer_load_dwordx4 {vr(XB+4*e,4)}, v{20+e}, s[24:27], s57 offen')
    A('s_load_dword s7, s[50:51], 0x%x' % WS_EPOCH)
    A('s_barrier')
    A('s_mov_b32 s20, s50', 's_mov_b32 s21, s51', 's_mov_b32 s8, s34', 's_mov_b32 s9, s35')
    A('s_lshl_b32 s59, s6, 11', f's_add_u32 s59, s59, {OL}', 'v_add_u32 v19, s59, v14')
    A('v_lshrrev_b32 v13, 5, v0', 'v_lshlrev_b32 v13, 10, v13')
    A('v_bfe_u32 v10, v0, 1, 4', 'v_lshl_add_u32 v13, v10, 6, v13')
    A('v_and_b32 v10, 1, v0', 'v_lshl_add_u32 v13, v10, 3, v13')
    A(f'v_add_u32 v13, {OL}, v13')
    A(f'v_mov_b32 v10, {CNT}', 'v_mov_b32 v11, 1')
    A('s_lshl_b32 s57, s3, 16', 's_lshl_b32 s59, s5, 10', 's_add_u32 s57, s57, s59', f's_add_u32 s57, s57, 0x{WS_Q:x}')
    A('s_waitcnt vmcnt(0)')
    def mfq(e):
        idx = e >> 2
        c = '0' if (e & 3) == 0 else vr(ACC + 4 * idx, 4)
        A(f'v_mfma_f32_16x16x32_bf16 {vr(ACC+4*idx,4)}, {vr(T+4*e,4)}, {vr(XB+4*(e&3),4)}, {c}')
    perm_mfma(WQ, T, mfq)
    A('s_nop 6')
    A(f'ds_write_b128 v19, {vr(ACC,4)}', f'ds_write_b128 v19, {vr(ACC+4,4)} offset:1024')
    A('s_mov_b64 exec, 1', 'ds_add_rtn_u32 v11, v10, v11', 's_mov_b64 exec, -1')
    A('s_waitcnt lgkmcnt(0)')
    A(f's_add_u32 s7, s7, 0x{TAGC:x}')
    A('v_readfirstlane_b32 s59, v11', 's_cmp_lg_u32 s59, 3', 's_cbranch_scc1 L_vgo')
    A.c("last arriver: add the four waves' partials and publish them")
    for b in range(4):
        for w in range(4): A(f'ds_read_b64 v[{T+8*b+2*w}:{T+8*b+2*w+1}], v13 offset:{2048*w+16*b}')
        if b == 1: A('s_waitcnt lgkmcnt(4)')
    for b in range(4): A(f'v_mov_b32 v{65+4*b}, s7', f'v_mov_b32 v{67+4*b}, s7')
    for b in range(4):
        A(f's_waitcnt lgkmcnt({4*(3-b)})')
        r = T + 8 * b
        A(f'v_add_f32 v{r}, v{r}, v{r+2}', f'v_add_f32 v{r+1}, v{r+1}, v{r+3}')
        A(f'v_add_f32 v{r+4}, v{r+4}, v{r+6}', f'v_add_f32 v{r+5}, v{r+5}, v{r+7}')
        A(f'v_add_f32 v{64+4*b}, v{r}, v{r+4}', f'v_add_f32 v{66+4*b}, v{r+1}, v{r+5}')
        if dual and dq:
            A(f's_add_u32 s59, s57, 0x{WS_LOC:x}', f'buffer_store_dwordx4 v[{64+4*b}:{67+4*b}], v14, s[20:23], s59 offen')
        if not xq: A(f'buffer_store_dwordx4 v[{64+4*b}:{67+4*b}], v14, s[20:23], s57 offen sc1')
        if b < 3: A('s_add_u32 s57, s57, 16384')
    A.lab('L_vgo')
    if touch:
        A.c('first touch of the pages that are needed late')
        A('s_mov_b32 s24, s46', 's_mov_b32 s25, s47', 's_lshl_b32 s57, s6, 21' if dual else 's_lshl_b32 s57, s6, 20')
        A('buffer_load_dword v17, v14, s[20:23], s57 offen', 'buffer_load_dword v18, v14, s[24:27], 0 offen')
    A('v_lshl_add_u32 v8, v1, 2, v16', 's_lshl_b32 s57, s6, 10', f's_add_u32 s57, s57, {PX}')
    A('v_lshlrev_b32 v8, 4, v8', 'v_add_u32 v8, s57, v8', f'v_mov_b32 v9, {ZL}')
    versions(20, 8, 9)
    A('v_bfe_u32 v12, v0, 3, 2', 'v_lshlrev_b32 v12, 2, v12', 'v_bfe_u32 v8, v0, 1, 2', 'v_add_u32 v12, v12, v8')
    A('v_lshlrev_b32 v12, 2, v12', 'v_add_u32 v12, s6, v12', 'v_lshlrev_b32 v12, 4, v12')
    A('v_and_b32 v8, 1, v0', 'v_lshl_add_u32 v12, v8, 10, v12', f'v_add_u32 v12, {OL}, v12')
    A('s_lshl_b32 s59, s6, 4', f's_add_u32 s59, s59, {ML}', 'v_mov_b32 v13, s59')
    A('s_lshl_b32 s57, s63, 11', 's_lshl_b32 s59, s6, 9', 's_add_u32 s57, s57, s59', f's_add_u32 s57, s57, 0x{WS_O:x}')
    A(f's_add_u32 s58, s57, 0x{WS_LOC:x}')
    A(f'v_mov_b32 v2, {CNT+8}', 'v_mov_b32 v3, 1', 'v_mov_b32 v9, s7', 'v_mov_b32 v11, s7')
    if vprio: A('s_setprio 0')
    A('s_barrier')
    issued[0] = 0
    for n in range(32):
        if n % 4 == 0: nextblock()
        A(f'buffer_load_dwordx4 {vr(V0+4*n,4)}, v14, s[8:11], s56 offen offset:{(n%4)*1024}{P}')
        thro()
    stamp(14)
    A('s_barrier')
    A('ds_read_b128 v[4:7], v13')
    for G_ in range(4):
        for e in range(4): A(f'ds_read_b128 {vr(PB+16*G_+4*e,4)}, v{20+e} offset:{256*G_}')
        if G_ == 1: A('s_waitcnt lgkmcnt(0)')
    A('v_max3_f32 v8, v4, v5, v6', 'v_max_f32 v8, v8, v7')
    for w in range(4): A(f'v_sub_f32 v{4+w}, v{4+w}, v8')
    for w in range(4): A(f'v_exp_f32 v{4+w}, v{4+w}')
    for G_ in range(4):
        if G_ == 2: A(f's_waitcnt vmcnt({8*(3-G_)}) lgkmcnt(0)')
        else: A(f's_waitcnt vmcnt({8*(3-G_)})')
        if G_ == 3: stamp(6)
        def mf(e):
            idx = e >> 2
            c = '0' if (G_ == 0 and (e & 3) == 0) else vr(ACC + 4 * idx, 4)
            A(f'v_mfma_f32_16x16x32_bf16 {vr(ACC+4*idx,4)}, {vr(T+4*e,4)}, {vr(PB+16*G_+4*(e&3),4)}, {c}')
        perm_mfma(V0 + 32 * G_, T, mf)
    stamp(12)
    A(f's_mov_b32 s59, {spin}', 's_nop 5')
    A(f'ds_write_b128 v19, {vr(ACC,4)}', f'ds_write_b128 v19, {vr(ACC+4,4)} offset:1024')
    A('s_mov_b64 exec, 1', 'ds_add_u32 v2, v3', 's_mov_b64 exec, -1')
    A.lab('L_ospin')
    A('ds_read_b32 v3, v2')
    for w in range(4): A(f'ds_read_b128 v[{64+4*w}:{67+4*w}], v12 offset:{2048*w}')
    A('s_waitcnt lgkmcnt(4)')
    A('v_readfirstlane_b32 s56, v3', 's_cmp_eq_u32 s56, 4', 's_cbranch_scc1 L_oall')
    A('s_sub_u32 s59, s59, 1', 's_cbranch_scc0 L_ospin')
    A.lab('L_oall')
    stamp(13)
    A('s_waitcnt lgkmcnt(3)')
    for r in range(4): A(f'v_mul_f32 v{24+r}, v4, v{64+r}')
    for w in range(1, 4):
        A(f's_waitcnt lgkmcnt({3-w})')
        for r in range(4): A(f'v_fmac_f32 v{24+r}, v{4+w}, v{64+4*w+r}')
    A('v_cvt_pk_bf16_f32 v8, v24, v25', 'v_cvt_pk_bf16_f32 v10, v26, v27')
    A('s_mov_b32 exec_hi, 0')
    if dual: A('buffer_store_dwordx4 v[8:11], v14, s[20:23], s58 offen')
    A('buffer_store_dwordx4 v[8:11], v14, s[20:23], s57 offen sc1')
    if stamps:
        A('s_mov_b32 exec_hi, -1')
        stamp(7)
        A('s_cmp_lg_u32 s6, 0', 's_cbranch_scc1 L_end')
        dump_stamps([6, 7, 12, 13, 14])
    A('s_endpgm')

    A.lab('L_kwave')
    R1 = 64; PB = 48; ACC = 40; WO = 128; WT = 160; XG = 192; WO2 = 64; WT2 = 96; ACC2 = 228
    if kprio: A(f's_setprio {kprio}')
    for i in (2, 5, 8, 9, 15): stamp(i)
    A('v_lshlrev_b32 v3, 2, v1', 'v_xor_b32 v3, v3, v2', 'v_lshlrev_b32 v8, 8, v1')
    for n in range(4): A(f'v_xor_b32 v9, {n}, v3', f'v_lshl_add_u32 v{10+n}, v9, 4, v8')
    A('s_lshl_b32 s57, s6, 8', f's_add_u32 s57, s57, {ZL}', 'v_lshlrev_b32 v4, 2, v0', 'v_add_u32 v4, s57, v4')
    A('v_mov_b32 v6, 0', 'v_lshlrev_b32 v7, 2, v16', f'v_add_u32 v7, {CNT}, v7')
    A('ds_write_b32 v4, v6', 'ds_write_b32 v7, v6')
    A('s_lshl_b32 s53, s6, 10', 's_mov_b32 s57, s55')
    A('s_waitcnt lgkmcnt(0)')
    A('s_mov_b32 s8, s32', 's_mov_b32 s9, s33', 's_mov_b32 s24, s40', 's_mov_b32 s25, s41')
    A('s_mov_b32 s28, s44', 's_mov_b32 s29, s45', 's_mov_b32 s30, 1024', 's_mov_b32 s31, 0x20000')
    A('s_load_dword s7, s[50:51], 0x%x' % WS_EPOCH)
    A('s_barrier')
    issued[0] = 0
    A(f'buffer_load_dwordx4 {vr(XG,4)}, v14, s[24:27], s53 offen')
    A(f'buffer_load_dwordx4 {vr(XG+4,4)}, v14, s[28:31], 0 offen')
    for n in range(32):
        if n % 4 == 0:
            A('s_mov_b32 m0, s57', 's_add_u32 s57, s57, 4096'); nextblock()
        A(f'buffer_load_dwordx4 v{10+n%4}, s[8:11], s56 offen offset:{(n%4)*1024}{P} lds')
        thro()
    stamp(1)
    A('s_barrier')
    if dyn:
        A.c('K wave 0 draws the arrival number that picks this workgroup\'s share of the out-projection')
        A('v_mov_b32 v236, 1', 'v_mov_b32 v237, 0', 's_cmp_lg_u32 s6, 0', 's_cbranch_scc1 L_noclaim')
        A('s_mov_b64 exec, 1', 'global_atomic_add v236, v237, v236, s[48:49] sc0 sc1', 's_mov_b64 exec, -1')
        A.lab('L_noclaim')
    A('s_mov_b32 s20, s50', 's_mov_b32 s21, s51')
    A('s_lshl_b32 s57, s3, 16', 's_lshl_b32 s56, s58, 14', 's_add_u32 s57, s57, s56')
    A('s_lshl_b32 s56, s6, 12', 's_add_u32 s57, s57, s56', f's_add_u32 s57, s57, 0x{WS_Q + (WS_LOC if dual and dq else 0):x}')
    QP = 64
    def pollq():
        if xq: return
        for k in range(4): A(f'buffer_load_dwordx4 {vr(QP+4*k,4)}, v14, s[20:23], s57 offen offset:{1024*k} sc1')
    pollq()
    A('s_mov_b32 s24, s46', 's_mov_b32 s25, s47')
    A('v_lshlrev_b32 v15, 10, v1', 'v_lshl_add_u32 v15, v2, 4, v15')
    A('v_lshl_add_u32 v4, v16, 2, v5', 'v_lshlrev_b32 v4, 8, v4', 'v_add_u32 v4, s55, v4')
    A('v_xor_b32 v6, v1, v2', 'v_lshlrev_b32 v6, 4, v6')
    for t in range(4): A(f'v_xor_b32 v7, {64*t}, v6', f'v_add_u32 v{20+t}, v4, v7')
    A('v_lshlrev_b32 v7, 8, v16', 'v_lshl_add_u32 v7, v1, 4, v7', f'v_add_u32 v7, {QL}, v7', f'v_mov_b32 v8, {ZL}')
    versions(32, 7, 8)
    A('s_lshl_b32 s59, s6, 8', f's_add_u32 s59, s59, {QL}')
    A('v_bfe_u32 v9, v0, 3, 2', 'v_lshlrev_b32 v9, 6, v9', 'v_and_b32 v8, 1, v0', 'v_lshl_add_u32 v9, v8, 5, v9')
    A('v_lshrrev_b32 v8, 5, v0', 'v_lshl_add_u32 v9, v8, 3, v9', 'v_bfe_u32 v8, v0, 1, 2', 'v_lshl_add_u32 v9, v8, 1, v9')
    A('v_add_u32 v9, s59, v9')
    A('v_lshlrev_b32 v18, 4, v16', 's_lshl_b32 s59, s6, 2', f's_add_u32 s59, s59, {ML}', 'v_add_u32 v18, s59, v18')
    A('v_lshl_add_u32 v17, v1, 2, v16', 'v_lshlrev_b32 v17, 4, v17')
    A('v_lshrrev_b32 v8, 1, v5', 'v_lshl_add_u32 v17, v8, 8, v17', 'v_and_b32 v8, 1, v5', 'v_lshl_add_u32 v17, v8, 3, v17')
    A('s_lshl_b32 s59, s6, 10', f's_add_u32 s59, s59, {PX}', 'v_add_u32 v17, s59, v17')
    A(f's_mov_b32 s62, 0x{SCALE:x}', f's_mov_b32 s58, 0x{LOG2E:x}')
    A('s_waitcnt vmcnt(%d) lgkmcnt(0)' % (32 if xq else 36))
    A(f's_add_u32 s7, s7, 0x{TAGC:x}')
    GA = XG + 8
    for i in range(4):
        x = XG + i; g = XG + 4 + i
        A(f'v_lshlrev_b32 v36, 16, v{x}', f'v_and_b32 v37, 0xffff0000, v{x}', f'v_lshlrev_b32 v38, 16, v{g}', f'v_and_b32 v39, 0xffff0000, v{g}')
        A('v_mul_f32 v36, v36, v38', 'v_mul_f32 v37, v37, v39', 'v_cvt_pk_bf16_f32 v36, v36, v37')
        if i == 0:
            A(f'v_lshlrev_b32 v{GA}, 16, v36', f'v_and_b32 v{GA+1}, 0xffff0000, v36')
        else:
            A('v_lshlrev_b32 v38, 16, v36', 'v_and_b32 v39, 0xffff0000, v36', f'v_add_f32 v{GA}, v{GA}, v38', f'v_add_f32 v{GA+1}, v{GA+1}, v39')
    A(f'v_add_f32 v{GA}, v{GA}, v{GA+1}')
    allred('v_add_f32', GA, GA + 1, quad=True)
    A(f'v_cvt_pk_bf16_f32 v{GA}, v{GA}, v{GA}', f'v_lshlrev_b32 v{GA}, 16, v{GA}')
    A(f'v_mul_f32 v{GA}, 0x{LOG2E ^ 0x80000000:x}, v{GA}', f'v_exp_f32 v{GA}, v{GA}', 's_nop 0')
    A(f'v_add_f32 v{GA}, 1.0, v{GA}', f'v_rcp_f32 v{GA}, v{GA}', 's_nop 0')
    A(f'v_cvt_pk_bf16_f32 v{GA}, v{GA}, v{GA}', f'v_lshlrev_b32 v{GA}, 16, v{GA}')
    A(f'v_sub_f32 v{GA+1}, 1.0, v{GA}', f'v_cvt_pk_bf16_f32 v{GA+1}, v{GA+1}, v{GA+1}', f'v_lshlrev_b32 v{GA+1}, 16, v{GA+1}')
    A('s_lshl_b32 s59, s6, 3', f's_add_u32 s59, s59, {GL}', 'v_mov_b32 v6, s59', f'ds_write_b64 v6, v[{GA}:{GA+1}]')
    A(f's_mov_b32 s59, {spin}')
    A.lab('L_pollq')
    A('s_waitcnt vmcnt(0)')
    tagcheck([QP + 4 * k for k in range(4)])
    if xq: A('s_branch L_gotq')
    A('s_cbranch_vccz L_gotq', 's_sub_u32 s59, s59, 1', 's_cbranch_scc1 L_gotq')
    if dual and dq: fallback(8, ['s57'])
    pollq()
    A('s_branch L_pollq')
    A.lab('L_gotq')
    stamp(3)
    A(f'v_add_f32 v24, v{QP}, v{QP+4}', f'v_add_f32 v25, v{QP+2}, v{QP+6}', f'v_add_f32 v26, v{QP+8}, v{QP+12}', f'v_add_f32 v27, v{QP+10}, v{QP+14}')
    A('v_add_f32 v24, v24, v26', 'v_add_f32 v25, v25, v27', 'v_cvt_pk_bf16_f32 v24, v24, v25')
    A(f'v_mov_b32 v6, {CNT+4}', 'v_mov_b32 v7, 1')
    A('ds_write_b16 v9, v24', 'ds_write_b16_d16_hi v9, v24 offset:16')
    A('s_mov_b64 exec, 1')
    if dyn:
        A('s_cmp_lg_u32 s6, 0', 's_cbranch_scc1 L_nojobw', 'ds_write_b32 v6, v236 offset:12')
        A.lab('L_nojobw')
    A('ds_add_u32 v6, v7', 's_mov_b64 exec, -1')
    Qb = [R1, R1 + 16]; Kb = [R1 + 32, R1 + 48]
    def rdq(x):
        for t in range(4): A(f'ds_read_b128 {vr(Qb[x&1]+4*t,4)}, v{32+x} offset:{64*t}')
    def rdk(T_, buf):
        for t in range(4): A(f'ds_read_b128 {vr(Kb[buf]+4*t,4)}, v{20+t} offset:{4096*T_}')
    def mm(T_, buf):
        x = T_ & 3; a = T_ >> 2
        for t in range(4):
            c = '0' if (x == 0 and t == 0) else vr(ACC+4*a, 4)
            A(f'v_mfma_f32_16x16x32_bf16 {vr(ACC+4*a,4)}, {vr(Kb[buf]+4*t,4)}, {vr(Qb[x&1]+4*t,4)}, {c}')
    rdk(0, 0); rdk(4, 1)
    A(f's_mov_b32 s59, {spin}')
    A.lab('L_qspin')
    A('ds_read_b32 v7, v6', 's_waitcnt lgkmcnt(0)', 'v_readfirstlane_b32 s56, v7', 's_cmp_eq_u32 s56, 4', 's_cbranch_scc1 L_qall')
    A('s_sub_u32 s59, s59, 1', 's_cbranch_scc0 L_qspin')
    A.lab('L_qall')
    rdq(0)
    for x in range(4):
        A('s_waitcnt lgkmcnt(%d)' % (0 if x == 0 else 4))
        mm(x, 0)
        if x < 3:
            rdq(x + 1)
            A('s_waitcnt lgkmcnt(4)')
        else:
            A('s_waitcnt lgkmcnt(0)')
        mm(x + 4, 1)
        if x < 3:
            rdk(x + 1, 0); rdk(x + 5, 1)
    A('s_nop 7')
    S = ACC
    for p in range(4): A(f'v_cvt_pk_bf16_f32 v{28+p}, v{S+2*p}, v{S+2*p+1}')
    for p in range(4): A(f'v_lshlrev_b32 v{S+2*p}, 16, v{28+p}', f'v_and_b32 v{S+2*p+1}, 0xffff0000, v{28+p}')
    for i in range(8): A(f'v_mul_f32 v{S+i}, s62, v{S+i}')
    for p in range(4): A(f'v_cvt_pk_bf16_f32 v{28+p}, v{S+2*p}, v{S+2*p+1}')
    for p in range(4): A(f'v_lshlrev_b32 v{S+2*p}, 16, v{28+p}', f'v_and_b32 v{S+2*p+1}, 0xffff0000, v{28+p}')
    A(f'v_max3_f32 v28, v{S}, v{S+1}, v{S+2}', f'v_max3_f32 v29, v{S+3}, v{S+4}, v{S+5}', f'v_max3_f32 v28, v28, v{S+6}, v{S+7}', 'v_max_f32 v28, v28, v29')
    allred('v_max_f32', 28, 29)
    A('v_mul_f32 v36, s58, v28')
    for i in range(8): A(f'v_fma_f32 v{S+i}, v{S+i}, s58, -v36')
    for i in range(8): A(f'v_exp_f32 v{S+i}, v{S+i}')
    A('ds_write_b32 v18, v36')
    for p in range(4): A(f'v_cvt_pk_bf16_f32 v{32+p}, v{S+2*p}, v{S+2*p+1}')
    A('ds_write_b64 v17, v[32:33]', 'ds_write_b64 v17, v[34:35] offset:512')
    A(f'v_add_f32 v28, v{S}, v{S+1}', f'v_add_f32 v29, v{S+2}, v{S+3}', f'v_add_f32 v30, v{S+4}, v{S+5}', f'v_add_f32 v31, v{S+6}, v{S+7}')
    A('v_add_f32 v28, v28, v29', 'v_add_f32 v30, v30, v31', 'v_add_f32 v28, v28, v30')
    allred('v_add_f32', 28, 29)
    A('ds_write_b32 v18, v28 offset:64')
    A('v_lshlrev_b32 v7, 4, v16', f'v_add_u32 v7, {ML}, v7', f'v_mov_b32 v6, {CNT+12}', 'v_mov_b32 v8, 1')
    A('s_mov_b64 exec, 1', 'ds_add_rtn_u32 v8, v6, v8', 's_mov_b64 exec, -1')
    A('ds_read_b128 v[20:23], v7', 'ds_read_b128 v[24:27], v7 offset:64')
    A('v_mov_b32 v37, s7', 'v_mov_b32 v39, s7')
    A('s_lshl_b32 s56, s63, 7', f's_add_u32 s56, s56, 0x{WS_ML:x}')
    A('s_waitcnt lgkmcnt(0)')
    A('v_readfirstlane_b32 s59, v8', 's_cmp_lg_u32 s59, 3', 's_cbranch_scc1 L_noml')
    A.c('last K wave to finish its softmax publishes (m, l) of this workgroup')
    A('v_max3_f32 v36, v20, v21, v22', 'v_max_f32 v36, v36, v23')
    for w in range(4): A(f'v_sub_f32 v{20+w}, v{20+w}, v36')
    for w in range(4): A(f'v_exp_f32 v{20+w}, v{20+w}')
    A('s_nop 0', 'v_mul_f32 v38, v20, v24')
    for w in range(1, 4): A(f'v_fmac_f32 v38, v{20+w}, v{24+w}')
    A('s_mov_b64 exec, 15')
    if dual: A(f's_add_u32 s59, s56, 0x{WS_LOC:x}', 'buffer_store_dwordx4 v[36:39], v14, s[20:23], s59 offen')
    if not xml: A('buffer_store_dwordx4 v[36:39], v14, s[20:23], s56 offen sc1')
    A('s_mov_b64 exec, -1')
    A.lab('L_noml')
    A('v_lshrrev_b32 v13, 3, v0', 'v_lshlrev_b32 v12, 11, v13', 'v_and_b32 v8, 7, v0', 'v_lshl_add_u32 v12, v8, 4, v12', 'v_lshlrev_b32 v13, 7, v13')
    A('s_lshl_b32 s59, s6, 8', f's_add_u32 s59, s59, {OX}')
    A('v_and_b32 v17, 31, v0', 'v_lshlrev_b32 v17, 3, v17', 'v_add_u32 v17, s59, v17')
    A('v_lshlrev_b32 v8, 6, v16', 'v_lshl_add_u32 v8, v1, 4, v8', 'v_add_u32 v8, s59, v8', f'v_mov_b32 v9, {ZL}')
    versions(208, 8, 9)
    A('s_lshl_b32 s59, s6, 11', 'v_add_u32 v19, s59, v14')
    A('s_lshl_b32 s59, s6, 9', 'v_lshlrev_b32 v18, 3, v0', 'v_add_u32 v18, s59, v18')
    A('v_mov_b32 v9, s7', 'v_mov_b32 v11, s7', 'v_mov_b32 v33, s7', 'v_mov_b32 v35, s7')
    A('s_and_b32 s56, s2, 7', 's_lshl_b32 s59, s5, 3', 's_add_u32 s56, s56, s59', 's_lshr_b32 s58, s56, 5')
    A('s_and_b32 s56, s56, 31', 's_lshl_b32 s56, s56, 3', 's_bfe_u32 s59, s2, 0x10003', 's_lshl_b32 s59, s59, 2', 's_add_u32 s56, s56, s59')
    A('s_lshl_b32 s97, s58, 18', 's_lshl_b32 s59, s56, 4', 's_add_u32 s97, s97, s59', f's_add_u32 s97, s97, 0x{WS_P:x}')
    A('s_add_u32 s98, s97, 65536', 's_add_u32 s99, s98, 65536', 's_add_u32 s100, s99, 65536')
    A('v_lshrrev_b32 v212, 2, v0', 'v_lshlrev_b32 v212, 12, v212', 'v_lshl_add_u32 v212, v16, 4, v212')
    A('v_add_u32 v4, s56, v16', 'v_bfe_u32 v7, v4, 1, 2', 'v_lshlrev_b32 v214, 3, v7', f'v_add_u32 v214, {GL}, v214')
    A('v_lshlrev_b32 v213, 9, v7', 's_lshl_b32 s58, s58, 7', 'v_add_u32 v213, s58, v213')
    A('v_bfe_u32 v7, v4, 5, 2', 'v_lshl_add_u32 v213, v7, 5, v213', 'v_and_b32 v7, 1, v4', 'v_lshl_add_u32 v213, v7, 4, v213')
    A('v_and_b32 v7, 1, v1', 'v_lshl_add_u32 v213, v7, 3, v213', 'v_lshrrev_b32 v7, 7, v4', 'v_lshl_add_u32 v213, v7, 2, v213')
    A('v_bfe_u32 v7, v4, 3, 2', 'v_add_u32 v213, v213, v7', 'v_lshlrev_b32 v213, 1, v213')
    A('s_waitcnt lgkmcnt(0)')
    stamp(4)
    A('s_barrier')
    A('ds_read_b64 v[214:215], v214')
    if dyn:
        A('ds_read_b32 v7, v6 offset:4', 's_waitcnt lgkmcnt(0)', 'v_readfirstlane_b32 s56, v7')
        A(f's_cmp_ge_u32 s56, {256-n2}', 's_cbranch_scc1 L_reduce')
        A('s_lshl_b32 s57, s56, 1', f's_add_u32 s58, s56, {n2}', f's_cmp_lt_u32 s56, {n2}')
        A('s_cselect_b32 s56, s57, s58', 's_cselect_b32 s62, 1, 0')
    else:
        A('s_lshl_b32 s56, s3, 4', 's_add_u32 s56, s56, s5', 's_mov_b32 s62, 0')
    A('s_cmp_lt_u32 s56, 128', 's_cselect_b32 s16, s38, s42', 's_cselect_b32 s17, s39, s43')
    A('s_lshr_b32 s57, s56, 2')
    A('s_lshr_b32 s58, s56, 4')
    A('s_and_b32 s59, s57, 3')
    A('s_lshl_b32 s52, s58, 11', 's_lshl_b32 s53, s59, 4', 's_add_u32 s52, s52, s53', f's_add_u32 s52, s52, 0x{WS_ML + (WS_LOC if dual else 0):x}')
    MLR = 216; FA = 224
    def pollml():
        A(f'buffer_load_dwordx4 v[{MLR}:{MLR+3}], v13, s[20:23], s52 offen sc1')
        A(f'buffer_load_dwordx4 v[{MLR+4}:{MLR+7}], v13, s[20:23], s52 offen offset:1024 sc1')
    if not xml: pollml()
    A('s_lshl_b32 s50, s58, 15', 's_lshl_b32 s53, s59, 9', 's_add_u32 s50, s50, s53', 's_lshl_b32 s53, s6, 7', 's_add_u32 s50, s50, s53')
    A(f's_add_u32 s50, s50, 0x{WS_O + (WS_LOC if dual else 0):x}', 's_add_u32 s51, s50, 16384')
    A('s_and_b32 s59, s56, 3')
    A('s_and_b32 s58, s57, 31', 's_lshl_b32 s58, s58, 17', 's_add_u32 s58, s58, s55', 's_lshl_b32 s53, s59, 8', 's_add_u32 s58, s58, s53')
    A('s_lshl_b32 s53, s59, 6', 's_add_u32 s53, s53, s57', 's_lshl_b32 s53, s53, 12')
    A('s_lshl_b32 s59, s6, 10', 's_add_u32 s53, s53, s59', f's_add_u32 s53, s53, 0x{WS_P:x}')
    def woloads(dst, off):
        for n in range(8):
            ro = 8 * (n & 3) + 4 * (n >> 2)
            A(f's_add_u32 s59, s58, {ro*1024}', f'buffer_load_dwordx4 {vr(dst+4*n,4)}, v15, s[16:19], s59 offen offset:{off}{WP}')
    def mlfactors():
        A(f'v_max_f32 v6, v{MLR}, v{MLR+4}')
        A('v_mov_b32 v7, v6', 's_nop 1', 'v_permlane32_swap_b32 v6, v7', 's_nop 1', 'v_max_f32 v6, v6, v7')
        A(f'v_sub_f32 v{FA}, v{MLR}, v6', f'v_sub_f32 v{FA+1}, v{MLR+4}, v6', f'v_exp_f32 v{FA}, v{FA}', f'v_exp_f32 v{FA+1}, v{FA+1}', 's_nop 0')
        A(f'v_mul_f32 v6, v{FA}, v{MLR+2}', f'v_fmac_f32 v6, v{FA+1}, v{MLR+6}')
        A('v_mov_b32 v7, v6', 's_nop 1', 'v_permlane32_swap_b32 v6, v7', 's_nop 1', 'v_add_f32 v6, v6, v7')
        A('v_rcp_f32 v6, v6', 's_nop 0', f'v_mul_f32 v{FA}, v{FA}, v6', f'v_mul_f32 v{FA+1}, v{FA+1}, v6')
    def poll1():
        A('buffer_load_dwordx4 v[20:23], v12, s[20:23], s50 offen sc1', 'buffer_load_dwordx4 v[24:27], v12, s[20:23], s51 offen sc1')
    woloads(WO, 0)
    if dyn:
        A('s_cmp_eq_u32 s62, 0', 's_cbranch_scc1 L_one')
        woloads(WO2, 256)
        A('s_waitcnt vmcnt(8)')
        perm_mfma(WO, WT, None)
        A('s_waitcnt vmcnt(0)')
        perm_mfma(WO2, WT2, None)
        A('s_branch L_woready')
        A.lab('L_one')
    stamp(5)
    A('s_waitcnt vmcnt(0)')
    perm_mfma(WO, WT, None)
    A.lab('L_woready')
    stamp(2)
    if xpoll: A('s_cmp_lg_u32 s6, 0', 's_cbranch_scc1 L_end', 's_branch L_fin')
    poll1()
    A(f's_mov_b32 s59, {spin}')
    A.lab('L_pollml')
    tagcheck([MLR, MLR + 4])
    A('s_cbranch_vccz L_gotml', 's_sub_u32 s59, s59, 1', 's_cbranch_scc1 L_gotml')
    if dual: fallback(fb, ['s52', 's50', 's51'])
    pollml()
    A('s_waitcnt vmcnt(0)', 's_branch L_pollml')
    A.lab('L_gotml')
    mlfactors()
    A.lab('L_poll1')
    A('s_waitcnt vmcnt(0)')
    if masked:
        A('v_xor_b32 v6, s7, v21', 'v_xor_b32 v7, s7, v25', 'v_bitop3_b32 v6, v23, s7, v6 bitop3:0xbe', 'v_bitop3_b32 v7, v27, s7, v7 bitop3:0xbe')
        A('v_cmp_ne_u32 s[56:57], 0, v6', 'v_cmp_ne_u32 vcc, 0, v7', 's_or_b64 s[62:63], s[56:57], vcc')
        A('s_cbranch_scc0 L_got1', 's_sub_u32 s59, s59, 1', 's_cbranch_scc1 L_got1')
        if sleep: A(f's_sleep {sleep}')
        A('s_mov_b64 exec, s[56:57]', 's_cbranch_execz L_p1b')
        A('buffer_load_dwordx4 v[20:23], v12, s[20:23], s50 offen sc1')
        A.lab('L_p1b')
        A('s_mov_b64 exec, vcc', 's_cbranch_execz L_p1c')
        A('buffer_load_dwordx4 v[24:27], v12, s[20:23], s51 offen sc1')
        A.lab('L_p1c')
        A('s_mov_b64 exec, -1')
    else:
        tagcheck([20, 24])
        A('s_cbranch_vccz L_got1', 's_sub_u32 s59, s59, 1', 's_cbranch_scc1 L_got1')
        if dual: fallback(fb, ['s50', 's51'])
        if sleep: A(f's_sleep {sleep}')
        poll1()
    A('s_branch L_poll1')
    A.lab('L_got1')
    stamp(8)
    A('v_lshlrev_b32 v28, 16, v20', 'v_and_b32 v29, 0xffff0000, v20', 'v_lshlrev_b32 v30, 16, v22', 'v_and_b32 v31, 0xffff0000, v22')
    A('v_lshlrev_b32 v36, 16, v24', 'v_and_b32 v37, 0xffff0000, v24', 'v_lshlrev_b32 v38, 16, v26', 'v_and_b32 v39, 0xffff0000, v26')
    for r in range(4): A(f'v_mul_f32 v{28+r}, v{FA}, v{28+r}')
    for r in range(4): A(f'v_fmac_f32 v{28+r}, v{FA+1}, v{36+r}')
    for r in range(4): A(f'v_mov_b32 v{36+r}, v{28+r}')
    A('s_nop 0')
    for r in range(4): A(f'v_permlane32_swap_b32 v{28+r}, v{36+r}')
    A('s_nop 0')
    for r in range(4): A(f'v_add_f32 v{28+r}, v{28+r}, v{36+r}')
    A('v_cvt_pk_bf16_f32 v20, v28, v29', 'v_cvt_pk_bf16_f32 v21, v30, v31')
    A('ds_write_b64 v17, v[20:21]')
    for e in range(4): A(f'ds_read_b128 {vr(PB+4*e,4)}, v{208+e}')
    for e in range(4):
        A(f's_waitcnt lgkmcnt({3-e})')
        for idx in range(2):
            c = '0' if e == 0 else vr(ACC + 4 * idx, 4)
            A(f'v_mfma_f32_16x16x32_bf16 {vr(ACC+4*idx,4)}, {vr(WT+4*(4*idx+e),4)}, {vr(PB+4*e,4)}, {c}')
    def combine(off, dst, base):
        for w in range(4): A(f'ds_read_b64 v[{base+2*w}:{base+1+2*w}], v18 offset:{off+2048*w}')
    def combine2(dst, base, n_after):
        A(f's_waitcnt lgkmcnt({n_after+2})')
        A(f'v_add_f32 v{base}, v{base}, v{base+2}', f'v_add_f32 v{base+1}, v{base+1}, v{base+3}')
        A(f's_waitcnt lgkmcnt({n_after})')
        A(f'v_add_f32 v{base+4}, v{base+4}, v{base+6}', f'v_add_f32 v{base+5}, v{base+5}, v{base+7}')
        A(f'v_add_f32 v{dst}, v{base}, v{base+4}', f'v_add_f32 v{dst+2}, v{base+1}, v{base+5}')
    if dyn:
        A('s_cmp_eq_u32 s62, 0', 's_cbranch_scc1 L_single')
        for e in range(4):
            for idx in range(2):
                c = '0' if e == 0 else vr(ACC2 + 4 * idx, 4)
                A(f'v_mfma_f32_16x16x32_bf16 {vr(ACC2+4*idx,4)}, {vr(WT2+4*(4*idx+e),4)}, {vr(PB+4*e,4)}, {c}')
        A(f'ds_write_b128 v19, {vr(ACC,4)}', f'ds_write_b128 v19, {vr(ACC+4,4)} offset:1024')
        A('s_nop 4')
        A(f'ds_write_b128 v19, {vr(ACC2,4)} offset:8192', f'ds_write_b128 v19, {vr(ACC2+4,4)} offset:9216')
        A('s_add_u32 s59, s53, 0x40000')
        A('s_waitcnt lgkmcnt(0)', 's_barrier')
        combine(0, 8, 20); combine(8192, 32, 40)
        combine2(8, 20, 4)
        A('buffer_store_dwordx4 v[8:11], v14, s[20:23], s53 offen sc1')
        combine2(32, 40, 0)
        A('buffer_store_dwordx4 v[32:35], v14, s[20:23], s59 offen sc1')
        A('s_branch L_published')
        A.lab('L_single')
        A('s_nop 4')
    else:
        A('s_nop 6')
    A(f'ds_write_b128 v19, {vr(ACC,4)}', f'ds_write_b128 v19, {vr(ACC+4,4)} offset:1024')
    A('s_waitcnt lgkmcnt(0)')
    stamp(15)
    A('s_barrier')
    combine(0, 8, 20); combine2(8, 20, 0)
    A('buffer_store_dwordx4 v[8:11], v14, s[20:23], s53 offen sc1')
    A.lab('L_published')
    stamp(9)
    A.lab('L_reduce')
    A('s_cmp_lg_u32 s6, 0', 's_cbranch_scc1 L_end')
    if ackfirst: A('s_waitcnt vmcnt(0)')
    A(f's_mov_b32 s59, {spin}')
    if x2: A('s_branch L_fin')
    if masked:
        for k in range(4): A(f'buffer_load_dwordx4 v[{20+4*k}:{23+4*k}], v212, s[20:23], s{97+k} offen sc1')
        A.lab('L_poll2')
        A('s_waitcnt vmcnt(0)')
        for k in range(4): A(f'v_xor_b32 v{36+k}, s7, v{21+4*k}')
        for k in range(4): A(f'v_bitop3_b32 v{36+k}, v{23+4*k}, s7, v{36+k} bitop3:0xbe')
        A('v_or3_b32 v6, v36, v37, v38', 'v_or_b32 v6, v6, v39', 'v_cmp_ne_u32 vcc, 0, v6')
        A('s_cbranch_vccz L_got2', 's_sub_u32 s59, s59, 1', 's_cbranch_scc1 L_got2')
        for k in range(4): A(f'v_cmp_ne_u32 s[{50+2*k}:{51+2*k}], 0, v{36+k}')
        if sleep2: A(f's_sleep {sleep2}')
        for k in range(4):
            A(f's_mov_b64 exec, s[{50+2*k}:{51+2*k}]', f's_cbranch_execz L_p2{k}')
            A(f'buffer_load_dwordx4 v[{20+4*k}:{23+4*k}], v212, s[20:23], s{97+k} offen sc1')
            A.lab(f'L_p2{k}')
        A('s_mov_b64 exec, -1', 's_branch L_poll2')
    else:
        A.lab('L_poll2')
        for k in range(4): A(f'buffer_load_dwordx4 v[{20+4*k}:{23+4*k}], v212, s[20:23], s{97+k} offen sc1')
        A('s_waitcnt vmcnt(0)')
        tagcheck([20, 24, 28, 32])
        A('s_cbranch_vccz L_got2', 's_sub_u32 s59, s59, 1', 's_cbranch_scc1 L_got2')
        if sleep2: A(f's_sleep {sleep2}')
        A('s_branch L_poll2')
    A.lab('L_got2')
    stamp(10)
    A('v_add_f32 v20, v20, v24', 'v_add_f32 v28, v28, v32', 'v_add_f32 v22, v22, v26', 'v_add_f32 v30, v30, v34')
    A('s_nop 0', 'v_permlane32_swap_b32 v20, v28', 'v_permlane32_swap_b32 v22, v30', 's_nop 0')
    A('v_add_f32 v20, v20, v28', 'v_add_f32 v22, v22, v30')
    A('s_nop 1', 'v_permlane16_swap_b32 v20, v22', 's_nop 1', 'v_add_f32 v20, v20, v22')
    A('s_nop 1', 'v_add_f32_dpp v20, v20, v20 row_ror:4 row_mask:0xf bank_mask:0xf')
    A('s_nop 1', 'v_add_f32_dpp v20, v20, v20 row_ror:8 row_mask:0xf bank_mask:0xf')
    A('v_mov_b32 v21, v20', 's_nop 1', 'v_permlane32_swap_b32 v20, v21', 's_nop 1')
    A('v_cvt_pk_bf16_f32 v20, v20, v21')
    A('v_lshlrev_b32 v21, 16, v20', 'v_and_b32 v22, 0xffff0000, v20')
    A('v_mul_f32 v21, v21, v214', 'v_mul_f32 v22, v22, v215')
    A('v_cvt_pk_bf16_f32 v20, v21, v22')
    A('v_lshlrev_b32 v21, 16, v20', 'v_and_b32 v22, 0xffff0000, v20', 'v_add_f32 v21, v21, v22')
    A('v_cvt_pk_bf16_f32 v20, v21, v21')
    A('s_mov_b64 exec, 0x000f000f', 'buffer_store_short v20, v213, s[24:27], 0 offen')
    A('s_cmp_lg_u32 s2, 0', 's_cbranch_scc1 L_fin')
    A('s_mov_b64 exec, 1', 'v_mov_b32 v6, s7', f'buffer_store_dword v6, v14, s[20:23], 0 offen offset:{WS_EPOCH}')
    A.lab('L_fin')
    if echo >= 0:
        stamp(11)
        A('s_memrealtime s[30:31]', 's_waitcnt lgkmcnt(0)')
        A(f's_sub_u32 s28, s{64+2*echo}, s64', 's_add_u32 s28, s28, s30')
        A.lab('L_echo')
        A('s_memrealtime s[30:31]', 's_waitcnt lgkmcnt(0)', 's_sub_u32 s29, s30, s28', 's_cmp_lt_i32 s29, 0', 's_cbranch_scc1 L_echo')
    if stamps:
        stamp(11)
        A('s_mov_b64 exec, -1')
        dump_stamps([0, 1, 2, 3, 4, 5, 8, 9, 10, 11, 15])
    A.lab('L_end')
    A('s_endpgm')
    A.lab('L_code_end')
    out += A.L
    out += ['.section .rodata,"a"', '.p2align 6', f'.amdhsa_kernel {KN}_kernel',
            '  .amdhsa_next_free_vgpr 256', '  .amdhsa_next_free_sgpr 102', '  .amdhsa_accum_offset 256',
            '  .amdhsa_group_segment_fixed_size 0', '  .amdhsa_kernarg_size 112', '  .amdhsa_user_sgpr_count 2',
            '  .amdhsa_user_sgpr_kernarg_segment_ptr 1', '  .amdhsa_system_sgpr_workgroup_id_x 1', '.end_amdhsa_kernel']
    return '\n'.join(out) + '\n'

if __name__ == '__main__':
    ap = argparse.ArgumentParser()
    ap.add_argument('-o', default='k.s')
    ap.add_argument('--set', action='append', default=[])
    a = ap.parse_args()
    kw = {}
    for s in a.set:
        k, v = s.split('=')
        try: v = int(v)
        except ValueError: pass
        kw[k] = v
    open(a.o, 'w').write(gen(**kw))
```

```python
import sys, argparse
KN = 'gated_mix__sliding_block_cached__sliding_block_cached__decode'
HEADER = open('cdna_kernels/' + KN + '.s.ref').read().split('; Override launch')[0]

WS_EPOCH = 0x0
WS_ML = 0x1000
WS_O = 0x40000
WS_P = 0xC0000
WS_Q = 0x140000
WS_BYTES = 285221888
STAMP_OFF = 64 << 20
TAGC = 0x9E3779B1
KL = 0
QL = 131072
ZL = QL + 1024
PX = ZL + 1024
ML = PX + 4096
LL = ML + 64
CNT = LL + 64
GL = CNT + 64
OX = GL + 64
OL = OX + 1024
LDS_BYTES = OL + 8192
LOG2E = 0x3FB8AA3B
SCALE = 0x3DB504F3

class G:
    def __init__(s): s.L = []
    def __call__(s, *ts):
        for t in ts: s.L.append('  ' + t)
    def lab(s, t): s.L.append(t + ':')
    def c(s, t): s.L.append('  ; ' + t)

def vr(a, n=1):
    return f'v{a}' if n == 1 else f'v[{a}:{a+n-1}]'

def gen(stamps=False, pol='nt', wpol='nt', spin=200000, prefetch=True, sleep=1, touch=1, kprio=1, vprio=3,
        gran=4, rotmul=4, ackfirst=1, local=1, echo=-1, sleep2=-1):
    if sleep2 < 0: sleep2 = sleep
    A = G()
    P = (' ' + pol) if pol else ''
    WP = (' ' + wpol) if wpol else ''
    out = [HEADER.rstrip('\n'),
           '; Override launch geometry by editing the next line (default: block=256,',
           '; grid=ceil(out_elems/256), lds=0). Harness parses it; keep it on one line.',
           f'; @launch grid=(256,1,1) block=(512,1,1) lds={LDS_BYTES}',
           '.amdgcn_target "amdgcn-amd-amdhsa--gfx950"', '.text', f'.globl {KN}_kernel', '.p2align 8',
           f'.type {KN}_kernel,@function', f'{KN}_kernel:']
    SLO, SHI = 's60', 's61'
    def stamp(i):
        if stamps or (echo >= 0 and i in (0, echo)): A(f's_memrealtime s[{64+2*i}:{65+2*i}]')
    def allred(op, r, t, quad=False):
        if quad:
            A('s_nop 1', f'{op}_dpp v{r}, v{r}, v{r} quad_perm:[1,0,3,2] row_mask:0xf bank_mask:0xf')
            A('s_nop 1', f'{op}_dpp v{r}, v{r}, v{r} quad_perm:[2,3,0,1] row_mask:0xf bank_mask:0xf')
        A('s_nop 1', f'{op}_dpp v{r}, v{r}, v{r} row_ror:4 row_mask:0xf bank_mask:0xf')
        A('s_nop 1', f'{op}_dpp v{r}, v{r}, v{r} row_ror:8 row_mask:0xf bank_mask:0xf')
        A(f'v_mov_b32 v{t}, v{r}', 's_nop 1', f'v_permlane16_swap_b32 v{r}, v{t}', 's_nop 1', f'{op} v{r}, v{r}, v{t}')
        A(f'v_mov_b32 v{t}, v{r}', 's_nop 1', f'v_permlane32_swap_b32 v{r}, v{t}', 's_nop 1', f'{op} v{r}, v{r}, v{t}')
    def perm_mfma(src, T, mf):
        for dp in range(4):
            for d in range(4):
                A(f'v_perm_b32 v{T+4*(2*dp)+d}, v{src+4*(2*d+1)+dp}, v{src+4*(2*d)+dp}, {SLO}')
            if dp > 0 and mf: mf(2 * dp - 1)
            for d in range(4):
                A(f'v_perm_b32 v{T+4*(2*dp+1)+d}, v{src+4*(2*d+1)+dp}, v{src+4*(2*d)+dp}, {SHI}')
            if mf: mf(2 * dp)
        if mf:
            A('s_nop 1'); mf(7)
    def tagcheck(regs):
        A(f'v_xor_b32 v6, s7, v{regs[0]+1}', f'v_xor_b32 v7, s7, v{regs[0]+3}')
        for r in regs[1:]:
            A(f'v_bitop3_b32 v6, v{r+1}, s7, v6 bitop3:0xbe', f'v_bitop3_b32 v7, v{r+3}, s7, v7 bitop3:0xbe')
        A('v_or_b32 v6, v6, v7', 'v_cmp_ne_u32 vcc, 0, v6')
    def versions(dst, good, bad):
        for e in range(4):
            A(f'v_cmp_eq_u32 vcc, {e}, v5', 's_nop 1', f'v_cndmask_b32 v{dst+e}, v{bad}, v{good}, vcc')
    def unpack(dst, a, b):
        A(f'v_lshlrev_b32 v{dst}, 16, v{a}', f'v_and_b32 v{dst+1}, 0xffff0000, v{a}', f'v_lshlrev_b32 v{dst+2}, 16, v{b}', f'v_and_b32 v{dst+3}, 0xffff0000, v{b}')
    def swapadd32(r, t):
        for i in range(4): A(f'v_mov_b32 v{t+i}, v{r+i}')
        A('s_nop 0')
        for i in range(4): A(f'v_permlane32_swap_b32 v{r+i}, v{t+i}')
        A('s_nop 0')
        for i in range(4): A(f'v_add_f32 v{r+i}, v{r+i}, v{t+i}')
    nteam = [0]
    def team_store(txt):
        if not local:
            A(txt + ' sc1'); return
        n = nteam[0]; nteam[0] += 1
        A('s_cmp_eq_u32 s13, 0', f's_cbranch_scc1 L_tl{n}', txt + ' sc1', f's_branch L_td{n}')
        A.lab(f'L_tl{n}'); A(txt); A.lab(f'L_td{n}')
    def dump_stamps(idx):
        A('s_waitcnt lgkmcnt(0)')
        A('s_lshl_b32 s59, s2, 7', f's_add_u32 s59, s59, 0x{STAMP_OFF:x}', 'v_mov_b32 v7, 0')
        for i in idx:
            A(f'v_mov_b32 v8, s{64+2*i}', f'v_mov_b32 v9, s{65+2*i}')
            A(f'buffer_store_dwordx2 v[8:9], v7, s[20:23], s59 offen offset:{8*i}', 's_nop 1')

    A('s_cmp_ge_u32 s2, 256', 's_cbranch_scc1 L_end')
    stamp(0)
    A('s_and_b32 s3, s2, 15')
    A('s_lshr_b32 s48, s3, 3', 's_mul_i32 s48, s48, 40')
    A('s_add_u32 s52, s0, s48', 's_addc_u32 s53, s1, 0')
    A('s_load_dwordx8 s[32:39], s[52:53], 8')
    A('s_load_dwordx2 s[40:41], s[0:1], 0')
    A('s_load_dwordx8 s[44:51], s[0:1], 80')
    A('v_lshrrev_b32 v1, 6, v0', 'v_and_b32 v0, 63, v0', 's_and_b32 s4, s3, 7')
    A('v_readfirstlane_b32 s6, v1', 's_lshr_b32 s5, s2, 4', 'v_lshlrev_b32 v14, 4, v0')
    if prefetch:
        A.c("warm L2 with this kernel's own code: one dword per 32 bytes")
        A('s_getpc_b64 s[56:57]')
        A.lab('L_pc')
        A(f's_sub_u32 s56, s56, L_pc-{KN}_kernel', 's_subb_u32 s57, s57, 0')
        A('v_lshlrev_b32 v2, 11, v1', 'v_lshl_add_u32 v2, v0, 5, v2')
        A(f'v_min_u32 v2, L_code_end-{KN}_kernel-4, v2')
        A('v_mov_b32 v3, s57', 'v_add_co_u32 v2, vcc, s56, v2', 's_nop 1', 'v_addc_co_u32 v3, vcc, 0, v3, vcc')
        A('global_load_dword v40, v[2:3], off')
    A(f's_mov_b32 {SLO}, 0x05040100', f's_mov_b32 {SHI}, 0x07060302')
    A('s_mov_b32 s10, 0x4000000', 's_mov_b32 s11, 0x20000')
    A('s_mov_b32 s18, 0x400000', 's_mov_b32 s19, 0x20000')
    A(f's_mov_b32 s22, {WS_BYTES}', 's_mov_b32 s23, 0x20000')
    A('s_mov_b32 s26, 4096', 's_mov_b32 s27, 0x20000')
    A('s_lshr_b32 s58, s5, 2', 's_and_b32 s59, s5, 3')
    A('s_and_b32 s62, s6, 4', 's_and_b32 s6, s6, 3')
    A('s_lshl_b32 s54, s58, 24', 's_lshl_b32 s55, s4, 21', 's_add_u32 s54, s54, s55')
    A('s_lshl_b32 s55, s59, 17', 's_add_u32 s54, s54, s55', 's_add_u32 s54, s54, 0x180000')
    A('s_lshl_b32 s55, s6, 15')
    A('s_lshl_b32 s63, s59, 2', 's_add_u32 s63, s63, s58', 's_lshl_b32 s56, s3, 4', 's_add_u32 s63, s63, s56')
    A(f's_mul_i32 s96, s2, {rotmul}', 's_add_u32 s96, s96, s6', f's_mul_i32 s96, s96, {gran*1024}')
    A('s_getreg_b32 s12, hwreg(HW_REG_XCC_ID, 0, 3)')
    A('v_lshrrev_b32 v1, 4, v0')
    A('v_and_b32 v2, 15, v0')
    A('v_bfe_u32 v5, v0, 2, 2')
    A('v_and_b32 v16, 3, v0')
    A('s_cmp_eq_u32 s62, 4', 's_cbranch_scc1 L_kwave')

    def nextblock():
        A('s_and_b32 s56, s96, 0x1ffff', 's_add_u32 s56, s56, s54', f's_add_u32 s96, s96, {gran*4096}')

    V0 = 128; PB = 64; T = 32; ACC = 24
    WQ = 64; XB = 96
    if vprio: A(f's_setprio {vprio}')
    A('v_lshlrev_b32 v9, 16, v1', 'v_lshl_add_u32 v9, v2, 4, v9')
    A('s_lshl_b32 s57, s59, 2', 's_add_u32 s57, s57, s6')
    A('s_lshl_b32 s56, s57, 18', 's_lshl_b32 s59, s4, 10', 's_add_u32 s56, s56, s59')
    A('s_lshl_b32 s59, s58, 8', 's_add_u32 s56, s56, s59')
    A('s_lshl_b32 s57, s57, 6')
    A('v_lshlrev_b32 v8, 4, v1', 'v_lshl_add_u32 v8, v16, 10, v8')
    A('v_bfrev_b32 v10, 1')
    versions(20, 8, 10)
    A('s_waitcnt lgkmcnt(0)')
    A('s_mov_b32 s16, s36', 's_mov_b32 s17, s37', 's_mov_b32 s24, s40', 's_mov_b32 s25, s41')
    for i in range(8):
        A(f'buffer_load_dwordx4 {vr(WQ+4*i,4)}, v9, s[16:19], s56 offen{WP}')
        if i < 7: A('s_add_u32 s56, s56, 8192')
    for e in range(4): A(f'buffer_load_dwordx4 {vr(XB+4*e,4)}, v{20+e}, s[24:27], s57 offen')
    A('s_load_dword s7, s[50:51], 0x%x' % WS_EPOCH)
    A('s_barrier')
    A('s_mov_b32 s20, s50', 's_mov_b32 s21, s51', 's_mov_b32 s8, s34', 's_mov_b32 s9, s35')
    A('s_lshl_b32 s59, s6, 11', f's_add_u32 s59, s59, {OL}', 'v_add_u32 v19, s59, v14')
    A('v_bfe_u32 v12, v0, 1, 4', 'v_lshlrev_b32 v12, 6, v12', 'v_and_b32 v8, 1, v0', 'v_lshl_add_u32 v12, v8, 10, v12')
    A(f'v_add_u32 v12, {OL}, v12')
    A('v_lshrrev_b32 v8, 5, v0', 'v_lshl_add_u32 v13, v8, 4, v12')
    A('v_and_b32 v15, 31, v0', 'v_lshlrev_b32 v15, 4, v15', 'v_lshl_add_u32 v15, v8, 13, v15')
    A(f'v_mov_b32 v10, {CNT}', 'v_mov_b32 v11, 1')
    A('s_lshl_b32 s57, s3, 15', 's_lshl_b32 s59, s5, 9', 's_add_u32 s57, s57, s59', f's_add_u32 s57, s57, 0x{WS_Q:x}')
    A('s_waitcnt vmcnt(0)')
    def mfq(e):
        idx = e >> 2
        c = '0' if (e & 3) == 0 else vr(ACC + 4 * idx, 4)
        A(f'v_mfma_f32_16x16x32_bf16 {vr(ACC+4*idx,4)}, {vr(T+4*e,4)}, {vr(XB+4*(e&3),4)}, {c}')
    perm_mfma(WQ, T, mfq)
    A('s_nop 6')
    A(f'ds_write_b128 v19, {vr(ACC,4)}', f'ds_write_b128 v19, {vr(ACC+4,4)} offset:1024')
    A('s_mov_b64 exec, 1', 'ds_add_rtn_u32 v11, v10, v11', 's_mov_b64 exec, -1')
    A('s_waitcnt lgkmcnt(0)')
    A(f's_add_u32 s7, s7, 0x{TAGC:x}')
    A('v_readfirstlane_b32 s59, v11', 's_cmp_lg_u32 s59, 3', 's_cbranch_scc1 L_vgo')
    A.c("last arriver: add the four waves' partials and publish them; the tag also carries the XCD number")
    for s_ in range(2):
        for w in range(4): A(f'ds_read_b128 {vr(T+16*s_+4*w,4)}, v13 offset:{2048*w+32*s_}')
    A('s_add_u32 s59, s7, s12', 's_mov_b32 s56, 0x07060503', 's_mov_b32 s58, 0x07060502', 's_mov_b32 s62, 0x07060501')
    for s_ in range(2): A(f'v_mov_b32 v{67+4*s_}, s59')
    for s_ in range(2):
        r = T + 16 * s_
        A(f's_waitcnt lgkmcnt({4*(1-s_)+2})')
        for i in range(4): A(f'v_add_f32 v{r+i}, v{r+i}, v{r+4+i}')
        A(f's_waitcnt lgkmcnt({4*(1-s_)})')
        for i in range(4): A(f'v_add_f32 v{r+8+i}, v{r+8+i}, v{r+12+i}')
        for i in range(4): A(f'v_add_f32 v{r+i}, v{r+i}, v{r+8+i}')
        A(f'v_perm_b32 v{64+4*s_}, v{r}, v{r+3}, s56', f'v_perm_b32 v{65+4*s_}, v{r+1}, v{r+3}, s58', f'v_perm_b32 v{66+4*s_}, v{r+2}, v{r+3}, s62')
        A(f'buffer_store_dwordx4 v[{64+4*s_}:{67+4*s_}], v15, s[20:23], s57 offen sc1')
        if s_ == 0: A('s_add_u32 s57, s57, 16384')
    A.lab('L_vgo')
    A('v_lshl_add_u32 v8, v1, 2, v16', 's_lshl_b32 s57, s6, 10', f's_add_u32 s57, s57, {PX}')
    A('v_lshlrev_b32 v8, 4, v8', 'v_add_u32 v8, s57, v8', f'v_mov_b32 v9, {ZL}')
    versions(20, 8, 9)
    A('s_lshl_b32 s59, s6, 4', 'v_add_u32 v12, s59, v12')
    A(f's_add_u32 s59, s59, {ML}', 'v_mov_b32 v13, s59')
    A('s_lshl_b32 s57, s63, 11', 's_lshl_b32 s59, s6, 9', 's_add_u32 s57, s57, s59', f's_add_u32 s57, s57, 0x{WS_O:x}')
    A(f'v_mov_b32 v2, {CNT+8}', 'v_mov_b32 v3, 1', 'v_mov_b32 v9, s7', 'v_mov_b32 v11, s7')
    if vprio: A('s_setprio 0')
    A('s_barrier')
    for n in range(32):
        if n % gran == 0: nextblock()
        A(f'buffer_load_dwordx4 {vr(V0+4*n,4)}, v14, s[8:11], s56 offen offset:{(n%gran)*1024}{P}')
    stamp(14)
    A('s_barrier')
    A('ds_read_b128 v[4:7], v13', 'ds_read_b32 v8, v10 offset:4')
    for G_ in range(4):
        for e in range(4): A(f'ds_read_b128 {vr(PB+16*G_+4*e,4)}, v{20+e} offset:{256*G_}')
        if G_ == 1: A('s_waitcnt lgkmcnt(0)')
    A('v_readfirstlane_b32 s13, v8')
    A('v_max3_f32 v8, v4, v5, v6', 'v_max_f32 v8, v8, v7')
    for w in range(4): A(f'v_sub_f32 v{4+w}, v{4+w}, v8')
    for w in range(4): A(f'v_exp_f32 v{4+w}, v{4+w}')
    A('s_lshr_b32 s13, s13, 8')
    for G_ in range(4):
        if G_ == 2: A(f's_waitcnt vmcnt({8*(3-G_)}) lgkmcnt(0)')
        else: A(f's_waitcnt vmcnt({8*(3-G_)})')
        if G_ == 3: stamp(6)
        def mf(e):
            idx = e >> 2
            c = '0' if (G_ == 0 and (e & 3) == 0) else vr(ACC + 4 * idx, 4)
            A(f'v_mfma_f32_16x16x32_bf16 {vr(ACC+4*idx,4)}, {vr(T+4*e,4)}, {vr(PB+16*G_+4*(e&3),4)}, {c}')
        perm_mfma(V0 + 32 * G_, T, mf)
    stamp(12)
    A(f's_mov_b32 s59, {spin}', 's_nop 5')
    A(f'ds_write_b128 v19, {vr(ACC,4)}', f'ds_write_b128 v19, {vr(ACC+4,4)} offset:1024')
    A('s_mov_b64 exec, 1', 'ds_add_u32 v2, v3', 's_mov_b64 exec, -1')
    A.lab('L_ospin')
    A('ds_read_b32 v3, v2')
    for w in range(4): A(f'ds_read_b128 v[{64+4*w}:{67+4*w}], v12 offset:{2048*w}')
    A('s_waitcnt lgkmcnt(4)')
    A('v_readfirstlane_b32 s56, v3', 's_cmp_eq_u32 s56, 4', 's_cbranch_scc1 L_oall')
    A('s_sub_u32 s59, s59, 1', 's_cbranch_scc0 L_ospin')
    A.lab('L_oall')
    stamp(13)
    A('s_waitcnt lgkmcnt(3)')
    for r in range(4): A(f'v_mul_f32 v{24+r}, v4, v{64+r}')
    for w in range(1, 4):
        A(f's_waitcnt lgkmcnt({3-w})')
        for r in range(4): A(f'v_fmac_f32 v{24+r}, v{4+w}, v{64+4*w+r}')
    A('v_cvt_pk_bf16_f32 v8, v24, v25', 'v_cvt_pk_bf16_f32 v10, v26, v27')
    A('s_mov_b32 exec_hi, 0')
    team_store('buffer_store_dwordx4 v[8:11], v14, s[20:23], s57 offen')
    if stamps:
        A('s_mov_b32 exec_hi, -1')
        stamp(7)
        A('s_cmp_lg_u32 s6, 0', 's_cbranch_scc1 L_end')
        dump_stamps([6, 7, 12, 13, 14])
    A('s_endpgm')

    A.lab('L_kwave')
    R1 = 64; PB = 48; ACC = 40; WO = 128; WT = 160; XG = 192
    if kprio: A(f's_setprio {kprio}')
    A('v_lshlrev_b32 v3, 2, v1', 'v_xor_b32 v3, v3, v2', 'v_lshlrev_b32 v8, 8, v1')
    for n in range(4): A(f'v_xor_b32 v9, {n}, v3', f'v_lshl_add_u32 v{10+n}, v9, 4, v8')
    A('s_lshl_b32 s57, s6, 8', f's_add_u32 s57, s57, {ZL}', 'v_lshlrev_b32 v4, 2, v0', 'v_add_u32 v4, s57, v4')
    A('v_mov_b32 v6, 0', 'v_lshlrev_b32 v7, 2, v16', f'v_add_u32 v7, {CNT}, v7')
    A('ds_write_b32 v4, v6', 'ds_write_b32 v7, v6')
    A('s_lshl_b32 s53, s6, 10', 's_mov_b32 s57, s55')
    A('s_waitcnt lgkmcnt(0)')
    A('s_mov_b32 s8, s32', 's_mov_b32 s9, s33', 's_mov_b32 s24, s40', 's_mov_b32 s25, s41')
    A('s_mov_b32 s28, s44', 's_mov_b32 s29, s45', 's_mov_b32 s30, 1024', 's_mov_b32 s31, 0x20000')
    A('s_load_dword s7, s[50:51], 0x%x' % WS_EPOCH)
    A('s_barrier')
    A(f'buffer_load_dwordx4 {vr(XG,4)}, v14, s[24:27], s53 offen')
    A(f'buffer_load_dwordx4 {vr(XG+4,4)}, v14, s[28:31], 0 offen')
    for n in range(32):
        if n % gran == 0:
            A('s_mov_b32 m0, s57', f's_add_u32 s57, s57, {gran*1024}'); nextblock()
        A(f'buffer_load_dwordx4 v{10+n%4}, s[8:11], s56 offen offset:{(n%gran)*1024}{P} lds')
    stamp(1)
    A('s_barrier')
    A('s_mov_b32 s20, s50', 's_mov_b32 s21, s51')
    A('s_lshl_b32 s57, s3, 15', 's_lshl_b32 s56, s58, 13', 's_add_u32 s57, s57, s56')
    A('s_lshl_b32 s56, s6, 11', 's_add_u32 s57, s57, s56', f's_add_u32 s57, s57, 0x{WS_Q:x}')
    QP = 64
    def pollq():
        for k in range(2): A(f'buffer_load_dwordx4 {vr(QP+4*k,4)}, v14, s[20:23], s57 offen offset:{1024*k} sc1')
    pollq()
    A('s_mov_b32 s24, s46', 's_mov_b32 s25, s47', 's_mov_b32 s16, s38', 's_mov_b32 s17, s39')
    NT = 0
    if touch:
        A.c('first touch of the output page')
        A('s_mov_b64 exec, 1', 'buffer_load_dword v237, v14, s[24:27], 0 offen', 's_mov_b64 exec, -1'); NT = 1
    A('v_lshlrev_b32 v15, 10, v1', 'v_lshl_add_u32 v15, v2, 4, v15')
    A('v_lshl_add_u32 v4, v16, 2, v5', 'v_lshlrev_b32 v4, 8, v4', 'v_add_u32 v4, s55, v4')
    A('v_xor_b32 v6, v1, v2', 'v_lshlrev_b32 v6, 4, v6')
    for t in range(4): A(f'v_xor_b32 v7, {64*t}, v6', f'v_add_u32 v{20+t}, v4, v7')
    A('v_lshlrev_b32 v7, 8, v16', 'v_lshl_add_u32 v7, v1, 4, v7', f'v_add_u32 v7, {QL}, v7', f'v_mov_b32 v8, {ZL}')
    versions(32, 7, 8)
    A('s_lshl_b32 s59, s6, 8', f's_add_u32 s59, s59, {QL}')
    A('v_bfe_u32 v9, v0, 3, 2', 'v_lshlrev_b32 v9, 6, v9', 'v_and_b32 v8, 1, v0', 'v_lshl_add_u32 v9, v8, 3, v9')
    A('v_bfe_u32 v8, v0, 1, 2', 'v_lshl_add_u32 v9, v8, 1, v9', 'v_add_u32 v9, s59, v9')
    A('v_lshlrev_b32 v18, 4, v16', 's_lshl_b32 s59, s6, 2', f's_add_u32 s59, s59, {ML}', 'v_add_u32 v18, s59, v18')
    A('v_lshl_add_u32 v17, v1, 2, v16', 'v_lshlrev_b32 v17, 4, v17')
    A('v_lshrrev_b32 v8, 1, v5', 'v_lshl_add_u32 v17, v8, 8, v17', 'v_and_b32 v8, 1, v5', 'v_lshl_add_u32 v17, v8, 3, v17')
    A('s_lshl_b32 s59, s6, 10', f's_add_u32 s59, s59, {PX}', 'v_add_u32 v17, s59, v17')
    A(f's_waitcnt vmcnt({34+NT}) lgkmcnt(0)')
    A(f's_add_u32 s7, s7, 0x{TAGC:x}')
    GA = XG + 8
    for i in range(4):
        x = XG + i; g = XG + 4 + i
        unpack(36, x, g)
        A('v_mul_f32 v36, v36, v38', 'v_mul_f32 v37, v37, v39', 'v_cvt_pk_bf16_f32 v36, v36, v37')
        if i == 0:
            A(f'v_lshlrev_b32 v{GA}, 16, v36', f'v_and_b32 v{GA+1}, 0xffff0000, v36')
        else:
            A('v_lshlrev_b32 v38, 16, v36', 'v_and_b32 v39, 0xffff0000, v36', f'v_add_f32 v{GA}, v{GA}, v38', f'v_add_f32 v{GA+1}, v{GA+1}, v39')
    A(f'v_add_f32 v{GA}, v{GA}, v{GA+1}')
    allred('v_add_f32', GA, GA + 1, quad=True)
    A(f'v_cvt_pk_bf16_f32 v{GA}, v{GA}, v{GA}', f'v_lshlrev_b32 v{GA}, 16, v{GA}')
    A(f'v_mul_f32 v{GA}, 0x{LOG2E ^ 0x80000000:x}, v{GA}', f'v_exp_f32 v{GA}, v{GA}', 's_nop 0')
    A(f'v_add_f32 v{GA}, 1.0, v{GA}', f'v_rcp_f32 v{GA}, v{GA}', 's_nop 0')
    A(f'v_cvt_pk_bf16_f32 v{GA}, v{GA}, v{GA}', f'v_lshlrev_b32 v{GA}, 16, v{GA}')
    A(f'v_sub_f32 v{GA+1}, 1.0, v{GA}', f'v_cvt_pk_bf16_f32 v{GA+1}, v{GA+1}, v{GA+1}', f'v_lshlrev_b32 v{GA+1}, 16, v{GA+1}')
    A('s_lshl_b32 s59, s6, 3', f's_add_u32 s59, s59, {GL}', 'v_mov_b32 v6, s59', f'ds_write_b64 v6, v[{GA}:{GA+1}]')
    A(f's_mov_b32 s59, {spin}', 's_add_u32 s62, s7, s12')
    A.lab('L_pollq')
    A('s_waitcnt vmcnt(0)')
    A(f'v_subrev_u32 v24, s7, v{QP+3}', f'v_subrev_u32 v25, s7, v{QP+7}')
    A('v_or_b32 v6, v24, v25', 'v_cmp_lt_u32 vcc, 7, v6')
    A('s_cbranch_vccz L_gotq', 's_sub_u32 s59, s59, 1', 's_cbranch_scc1 L_gotq')
    pollq()
    A('s_branch L_pollq')
    A.lab('L_gotq')
    stamp(3)
    A(f'v_xor_b32 v6, s62, v{QP+3}', f'v_bitop3_b32 v6, v{QP+7}, s62, v6 bitop3:0xbe', 'v_cmp_ne_u32 vcc, 0, v6')
    A('s_mov_b32 s56, 0x04000c0c', 's_mov_b32 s57, 0x0706000c')
    for k in range(2):
        q = QP + 4 * k
        A(f'v_perm_b32 v{28+k}, v{q}, v{q+1}, s56', f'v_perm_b32 v{28+k}, v{28+k}, v{q+2}, s57')
    A('s_cmp_eq_u64 vcc, 0', 's_cselect_b32 s59, 1, 0x101')
    for i in range(3): A(f'v_add_f32 v{24+i}, v{QP+i}, v{QP+4+i}')
    A('v_add_f32 v27, v28, v29')
    swapadd32(24, 28)
    A('v_cvt_pk_bf16_f32 v24, v24, v25', 'v_cvt_pk_bf16_f32 v25, v26, v27')
    A(f'v_mov_b32 v6, {CNT+4}', 'v_mov_b32 v7, s59')
    A('ds_write_b16 v9, v24', 'ds_write_b16_d16_hi v9, v24 offset:16', 'ds_write_b16 v9, v25 offset:32', 'ds_write_b16_d16_hi v9, v25 offset:48')
    A('s_mov_b64 exec, 1', 'ds_add_u32 v6, v7', 's_mov_b64 exec, -1')
    Qb = [R1, R1 + 16]; Kb = [R1 + 32, R1 + 48]
    def rdq(x):
        for t in range(4): A(f'ds_read_b128 {vr(Qb[x&1]+4*t,4)}, v{32+x} offset:{64*t}')
    def rdk(T_, buf):
        for t in range(4): A(f'ds_read_b128 {vr(Kb[buf]+4*t,4)}, v{20+t} offset:{4096*T_}')
    def mm(T_, buf):
        x = T_ & 3; a = T_ >> 2
        for t in range(4):
            c = '0' if (x == 0 and t == 0) else vr(ACC+4*a, 4)
            A(f'v_mfma_f32_16x16x32_bf16 {vr(ACC+4*a,4)}, {vr(Kb[buf]+4*t,4)}, {vr(Qb[x&1]+4*t,4)}, {c}')
    rdk(0, 0); rdk(4, 1)
    A(f's_mov_b32 s59, {spin}', f's_mov_b32 s62, 0x{SCALE:x}', f's_mov_b32 s14, 0x{LOG2E:x}')
    A.lab('L_qspin')
    A('ds_read_b32 v7, v6', 's_waitcnt lgkmcnt(0)', 'v_readfirstlane_b32 s13, v7', 's_and_b32 s56, s13, 255', 's_cmp_eq_u32 s56, 4', 's_cbranch_scc1 L_qall')
    A('s_sub_u32 s59, s59, 1', 's_cbranch_scc0 L_qspin')
    A.lab('L_qall')
    rdq(0)
    A('s_lshr_b32 s13, s13, 8')
    for x in range(4):
        A('s_waitcnt lgkmcnt(%d)' % (0 if x == 0 else 4))
        mm(x, 0)
        if x < 3:
            rdq(x + 1)
            A('s_waitcnt lgkmcnt(4)')
        else:
            A('s_waitcnt lgkmcnt(0)')
        mm(x + 4, 1)
        if x < 3:
            rdk(x + 1, 0); rdk(x + 5, 1)
    A('s_nop 7')
    S = ACC
    for p in range(4): A(f'v_cvt_pk_bf16_f32 v{28+p}, v{S+2*p}, v{S+2*p+1}')
    for p in range(4): A(f'v_lshlrev_b32 v{S+2*p}, 16, v{28+p}', f'v_and_b32 v{S+2*p+1}, 0xffff0000, v{28+p}')
    for i in range(8): A(f'v_mul_f32 v{S+i}, s62, v{S+i}')
    for p in range(4): A(f'v_cvt_pk_bf16_f32 v{28+p}, v{S+2*p}, v{S+2*p+1}')
    for p in range(4): A(f'v_lshlrev_b32 v{S+2*p}, 16, v{28+p}', f'v_and_b32 v{S+2*p+1}, 0xffff0000, v{28+p}')
    A(f'v_max3_f32 v28, v{S}, v{S+1}, v{S+2}', f'v_max3_f32 v29, v{S+3}, v{S+4}, v{S+5}', f'v_max3_f32 v28, v28, v{S+6}, v{S+7}', 'v_max_f32 v28, v28, v29')
    allred('v_max_f32', 28, 29)
    A('v_mul_f32 v36, s14, v28')
    for i in range(8): A(f'v_fma_f32 v{S+i}, v{S+i}, s14, -v36')
    for i in range(8): A(f'v_exp_f32 v{S+i}, v{S+i}')
    A('ds_write_b32 v18, v36')
    for p in range(4): A(f'v_cvt_pk_bf16_f32 v{32+p}, v{S+2*p}, v{S+2*p+1}')
    A('ds_write_b64 v17, v[32:33]', 'ds_write_b64 v17, v[34:35] offset:512')
    A(f'v_add_f32 v28, v{S}, v{S+1}', f'v_add_f32 v29, v{S+2}, v{S+3}', f'v_add_f32 v30, v{S+4}, v{S+5}', f'v_add_f32 v31, v{S+6}, v{S+7}')
    A('v_add_f32 v28, v28, v29', 'v_add_f32 v30, v30, v31', 'v_add_f32 v28, v28, v30')
    allred('v_add_f32', 28, 29)
    A('ds_write_b32 v18, v28 offset:64')
    A('v_lshlrev_b32 v7, 4, v16', f'v_add_u32 v7, {ML}, v7', f'v_mov_b32 v6, {CNT+12}', 'v_mov_b32 v8, 1')
    A('s_mov_b64 exec, 1', 'ds_add_rtn_u32 v8, v6, v8', 's_mov_b64 exec, -1')
    A('ds_read_b128 v[20:23], v7', 'ds_read_b128 v[24:27], v7 offset:64')
    A('v_mov_b32 v37, s7', 'v_mov_b32 v39, s7')
    A('s_lshl_b32 s56, s63, 7', f's_add_u32 s56, s56, 0x{WS_ML:x}')
    A('s_waitcnt lgkmcnt(0)')
    A('v_readfirstlane_b32 s59, v8', 's_cmp_lg_u32 s59, 3', 's_cbranch_scc1 L_noml')
    A.c('last K wave to finish its softmax publishes (m, l) of this workgroup, lane = head')
    A('v_max3_f32 v36, v20, v21, v22', 'v_max_f32 v36, v36, v23')
    for w in range(4): A(f'v_sub_f32 v{20+w}, v{20+w}, v36')
    for w in range(4): A(f'v_exp_f32 v{20+w}, v{20+w}')
    A('s_nop 0', 'v_mul_f32 v38, v20, v24')
    for w in range(1, 4): A(f'v_fmac_f32 v38, v{20+w}, v{24+w}')
    A('s_mov_b64 exec, 15')
    team_store('buffer_store_dwordx4 v[36:39], v14, s[20:23], s56 offen')
    A('s_mov_b64 exec, -1')
    A.lab('L_noml')
    A('v_lshrrev_b32 v13, 3, v0', 'v_lshlrev_b32 v12, 11, v13', 'v_and_b32 v8, 7, v0', 'v_lshl_add_u32 v12, v8, 4, v12', 'v_lshlrev_b32 v13, 7, v13')
    A('s_lshl_b32 s59, s6, 8', f's_add_u32 s59, s59, {OX}')
    A('v_and_b32 v17, 31, v0', 'v_lshlrev_b32 v17, 3, v17', 'v_add_u32 v17, s59, v17')
    A('v_lshlrev_b32 v8, 6, v16', 'v_lshl_add_u32 v8, v1, 4, v8', 'v_add_u32 v8, s59, v8', f'v_mov_b32 v9, {ZL}')
    versions(208, 8, 9)
    A('s_lshl_b32 s59, s6, 11', 'v_add_u32 v19, s59, v14')
    A('s_lshl_b32 s59, s6, 9', 'v_and_b32 v18, 31, v0', 'v_lshlrev_b32 v18, 4, v18', 'v_add_u32 v18, s59, v18')
    A('v_mov_b32 v9, s7', 'v_mov_b32 v11, s7')
    A('s_lshr_b32 s58, s5, 2', 's_and_b32 s59, s5, 3')
    A('s_lshl_b32 s52, s3, 11', 's_lshl_b32 s53, s58, 4', 's_add_u32 s52, s52, s53', f's_add_u32 s52, s52, 0x{WS_ML:x}')
    A('s_lshl_b32 s50, s3, 15', 's_lshl_b32 s53, s58, 9', 's_add_u32 s50, s50, s53', 's_lshl_b32 s53, s6, 7', 's_add_u32 s50, s50, s53')
    A(f's_add_u32 s50, s50, 0x{WS_O:x}', 's_add_u32 s51, s50, 16384')
    A('s_lshl_b32 s57, s3, 2', 's_add_u32 s57, s57, s58')
    A('s_lshl_b32 s53, s59, 6', 's_add_u32 s53, s53, s57', 's_lshl_b32 s53, s53, 11')
    A('s_lshl_b32 s56, s6, 9', 's_add_u32 s53, s53, s56', f's_add_u32 s53, s53, 0x{WS_P:x}')
    A('s_and_b32 s58, s57, 31', 's_lshl_b32 s58, s58, 17', 's_add_u32 s58, s58, s55', 's_lshl_b32 s59, s59, 8', 's_add_u32 s58, s58, s59')
    A('s_and_b32 s56, s2, 7', 's_lshr_b32 s59, s2, 5', 's_lshl_b32 s59, s59, 3', 's_add_u32 s56, s56, s59', 's_lshr_b32 s57, s56, 4')
    A('s_and_b32 s56, s56, 15', 's_lshl_b32 s56, s56, 3', 's_bfe_u32 s59, s2, 0x20003', 's_lshl_b32 s59, s59, 1', 's_add_u32 s56, s56, s59')
    A('s_lshl_b32 s97, s57, 17', 's_lshl_b32 s59, s56, 4', 's_add_u32 s97, s97, s59', f's_add_u32 s97, s97, 0x{WS_P:x}')
    A('s_add_u32 s98, s97, 65536')
    A('v_lshrrev_b32 v212, 1, v0', 'v_lshlrev_b32 v212, 11, v212', 'v_and_b32 v7, 1, v0', 'v_lshl_add_u32 v212, v7, 4, v212')
    A('v_add_u32 v4, s56, v7', 'v_and_b32 v7, 3, v4', 'v_lshlrev_b32 v214, 3, v7', f'v_add_u32 v214, {GL}, v214')
    A('v_lshlrev_b32 v213, 9, v7', 's_lshl_b32 s57, s57, 7', 'v_add_u32 v213, s57, v213')
    A('v_bfe_u32 v7, v4, 4, 2', 'v_lshl_add_u32 v213, v7, 5, v213', 'v_lshrrev_b32 v7, 6, v4', 'v_lshl_add_u32 v213, v7, 2, v213')
    A('v_bfe_u32 v7, v4, 2, 2', 'v_add_u32 v213, v213, v7')
    A('v_bfe_u32 v7, v0, 1, 1', 'v_lshl_add_u32 v213, v7, 4, v213', 'v_and_b32 v7, 1, v1', 'v_lshl_add_u32 v213, v7, 3, v213')
    A('v_lshlrev_b32 v213, 1, v213')
    A('v_and_b32 v7, 2, v0', 'v_cmp_ne_u32 s[100:101], 0, v7')
    stamp(4)
    A('s_barrier')
    MLR = 216; FA = 224
    def pollml():
        A(f'buffer_load_dwordx4 v[{MLR}:{MLR+3}], v13, s[20:23], s52 offen sc1')
        A(f'buffer_load_dwordx4 v[{MLR+4}:{MLR+7}], v13, s[20:23], s52 offen offset:1024 sc1')
    def mlfactors():
        A(f'v_max_f32 v6, v{MLR}, v{MLR+4}')
        A('v_mov_b32 v7, v6', 's_nop 1', 'v_permlane32_swap_b32 v6, v7', 's_nop 1', 'v_max_f32 v6, v6, v7')
        A(f'v_sub_f32 v{FA}, v{MLR}, v6', f'v_sub_f32 v{FA+1}, v{MLR+4}, v6', f'v_exp_f32 v{FA}, v{FA}', f'v_exp_f32 v{FA+1}, v{FA+1}', 's_nop 0')
        A(f'v_mul_f32 v6, v{FA}, v{MLR+2}', f'v_fmac_f32 v6, v{FA+1}, v{MLR+6}')
        A('v_mov_b32 v7, v6', 's_nop 1', 'v_permlane32_swap_b32 v6, v7', 's_nop 1', 'v_add_f32 v6, v6, v7')
        A('v_rcp_f32 v6, v6', 's_nop 0', f'v_mul_f32 v{FA}, v{FA}, v6', f'v_mul_f32 v{FA+1}, v{FA+1}, v6')
    def poll1():
        A('buffer_load_dwordx4 v[20:23], v12, s[20:23], s50 offen sc1', 'buffer_load_dwordx4 v[24:27], v12, s[20:23], s51 offen sc1')
    pollml()
    for n in range(8):
        ro = 8 * (n & 3) + 4 * (n >> 2)
        A(f's_add_u32 s59, s58, {ro*1024}', f'buffer_load_dwordx4 {vr(WO+4*n,4)}, v15, s[16:19], s59 offen{WP}')
    poll1()
    A('ds_read_b64 v[214:215], v214')
    stamp(5)
    A('s_waitcnt vmcnt(10)')
    tagcheck([MLR, MLR + 4])
    A('s_mov_b32 s62, 0', 's_cbranch_vccnz L_mllate')
    mlfactors()
    A('s_mov_b32 s62, 1')
    A.lab('L_mllate')
    for d in range(4):
        A(f's_waitcnt vmcnt({8-2*d})')
        for dp in range(4):
            A(f'v_perm_b32 v{WT+8*dp+d}, v{WO+4*(2*d+1)+dp}, v{WO+8*d+dp}, {SLO}', f'v_perm_b32 v{WT+8*dp+4+d}, v{WO+4*(2*d+1)+dp}, v{WO+8*d+dp}, {SHI}')
    stamp(2)
    A(f's_mov_b32 s59, {spin}', 's_cmp_eq_u32 s62, 1', 's_cbranch_scc1 L_poll1')
    A.lab('L_pollml')
    pollml()
    A('s_waitcnt vmcnt(0)')
    tagcheck([MLR, MLR + 4])
    A('s_cbranch_vccz L_gotml', 's_sub_u32 s59, s59, 1', 's_cbranch_scc0 L_pollml')
    A.lab('L_gotml')
    mlfactors()
    A.lab('L_poll1')
    A('s_waitcnt vmcnt(0)')
    tagcheck([20, 24])
    A('s_cbranch_vccz L_got1', 's_sub_u32 s59, s59, 1', 's_cbranch_scc1 L_got1')
    if sleep: A(f's_sleep {sleep}')
    poll1()
    A('s_branch L_poll1')
    A.lab('L_got1')
    stamp(8)
    unpack(28, 20, 22); unpack(36, 24, 26)
    for r in range(4): A(f'v_mul_f32 v{28+r}, v{FA}, v{28+r}')
    for r in range(4): A(f'v_fmac_f32 v{28+r}, v{FA+1}, v{36+r}')
    swapadd32(28, 36)
    A('v_cvt_pk_bf16_f32 v20, v28, v29', 'v_cvt_pk_bf16_f32 v21, v30, v31')
    A('ds_write_b64 v17, v[20:21]')
    for e in range(4): A(f'ds_read_b128 {vr(PB+4*e,4)}, v{208+e}')
    for e in range(4):
        A(f's_waitcnt lgkmcnt({3-e})')
        for idx in range(2):
            c = '0' if e == 0 else vr(ACC + 4 * idx, 4)
            A(f'v_mfma_f32_16x16x32_bf16 {vr(ACC+4*idx,4)}, {vr(WT+4*(4*idx+e),4)}, {vr(PB+4*e,4)}, {c}')
    A('s_nop 6')
    A(f'ds_write_b128 v19, {vr(ACC,4)}', f'ds_write_b128 v19, {vr(ACC+4,4)} offset:1024')
    A('s_waitcnt lgkmcnt(0)')
    stamp(15)
    A('s_barrier')
    for w in range(4): A(f'ds_read_b128 {vr(20+4*w,4)}, v18 offset:{2048*w}')
    A('s_waitcnt lgkmcnt(2)')
    for i in range(4): A(f'v_add_f32 v{20+i}, v{20+i}, v{24+i}')
    A('s_waitcnt lgkmcnt(0)')
    for i in range(4): A(f'v_add_f32 v{28+i}, v{28+i}, v{32+i}')
    for i in range(4): A(f'v_add_f32 v{20+i}, v{20+i}, v{28+i}')
    A('v_cvt_pk_bf16_f32 v8, v20, v21', 'v_cvt_pk_bf16_f32 v10, v22, v23')
    A('s_mov_b32 exec_hi, 0', 'buffer_store_dwordx4 v[8:11], v14, s[20:23], s53 offen sc1', 's_mov_b32 exec_hi, -1')
    stamp(9)
    A('s_cmp_lg_u32 s6, 0', 's_cbranch_scc1 L_end')
    if ackfirst: A('s_waitcnt vmcnt(0)')
    A(f's_mov_b32 s59, {spin}')
    A.lab('L_poll2')
    for k in range(2): A(f'buffer_load_dwordx4 v[{20+4*k}:{23+4*k}], v212, s[20:23], s{97+k} offen sc1')
    A('s_waitcnt vmcnt(0)')
    tagcheck([20, 24])
    A('s_cbranch_vccz L_got2', 's_sub_u32 s59, s59, 1', 's_cbranch_scc1 L_got2')
    if sleep2: A(f's_sleep {sleep2}')
    A('s_branch L_poll2')
    A.lab('L_got2')
    stamp(10)
    unpack(28, 20, 22); unpack(32, 24, 26)
    A('s_nop 0')
    for i in range(4): A(f'v_permlane32_swap_b32 v{28+i}, v{32+i}')
    A('s_nop 0')
    for i in range(4): A(f'v_add_f32 v{28+i}, v{28+i}, v{32+i}')
    A('s_nop 0', 'v_permlane16_swap_b32 v28, v29', 'v_permlane16_swap_b32 v30, v31', 's_nop 0')
    A('v_add_f32 v28, v28, v29', 'v_add_f32 v30, v30, v31')
    A('s_nop 0', 'v_add_f32_dpp v28, v28, v28 quad_perm:[2,3,0,1] row_mask:0xf bank_mask:0xf', 'v_add_f32_dpp v30, v30, v30 quad_perm:[2,3,0,1] row_mask:0xf bank_mask:0xf')
    A('s_nop 0', 'v_cndmask_b32 v20, v28, v30, s[100:101]')
    A('s_nop 1', 'v_add_f32_dpp v20, v20, v20 row_ror:4 row_mask:0xf bank_mask:0xf')
    A('s_nop 1', 'v_add_f32_dpp v20, v20, v20 row_ror:8 row_mask:0xf bank_mask:0xf')
    A('v_mov_b32 v21, v20', 's_nop 1', 'v_permlane32_swap_b32 v20, v21', 's_nop 1')
    A('v_cvt_pk_bf16_f32 v20, v20, v21')
    A('v_lshlrev_b32 v21, 16, v20', 'v_and_b32 v22, 0xffff0000, v20')
    A('v_mul_f32 v21, v21, v214', 'v_mul_f32 v22, v22, v215')
    A('v_cvt_pk_bf16_f32 v20, v21, v22')
    A('v_lshlrev_b32 v21, 16, v20', 'v_and_b32 v22, 0xffff0000, v20', 'v_add_f32 v21, v21, v22')
    A('v_cvt_pk_bf16_f32 v20, v21, v21')
    A('s_mov_b64 exec, 0x000f000f', 'buffer_store_short v20, v213, s[24:27], 0 offen')
    A('s_cmp_lg_u32 s2, 0', 's_cbranch_scc1 L_fin')
    A('s_mov_b64 exec, 1', 'v_mov_b32 v6, s7', f'buffer_store_dword v6, v14, s[20:23], 0 offen offset:{WS_EPOCH}')
    A.lab('L_fin')
    if echo >= 0:
        stamp(11)
        A('s_memrealtime s[30:31]', 's_waitcnt lgkmcnt(0)')
        A(f's_sub_u32 s28, s{64+2*echo}, s64', 's_add_u32 s28, s28, s30')
        A.lab('L_echo')
        A('s_memrealtime s[30:31]', 's_waitcnt lgkmcnt(0)', 's_sub_u32 s29, s30, s28', 's_cmp_lt_i32 s29, 0', 's_cbranch_scc1 L_echo')
    if stamps:
        stamp(11)
        A('s_mov_b64 exec, -1')
        dump_stamps([0, 1, 2, 3, 4, 5, 8, 9, 10, 11, 15])
    A.lab('L_end')
    A('s_endpgm')
    A.lab('L_code_end')
    out += A.L
    out += ['.section .rodata,"a"', '.p2align 6', f'.amdhsa_kernel {KN}_kernel',
            '  .amdhsa_next_free_vgpr 256', '  .amdhsa_next_free_sgpr 102', '  .amdhsa_accum_offset 256',
            '  .amdhsa_group_segment_fixed_size 0', '  .amdhsa_kernarg_size 112', '  .amdhsa_user_sgpr_count 2',
            '  .amdhsa_user_sgpr_kernarg_segment_ptr 1', '  .amdhsa_system_sgpr_workgroup_id_x 1', '.end_amdhsa_kernel']
    return '\n'.join(out) + '\n'

if __name__ == '__main__':
    ap = argparse.ArgumentParser()
    ap.add_argument('-o', default='k.s')
    ap.add_argument('--set', action='append', default=[])
    a = ap.parse_args()
    kw = {}
    for s in a.set:
        k, v = s.split('=')
        try: v = int(v)
        except ValueError: pass
        kw[k] = v
    open(a.o, 'w').write(gen(**kw))
```

```python
import sys, argparse
KN = 'gated_mix__sliding_block_cached__sliding_block_cached__decode'
HEADER = open('cdna_kernels/' + KN + '.s.ref').read().split('; Override launch')[0]

WS_EPOCH = 0x0
WS_ML = 0x1000
WS_O = 0x40000
WS_P = 0xC0000
WS_Q = 0x140000
WS_BYTES = 285221888
STAMP_OFF = 64 << 20
TAGC = 0x9E3779B1
KL = 0
QL = 131072
ZL = QL + 1024
PX = ZL + 1024
ML = PX + 4096
LL = ML + 64
CNT = LL + 64
GL = CNT + 64
OX = GL + 64
OL = OX + 1024
LDS_BYTES = OL + 8192
LOG2E = 0x3FB8AA3B
SCALE = 0x3DB504F3

class G:
    def __init__(s): s.L = []
    def __call__(s, *ts):
        for t in ts: s.L.append('  ' + t)
    def lab(s, t): s.L.append(t + ':')
    def c(s, t): s.L.append('  ; ' + t)

def vr(a, n=1):
    return f'v{a}' if n == 1 else f'v[{a}:{a+n-1}]'

def gen(stamps=False, pol='nt', wpol='nt', spin=200000, prefetch=True, sleep=1, touch=1, kprio=1, vprio=3,
        gran=4, rotmul=4, ackfirst=1, local=1, echo=-1, sleep2=-1, echog=-1, pre=0, mask1=0, h2=0, stag=6, qplain=0, st0=0, kb0=1, pat=1, rot=1):
    if sleep2 < 0: sleep2 = sleep
    A = G()
    P = (' ' + pol) if pol else ''
    WP = (' ' + wpol) if wpol else ''
    out = [HEADER.rstrip('\n'),
           '; Override launch geometry by editing the next line (default: block=256,',
           '; grid=ceil(out_elems/256), lds=0). Harness parses it; keep it on one line.',
           f'; @launch grid=(256,1,1) block=(512,1,1) lds={LDS_BYTES}',
           '.amdgcn_target "amdgcn-amd-amdhsa--gfx950"', '.text', f'.globl {KN}_kernel', '.p2align 8',
           f'.type {KN}_kernel,@function', f'{KN}_kernel:']
    SLO, SHI = 's60', 's61'
    def stamp(i):
        if stamps or (echo >= 0 and i in (0, echo)): A(f's_memrealtime s[{64+2*i}:{65+2*i}]')
    def allred(op, r, t, quad=False):
        if quad:
            A('s_nop 1', f'{op}_dpp v{r}, v{r}, v{r} quad_perm:[1,0,3,2] row_mask:0xf bank_mask:0xf')
            A('s_nop 1', f'{op}_dpp v{r}, v{r}, v{r} quad_perm:[2,3,0,1] row_mask:0xf bank_mask:0xf')
        A('s_nop 1', f'{op}_dpp v{r}, v{r}, v{r} row_ror:4 row_mask:0xf bank_mask:0xf')
        A('s_nop 1', f'{op}_dpp v{r}, v{r}, v{r} row_ror:8 row_mask:0xf bank_mask:0xf')
        A(f'v_mov_b32 v{t}, v{r}', 's_nop 1', f'v_permlane16_swap_b32 v{r}, v{t}', 's_nop 1', f'{op} v{r}, v{r}, v{t}')
        A(f'v_mov_b32 v{t}, v{r}', 's_nop 1', f'v_permlane32_swap_b32 v{r}, v{t}', 's_nop 1', f'{op} v{r}, v{r}, v{t}')
    def perm_mfma(src, T, mf):
        for dp in range(4):
            for d in range(4):
                A(f'v_perm_b32 v{T+4*(2*dp)+d}, v{src+4*(2*d+1)+dp}, v{src+4*(2*d)+dp}, {SLO}')
            if dp > 0 and mf: mf(2 * dp - 1)
            for d in range(4):
                A(f'v_perm_b32 v{T+4*(2*dp+1)+d}, v{src+4*(2*d+1)+dp}, v{src+4*(2*d)+dp}, {SHI}')
            if mf: mf(2 * dp)
        if mf:
            A('s_nop 1'); mf(7)
    def tagcheck(regs):
        A(f'v_xor_b32 v6, s7, v{regs[0]+1}', f'v_xor_b32 v7, s7, v{regs[0]+3}')
        for r in regs[1:]:
            A(f'v_bitop3_b32 v6, v{r+1}, s7, v6 bitop3:0xbe', f'v_bitop3_b32 v7, v{r+3}, s7, v7 bitop3:0xbe')
        A('v_or_b32 v6, v6, v7', 'v_cmp_ne_u32 vcc, 0, v6')
    def versions(dst, good, bad):
        for e in range(4):
            A(f'v_cmp_eq_u32 vcc, {e}, v5', 's_nop 1', f'v_cndmask_b32 v{dst+e}, v{bad}, v{good}, vcc')
    def unpack(dst, a, b):
        A(f'v_lshlrev_b32 v{dst}, 16, v{a}', f'v_and_b32 v{dst+1}, 0xffff0000, v{a}', f'v_lshlrev_b32 v{dst+2}, 16, v{b}', f'v_and_b32 v{dst+3}, 0xffff0000, v{b}')
    def swapadd32(r, t):
        for i in range(4): A(f'v_mov_b32 v{t+i}, v{r+i}')
        A('s_nop 0')
        for i in range(4): A(f'v_permlane32_swap_b32 v{r+i}, v{t+i}')
        A('s_nop 0')
        for i in range(4): A(f'v_add_f32 v{r+i}, v{r+i}, v{t+i}')
    nteam = [0]
    def team_store(txt):
        if not local:
            A(txt + ' sc1'); return
        n = nteam[0]; nteam[0] += 1
        A('s_cmp_eq_u32 s13, 0', f's_cbranch_scc1 L_tl{n}', txt + ' sc1', f's_branch L_td{n}')
        A.lab(f'L_tl{n}'); A(txt); A.lab(f'L_td{n}')
    def dump_stamps(idx):
        A('s_waitcnt lgkmcnt(0)')
        A('s_lshl_b32 s59, s2, 7', f's_add_u32 s59, s59, 0x{STAMP_OFF:x}', 'v_mov_b32 v7, 0')
        for i in idx:
            A(f'v_mov_b32 v8, s{64+2*i}', f'v_mov_b32 v9, s{65+2*i}')
            A(f'buffer_store_dwordx2 v[8:9], v7, s[20:23], s59 offen offset:{8*i}', 's_nop 1')

    A('s_cmpk_ge_u32 s2, 0x100', 's_cbranch_scc1 L_end')
    stamp(0)
    A('s_and_b32 s52, s2, 8', 's_mul_i32 s52, s52, 5')
    A('s_load_dwordx8 s[32:39], s[0:1], s52 offset:8')
    A('s_load_dwordx2 s[40:41], s[0:1], 0')
    A('s_load_dwordx8 s[44:51], s[0:1], 80')
    A('v_lshrrev_b32 v1, 6, v0', 'v_and_b32 v0, 63, v0', 'v_readfirstlane_b32 s6, v1', 'v_lshlrev_b32 v14, 4, v0')
    A('s_bitcmp1_b32 s6, 2', 's_cbranch_scc1 L_vwave')
    ISH = 13 if pat else 15
    def kvbase():
        A('s_lshr_b32 s58, s2, 6', 's_and_b32 s4, s2, 7', 's_lshl3_add_u32 s54, s58, s4', 's_lshr_b32 s5, s2, 4')
        if pat:
            A('s_and_b32 s59, s5, 3', 's_lshl2_add_u32 s54, s54, 3', 's_lshl_b32 s54, s54, 7', 's_lshl2_add_u32 s59, s59, s6', 's_add_u32 s54, s54, s59', 's_lshl_b32 s54, s54, 12')
        else:
            A('s_or_b32 s59, s5, 12', 's_lshl4_add_u32 s54, s54, s59', 's_lshl_b32 s54, s54, 5', 's_add_u32 s54, s54, s6', 's_lshl_b32 s54, s54, 12')
        A('s_lshl_b32 s96, s2, 29' if rot else 's_mov_b32 s96, 0', 's_lshl_b32 s97, 1, 29')
        A('s_lshl_b32 s10, 1, 26', 's_mov_b32 s11, 0x20000')
    kvbase()
    A('v_and_b32 v3, 48, v0', 'v_lshlrev_b32 v3, 2, v3', 'v_xor_b32 v10, v14, v3', 'v_add_u32 v10, s54, v10')
    for n in range(1, 4): A(f'v_xor_b32 v{10+n}, {16*n}, v10')
    A('s_lshl_b32 m0, s6, 15', 's_mov_b32 s59, 7')
    if kprio: A(f's_setprio {kprio}')
    A('s_waitcnt lgkmcnt(0)', 's_mov_b64 s[8:9], s[32:33]')
    if st0: stamp(5)
    A.lab('L_kloop')
    A(f's_lshr_b32 s56, s96, {ISH}')
    if kb0 >= 0:
        A(f's_cmp_lg_u32 s59, {7-kb0}', 's_cbranch_scc1 L_knob', 's_barrier')
        A.lab('L_knob')
    for n in range(4): A(f'buffer_load_dwordx4 v{10+n}, s[8:11], s56 offen offset:{n*1024}{P} lds')
    A('s_add_u32 s96, s96, s97', 's_addk_i32 m0, 0x1000', 's_sub_u32 s59, s59, 1', 's_cbranch_scc0 L_kloop')
    A.lab('L_entry_end')
    def common():
        A('s_and_b32 s3, s2, 15', 's_and_b32 s59, s5, 3')
        A(f's_mov_b32 {SLO}, 0x05040100', f's_mov_b32 {SHI}, 0x07060302')
        A('s_mov_b32 s18, 0x400000', 's_mov_b32 s19, 0x20000')
        A(f's_mov_b32 s22, {WS_BYTES}', 's_mov_b32 s23, 0x20000')
        A('s_mov_b32 s26, 4096', 's_mov_b32 s27, 0x20000')
        A('s_lshl_b32 s55, s6, 15')
        A('s_lshl2_add_u32 s63, s59, s58', 's_lshl4_add_u32 s63, s3, s63')
        A('s_getreg_b32 s12, hwreg(HW_REG_XCC_ID, 0, 3)')
        A('v_lshrrev_b32 v1, 4, v0')
        A('v_and_b32 v2, 15, v0')
        A('v_bfe_u32 v5, v0, 2, 2')
        A('v_and_b32 v16, 3, v0')

    R1 = 64; PB = 48; ACC = 40; WO = 128; WT = 160
    stamp(1)
    A('s_barrier')
    A('s_load_dword s7, s[50:51], 0x%x' % WS_EPOCH)
    common()
    A('s_mov_b64 s[20:21], s[50:51]')
    A('s_lshl_b32 s57, s3, 15', 's_lshl_b32 s56, s58, 13', 's_add_u32 s57, s57, s56')
    A('s_lshl_b32 s56, s6, 11', 's_add_u32 s57, s57, s56', f's_add_u32 s57, s57, 0x{WS_Q:x}')
    QP = 64
    def pollq(f=' sc1'):
        for k in range(2): A(f'buffer_load_dwordx4 {vr(QP+4*k,4)}, v14, s[20:23], s57 offen offset:{1024*k}{f}')
    pollq('' if qplain else ' sc1')
    A('s_mov_b32 s24, s46', 's_mov_b32 s25, s47', 's_mov_b32 s16, s38', 's_mov_b32 s17, s39')
    NT = 0
    if touch:
        A.c('first touch of the output page')
        A('s_mov_b64 exec, 1', 'buffer_load_dword v237, v14, s[24:27], 0 offen', 's_mov_b64 exec, -1'); NT = 1
    A('v_lshlrev_b32 v15, 10, v1', 'v_lshl_add_u32 v15, v2, 4, v15')
    A('v_lshl_add_u32 v4, v16, 2, v5', 'v_lshlrev_b32 v4, 8, v4', 'v_add_u32 v4, s55, v4')
    A('v_xor_b32 v6, v1, v2', 'v_lshlrev_b32 v6, 4, v6')
    for t in range(4): A(f'v_xor_b32 v7, {64*t}, v6', f'v_add_u32 v{20+t}, v4, v7')
    A('v_lshlrev_b32 v7, 8, v16', 'v_lshl_add_u32 v7, v1, 4, v7', f'v_add_u32 v7, {QL}, v7', f'v_mov_b32 v8, {ZL}')
    versions(32, 7, 8)
    A('s_lshl_b32 s59, s6, 8', f's_add_u32 s59, s59, {QL}')
    A('v_bfe_u32 v9, v0, 3, 2', 'v_lshlrev_b32 v9, 6, v9', 'v_and_b32 v8, 1, v0', 'v_lshl_add_u32 v9, v8, 3, v9')
    A('v_bfe_u32 v8, v0, 1, 2', 'v_lshl_add_u32 v9, v8, 1, v9', 'v_add_u32 v9, s59, v9')
    A('v_lshlrev_b32 v18, 4, v16', 's_lshl_b32 s59, s6, 2', f's_add_u32 s59, s59, {ML}', 'v_add_u32 v18, s59, v18')
    A('v_lshl_add_u32 v17, v1, 2, v16', 'v_lshlrev_b32 v17, 4, v17')
    A('v_lshrrev_b32 v8, 1, v5', 'v_lshl_add_u32 v17, v8, 8, v17', 'v_and_b32 v8, 1, v5', 'v_lshl_add_u32 v17, v8, 3, v17')
    A('s_lshl_b32 s59, s6, 10', f's_add_u32 s59, s59, {PX}', 'v_add_u32 v17, s59, v17')
    A('s_waitcnt lgkmcnt(0)')
    A(f's_add_u32 s7, s7, 0x{TAGC:x}')
    A(f's_mov_b32 s59, {spin}', 's_add_u32 s62, s7, s12')
    A.lab('L_pollq')
    A('s_waitcnt vmcnt(0)')
    A(f'v_subrev_u32 v24, s7, v{QP+3}', f'v_subrev_u32 v25, s7, v{QP+7}')
    A('v_or_b32 v6, v24, v25', 'v_cmp_lt_u32 vcc, 7, v6')
    A('s_cbranch_vccz L_gotq', 's_sub_u32 s59, s59, 1', 's_cbranch_scc1 L_gotq')
    pollq()
    A('s_branch L_pollq')
    A.lab('L_gotq')
    stamp(3)
    A(f'v_xor_b32 v6, s62, v{QP+3}', f'v_bitop3_b32 v6, v{QP+7}, s62, v6 bitop3:0xbe', 'v_cmp_ne_u32 vcc, 0, v6')
    A('s_mov_b32 s56, 0x04000c0c', 's_mov_b32 s57, 0x0706000c')
    for k in range(2):
        q = QP + 4 * k
        A(f'v_perm_b32 v{28+k}, v{q}, v{q+1}, s56', f'v_perm_b32 v{28+k}, v{28+k}, v{q+2}, s57')
    A('s_cmp_eq_u64 vcc, 0', 's_cselect_b32 s59, 1, 0x101')
    for i in range(3): A(f'v_add_f32 v{24+i}, v{QP+i}, v{QP+4+i}')
    A('v_add_f32 v27, v28, v29')
    swapadd32(24, 28)
    A('v_cvt_pk_bf16_f32 v24, v24, v25', 'v_cvt_pk_bf16_f32 v25, v26, v27')
    A(f'v_mov_b32 v6, {CNT+4}', 'v_mov_b32 v7, s59')
    A('ds_write_b16 v9, v24', 'ds_write_b16_d16_hi v9, v24 offset:16', 'ds_write_b16 v9, v25 offset:32', 'ds_write_b16_d16_hi v9, v25 offset:48')
    A('s_mov_b64 exec, 1', 'ds_add_u32 v6, v7', 's_mov_b64 exec, -1')
    Qb = [R1, R1 + 16]; Kb = [R1 + 32, R1 + 48]
    def rdq(x):
        for t in range(4): A(f'ds_read_b128 {vr(Qb[x&1]+4*t,4)}, v{32+x} offset:{64*t}')
    def rdk(T_, buf):
        for t in range(4): A(f'ds_read_b128 {vr(Kb[buf]+4*t,4)}, v{20+t} offset:{4096*T_}')
    def mm(T_, buf):
        x = T_ & 3; a = T_ >> 2
        for t in range(4):
            c = '0' if (x == 0 and t == 0) else vr(ACC+4*a, 4)
            A(f'v_mfma_f32_16x16x32_bf16 {vr(ACC+4*a,4)}, {vr(Kb[buf]+4*t,4)}, {vr(Qb[x&1]+4*t,4)}, {c}')
    rdk(0, 0); rdk(4, 1)
    A(f's_mov_b32 s59, {spin}', f's_mov_b32 s62, 0x{SCALE:x}', f's_mov_b32 s14, 0x{LOG2E:x}')
    A.lab('L_qspin')
    A('ds_read_b32 v7, v6', 's_waitcnt lgkmcnt(0)', 'v_readfirstlane_b32 s13, v7', 's_and_b32 s56, s13, 255', 's_cmp_eq_u32 s56, 4', 's_cbranch_scc1 L_qall')
    A('s_sub_u32 s59, s59, 1', 's_cbranch_scc0 L_qspin')
    A.lab('L_qall')
    rdq(0)
    A('s_lshr_b32 s13, s13, 8')
    if pre:
        A.c("team on one XCD: put this workgroup's O lines into the L2 now, untagged, so that early polls stay inside the L2")
        A('s_cmp_lg_u32 s13, 0', 's_cbranch_scc1 L_nopre')
        A('s_lshl_b32 s57, s63, 11', 's_lshl_b32 s59, s6, 9', 's_add_u32 s57, s57, s59', f's_add_u32 s57, s57, 0x{WS_O:x}')
        A('s_not_b32 s59, s7', 'v_mov_b32 v24, s59', 'v_mov_b32 v25, s59', 'v_mov_b32 v26, s59', 'v_mov_b32 v27, s59')
        A('s_mov_b32 exec_hi, 0', 'buffer_store_dwordx4 v[24:27], v14, s[20:23], s57 offen', 's_mov_b32 exec_hi, -1')
        A.lab('L_nopre')
    for x in range(4):
        A('s_waitcnt lgkmcnt(%d)' % (0 if x == 0 else 4))
        mm(x, 0)
        if x < 3:
            rdq(x + 1)
            A('s_waitcnt lgkmcnt(4)')
        else:
            A('s_waitcnt lgkmcnt(0)')
        mm(x + 4, 1)
        if x < 3:
            rdk(x + 1, 0); rdk(x + 5, 1)
    A('s_nop 7')
    S = ACC
    for p in range(4): A(f'v_cvt_pk_bf16_f32 v{28+p}, v{S+2*p}, v{S+2*p+1}')
    for p in range(4): A(f'v_lshlrev_b32 v{S+2*p}, 16, v{28+p}', f'v_and_b32 v{S+2*p+1}, 0xffff0000, v{28+p}')
    for i in range(8): A(f'v_mul_f32 v{S+i}, s62, v{S+i}')
    for p in range(4): A(f'v_cvt_pk_bf16_f32 v{28+p}, v{S+2*p}, v{S+2*p+1}')
    for p in range(4): A(f'v_lshlrev_b32 v{S+2*p}, 16, v{28+p}', f'v_and_b32 v{S+2*p+1}, 0xffff0000, v{28+p}')
    A(f'v_max3_f32 v28, v{S}, v{S+1}, v{S+2}', f'v_max3_f32 v29, v{S+3}, v{S+4}, v{S+5}', f'v_max3_f32 v28, v28, v{S+6}, v{S+7}', 'v_max_f32 v28, v28, v29')
    allred('v_max_f32', 28, 29)
    A('v_mul_f32 v36, s14, v28')
    for i in range(8): A(f'v_fma_f32 v{S+i}, v{S+i}, s14, -v36')
    for i in range(8): A(f'v_exp_f32 v{S+i}, v{S+i}')
    A('ds_write_b32 v18, v36')
    for p in range(4): A(f'v_cvt_pk_bf16_f32 v{32+p}, v{S+2*p}, v{S+2*p+1}')
    A('ds_write_b64 v17, v[32:33]', 'ds_write_b64 v17, v[34:35] offset:512')
    A(f'v_add_f32 v28, v{S}, v{S+1}', f'v_add_f32 v29, v{S+2}, v{S+3}', f'v_add_f32 v30, v{S+4}, v{S+5}', f'v_add_f32 v31, v{S+6}, v{S+7}')
    A('v_add_f32 v28, v28, v29', 'v_add_f32 v30, v30, v31', 'v_add_f32 v28, v28, v30')
    allred('v_add_f32', 28, 29)
    A('ds_write_b32 v18, v28 offset:64')
    A('v_lshlrev_b32 v7, 4, v16', f'v_add_u32 v7, {ML}, v7', f'v_mov_b32 v6, {CNT+12}', 'v_mov_b32 v8, 1')
    A('s_mov_b64 exec, 1', 'ds_add_rtn_u32 v8, v6, v8', 's_mov_b64 exec, -1')
    A('ds_read_b128 v[20:23], v7', 'ds_read_b128 v[24:27], v7 offset:64')
    A('v_mov_b32 v37, s7', 'v_mov_b32 v39, s7')
    A('s_lshl_b32 s56, s63, 7', f's_add_u32 s56, s56, 0x{WS_ML:x}')
    A('s_waitcnt lgkmcnt(0)')
    A('v_readfirstlane_b32 s59, v8', 's_cmp_lg_u32 s59, 3', 's_cbranch_scc1 L_noml')
    A.c('last K wave to finish its softmax publishes (m, l) of this workgroup, lane = head')
    A('v_max3_f32 v36, v20, v21, v22', 'v_max_f32 v36, v36, v23')
    for w in range(4): A(f'v_sub_f32 v{20+w}, v{20+w}, v36')
    for w in range(4): A(f'v_exp_f32 v{20+w}, v{20+w}')
    A('s_nop 0', 'v_mul_f32 v38, v20, v24')
    for w in range(1, 4): A(f'v_fmac_f32 v38, v{20+w}, v{24+w}')
    A('s_mov_b64 exec, 15')
    team_store('buffer_store_dwordx4 v[36:39], v14, s[20:23], s56 offen')
    A('s_mov_b64 exec, -1')
    A.lab('L_noml')
    A('v_lshrrev_b32 v13, 3, v0', 'v_lshlrev_b32 v12, 11, v13', 'v_and_b32 v8, 7, v0', 'v_lshl_add_u32 v12, v8, 4, v12', 'v_lshlrev_b32 v13, 7, v13')
    A('s_lshl_b32 s59, s6, 8', f's_add_u32 s59, s59, {OX}')
    A('v_and_b32 v17, 31, v0', 'v_lshlrev_b32 v17, 3, v17', 'v_add_u32 v17, s59, v17')
    A('v_lshlrev_b32 v8, 6, v16', 'v_lshl_add_u32 v8, v1, 4, v8', 'v_add_u32 v8, s59, v8', f'v_mov_b32 v9, {ZL}')
    versions(208, 8, 9)
    A('s_lshl_b32 s59, s6, 11', 'v_add_u32 v19, s59, v14')
    A('s_lshl_b32 s59, s6, 9', 'v_and_b32 v18, 31, v0', 'v_lshlrev_b32 v18, 4, v18', 'v_add_u32 v18, s59, v18')
    A('v_mov_b32 v9, s7', 'v_mov_b32 v11, s7')
    A('s_lshr_b32 s58, s5, 2', 's_and_b32 s59, s5, 3')
    A('s_lshl_b32 s52, s3, 11', 's_lshl_b32 s53, s58, 4', 's_add_u32 s52, s52, s53', f's_add_u32 s52, s52, 0x{WS_ML:x}')
    A('s_lshl_b32 s50, s3, 15', 's_lshl_b32 s53, s58, 9', 's_add_u32 s50, s50, s53', 's_lshl_b32 s53, s6, 7', 's_add_u32 s50, s50, s53')
    A(f's_add_u32 s50, s50, 0x{WS_O:x}', 's_add_u32 s51, s50, 16384')
    A('s_lshl_b32 s57, s3, 2', 's_add_u32 s57, s57, s58')
    A('s_lshl_b32 s53, s59, 6', 's_add_u32 s53, s53, s57', 's_lshl_b32 s53, s53, 11')
    A('s_lshl_b32 s56, s6, 9', 's_add_u32 s53, s53, s56', f's_add_u32 s53, s53, 0x{WS_P:x}')
    A('s_and_b32 s58, s57, 31', 's_lshl_b32 s58, s58, 17', 's_add_u32 s58, s58, s55', 's_lshl_b32 s59, s59, 8', 's_add_u32 s58, s58, s59')
    A('s_and_b32 s56, s2, 7', 's_lshr_b32 s59, s2, 5', 's_lshl_b32 s59, s59, 3', 's_add_u32 s56, s56, s59', 's_lshr_b32 s57, s56, 4')
    A('s_and_b32 s56, s56, 15', 's_lshl_b32 s56, s56, 3', 's_bfe_u32 s59, s2, 0x20003', 's_lshl_b32 s59, s59, 1', 's_add_u32 s56, s56, s59')
    A('s_lshl_b32 s97, s57, 17', 's_lshl_b32 s59, s56, 4', 's_add_u32 s97, s97, s59', f's_add_u32 s97, s97, 0x{WS_P:x}')
    A('s_add_u32 s98, s97, 65536')
    A('v_lshrrev_b32 v212, 1, v0', 'v_lshlrev_b32 v212, 11, v212', 'v_and_b32 v7, 1, v0', 'v_lshl_add_u32 v212, v7, 4, v212')
    A('v_add_u32 v4, s56, v7', 'v_and_b32 v7, 3, v4', 'v_lshlrev_b32 v214, 3, v7', f'v_add_u32 v214, {GL}, v214')
    A('v_lshlrev_b32 v213, 9, v7', 's_lshl_b32 s57, s57, 7', 'v_add_u32 v213, s57, v213')
    A('v_bfe_u32 v7, v4, 4, 2', 'v_lshl_add_u32 v213, v7, 5, v213', 'v_lshrrev_b32 v7, 6, v4', 'v_lshl_add_u32 v213, v7, 2, v213')
    A('v_bfe_u32 v7, v4, 2, 2', 'v_add_u32 v213, v213, v7')
    A('v_bfe_u32 v7, v0, 1, 1', 'v_lshl_add_u32 v213, v7, 4, v213', 'v_and_b32 v7, 1, v1', 'v_lshl_add_u32 v213, v7, 3, v213')
    A('v_lshlrev_b32 v213, 1, v213')
    A('v_and_b32 v7, 2, v0', 'v_cmp_ne_u32 s[100:101], 0, v7')
    stamp(4)
    if pre: A('s_waitcnt vmcnt(1)' if 0 else 's_waitcnt vmcnt(0)')
    A('s_barrier')
    MLR = 216; FA = 224
    def pollml():
        A(f'buffer_load_dwordx4 v[{MLR}:{MLR+3}], v13, s[20:23], s52 offen sc1')
        A(f'buffer_load_dwordx4 v[{MLR+4}:{MLR+7}], v13, s[20:23], s52 offen offset:1024 sc1')
    def mlfactors():
        A(f'v_max_f32 v6, v{MLR}, v{MLR+4}')
        A('v_mov_b32 v7, v6', 's_nop 1', 'v_permlane32_swap_b32 v6, v7', 's_nop 1', 'v_max_f32 v6, v6, v7')
        A(f'v_sub_f32 v{FA}, v{MLR}, v6', f'v_sub_f32 v{FA+1}, v{MLR+4}, v6', f'v_exp_f32 v{FA}, v{FA}', f'v_exp_f32 v{FA+1}, v{FA+1}', 's_nop 0')
        A(f'v_mul_f32 v6, v{FA}, v{MLR+2}', f'v_fmac_f32 v6, v{FA+1}, v{MLR+6}')
        A('v_mov_b32 v7, v6', 's_nop 1', 'v_permlane32_swap_b32 v6, v7', 's_nop 1', 'v_add_f32 v6, v6, v7')
        A('v_rcp_f32 v6, v6', 's_nop 0', f'v_mul_f32 v{FA}, v{FA}, v6', f'v_mul_f32 v{FA+1}, v{FA+1}, v6')
    def poll1():
        A('buffer_load_dwordx4 v[20:23], v12, s[20:23], s50 offen sc1', 'buffer_load_dwordx4 v[24:27], v12, s[20:23], s51 offen sc1')
    pollml()
    for n in range(8):
        ro = 8 * (n & 3) + 4 * (n >> 2)
        A(f's_add_u32 s59, s58, {ro*1024}', f'buffer_load_dwordx4 {vr(WO+4*n,4)}, v15, s[16:19], s59 offen{WP}')
    poll1()
    A('ds_read_b64 v[214:215], v214')
    if not st0: stamp(5)
    A('s_waitcnt vmcnt(10)')
    tagcheck([MLR, MLR + 4])
    A('s_mov_b32 s62, 0', 's_cbranch_vccnz L_mllate')
    mlfactors()
    A('s_mov_b32 s62, 1')
    A.lab('L_mllate')
    for d in range(4):
        A(f's_waitcnt vmcnt({8-2*d})')
        for dp in range(4):
            A(f'v_perm_b32 v{WT+8*dp+d}, v{WO+4*(2*d+1)+dp}, v{WO+8*d+dp}, {SLO}', f'v_perm_b32 v{WT+8*dp+4+d}, v{WO+4*(2*d+1)+dp}, v{WO+8*d+dp}, {SHI}')
    stamp(2)
    A(f's_mov_b32 s59, {spin}', 's_cmp_eq_u32 s62, 1', 's_cbranch_scc1 L_poll1')
    A.lab('L_pollml')
    pollml()
    A('s_waitcnt vmcnt(0)')
    tagcheck([MLR, MLR + 4])
    A('s_cbranch_vccz L_gotml', 's_sub_u32 s59, s59, 1', 's_cbranch_scc0 L_pollml')
    A.lab('L_gotml')
    mlfactors()
    A.lab('L_poll1')
    A('s_waitcnt vmcnt(0)')
    tagcheck([20, 24])
    A('s_cbranch_vccz L_got1', 's_sub_u32 s59, s59, 1', 's_cbranch_scc1 L_got1')
    if sleep: A(f's_sleep {sleep}')
    if mask1: A('s_mov_b64 exec, vcc')
    poll1()
    A('s_branch L_poll1')
    A.lab('L_got1')
    if mask1: A('s_mov_b64 exec, -1')
    stamp(8)
    unpack(28, 20, 22); unpack(36, 24, 26)
    for r in range(4): A(f'v_mul_f32 v{28+r}, v{FA}, v{28+r}')
    for r in range(4): A(f'v_fmac_f32 v{28+r}, v{FA+1}, v{36+r}')
    swapadd32(28, 36)
    A('v_cvt_pk_bf16_f32 v20, v28, v29', 'v_cvt_pk_bf16_f32 v21, v30, v31')
    A('ds_write_b64 v17, v[20:21]')
    for e in range(4): A(f'ds_read_b128 {vr(PB+4*e,4)}, v{208+e}')
    for e in range(4):
        A(f's_waitcnt lgkmcnt({3-e})')
        for idx in range(2):
            c = '0' if e == 0 else vr(ACC + 4 * idx, 4)
            A(f'v_mfma_f32_16x16x32_bf16 {vr(ACC+4*idx,4)}, {vr(WT+4*(4*idx+e),4)}, {vr(PB+4*e,4)}, {c}')
    A('s_nop 6')
    A(f'ds_write_b128 v19, {vr(ACC,4)}', f'ds_write_b128 v19, {vr(ACC+4,4)} offset:1024')
    A('s_waitcnt lgkmcnt(0)')
    if not st0: stamp(15)
    A('s_barrier')
    for w in range(4): A(f'ds_read_b128 {vr(20+4*w,4)}, v18 offset:{2048*w}')
    A('s_waitcnt lgkmcnt(2)')
    for i in range(4): A(f'v_add_f32 v{20+i}, v{20+i}, v{24+i}')
    A('s_waitcnt lgkmcnt(0)')
    for i in range(4): A(f'v_add_f32 v{28+i}, v{28+i}, v{32+i}')
    for i in range(4): A(f'v_add_f32 v{20+i}, v{20+i}, v{28+i}')
    A('v_cvt_pk_bf16_f32 v8, v20, v21', 'v_cvt_pk_bf16_f32 v10, v22, v23')
    A('s_mov_b32 exec_hi, 0', 'buffer_store_dwordx4 v[8:11], v14, s[20:23], s53 offen sc1', 's_mov_b32 exec_hi, -1')
    stamp(9)
    A('s_cmp_lg_u32 s6, 0', 's_cbranch_scc1 L_end')
    if ackfirst: A('s_waitcnt vmcnt(0)')
    A(f's_mov_b32 s59, {spin}')
    def poll2(r):
        for k in range(2): A(f'buffer_load_dwordx4 v[{r+4*k}:{r+3+4*k}], v212, s[20:23], s{97+k} offen sc1')
    if h2 < 2:
        A.lab('L_poll2')
        poll2(20)
        A('s_waitcnt vmcnt(0)')
        tagcheck([20, 24])
        A('s_cbranch_vccz L_got2', 's_sub_u32 s59, s59, 1', 's_cbranch_scc1 L_got2')
        if sleep2: A(f's_sleep {sleep2}')
        if h2 == 1: A('s_mov_b64 exec, vcc')
        A('s_branch L_poll2')
    else:
        poll2(44)
        A('s_mov_b64 s[32:33], -1', 's_mov_b64 s[34:35], -1', 's_mov_b64 s[36:37], -1', 's_mov_b64 s[38:39], 0')
        if stag: A(f's_sleep {stag}')
        poll2(52)
        A.lab('L_poll2')
        A('s_mov_b64 exec, s[32:33]', 's_waitcnt vmcnt(2)')
        tagcheck([44, 48])
        A('s_andn2_b64 s[40:41], exec, vcc', 's_or_b64 s[38:39], s[38:39], s[40:41]', 's_andn2_b64 s[36:37], s[36:37], s[40:41]', 's_cbranch_scc0 L_got2')
        A('s_mov_b64 exec, s[36:37]', 's_mov_b64 s[32:33], s[36:37]')
        poll2(44)
        A('s_mov_b64 exec, s[34:35]', 's_waitcnt vmcnt(2)')
        tagcheck([52, 56])
        A('s_andn2_b64 s[40:41], exec, vcc', 's_andn2_b64 s[36:37], s[36:37], s[40:41]', 's_cbranch_scc0 L_got2')
        A('s_mov_b64 exec, s[36:37]', 's_mov_b64 s[34:35], s[36:37]')
        poll2(52)
        A('s_sub_u32 s59, s59, 1', 's_cbranch_scc0 L_poll2')
    A.lab('L_got2')
    if h2: A('s_mov_b64 exec, -1')
    if h2 == 2:
        for i in range(4): A(f'v_cndmask_b32 v{20+2*i}, v{52+2*i}, v{44+2*i}, s[38:39]')
    stamp(10)
    unpack(28, 20, 22); unpack(32, 24, 26)
    A('s_nop 0')
    for i in range(4): A(f'v_permlane32_swap_b32 v{28+i}, v{32+i}')
    A('s_nop 0')
    for i in range(4): A(f'v_add_f32 v{28+i}, v{28+i}, v{32+i}')
    A('s_nop 0', 'v_permlane16_swap_b32 v28, v29', 'v_permlane16_swap_b32 v30, v31', 's_nop 0')
    A('v_add_f32 v28, v28, v29', 'v_add_f32 v30, v30, v31')
    A('s_nop 0', 'v_add_f32_dpp v28, v28, v28 quad_perm:[2,3,0,1] row_mask:0xf bank_mask:0xf', 'v_add_f32_dpp v30, v30, v30 quad_perm:[2,3,0,1] row_mask:0xf bank_mask:0xf')
    A('s_nop 0', 'v_cndmask_b32 v20, v28, v30, s[100:101]')
    A('s_nop 1', 'v_add_f32_dpp v20, v20, v20 row_ror:4 row_mask:0xf bank_mask:0xf')
    A('s_nop 1', 'v_add_f32_dpp v20, v20, v20 row_ror:8 row_mask:0xf bank_mask:0xf')
    A('v_mov_b32 v21, v20', 's_nop 1', 'v_permlane32_swap_b32 v20, v21', 's_nop 1')
    A('v_cvt_pk_bf16_f32 v20, v20, v21')
    A('v_lshlrev_b32 v21, 16, v20', 'v_and_b32 v22, 0xffff0000, v20')
    A('v_mul_f32 v21, v21, v214', 'v_mul_f32 v22, v22, v215')
    A('v_cvt_pk_bf16_f32 v20, v21, v22')
    A('v_lshlrev_b32 v21, 16, v20', 'v_and_b32 v22, 0xffff0000, v20', 'v_add_f32 v21, v21, v22')
    A('v_cvt_pk_bf16_f32 v20, v21, v21')
    A('s_mov_b64 exec, 0x000f000f', 'buffer_store_short v20, v213, s[24:27], 0 offen')
    A('s_cmp_lg_u32 s2, 0', 's_cbranch_scc1 L_fin')
    A('s_mov_b64 exec, 1', 'v_mov_b32 v6, s7', f'buffer_store_dword v6, v14, s[20:23], 0 offen offset:{WS_EPOCH}')
    A.lab('L_fin')
    if echo >= 0:
        stamp(11)
        A('s_memrealtime s[30:31]', 's_waitcnt lgkmcnt(0)')
        A(f's_sub_u32 s28, s{64+2*echo}, s64', 's_add_u32 s28, s28, s30')
        if echog >= 0: A('s_lshr_b32 s29, s3, 3', f's_cmp_lg_u32 s29, {echog}', 's_cbranch_scc1 L_end')
        A.lab('L_echo')
        A('s_memrealtime s[30:31]', 's_waitcnt lgkmcnt(0)', 's_sub_u32 s29, s30, s28', 's_cmp_lt_i32 s29, 0', 's_cbranch_scc1 L_echo')
    if stamps:
        stamp(11)
        A('s_mov_b64 exec, -1')
        dump_stamps([0, 1, 2, 3, 4, 5, 8, 9, 10, 11, 15])
    A('s_endpgm')

    V0 = 128; PB = 64; T = 32; ACC = 24
    WQ = 64; XB = 96
    A('.p2align 6')
    A.lab('L_vwave')
    if vprio: A(f's_setprio {vprio}')
    A('s_and_b32 s6, s6, 3')
    if prefetch:
        A.c("warm L2 with this kernel's own code: one dword per 64 bytes")
        A('s_getpc_b64 s[56:57]')
        A.lab('L_pc')
        A(f's_sub_u32 s56, s56, L_pc-{KN}_kernel', 's_subb_u32 s57, s57, 0')
        A('s_lshl_b32 s59, s6, 12', 'v_lshl_add_u32 v2, v14, 2, s59')
        A(f'v_min_u32 v2, L_code_end-{KN}_kernel-4, v2')
        A('v_mov_b32 v3, s57', 'v_add_co_u32 v2, vcc, s56, v2', 's_nop 1', 'v_addc_co_u32 v3, vcc, 0, v3, vcc')
        A('global_load_dword v40, v[2:3], off')
    kvbase()
    common()
    XG = 128; GA = XG + 8
    assert kb0 >= 0
    A('s_lshl_b32 s57, s6, 8', f's_add_u32 s57, s57, {ZL}', 'v_lshlrev_b32 v4, 2, v0', 'v_add_u32 v4, s57, v4')
    A('v_mov_b32 v6, 0', 'v_lshlrev_b32 v7, 2, v16', f'v_add_u32 v7, {CNT}, v7')
    A('ds_write_b32 v4, v6', 'ds_write_b32 v7, v6')
    A('v_lshlrev_b32 v9, 16, v1', 'v_lshl_add_u32 v9, v2, 4, v9')
    A('s_lshl2_add_u32 s57, s59, s6')
    A('s_lshl_b32 s56, s57, 10', 's_lshl2_add_u32 s59, s4, s58', 's_add_u32 s56, s56, s59', 's_lshl_b32 s56, s56, 8')
    A('s_lshl_b32 s57, s57, 6', 's_lshl_b32 s53, s6, 10')
    A('v_lshlrev_b32 v8, 4, v1', 'v_lshl_add_u32 v8, v16, 10, v8')
    A('v_bfrev_b32 v10, 1')
    A('s_mov_b32 s30, 1024', 's_mov_b32 s31, 0x20000')
    A('s_waitcnt lgkmcnt(0)')
    A('s_mov_b64 s[16:17], s[36:37]', 's_mov_b64 s[24:25], s[40:41]', 's_mov_b64 s[28:29], s[44:45]')
    if st0: stamp(12)
    A(f'buffer_load_dwordx4 {vr(XG,4)}, v14, s[24:27], s53 offen')
    A(f'buffer_load_dwordx4 {vr(XG+4,4)}, v14, s[28:31], 0 offen')
    for i in range(8):
        A(f'buffer_load_dwordx4 {vr(WQ+4*i,4)}, v9, s[16:19], s56 offen{WP}')
        if i < 7: A('s_addk_i32 s56, 0x2000')
    if kb0 >= 0: A('s_barrier')
    versions(20, 8, 10)
    for e in range(4): A(f'buffer_load_dwordx4 {vr(XB+4*e,4)}, v{20+e}, s[24:27], s57 offen')
    A('s_load_dword s7, s[50:51], 0x%x' % WS_EPOCH)
    A('s_mov_b64 s[20:21], s[50:51]', 's_mov_b64 s[8:9], s[34:35]')
    A('s_lshl_b32 s59, s6, 11', f's_add_u32 s59, s59, {OL}', 'v_add_u32 v19, s59, v14')
    A('v_bfe_u32 v12, v0, 1, 4', 'v_lshlrev_b32 v12, 6, v12', 'v_and_b32 v8, 1, v0', 'v_lshl_add_u32 v12, v8, 10, v12')
    A('s_lshl_b32 s59, s6, 4', f's_add_u32 s59, s59, {OL}', 'v_add_u32 v12, s59, v12')
    A('v_add_u32 v15, s54, v14')
    A(f'v_mov_b32 v10, {CNT}', 'v_mov_b32 v11, 1')
    A('s_lshl2_add_u32 s57, s3, s6', 's_lshl4_add_u32 s57, s57, s5', 's_lshl_b32 s57, s57, 9', f's_add_u32 s57, s57, 0x{WS_Q:x}')
    A('s_waitcnt vmcnt(12)')
    A.c('gate of batch cw')
    for i in range(4):
        x = XG + i; g = XG + 4 + i
        unpack(36, x, g)
        A('v_mul_f32 v36, v36, v38', 'v_mul_f32 v37, v37, v39', 'v_cvt_pk_bf16_f32 v36, v36, v37')
        if i == 0:
            A(f'v_lshlrev_b32 v{GA}, 16, v36', f'v_and_b32 v{GA+1}, 0xffff0000, v36')
        else:
            A('v_lshlrev_b32 v38, 16, v36', 'v_and_b32 v39, 0xffff0000, v36', f'v_add_f32 v{GA}, v{GA}, v38', f'v_add_f32 v{GA+1}, v{GA+1}, v39')
    A(f'v_add_f32 v{GA}, v{GA}, v{GA+1}')
    allred('v_add_f32', GA, GA + 1, quad=True)
    A(f'v_cvt_pk_bf16_f32 v{GA}, v{GA}, v{GA}', f'v_lshlrev_b32 v{GA}, 16, v{GA}')
    A(f'v_mul_f32 v{GA}, 0x{LOG2E ^ 0x80000000:x}, v{GA}', f'v_exp_f32 v{GA}, v{GA}', 's_nop 0')
    A(f'v_add_f32 v{GA}, 1.0, v{GA}', f'v_rcp_f32 v{GA}, v{GA}', 's_nop 0')
    A(f'v_cvt_pk_bf16_f32 v{GA}, v{GA}, v{GA}', f'v_lshlrev_b32 v{GA}, 16, v{GA}')
    A(f'v_sub_f32 v{GA+1}, 1.0, v{GA}', f'v_cvt_pk_bf16_f32 v{GA+1}, v{GA+1}, v{GA+1}', f'v_lshlrev_b32 v{GA+1}, 16, v{GA+1}')
    A('s_lshl_b32 s59, s6, 3', f's_add_u32 s59, s59, {GL}', 'v_mov_b32 v6, s59', f'ds_write_b64 v6, v[{GA}:{GA+1}]')
    A('s_waitcnt vmcnt(0) lgkmcnt(0)')
    A(f's_add_u32 s7, s7, 0x{TAGC:x}')
    if st0: stamp(13)
    def mfq(e):
        idx = e >> 2
        c = '0' if (e & 3) == 0 else vr(ACC + 4 * idx, 4)
        A(f'v_mfma_f32_16x16x32_bf16 {vr(ACC+4*idx,4)}, {vr(T+4*e,4)}, {vr(XB+4*(e&3),4)}, {c}')
    perm_mfma(WQ, T, mfq)
    A('s_nop 6')
    A(f'ds_write_b128 v19, {vr(ACC,4)}', f'ds_write_b128 v19, {vr(ACC+4,4)} offset:1024')
    A('s_mov_b64 exec, 1', 'ds_add_u32 v10, v11', 's_mov_b64 exec, -1')
    A('s_add_u32 s59, s7, s12', 's_mov_b32 s56, 0x07060503', 's_mov_b32 s58, 0x07060502', 's_mov_b32 s62, 0x07060501')
    A('v_mov_b32 v67, s59', f's_mov_b32 s59, {spin}')
    A.lab('L_xspin')
    A('ds_read_b32 v4, v10')
    for w in range(4): A(f'ds_read_b128 {vr(T+4*w,4)}, v12 offset:{2048*w}')
    A('s_waitcnt lgkmcnt(4)')
    A('v_readfirstlane_b32 s53, v4', 's_cmp_eq_u32 s53, 4', 's_cbranch_scc1 L_xall')
    A('s_sub_u32 s59, s59, 1', 's_cbranch_scc0 L_xspin')
    A.lab('L_xall')
    A.c("add the four waves' partials of batch cw and publish them; the tag also carries the XCD number")
    A('s_waitcnt lgkmcnt(2)')
    for i in range(4): A(f'v_add_f32 v{T+i}, v{T+i}, v{T+4+i}')
    A('s_waitcnt lgkmcnt(0)')
    for i in range(4): A(f'v_add_f32 v{T+8+i}, v{T+8+i}, v{T+12+i}')
    for i in range(4): A(f'v_add_f32 v{T+i}, v{T+i}, v{T+8+i}')
    A(f'v_perm_b32 v64, v{T}, v{T+3}, s56', f'v_perm_b32 v65, v{T+1}, v{T+3}, s58', f'v_perm_b32 v66, v{T+2}, v{T+3}, s62')
    A('s_mov_b32 exec_hi, 0', 'buffer_store_dwordx4 v[64:67], v14, s[20:23], s57 offen sc1', 's_mov_b32 exec_hi, -1')
    A('v_lshl_add_u32 v8, v1, 2, v16', 's_lshl_b32 s57, s6, 10', f's_add_u32 s57, s57, {PX}')
    A('v_lshlrev_b32 v8, 4, v8', 'v_add_u32 v8, s57, v8', f'v_mov_b32 v9, {ZL}')
    versions(20, 8, 9)
    A('s_lshl_b32 s59, s6, 4', f's_add_u32 s59, s59, {ML}', 'v_mov_b32 v13, s59')
    A('s_lshl_b32 s57, s63, 11', 's_lshl_b32 s59, s6, 9', 's_add_u32 s57, s57, s59', f's_add_u32 s57, s57, 0x{WS_O:x}')
    A(f'v_mov_b32 v2, {CNT+8}', 'v_mov_b32 v3, 1', 'v_mov_b32 v9, s7', 'v_mov_b32 v11, s7')
    if vprio: A('s_setprio 0')
    A('s_barrier')
    for n in range(32):
        if n % 4 == 0: A(f's_lshr_b32 s56, s96, {ISH}', 's_add_u32 s96, s96, s97')
        A(f'buffer_load_dwordx4 {vr(V0+4*n,4)}, v15, s[8:11], s56 offen offset:{(n%4)*1024}{P}')
    stamp(14)
    A('s_barrier')
    A('ds_read_b128 v[4:7], v13', 'ds_read_b32 v8, v10 offset:4')
    for G_ in range(4):
        for e in range(4): A(f'ds_read_b128 {vr(PB+16*G_+4*e,4)}, v{20+e} offset:{256*G_}')
        if G_ == 1: A('s_waitcnt lgkmcnt(0)')
    A('v_readfirstlane_b32 s13, v8')
    A('v_max3_f32 v8, v4, v5, v6', 'v_max_f32 v8, v8, v7')
    for w in range(4): A(f'v_sub_f32 v{4+w}, v{4+w}, v8')
    for w in range(4): A(f'v_exp_f32 v{4+w}, v{4+w}')
    A('s_lshr_b32 s13, s13, 8')
    for G_ in range(4):
        if G_ == 2: A(f's_waitcnt vmcnt({8*(3-G_)}) lgkmcnt(0)')
        else: A(f's_waitcnt vmcnt({8*(3-G_)})')
        if G_ == 3: stamp(6)
        def mf(e):
            idx = e >> 2
            c = '0' if (G_ == 0 and (e & 3) == 0) else vr(ACC + 4 * idx, 4)
            A(f'v_mfma_f32_16x16x32_bf16 {vr(ACC+4*idx,4)}, {vr(T+4*e,4)}, {vr(PB+16*G_+4*(e&3),4)}, {c}')
        perm_mfma(V0 + 32 * G_, T, mf)
    if not st0: stamp(12)
    A(f's_mov_b32 s59, {spin}', 's_nop 5')
    A(f'ds_write_b128 v19, {vr(ACC,4)}', f'ds_write_b128 v19, {vr(ACC+4,4)} offset:1024')
    A('s_mov_b64 exec, 1', 'ds_add_u32 v2, v3', 's_mov_b64 exec, -1')
    A.lab('L_ospin')
    A('ds_read_b32 v3, v2')
    for w in range(4): A(f'ds_read_b128 v[{64+4*w}:{67+4*w}], v12 offset:{2048*w}')
    A('s_waitcnt lgkmcnt(4)')
    A('v_readfirstlane_b32 s56, v3', 's_cmp_eq_u32 s56, 4', 's_cbranch_scc1 L_oall')
    A('s_sub_u32 s59, s59, 1', 's_cbranch_scc0 L_ospin')
    A.lab('L_oall')
    if not st0: stamp(13)
    A('s_waitcnt lgkmcnt(3)')
    for r in range(4): A(f'v_mul_f32 v{24+r}, v4, v{64+r}')
    for w in range(1, 4):
        A(f's_waitcnt lgkmcnt({3-w})')
        for r in range(4): A(f'v_fmac_f32 v{24+r}, v{4+w}, v{64+4*w+r}')
    A('v_cvt_pk_bf16_f32 v8, v24, v25', 'v_cvt_pk_bf16_f32 v10, v26, v27')
    A('s_mov_b32 exec_hi, 0')
    team_store('buffer_store_dwordx4 v[8:11], v14, s[20:23], s57 offen')
    if stamps:
        A('s_mov_b32 exec_hi, -1')
        stamp(7)
        A('s_cmp_lg_u32 s6, 0', 's_cbranch_scc1 L_end')
        dump_stamps([6, 7, 12, 13, 14])
    A('s_endpgm')

    A.lab('L_end')
    A('s_endpgm')
    A.lab('L_code_end')
    out += A.L
    out += ['.section .rodata,"a"', '.p2align 6', f'.amdhsa_kernel {KN}_kernel',
            '  .amdhsa_next_free_vgpr 256', '  .amdhsa_next_free_sgpr 102', '  .amdhsa_accum_offset 256',
            '  .amdhsa_group_segment_fixed_size 0', '  .amdhsa_kernarg_size 112', '  .amdhsa_user_sgpr_count 2',
            '  .amdhsa_user_sgpr_kernarg_segment_ptr 1', '  .amdhsa_system_sgpr_workgroup_id_x 1', '.end_amdhsa_kernel']
    return '\n'.join(out) + '\n'

if __name__ == '__main__':
    ap = argparse.ArgumentParser()
    ap.add_argument('-o', default='k.s')
    ap.add_argument('--set', action='append', default=[])
    a = ap.parse_args()
    kw = {}
    for s in a.set:
        k, v = s.split('=')
        try: v = int(v)
        except ValueError: pass
        kw[k] = v
    open(a.o, 'w').write(gen(**kw))
```

```python
import sys, argparse
KN = 'gated_mix__sliding_block_cached__sliding_block_cached__decode'
HEADER = open('cdna_kernels/' + KN + '.s.ref').read().split('; Override launch')[0]

WS_EPOCH = 0x0
WS_ML = 0x1000
WS_O = 0x40000
WS_P = 0xC0000
WS_Q = 0x140000
WS_BYTES = 285221888
STAMP_OFF = 64 << 20
TAGC = 0x9E3779B1
KL = 0
QL = 131072
ZL = QL + 1024
PX = ZL + 1024
ML = PX + 4096
LL = ML + 64
CNT = LL + 64
GL = CNT + 64
OX = GL + 64
OL = OX + 1024
LDS_BYTES = OL + 8192
LOG2E = 0x3FB8AA3B
SCALE = 0x3DB504F3

class G:
    def __init__(s): s.L = []
    def __call__(s, *ts):
        for t in ts: s.L.append('  ' + t)
    def lab(s, t): s.L.append(t + ':')
    def c(s, t): s.L.append('  ; ' + t)

def vr(a, n=1):
    return f'v{a}' if n == 1 else f'v[{a}:{a+n-1}]'

def gen(stamps=False, pol='nt', wpol='nt', spin=200000, prefetch=True, sleep=1, touch=1, kprio=1, vprio=3,
        gran=4, rotmul=4, ackfirst=1, local=1, echo=-1, sleep2=-1, echog=-1, pre=0, mask1=0, h2=0, stag=6, qplain=0, st0=0, kb0=0, pat=1, rot=0, qloc=1, xdbg=0):
    if sleep2 < 0: sleep2 = sleep
    A = G()
    P = (' ' + pol) if pol else ''
    WP = (' ' + wpol) if wpol else ''
    out = [HEADER.rstrip('\n'),
           '; Override launch geometry by editing the next line (default: block=256,',
           '; grid=ceil(out_elems/256), lds=0). Harness parses it; keep it on one line.',
           f'; @launch grid=(256,1,1) block=(512,1,1) lds={LDS_BYTES}',
           '.amdgcn_target "amdgcn-amd-amdhsa--gfx950"', '.text', f'.globl {KN}_kernel', '.p2align 8',
           f'.type {KN}_kernel,@function', f'{KN}_kernel:']
    SLO, SHI = 's60', 's61'
    def stamp(i):
        if stamps or (echo >= 0 and i in (0, echo)): A(f's_memrealtime s[{64+2*i}:{65+2*i}]')
    def allred(op, r, t, quad=False):
        if quad:
            A('s_nop 1', f'{op}_dpp v{r}, v{r}, v{r} quad_perm:[1,0,3,2] row_mask:0xf bank_mask:0xf')
            A('s_nop 1', f'{op}_dpp v{r}, v{r}, v{r} quad_perm:[2,3,0,1] row_mask:0xf bank_mask:0xf')
        A('s_nop 1', f'{op}_dpp v{r}, v{r}, v{r} row_ror:4 row_mask:0xf bank_mask:0xf')
        A('s_nop 1', f'{op}_dpp v{r}, v{r}, v{r} row_ror:8 row_mask:0xf bank_mask:0xf')
        A(f'v_mov_b32 v{t}, v{r}', 's_nop 1', f'v_permlane16_swap_b32 v{r}, v{t}', 's_nop 1', f'{op} v{r}, v{r}, v{t}')
        A(f'v_mov_b32 v{t}, v{r}', 's_nop 1', f'v_permlane32_swap_b32 v{r}, v{t}', 's_nop 1', f'{op} v{r}, v{r}, v{t}')
    def perm_mfma(src, T, mf):
        for dp in range(4):
            for d in range(4):
                A(f'v_perm_b32 v{T+4*(2*dp)+d}, v{src+4*(2*d+1)+dp}, v{src+4*(2*d)+dp}, {SLO}')
            if dp > 0 and mf: mf(2 * dp - 1)
            for d in range(4):
                A(f'v_perm_b32 v{T+4*(2*dp+1)+d}, v{src+4*(2*d+1)+dp}, v{src+4*(2*d)+dp}, {SHI}')
            if mf: mf(2 * dp)
        if mf:
            A('s_nop 1'); mf(7)
    def tagcheck(regs):
        A(f'v_xor_b32 v6, s7, v{regs[0]+1}', f'v_xor_b32 v7, s7, v{regs[0]+3}')
        for r in regs[1:]:
            A(f'v_bitop3_b32 v6, v{r+1}, s7, v6 bitop3:0xbe', f'v_bitop3_b32 v7, v{r+3}, s7, v7 bitop3:0xbe')
        A('v_or_b32 v6, v6, v7', 'v_cmp_ne_u32 vcc, 0, v6')
    def versions(dst, good, bad):
        for e in range(4):
            A(f'v_cmp_eq_u32 vcc, {e}, v5', 's_nop 1', f'v_cndmask_b32 v{dst+e}, v{bad}, v{good}, vcc')
    def unpack(dst, a, b):
        A(f'v_lshlrev_b32 v{dst}, 16, v{a}', f'v_and_b32 v{dst+1}, 0xffff0000, v{a}', f'v_lshlrev_b32 v{dst+2}, 16, v{b}', f'v_and_b32 v{dst+3}, 0xffff0000, v{b}')
    def swapadd32(r, t):
        for i in range(4): A(f'v_mov_b32 v{t+i}, v{r+i}')
        A('s_nop 0')
        for i in range(4): A(f'v_permlane32_swap_b32 v{r+i}, v{t+i}')
        A('s_nop 0')
        for i in range(4): A(f'v_add_f32 v{r+i}, v{r+i}, v{t+i}')
    nteam = [0]
    def team_store(txt):
        if not local:
            A(txt + ' sc1'); return
        n = nteam[0]; nteam[0] += 1
        A('s_cmp_eq_u32 s13, 0', f's_cbranch_scc1 L_tl{n}', txt + ' sc1', f's_branch L_td{n}')
        A.lab(f'L_tl{n}'); A(txt); A.lab(f'L_td{n}')
    def dump_stamps(idx):
        A('s_waitcnt lgkmcnt(0)')
        A('s_lshl_b32 s59, s2, 7', f's_add_u32 s59, s59, 0x{STAMP_OFF:x}', 'v_mov_b32 v7, 0')
        for i in idx:
            A(f'v_mov_b32 v8, s{64+2*i}', f'v_mov_b32 v9, s{65+2*i}')
            A(f'buffer_store_dwordx2 v[8:9], v7, s[20:23], s59 offen offset:{8*i}', 's_nop 1')

    A('s_cmpk_ge_u32 s2, 0x100', 's_cbranch_scc1 L_end')
    stamp(0)
    A('s_and_b32 s52, s2, 8', 's_mul_i32 s52, s52, 5')
    A('s_load_dwordx8 s[32:39], s[0:1], s52 offset:8')
    A('s_load_dwordx2 s[40:41], s[0:1], 0')
    A('s_load_dwordx8 s[44:51], s[0:1], 80')
    A('v_lshrrev_b32 v1, 6, v0', 'v_and_b32 v0, 63, v0', 'v_readfirstlane_b32 s6, v1', 'v_lshlrev_b32 v14, 4, v0')
    A('s_bitcmp1_b32 s6, 2', 's_cbranch_scc1 L_vwave')
    ISH = 13 if pat else 15
    def kvbase():
        A('s_lshr_b32 s58, s2, 6', 's_and_b32 s4, s2, 7', 's_lshl3_add_u32 s54, s58, s4', 's_lshr_b32 s5, s2, 4')
        if pat:
            A('s_and_b32 s59, s5, 3', 's_lshl2_add_u32 s54, s54, 3', 's_lshl_b32 s54, s54, 7', 's_lshl2_add_u32 s59, s59, s6', 's_add_u32 s54, s54, s59', 's_lshl_b32 s54, s54, 12')
        else:
            A('s_or_b32 s59, s5, 12', 's_lshl4_add_u32 s54, s54, s59', 's_lshl_b32 s54, s54, 5', 's_add_u32 s54, s54, s6', 's_lshl_b32 s54, s54, 12')
        A('s_lshl_b32 s96, s2, 29' if rot else 's_mov_b32 s96, 0', 's_lshl_b32 s97, 1, 29')
        A('s_lshl_b32 s10, 1, 26', 's_mov_b32 s11, 0x20000')
    kvbase()
    A('v_and_b32 v3, 48, v0', 'v_lshlrev_b32 v3, 2, v3', 'v_xor_b32 v10, v14, v3', 'v_add_u32 v10, s54, v10')
    for n in range(1, 4): A(f'v_xor_b32 v{10+n}, {16*n}, v10')
    A('s_lshl_b32 m0, s6, 15', 's_mov_b32 s59, 7')
    if kprio: A(f's_setprio {kprio}')
    A('s_waitcnt lgkmcnt(0)', 's_mov_b64 s[8:9], s[32:33]')
    if st0: stamp(5)
    A.lab('L_kloop')
    A(f's_lshr_b32 s56, s96, {ISH}')
    if kb0 >= 0:
        A(f's_cmp_lg_u32 s59, {7-kb0}', 's_cbranch_scc1 L_knob', 's_barrier')
        A.lab('L_knob')
    for n in range(4): A(f'buffer_load_dwordx4 v{10+n}, s[8:11], s56 offen offset:{n*1024}{P} lds')
    A('s_add_u32 s96, s96, s97', 's_addk_i32 m0, 0x1000', 's_sub_u32 s59, s59, 1', 's_cbranch_scc0 L_kloop')
    A.lab('L_entry_end')
    def common():
        A('s_and_b32 s3, s2, 15', 's_and_b32 s59, s5, 3')
        A(f's_mov_b32 {SLO}, 0x05040100', f's_mov_b32 {SHI}, 0x07060302')
        A('s_mov_b32 s18, 0x400000', 's_mov_b32 s19, 0x20000')
        A(f's_mov_b32 s22, {WS_BYTES}', 's_mov_b32 s23, 0x20000')
        A('s_mov_b32 s26, 4096', 's_mov_b32 s27, 0x20000')
        A('s_lshl_b32 s55, s6, 15')
        A('s_lshl2_add_u32 s63, s59, s58', 's_lshl4_add_u32 s63, s3, s63')
        A('s_getreg_b32 s12, hwreg(HW_REG_XCC_ID, 0, 3)')
        A('v_lshrrev_b32 v1, 4, v0')
        A('v_and_b32 v2, 15, v0')
        A('v_bfe_u32 v5, v0, 2, 2')
        A('v_and_b32 v16, 3, v0')

    R1 = 64; PB = 48; ACC = 40; WO = 128; WT = 160
    stamp(1)
    A('s_barrier')
    A('s_load_dword s7, s[50:51], 0x%x' % WS_EPOCH)
    common()
    A('s_mov_b64 s[20:21], s[50:51]')
    A('s_lshl_b32 s57, s3, 15', 's_lshl_b32 s56, s58, 13', 's_add_u32 s57, s57, s56')
    A('s_lshl_b32 s56, s6, 11', 's_add_u32 s57, s57, s56', f's_add_u32 s57, s57, 0x{WS_Q:x}')
    QP = 64
    def pollq(f=' sc1'):
        for k in range(2): A(f'buffer_load_dwordx4 {vr(QP+4*k,4)}, v14, s[20:23], s57 offen offset:{1024*k}{f}')
    pollq('' if qplain else ' sc1')
    A('s_mov_b32 s24, s46', 's_mov_b32 s25, s47', 's_mov_b32 s16, s38', 's_mov_b32 s17, s39')
    NT = 0
    if touch:
        A.c('first touch of the output page')
        A('s_mov_b64 exec, 1', 'buffer_load_dword v237, v14, s[24:27], 0 offen', 's_mov_b64 exec, -1'); NT = 1
    A('v_lshlrev_b32 v15, 10, v1', 'v_lshl_add_u32 v15, v2, 4, v15')
    A('v_lshl_add_u32 v4, v16, 2, v5', 'v_lshlrev_b32 v4, 8, v4', 'v_add_u32 v4, s55, v4')
    A('v_xor_b32 v6, v1, v2', 'v_lshlrev_b32 v6, 4, v6')
    for t in range(4): A(f'v_xor_b32 v7, {64*t}, v6', f'v_add_u32 v{20+t}, v4, v7')
    A('v_lshlrev_b32 v7, 8, v16', 'v_lshl_add_u32 v7, v1, 4, v7', f'v_add_u32 v7, {QL}, v7', f'v_mov_b32 v8, {ZL}')
    versions(32, 7, 8)
    A('s_lshl_b32 s59, s6, 8', f's_add_u32 s59, s59, {QL}')
    A('v_bfe_u32 v9, v0, 3, 2', 'v_lshlrev_b32 v9, 6, v9', 'v_and_b32 v8, 1, v0', 'v_lshl_add_u32 v9, v8, 3, v9')
    A('v_bfe_u32 v8, v0, 1, 2', 'v_lshl_add_u32 v9, v8, 1, v9', 'v_add_u32 v9, s59, v9')
    A('v_lshlrev_b32 v18, 4, v16', 's_lshl_b32 s59, s6, 2', f's_add_u32 s59, s59, {ML}', 'v_add_u32 v18, s59, v18')
    A('v_lshl_add_u32 v17, v1, 2, v16', 'v_lshlrev_b32 v17, 4, v17')
    A('v_lshrrev_b32 v8, 1, v5', 'v_lshl_add_u32 v17, v8, 8, v17', 'v_and_b32 v8, 1, v5', 'v_lshl_add_u32 v17, v8, 3, v17')
    A('s_lshl_b32 s59, s6, 10', f's_add_u32 s59, s59, {PX}', 'v_add_u32 v17, s59, v17')
    A('s_waitcnt lgkmcnt(0)')
    A(f's_add_u32 s7, s7, 0x{TAGC:x}')
    A(f's_mov_b32 s59, {spin}', 's_add_u32 s62, s7, s12')
    A.lab('L_pollq')
    A('s_waitcnt vmcnt(0)')
    A(f'v_subrev_u32 v24, s7, v{QP+3}', f'v_subrev_u32 v25, s7, v{QP+7}')
    A('v_or_b32 v6, v24, v25', 'v_cmp_lt_u32 vcc, 7, v6')
    A('s_cbranch_vccz L_gotq', 's_sub_u32 s59, s59, 1', 's_cbranch_scc1 L_gotq')
    pollq()
    A('s_branch L_pollq')
    A.lab('L_gotq')
    stamp(3)
    A(f'v_xor_b32 v6, s62, v{QP+3}', f'v_bitop3_b32 v6, v{QP+7}, s62, v6 bitop3:0xbe', 'v_cmp_ne_u32 vcc, 0, v6')
    A('s_mov_b32 s56, 0x04000c0c', 's_mov_b32 s57, 0x0706000c')
    for k in range(2):
        q = QP + 4 * k
        A(f'v_perm_b32 v{28+k}, v{q}, v{q+1}, s56', f'v_perm_b32 v{28+k}, v{28+k}, v{q+2}, s57')
    A('s_cmp_eq_u64 vcc, 0', 's_cselect_b32 s59, 1, 0x101')
    for i in range(3): A(f'v_add_f32 v{24+i}, v{QP+i}, v{QP+4+i}')
    A('v_add_f32 v27, v28, v29')
    swapadd32(24, 28)
    A('v_cvt_pk_bf16_f32 v24, v24, v25', 'v_cvt_pk_bf16_f32 v25, v26, v27')
    A(f'v_mov_b32 v6, {CNT+4}', 'v_mov_b32 v7, s59')
    A('ds_write_b16 v9, v24', 'ds_write_b16_d16_hi v9, v24 offset:16', 'ds_write_b16 v9, v25 offset:32', 'ds_write_b16_d16_hi v9, v25 offset:48')
    A('s_mov_b64 exec, 1', 'ds_add_u32 v6, v7', 's_mov_b64 exec, -1')
    Qb = [R1, R1 + 16]; Kb = [R1 + 32, R1 + 48]
    def rdq(x):
        for t in range(4): A(f'ds_read_b128 {vr(Qb[x&1]+4*t,4)}, v{32+x} offset:{64*t}')
    def rdk(T_, buf):
        for t in range(4): A(f'ds_read_b128 {vr(Kb[buf]+4*t,4)}, v{20+t} offset:{4096*T_}')
    def mm(T_, buf):
        x = T_ & 3; a = T_ >> 2
        for t in range(4):
            c = '0' if (x == 0 and t == 0) else vr(ACC+4*a, 4)
            A(f'v_mfma_f32_16x16x32_bf16 {vr(ACC+4*a,4)}, {vr(Kb[buf]+4*t,4)}, {vr(Qb[x&1]+4*t,4)}, {c}')
    rdk(0, 0); rdk(4, 1)
    A(f's_mov_b32 s59, {spin}', f's_mov_b32 s62, 0x{SCALE:x}', f's_mov_b32 s14, 0x{LOG2E:x}')
    A.lab('L_qspin')
    A('ds_read_b32 v7, v6', 's_waitcnt lgkmcnt(0)', 'v_readfirstlane_b32 s13, v7', 's_and_b32 s56, s13, 255', 's_cmp_eq_u32 s56, 4', 's_cbranch_scc1 L_qall')
    A('s_sub_u32 s59, s59, 1', 's_cbranch_scc0 L_qspin')
    A.lab('L_qall')
    rdq(0)
    A('s_lshr_b32 s13, s13, 8')
    if qloc:
        A('s_cbranch_scc0 L_norep')
        A.c("some member sits on another XCD: write this workgroup's q partials through for it")
        A('s_lshl2_add_u32 s57, s3, s6', 's_lshl4_add_u32 s57, s57, s5', 's_lshl_b32 s57, s57, 9', f's_add_u32 s57, s57, 0x{WS_Q:x}')
        A('s_add_u32 s56, s7, s12', f's_mov_b32 s59, {spin}', 's_mov_b32 exec_hi, 0')
        A.lab('L_rep')
        A('buffer_load_dwordx4 v[24:27], v14, s[20:23], s57 offen sc1', 's_waitcnt vmcnt(0)', 'v_cmp_ne_u32 vcc, s56, v27')
        A('s_cbranch_vccz L_rep2', 's_sub_u32 s59, s59, 1', 's_cbranch_scc0 L_rep')
        A.lab('L_rep2')
        A('buffer_store_dwordx4 v[24:27], v14, s[20:23], s57 offen sc1', 's_mov_b32 exec_hi, -1')
        A.lab('L_norep')
    if pre:
        A.c("team on one XCD: put this workgroup's O lines into the L2 now, untagged, so that early polls stay inside the L2")
        A('s_cmp_lg_u32 s13, 0', 's_cbranch_scc1 L_nopre')
        A('s_lshl_b32 s57, s63, 11', 's_lshl_b32 s59, s6, 9', 's_add_u32 s57, s57, s59', f's_add_u32 s57, s57, 0x{WS_O:x}')
        A('s_not_b32 s59, s7', 'v_mov_b32 v24, s59', 'v_mov_b32 v25, s59', 'v_mov_b32 v26, s59', 'v_mov_b32 v27, s59')
        A('s_mov_b32 exec_hi, 0', 'buffer_store_dwordx4 v[24:27], v14, s[20:23], s57 offen', 's_mov_b32 exec_hi, -1')
        A.lab('L_nopre')
    for x in range(4):
        A('s_waitcnt lgkmcnt(%d)' % (0 if x == 0 else 4))
        mm(x, 0)
        if x < 3:
            rdq(x + 1)
            A('s_waitcnt lgkmcnt(4)')
        else:
            A('s_waitcnt lgkmcnt(0)')
        mm(x + 4, 1)
        if x < 3:
            rdk(x + 1, 0); rdk(x + 5, 1)
    A('s_nop 7')
    S = ACC
    for p in range(4): A(f'v_cvt_pk_bf16_f32 v{28+p}, v{S+2*p}, v{S+2*p+1}')
    for p in range(4): A(f'v_lshlrev_b32 v{S+2*p}, 16, v{28+p}', f'v_and_b32 v{S+2*p+1}, 0xffff0000, v{28+p}')
    for i in range(8): A(f'v_mul_f32 v{S+i}, s62, v{S+i}')
    for p in range(4): A(f'v_cvt_pk_bf16_f32 v{28+p}, v{S+2*p}, v{S+2*p+1}')
    for p in range(4): A(f'v_lshlrev_b32 v{S+2*p}, 16, v{28+p}', f'v_and_b32 v{S+2*p+1}, 0xffff0000, v{28+p}')
    A(f'v_max3_f32 v28, v{S}, v{S+1}, v{S+2}', f'v_max3_f32 v29, v{S+3}, v{S+4}, v{S+5}', f'v_max3_f32 v28, v28, v{S+6}, v{S+7}', 'v_max_f32 v28, v28, v29')
    allred('v_max_f32', 28, 29)
    A('v_mul_f32 v36, s14, v28')
    for i in range(8): A(f'v_fma_f32 v{S+i}, v{S+i}, s14, -v36')
    for i in range(8): A(f'v_exp_f32 v{S+i}, v{S+i}')
    A('ds_write_b32 v18, v36')
    for p in range(4): A(f'v_cvt_pk_bf16_f32 v{32+p}, v{S+2*p}, v{S+2*p+1}')
    A('ds_write_b64 v17, v[32:33]', 'ds_write_b64 v17, v[34:35] offset:512')
    A(f'v_add_f32 v28, v{S}, v{S+1}', f'v_add_f32 v29, v{S+2}, v{S+3}', f'v_add_f32 v30, v{S+4}, v{S+5}', f'v_add_f32 v31, v{S+6}, v{S+7}')
    A('v_add_f32 v28, v28, v29', 'v_add_f32 v30, v30, v31', 'v_add_f32 v28, v28, v30')
    allred('v_add_f32', 28, 29)
    A('ds_write_b32 v18, v28 offset:64')
    A('v_lshlrev_b32 v7, 4, v16', f'v_add_u32 v7, {ML}, v7', f'v_mov_b32 v6, {CNT+12}', 'v_mov_b32 v8, 1')
    A('s_mov_b64 exec, 1', 'ds_add_rtn_u32 v8, v6, v8', 's_mov_b64 exec, -1')
    A('ds_read_b128 v[20:23], v7', 'ds_read_b128 v[24:27], v7 offset:64')
    A('v_mov_b32 v37, s7', 'v_mov_b32 v39, s7')
    A('s_lshl_b32 s56, s63, 7', f's_add_u32 s56, s56, 0x{WS_ML:x}')
    A('s_waitcnt lgkmcnt(0)')
    A('v_readfirstlane_b32 s59, v8', 's_cmp_lg_u32 s59, 3', 's_cbranch_scc1 L_noml')
    A.c('last K wave to finish its softmax publishes (m, l) of this workgroup, lane = head')
    A('v_max3_f32 v36, v20, v21, v22', 'v_max_f32 v36, v36, v23')
    for w in range(4): A(f'v_sub_f32 v{20+w}, v{20+w}, v36')
    for w in range(4): A(f'v_exp_f32 v{20+w}, v{20+w}')
    A('s_nop 0', 'v_mul_f32 v38, v20, v24')
    for w in range(1, 4): A(f'v_fmac_f32 v38, v{20+w}, v{24+w}')
    A('s_mov_b64 exec, 15')
    team_store('buffer_store_dwordx4 v[36:39], v14, s[20:23], s56 offen')
    A('s_mov_b64 exec, -1')
    A.lab('L_noml')
    A('v_lshrrev_b32 v13, 3, v0', 'v_lshlrev_b32 v12, 11, v13', 'v_and_b32 v8, 7, v0', 'v_lshl_add_u32 v12, v8, 4, v12', 'v_lshlrev_b32 v13, 7, v13')
    A('s_lshl_b32 s59, s6, 8', f's_add_u32 s59, s59, {OX}')
    A('v_and_b32 v17, 31, v0', 'v_lshlrev_b32 v17, 3, v17', 'v_add_u32 v17, s59, v17')
    A('v_lshlrev_b32 v8, 6, v16', 'v_lshl_add_u32 v8, v1, 4, v8', 'v_add_u32 v8, s59, v8', f'v_mov_b32 v9, {ZL}')
    versions(208, 8, 9)
    A('s_lshl_b32 s59, s6, 11', 'v_add_u32 v19, s59, v14')
    A('s_lshl_b32 s59, s6, 9', 'v_and_b32 v18, 31, v0', 'v_lshlrev_b32 v18, 4, v18', 'v_add_u32 v18, s59, v18')
    A('v_mov_b32 v9, s7', 'v_mov_b32 v11, s7')
    A('s_lshr_b32 s58, s5, 2', 's_and_b32 s59, s5, 3')
    A('s_lshl_b32 s52, s3, 11', 's_lshl_b32 s53, s58, 4', 's_add_u32 s52, s52, s53', f's_add_u32 s52, s52, 0x{WS_ML:x}')
    A('s_lshl_b32 s50, s3, 15', 's_lshl_b32 s53, s58, 9', 's_add_u32 s50, s50, s53', 's_lshl_b32 s53, s6, 7', 's_add_u32 s50, s50, s53')
    A(f's_add_u32 s50, s50, 0x{WS_O:x}', 's_add_u32 s51, s50, 16384')
    A('s_lshl_b32 s57, s3, 2', 's_add_u32 s57, s57, s58')
    A('s_lshl_b32 s53, s59, 6', 's_add_u32 s53, s53, s57', 's_lshl_b32 s53, s53, 11')
    A('s_lshl_b32 s56, s6, 9', 's_add_u32 s53, s53, s56', f's_add_u32 s53, s53, 0x{WS_P:x}')
    A('s_and_b32 s58, s57, 31', 's_lshl_b32 s58, s58, 17', 's_add_u32 s58, s58, s55', 's_lshl_b32 s59, s59, 8', 's_add_u32 s58, s58, s59')
    A('s_and_b32 s56, s2, 7', 's_lshr_b32 s59, s2, 5', 's_lshl_b32 s59, s59, 3', 's_add_u32 s56, s56, s59', 's_lshr_b32 s57, s56, 4')
    A('s_and_b32 s56, s56, 15', 's_lshl_b32 s56, s56, 3', 's_bfe_u32 s59, s2, 0x20003', 's_lshl_b32 s59, s59, 1', 's_add_u32 s56, s56, s59')
    A('s_lshl_b32 s97, s57, 17', 's_lshl_b32 s59, s56, 4', 's_add_u32 s97, s97, s59', f's_add_u32 s97, s97, 0x{WS_P:x}')
    A('s_add_u32 s98, s97, 65536')
    A('v_lshrrev_b32 v212, 1, v0', 'v_lshlrev_b32 v212, 11, v212', 'v_and_b32 v7, 1, v0', 'v_lshl_add_u32 v212, v7, 4, v212')
    A('v_add_u32 v4, s56, v7', 'v_and_b32 v7, 3, v4', 'v_lshlrev_b32 v214, 3, v7', f'v_add_u32 v214, {GL}, v214')
    A('v_lshlrev_b32 v213, 9, v7', 's_lshl_b32 s57, s57, 7', 'v_add_u32 v213, s57, v213')
    A('v_bfe_u32 v7, v4, 4, 2', 'v_lshl_add_u32 v213, v7, 5, v213', 'v_lshrrev_b32 v7, 6, v4', 'v_lshl_add_u32 v213, v7, 2, v213')
    A('v_bfe_u32 v7, v4, 2, 2', 'v_add_u32 v213, v213, v7')
    A('v_bfe_u32 v7, v0, 1, 1', 'v_lshl_add_u32 v213, v7, 4, v213', 'v_and_b32 v7, 1, v1', 'v_lshl_add_u32 v213, v7, 3, v213')
    A('v_lshlrev_b32 v213, 1, v213')
    A('v_and_b32 v7, 2, v0', 'v_cmp_ne_u32 s[100:101], 0, v7')
    stamp(4)
    if pre: A('s_waitcnt vmcnt(1)' if 0 else 's_waitcnt vmcnt(0)')
    A('s_barrier')
    MLR = 216; FA = 224
    def pollml():
        A(f'buffer_load_dwordx4 v[{MLR}:{MLR+3}], v13, s[20:23], s52 offen sc1')
        A(f'buffer_load_dwordx4 v[{MLR+4}:{MLR+7}], v13, s[20:23], s52 offen offset:1024 sc1')
    def mlfactors():
        A(f'v_max_f32 v6, v{MLR}, v{MLR+4}')
        A('v_mov_b32 v7, v6', 's_nop 1', 'v_permlane32_swap_b32 v6, v7', 's_nop 1', 'v_max_f32 v6, v6, v7')
        A(f'v_sub_f32 v{FA}, v{MLR}, v6', f'v_sub_f32 v{FA+1}, v{MLR+4}, v6', f'v_exp_f32 v{FA}, v{FA}', f'v_exp_f32 v{FA+1}, v{FA+1}', 's_nop 0')
        A(f'v_mul_f32 v6, v{FA}, v{MLR+2}', f'v_fmac_f32 v6, v{FA+1}, v{MLR+6}')
        A('v_mov_b32 v7, v6', 's_nop 1', 'v_permlane32_swap_b32 v6, v7', 's_nop 1', 'v_add_f32 v6, v6, v7')
        A('v_rcp_f32 v6, v6', 's_nop 0', f'v_mul_f32 v{FA}, v{FA}, v6', f'v_mul_f32 v{FA+1}, v{FA+1}, v6')
    def poll1():
        A('buffer_load_dwordx4 v[20:23], v12, s[20:23], s50 offen sc1', 'buffer_load_dwordx4 v[24:27], v12, s[20:23], s51 offen sc1')
    pollml()
    for n in range(8):
        ro = 8 * (n & 3) + 4 * (n >> 2)
        A(f's_add_u32 s59, s58, {ro*1024}', f'buffer_load_dwordx4 {vr(WO+4*n,4)}, v15, s[16:19], s59 offen{WP}')
    poll1()
    A('ds_read_b64 v[214:215], v214')
    if not st0: stamp(5)
    A('s_waitcnt vmcnt(10)')
    tagcheck([MLR, MLR + 4])
    A('s_mov_b32 s62, 0', 's_cbranch_vccnz L_mllate')
    mlfactors()
    A('s_mov_b32 s62, 1')
    A.lab('L_mllate')
    for d in range(4):
        A(f's_waitcnt vmcnt({8-2*d})')
        for dp in range(4):
            A(f'v_perm_b32 v{WT+8*dp+d}, v{WO+4*(2*d+1)+dp}, v{WO+8*d+dp}, {SLO}', f'v_perm_b32 v{WT+8*dp+4+d}, v{WO+4*(2*d+1)+dp}, v{WO+8*d+dp}, {SHI}')
    stamp(2)
    A(f's_mov_b32 s59, {spin}', 's_cmp_eq_u32 s62, 1', 's_cbranch_scc1 L_poll1')
    A.lab('L_pollml')
    pollml()
    A('s_waitcnt vmcnt(0)')
    tagcheck([MLR, MLR + 4])
    A('s_cbranch_vccz L_gotml', 's_sub_u32 s59, s59, 1', 's_cbranch_scc0 L_pollml')
    A.lab('L_gotml')
    mlfactors()
    A.lab('L_poll1')
    A('s_waitcnt vmcnt(0)')
    tagcheck([20, 24])
    A('s_cbranch_vccz L_got1', 's_sub_u32 s59, s59, 1', 's_cbranch_scc1 L_got1')
    if sleep: A(f's_sleep {sleep}')
    if mask1: A('s_mov_b64 exec, vcc')
    poll1()
    A('s_branch L_poll1')
    A.lab('L_got1')
    if mask1: A('s_mov_b64 exec, -1')
    stamp(8)
    unpack(28, 20, 22); unpack(36, 24, 26)
    for r in range(4): A(f'v_mul_f32 v{28+r}, v{FA}, v{28+r}')
    for r in range(4): A(f'v_fmac_f32 v{28+r}, v{FA+1}, v{36+r}')
    swapadd32(28, 36)
    A('v_cvt_pk_bf16_f32 v20, v28, v29', 'v_cvt_pk_bf16_f32 v21, v30, v31')
    A('ds_write_b64 v17, v[20:21]')
    for e in range(4): A(f'ds_read_b128 {vr(PB+4*e,4)}, v{208+e}')
    for e in range(4):
        A(f's_waitcnt lgkmcnt({3-e})')
        for idx in range(2):
            c = '0' if e == 0 else vr(ACC + 4 * idx, 4)
            A(f'v_mfma_f32_16x16x32_bf16 {vr(ACC+4*idx,4)}, {vr(WT+4*(4*idx+e),4)}, {vr(PB+4*e,4)}, {c}')
    A('s_nop 6')
    A(f'ds_write_b128 v19, {vr(ACC,4)}', f'ds_write_b128 v19, {vr(ACC+4,4)} offset:1024')
    A('s_waitcnt lgkmcnt(0)')
    if not st0: stamp(15)
    A('s_barrier')
    for w in range(4): A(f'ds_read_b128 {vr(20+4*w,4)}, v18 offset:{2048*w}')
    A('s_waitcnt lgkmcnt(2)')
    for i in range(4): A(f'v_add_f32 v{20+i}, v{20+i}, v{24+i}')
    A('s_waitcnt lgkmcnt(0)')
    for i in range(4): A(f'v_add_f32 v{28+i}, v{28+i}, v{32+i}')
    for i in range(4): A(f'v_add_f32 v{20+i}, v{20+i}, v{28+i}')
    A('v_cvt_pk_bf16_f32 v8, v20, v21', 'v_cvt_pk_bf16_f32 v10, v22, v23')
    A('s_mov_b32 exec_hi, 0', 'buffer_store_dwordx4 v[8:11], v14, s[20:23], s53 offen sc1', 's_mov_b32 exec_hi, -1')
    stamp(9)
    A('s_cmp_lg_u32 s6, 0', 's_cbranch_scc1 L_end')
    if ackfirst: A('s_waitcnt vmcnt(0)')
    A(f's_mov_b32 s59, {spin}')
    def poll2(r):
        for k in range(2): A(f'buffer_load_dwordx4 v[{r+4*k}:{r+3+4*k}], v212, s[20:23], s{97+k} offen sc1')
    if h2 < 2:
        A.lab('L_poll2')
        poll2(20)
        A('s_waitcnt vmcnt(0)')
        tagcheck([20, 24])
        A('s_cbranch_vccz L_got2', 's_sub_u32 s59, s59, 1', 's_cbranch_scc1 L_got2')
        if sleep2: A(f's_sleep {sleep2}')
        if h2 == 1: A('s_mov_b64 exec, vcc')
        A('s_branch L_poll2')
    else:
        poll2(44)
        A('s_mov_b64 s[32:33], -1', 's_mov_b64 s[34:35], -1', 's_mov_b64 s[36:37], -1', 's_mov_b64 s[38:39], 0')
        if stag: A(f's_sleep {stag}')
        poll2(52)
        A.lab('L_poll2')
        A('s_mov_b64 exec, s[32:33]', 's_waitcnt vmcnt(2)')
        tagcheck([44, 48])
        A('s_andn2_b64 s[40:41], exec, vcc', 's_or_b64 s[38:39], s[38:39], s[40:41]', 's_andn2_b64 s[36:37], s[36:37], s[40:41]', 's_cbranch_scc0 L_got2')
        A('s_mov_b64 exec, s[36:37]', 's_mov_b64 s[32:33], s[36:37]')
        poll2(44)
        A('s_mov_b64 exec, s[34:35]', 's_waitcnt vmcnt(2)')
        tagcheck([52, 56])
        A('s_andn2_b64 s[40:41], exec, vcc', 's_andn2_b64 s[36:37], s[36:37], s[40:41]', 's_cbranch_scc0 L_got2')
        A('s_mov_b64 exec, s[36:37]', 's_mov_b64 s[34:35], s[36:37]')
        poll2(52)
        A('s_sub_u32 s59, s59, 1', 's_cbranch_scc0 L_poll2')
    A.lab('L_got2')
    if h2: A('s_mov_b64 exec, -1')
    if h2 == 2:
        for i in range(4): A(f'v_cndmask_b32 v{20+2*i}, v{52+2*i}, v{44+2*i}, s[38:39]')
    stamp(10)
    unpack(28, 20, 22); unpack(32, 24, 26)
    A('s_nop 0')
    for i in range(4): A(f'v_permlane32_swap_b32 v{28+i}, v{32+i}')
    A('s_nop 0')
    for i in range(4): A(f'v_add_f32 v{28+i}, v{28+i}, v{32+i}')
    A('s_nop 0', 'v_permlane16_swap_b32 v28, v29', 'v_permlane16_swap_b32 v30, v31', 's_nop 0')
    A('v_add_f32 v28, v28, v29', 'v_add_f32 v30, v30, v31')
    A('s_nop 0', 'v_add_f32_dpp v28, v28, v28 quad_perm:[2,3,0,1] row_mask:0xf bank_mask:0xf', 'v_add_f32_dpp v30, v30, v30 quad_perm:[2,3,0,1] row_mask:0xf bank_mask:0xf')
    A('s_nop 0', 'v_cndmask_b32 v20, v28, v30, s[100:101]')
    A('s_nop 1', 'v_add_f32_dpp v20, v20, v20 row_ror:4 row_mask:0xf bank_mask:0xf')
    A('s_nop 1', 'v_add_f32_dpp v20, v20, v20 row_ror:8 row_mask:0xf bank_mask:0xf')
    A('v_mov_b32 v21, v20', 's_nop 1', 'v_permlane32_swap_b32 v20, v21', 's_nop 1')
    A('v_cvt_pk_bf16_f32 v20, v20, v21')
    A('v_lshlrev_b32 v21, 16, v20', 'v_and_b32 v22, 0xffff0000, v20')
    A('v_mul_f32 v21, v21, v214', 'v_mul_f32 v22, v22, v215')
    A('v_cvt_pk_bf16_f32 v20, v21, v22')
    A('v_lshlrev_b32 v21, 16, v20', 'v_and_b32 v22, 0xffff0000, v20', 'v_add_f32 v21, v21, v22')
    A('v_cvt_pk_bf16_f32 v20, v21, v21')
    A('s_mov_b64 exec, 0x000f000f', 'buffer_store_short v20, v213, s[24:27], 0 offen')
    A('s_cmp_lg_u32 s2, 0', 's_cbranch_scc1 L_fin')
    A('s_mov_b64 exec, 1', 'v_mov_b32 v6, s7', f'buffer_store_dword v6, v14, s[20:23], 0 offen offset:{WS_EPOCH}')
    A.lab('L_fin')
    if echo >= 0:
        stamp(11)
        A('s_memrealtime s[30:31]', 's_waitcnt lgkmcnt(0)')
        A(f's_sub_u32 s28, s{64+2*echo}, s64', 's_add_u32 s28, s28, s30')
        if echog >= 0: A('s_lshr_b32 s29, s3, 3', f's_cmp_lg_u32 s29, {echog}', 's_cbranch_scc1 L_end')
        A.lab('L_echo')
        A('s_memrealtime s[30:31]', 's_waitcnt lgkmcnt(0)', 's_sub_u32 s29, s30, s28', 's_cmp_lt_i32 s29, 0', 's_cbranch_scc1 L_echo')
    if stamps:
        stamp(11)
        A('s_mov_b64 exec, -1')
        if xdbg: A('s_waitcnt lgkmcnt(0)', 's_mul_i32 s94, s12, 100', 's_add_u32 s94, s94, s64', 's_addc_u32 s95, s65, 0')
        dump_stamps([0, 1, 2, 3, 4, 5, 8, 9, 10, 11, 15])
    A('s_endpgm')

    V0 = 128; PB = 64; T = 32; ACC = 24
    WQ = 64; XB = 96
    A('.p2align 6')
    A.lab('L_vwave')
    if vprio: A(f's_setprio {vprio}')
    A('s_and_b32 s6, s6, 3')
    if prefetch:
        A.c("warm L2 with this kernel's own code: one dword per 64 bytes")
        A('s_getpc_b64 s[56:57]')
        A.lab('L_pc')
        A(f's_sub_u32 s56, s56, L_pc-{KN}_kernel', 's_subb_u32 s57, s57, 0')
        A('s_lshl_b32 s59, s6, 12', 'v_lshl_add_u32 v2, v14, 2, s59')
        A(f'v_min_u32 v2, L_code_end-{KN}_kernel-4, v2')
        A('v_mov_b32 v3, s57', 'v_add_co_u32 v2, vcc, s56, v2', 's_nop 1', 'v_addc_co_u32 v3, vcc, 0, v3, vcc')
        A('global_load_dword v40, v[2:3], off')
    kvbase()
    common()
    XG = 128; GA = XG + 8
    assert kb0 >= 0
    A('s_lshl_b32 s57, s6, 8', f's_add_u32 s57, s57, {ZL}', 'v_lshlrev_b32 v4, 2, v0', 'v_add_u32 v4, s57, v4')
    A('v_mov_b32 v6, 0', 'v_lshlrev_b32 v7, 2, v16', f'v_add_u32 v7, {CNT}, v7')
    A('ds_write_b32 v4, v6', 'ds_write_b32 v7, v6')
    A('v_lshlrev_b32 v9, 16, v1', 'v_lshl_add_u32 v9, v2, 4, v9')
    A('s_lshl2_add_u32 s57, s59, s6')
    A('s_lshl_b32 s56, s57, 10', 's_lshl2_add_u32 s59, s4, s58', 's_add_u32 s56, s56, s59', 's_lshl_b32 s56, s56, 8')
    A('s_lshl_b32 s57, s57, 6', 's_lshl_b32 s53, s6, 10')
    A('v_lshlrev_b32 v8, 4, v1', 'v_lshl_add_u32 v8, v16, 10, v8')
    A('v_bfrev_b32 v10, 1')
    A('s_mov_b32 s30, 1024', 's_mov_b32 s31, 0x20000')
    A('s_waitcnt lgkmcnt(0)')
    A('s_mov_b64 s[16:17], s[36:37]', 's_mov_b64 s[24:25], s[40:41]', 's_mov_b64 s[28:29], s[44:45]')
    if st0: stamp(12)
    A(f'buffer_load_dwordx4 {vr(XG,4)}, v14, s[24:27], s53 offen')
    A(f'buffer_load_dwordx4 {vr(XG+4,4)}, v14, s[28:31], 0 offen')
    for i in range(8):
        A(f'buffer_load_dwordx4 {vr(WQ+4*i,4)}, v9, s[16:19], s56 offen{WP}')
        if i < 7: A('s_addk_i32 s56, 0x2000')
    if kb0 >= 0: A('s_barrier')
    versions(20, 8, 10)
    for e in range(4): A(f'buffer_load_dwordx4 {vr(XB+4*e,4)}, v{20+e}, s[24:27], s57 offen')
    A('s_load_dword s7, s[50:51], 0x%x' % WS_EPOCH)
    A('s_mov_b64 s[20:21], s[50:51]', 's_mov_b64 s[8:9], s[34:35]')
    A('s_lshl_b32 s59, s6, 11', f's_add_u32 s59, s59, {OL}', 'v_add_u32 v19, s59, v14')
    A('v_bfe_u32 v12, v0, 1, 4', 'v_lshlrev_b32 v12, 6, v12', 'v_and_b32 v8, 1, v0', 'v_lshl_add_u32 v12, v8, 10, v12')
    A('s_lshl_b32 s59, s6, 4', f's_add_u32 s59, s59, {OL}', 'v_add_u32 v12, s59, v12')
    A('v_add_u32 v15, s54, v14')
    A(f'v_mov_b32 v10, {CNT}', 'v_mov_b32 v11, 1')
    A('s_lshl2_add_u32 s57, s3, s6', 's_lshl4_add_u32 s57, s57, s5', 's_lshl_b32 s57, s57, 9', f's_add_u32 s57, s57, 0x{WS_Q:x}')
    A('s_waitcnt vmcnt(12)')
    A.c('gate of batch cw')
    for i in range(4):
        x = XG + i; g = XG + 4 + i
        unpack(36, x, g)
        A('v_mul_f32 v36, v36, v38', 'v_mul_f32 v37, v37, v39', 'v_cvt_pk_bf16_f32 v36, v36, v37')
        if i == 0:
            A(f'v_lshlrev_b32 v{GA}, 16, v36', f'v_and_b32 v{GA+1}, 0xffff0000, v36')
        else:
            A('v_lshlrev_b32 v38, 16, v36', 'v_and_b32 v39, 0xffff0000, v36', f'v_add_f32 v{GA}, v{GA}, v38', f'v_add_f32 v{GA+1}, v{GA+1}, v39')
    A(f'v_add_f32 v{GA}, v{GA}, v{GA+1}')
    allred('v_add_f32', GA, GA + 1, quad=True)
    A(f'v_cvt_pk_bf16_f32 v{GA}, v{GA}, v{GA}', f'v_lshlrev_b32 v{GA}, 16, v{GA}')
    A(f'v_mul_f32 v{GA}, 0x{LOG2E ^ 0x80000000:x}, v{GA}', f'v_exp_f32 v{GA}, v{GA}', 's_nop 0')
    A(f'v_add_f32 v{GA}, 1.0, v{GA}', f'v_rcp_f32 v{GA}, v{GA}', 's_nop 0')
    A(f'v_cvt_pk_bf16_f32 v{GA}, v{GA}, v{GA}', f'v_lshlrev_b32 v{GA}, 16, v{GA}')
    A(f'v_sub_f32 v{GA+1}, 1.0, v{GA}', f'v_cvt_pk_bf16_f32 v{GA+1}, v{GA+1}, v{GA+1}', f'v_lshlrev_b32 v{GA+1}, 16, v{GA+1}')
    A('s_lshl_b32 s59, s6, 3', f's_add_u32 s59, s59, {GL}', 'v_mov_b32 v6, s59', f'ds_write_b64 v6, v[{GA}:{GA+1}]')
    A('s_waitcnt vmcnt(0) lgkmcnt(0)')
    A(f's_add_u32 s7, s7, 0x{TAGC:x}')
    if st0: stamp(13)
    def mfq(e):
        idx = e >> 2
        c = '0' if (e & 3) == 0 else vr(ACC + 4 * idx, 4)
        A(f'v_mfma_f32_16x16x32_bf16 {vr(ACC+4*idx,4)}, {vr(T+4*e,4)}, {vr(XB+4*(e&3),4)}, {c}')
    perm_mfma(WQ, T, mfq)
    A('s_nop 6')
    A(f'ds_write_b128 v19, {vr(ACC,4)}', f'ds_write_b128 v19, {vr(ACC+4,4)} offset:1024')
    A('s_mov_b64 exec, 1', 'ds_add_u32 v10, v11', 's_mov_b64 exec, -1')
    A('s_add_u32 s59, s7, s12', 's_mov_b32 s56, 0x07060503', 's_mov_b32 s58, 0x07060502', 's_mov_b32 s62, 0x07060501')
    A('v_mov_b32 v67, s59', f's_mov_b32 s59, {spin}')
    A.lab('L_xspin')
    A('ds_read_b32 v4, v10')
    for w in range(4): A(f'ds_read_b128 {vr(T+4*w,4)}, v12 offset:{2048*w}')
    A('s_waitcnt lgkmcnt(4)')
    A('v_readfirstlane_b32 s53, v4', 's_cmp_eq_u32 s53, 4', 's_cbranch_scc1 L_xall')
    A('s_sub_u32 s59, s59, 1', 's_cbranch_scc0 L_xspin')
    A.lab('L_xall')
    A.c("add the four waves' partials of batch cw and publish them; the tag also carries the XCD number")
    A('s_waitcnt lgkmcnt(2)')
    for i in range(4): A(f'v_add_f32 v{T+i}, v{T+i}, v{T+4+i}')
    A('s_waitcnt lgkmcnt(0)')
    for i in range(4): A(f'v_add_f32 v{T+8+i}, v{T+8+i}, v{T+12+i}')
    for i in range(4): A(f'v_add_f32 v{T+i}, v{T+i}, v{T+8+i}')
    A(f'v_perm_b32 v64, v{T}, v{T+3}, s56', f'v_perm_b32 v65, v{T+1}, v{T+3}, s58', f'v_perm_b32 v66, v{T+2}, v{T+3}, s62')
    A('s_mov_b32 exec_hi, 0')
    if qloc:
        A.c('on the XCD that round-robin placement gives the team the shared L2 carries it; anywhere else it is written through')
        A('s_cmp_eq_u32 s12, s4', 's_cbranch_scc1 L_ql')
    A('buffer_store_dwordx4 v[64:67], v14, s[20:23], s57 offen sc1')
    if qloc:
        A('s_branch L_qd')
        A.lab('L_ql'); A('buffer_store_dwordx4 v[64:67], v14, s[20:23], s57 offen'); A.lab('L_qd')
    A('s_mov_b32 exec_hi, -1')
    A('v_lshl_add_u32 v8, v1, 2, v16', 's_lshl_b32 s57, s6, 10', f's_add_u32 s57, s57, {PX}')
    A('v_lshlrev_b32 v8, 4, v8', 'v_add_u32 v8, s57, v8', f'v_mov_b32 v9, {ZL}')
    versions(20, 8, 9)
    A('s_lshl_b32 s59, s6, 4', f's_add_u32 s59, s59, {ML}', 'v_mov_b32 v13, s59')
    A('s_lshl_b32 s57, s63, 11', 's_lshl_b32 s59, s6, 9', 's_add_u32 s57, s57, s59', f's_add_u32 s57, s57, 0x{WS_O:x}')
    A(f'v_mov_b32 v2, {CNT+8}', 'v_mov_b32 v3, 1', 'v_mov_b32 v9, s7', 'v_mov_b32 v11, s7')
    if vprio: A('s_setprio 0')
    A('s_barrier')
    for n in range(32):
        if n % 4 == 0: A(f's_lshr_b32 s56, s96, {ISH}', 's_add_u32 s96, s96, s97')
        A(f'buffer_load_dwordx4 {vr(V0+4*n,4)}, v15, s[8:11], s56 offen offset:{(n%4)*1024}{P}')
    stamp(14)
    A('s_barrier')
    A('ds_read_b128 v[4:7], v13', 'ds_read_b32 v8, v10 offset:4')
    for G_ in range(4):
        for e in range(4): A(f'ds_read_b128 {vr(PB+16*G_+4*e,4)}, v{20+e} offset:{256*G_}')
        if G_ == 1: A('s_waitcnt lgkmcnt(0)')
    A('v_readfirstlane_b32 s13, v8')
    A('v_max3_f32 v8, v4, v5, v6', 'v_max_f32 v8, v8, v7')
    for w in range(4): A(f'v_sub_f32 v{4+w}, v{4+w}, v8')
    for w in range(4): A(f'v_exp_f32 v{4+w}, v{4+w}')
    A('s_lshr_b32 s13, s13, 8')
    for G_ in range(4):
        if G_ == 2: A(f's_waitcnt vmcnt({8*(3-G_)}) lgkmcnt(0)')
        else: A(f's_waitcnt vmcnt({8*(3-G_)})')
        if G_ == 3: stamp(6)
        def mf(e):
            idx = e >> 2
            c = '0' if (G_ == 0 and (e & 3) == 0) else vr(ACC + 4 * idx, 4)
            A(f'v_mfma_f32_16x16x32_bf16 {vr(ACC+4*idx,4)}, {vr(T+4*e,4)}, {vr(PB+16*G_+4*(e&3),4)}, {c}')
        perm_mfma(V0 + 32 * G_, T, mf)
    if not st0: stamp(12)
    A(f's_mov_b32 s59, {spin}', 's_nop 5')
    A(f'ds_write_b128 v19, {vr(ACC,4)}', f'ds_write_b128 v19, {vr(ACC+4,4)} offset:1024')
    A('s_mov_b64 exec, 1', 'ds_add_u32 v2, v3', 's_mov_b64 exec, -1')
    A.lab('L_ospin')
    A('ds_read_b32 v3, v2')
    for w in range(4): A(f'ds_read_b128 v[{64+4*w}:{67+4*w}], v12 offset:{2048*w}')
    A('s_waitcnt lgkmcnt(4)')
    A('v_readfirstlane_b32 s56, v3', 's_cmp_eq_u32 s56, 4', 's_cbranch_scc1 L_oall')
    A('s_sub_u32 s59, s59, 1', 's_cbranch_scc0 L_ospin')
    A.lab('L_oall')
    if not st0: stamp(13)
    A('s_waitcnt lgkmcnt(3)')
    for r in range(4): A(f'v_mul_f32 v{24+r}, v4, v{64+r}')
    for w in range(1, 4):
        A(f's_waitcnt lgkmcnt({3-w})')
        for r in range(4): A(f'v_fmac_f32 v{24+r}, v{4+w}, v{64+4*w+r}')
    A('v_cvt_pk_bf16_f32 v8, v24, v25', 'v_cvt_pk_bf16_f32 v10, v26, v27')
    A('s_mov_b32 exec_hi, 0')
    team_store('buffer_store_dwordx4 v[8:11], v14, s[20:23], s57 offen')
    if stamps:
        A('s_mov_b32 exec_hi, -1')
        stamp(7)
        A('s_cmp_lg_u32 s6, 0', 's_cbranch_scc1 L_end')
        dump_stamps([6, 7, 12, 13, 14])
    A('s_endpgm')

    A.lab('L_end')
    A('s_endpgm')
    A.lab('L_code_end')
    out += A.L
    out += ['.section .rodata,"a"', '.p2align 6', f'.amdhsa_kernel {KN}_kernel',
            '  .amdhsa_next_free_vgpr 256', '  .amdhsa_next_free_sgpr 102', '  .amdhsa_accum_offset 256',
            '  .amdhsa_group_segment_fixed_size 0', '  .amdhsa_kernarg_size 112', '  .amdhsa_user_sgpr_count 2',
            '  .amdhsa_user_sgpr_kernarg_segment_ptr 1', '  .amdhsa_system_sgpr_workgroup_id_x 1', '.end_amdhsa_kernel']
    return '\n'.join(out) + '\n'

if __name__ == '__main__':
    ap = argparse.ArgumentParser()
    ap.add_argument('-o', default='k.s')
    ap.add_argument('--set', action='append', default=[])
    a = ap.parse_args()
    kw = {}
    for s in a.set:
        k, v = s.split('=')
        try: v = int(v)
        except ValueError: pass
        kw[k] = v
    open(a.o, 'w').write(gen(**kw))
```

```python
import sys, argparse
KN = 'gated_mix__sliding_block_cached__sliding_block_cached__decode'
HEADER = open('cdna_kernels/' + KN + '.s.ref').read().split('; Override launch')[0]

WS_EPOCH = 0x0
WS_ML = 0x1000
WS_O = 0x40000
WS_P = 0xC0000
WS_Q = 0x140000
WS_BYTES = 285221888
STAMP_OFF = 64 << 20
TAGC = 0x9E3779B1
KL = 0
QL = 131072
ZL = QL + 1024
PX = ZL + 1024
ML = PX + 4096
LL = ML + 64
CNT = LL + 64
GL = CNT + 64
OX = GL + 64
OL = OX + 1024
LDS_BYTES = OL + 8192
LOG2E = 0x3FB8AA3B
SCALE = 0x3DB504F3

class G:
    def __init__(s): s.L = []
    def __call__(s, *ts):
        for t in ts: s.L.append('  ' + t)
    def lab(s, t): s.L.append(t + ':')
    def c(s, t): s.L.append('  ; ' + t)

def vr(a, n=1):
    return f'v{a}' if n == 1 else f'v[{a}:{a+n-1}]'

def gen(stamps=False, pol='nt', wpol='nt', spin=200000, prefetch=True, sleep=0, touch=1, kprio=1, vprio=3,
        gran=4, rotmul=4, ackfirst=1, local=1, echo=-1, sleep2=-1, echog=-1, pre=0, mask1=1, h2=1, stag=6, qplain=0, st0=0, kb0=0, pat=1, rot=0, qloc=1, xdbg=0, trim=1, pd=3, mlp=0, qd=0):
    if sleep2 < 0: sleep2 = sleep
    A = G()
    P = (' ' + pol) if pol else ''
    WP = (' ' + wpol) if wpol else ''
    out = [HEADER.rstrip('\n'),
           '; Override launch geometry by editing the next line (default: block=256,',
           '; grid=ceil(out_elems/256), lds=0). Harness parses it; keep it on one line.',
           f'; @launch grid=(256,1,1) block=(512,1,1) lds={LDS_BYTES}',
           '.amdgcn_target "amdgcn-amd-amdhsa--gfx950"', '.text', f'.globl {KN}_kernel', '.p2align 8',
           f'.type {KN}_kernel,@function', f'{KN}_kernel:']
    SLO, SHI = 's60', 's61'
    def stamp(i):
        if stamps or (echo >= 0 and i in (0, echo)): A(f's_memrealtime s[{64+2*i}:{65+2*i}]')
    def allred(op, r, t, quad=False):
        if quad:
            A('s_nop 1', f'{op}_dpp v{r}, v{r}, v{r} quad_perm:[1,0,3,2] row_mask:0xf bank_mask:0xf')
            A('s_nop 1', f'{op}_dpp v{r}, v{r}, v{r} quad_perm:[2,3,0,1] row_mask:0xf bank_mask:0xf')
        A('s_nop 1', f'{op}_dpp v{r}, v{r}, v{r} row_ror:4 row_mask:0xf bank_mask:0xf')
        A('s_nop 1', f'{op}_dpp v{r}, v{r}, v{r} row_ror:8 row_mask:0xf bank_mask:0xf')
        A(f'v_mov_b32 v{t}, v{r}', 's_nop 1', f'v_permlane16_swap_b32 v{r}, v{t}', 's_nop 1', f'{op} v{r}, v{r}, v{t}')
        A(f'v_mov_b32 v{t}, v{r}', 's_nop 1', f'v_permlane32_swap_b32 v{r}, v{t}', 's_nop 1', f'{op} v{r}, v{r}, v{t}')
    def perm_mfma(src, T, mf):
        for dp in range(4):
            for d in range(4):
                A(f'v_perm_b32 v{T+4*(2*dp)+d}, v{src+4*(2*d+1)+dp}, v{src+4*(2*d)+dp}, {SLO}')
            if dp > 0 and mf: mf(2 * dp - 1)
            for d in range(4):
                A(f'v_perm_b32 v{T+4*(2*dp+1)+d}, v{src+4*(2*d+1)+dp}, v{src+4*(2*d)+dp}, {SHI}')
            if mf: mf(2 * dp)
        if mf:
            A('s_nop 1'); mf(7)
    def tagcheck(regs):
        A(f'v_xor_b32 v6, s7, v{regs[0]+1}', f'v_xor_b32 v7, s7, v{regs[0]+3}')
        for r in regs[1:]:
            A(f'v_bitop3_b32 v6, v{r+1}, s7, v6 bitop3:0xbe', f'v_bitop3_b32 v7, v{r+3}, s7, v7 bitop3:0xbe')
        A('v_or_b32 v6, v6, v7', 'v_cmp_ne_u32 vcc, 0, v6')
    def versions(dst, good, bad):
        for e in range(4):
            A(f'v_cmp_eq_u32 vcc, {e}, v5', 's_nop 1', f'v_cndmask_b32 v{dst+e}, v{bad}, v{good}, vcc')
    def unpack(dst, a, b):
        A(f'v_lshlrev_b32 v{dst}, 16, v{a}', f'v_and_b32 v{dst+1}, 0xffff0000, v{a}', f'v_lshlrev_b32 v{dst+2}, 16, v{b}', f'v_and_b32 v{dst+3}, 0xffff0000, v{b}')
    def swapadd32(r, t):
        for i in range(4): A(f'v_mov_b32 v{t+i}, v{r+i}')
        A('s_nop 0')
        for i in range(4): A(f'v_permlane32_swap_b32 v{r+i}, v{t+i}')
        A('s_nop 0')
        for i in range(4): A(f'v_add_f32 v{r+i}, v{r+i}, v{t+i}')
    nteam = [0]
    def team_store(txt):
        if not local:
            A(txt + ' sc1'); return
        n = nteam[0]; nteam[0] += 1
        A('s_cmp_eq_u32 s13, 0', f's_cbranch_scc1 L_tl{n}', txt + ' sc1', f's_branch L_td{n}')
        A.lab(f'L_tl{n}'); A(txt); A.lab(f'L_td{n}')
    def dump_stamps(idx):
        A('s_waitcnt lgkmcnt(0)')
        A('s_lshl_b32 s59, s2, 7', f's_add_u32 s59, s59, 0x{STAMP_OFF:x}', 'v_mov_b32 v7, 0')
        for i in idx:
            A(f'v_mov_b32 v8, s{64+2*i}', f'v_mov_b32 v9, s{65+2*i}')
            A(f'buffer_store_dwordx2 v[8:9], v7, s[20:23], s59 offen offset:{8*i}', 's_nop 1')

    A('s_cmpk_ge_u32 s2, 0x100', 's_cbranch_scc1 L_end')
    stamp(0)
    A('s_and_b32 s52, s2, 8', 's_mul_i32 s52, s52, 5')
    A('s_load_dwordx8 s[32:39], s[0:1], s52 offset:8')
    A('s_load_dwordx2 s[40:41], s[0:1], 0')
    A('s_load_dwordx8 s[44:51], s[0:1], 80')
    A('v_lshrrev_b32 v1, 6, v0', 'v_and_b32 v0, 63, v0', 'v_readfirstlane_b32 s6, v1', 'v_lshlrev_b32 v14, 4, v0')
    A('s_bitcmp1_b32 s6, 2', 's_cbranch_scc1 L_vwave')
    ISH = 13 if pat else 15
    def kvbase():
        A('s_lshr_b32 s58, s2, 6', 's_and_b32 s4, s2, 7', 's_lshl3_add_u32 s54, s58, s4', 's_lshr_b32 s5, s2, 4')
        if pat:
            A('s_and_b32 s59, s5, 3', 's_lshl2_add_u32 s54, s54, 3', 's_lshl_b32 s54, s54, 7', 's_lshl2_add_u32 s59, s59, s6', 's_add_u32 s54, s54, s59', 's_lshl_b32 s54, s54, 12')
        else:
            A('s_or_b32 s59, s5, 12', 's_lshl4_add_u32 s54, s54, s59', 's_lshl_b32 s54, s54, 5', 's_add_u32 s54, s54, s6', 's_lshl_b32 s54, s54, 12')
        A('s_lshl_b32 s96, s2, 29' if rot else 's_mov_b32 s96, 0', 's_lshl_b32 s97, 1, 29')
        A('s_lshl_b32 s10, 1, 26', 's_mov_b32 s11, 0x20000')
    kvbase()
    A('v_and_b32 v3, 48, v0', 'v_lshlrev_b32 v3, 2, v3', 'v_xor_b32 v10, v14, v3', 'v_add_u32 v10, s54, v10')
    for n in range(1, 4): A(f'v_xor_b32 v{10+n}, {16*n}, v10')
    A('s_lshl_b32 m0, s6, 15', 's_mov_b32 s59, 7')
    if kprio: A(f's_setprio {kprio}')
    A('s_waitcnt lgkmcnt(0)', 's_mov_b64 s[8:9], s[32:33]')
    if st0: stamp(5)
    A.lab('L_kloop')
    A(f's_lshr_b32 s56, s96, {ISH}')
    if kb0 >= 0:
        A(f's_cmp_lg_u32 s59, {7-kb0}', 's_cbranch_scc1 L_knob', 's_barrier')
        A.lab('L_knob')
    for n in range(4): A(f'buffer_load_dwordx4 v{10+n}, s[8:11], s56 offen offset:{n*1024}{P} lds')
    A('s_add_u32 s96, s96, s97', 's_addk_i32 m0, 0x1000', 's_sub_u32 s59, s59, 1', 's_cbranch_scc0 L_kloop')
    A.lab('L_entry_end')
    def common():
        A('s_and_b32 s3, s2, 15', 's_and_b32 s59, s5, 3')
        A(f's_mov_b32 {SLO}, 0x05040100', f's_mov_b32 {SHI}, 0x07060302')
        A('s_mov_b32 s18, 0x400000', 's_mov_b32 s19, 0x20000')
        A(f's_mov_b32 s22, {WS_BYTES}', 's_mov_b32 s23, 0x20000')
        A('s_mov_b32 s26, 4096', 's_mov_b32 s27, 0x20000')
        A('s_lshl_b32 s55, s6, 15')
        A('s_lshl2_add_u32 s63, s59, s58', 's_lshl4_add_u32 s63, s3, s63')
        A('s_getreg_b32 s12, hwreg(HW_REG_XCC_ID, 0, 3)')
        A('v_lshrrev_b32 v1, 4, v0')
        A('v_and_b32 v2, 15, v0')
        A('v_bfe_u32 v5, v0, 2, 2')
        A('v_and_b32 v16, 3, v0')

    R1 = 64; PB = 48; ACC = 40; WO = 128; WT = 160
    stamp(1)
    A('s_barrier')
    A('s_load_dword s7, s[50:51], 0x%x' % WS_EPOCH)
    common()
    A('s_mov_b64 s[20:21], s[50:51]')
    A('s_lshl_b32 s57, s3, 15', 's_lshl_b32 s56, s58, 13', 's_add_u32 s57, s57, s56')
    A('s_lshl_b32 s56, s6, 11', 's_add_u32 s57, s57, s56', f's_add_u32 s57, s57, 0x{WS_Q:x}')
    QP = 64
    def pollq(f=' sc1'):
        for k in range(2): A(f'buffer_load_dwordx4 {vr(QP+4*k,4)}, v14, s[20:23], s57 offen offset:{1024*k}{f}')
    if not qd: pollq('' if qplain else ' sc1')
    A('s_mov_b32 s24, s46', 's_mov_b32 s25, s47', 's_mov_b32 s16, s38', 's_mov_b32 s17, s39')
    NT = 0
    if touch:
        A.c('first touch of the output page')
        A('s_mov_b64 exec, 1', 'buffer_load_dword v237, v14, s[24:27], 0 offen', 's_mov_b64 exec, -1'); NT = 1
    A('v_lshlrev_b32 v15, 10, v1', 'v_lshl_add_u32 v15, v2, 4, v15')
    A('v_lshl_add_u32 v4, v16, 2, v5', 'v_lshlrev_b32 v4, 8, v4', 'v_add_u32 v4, s55, v4')
    A('v_xor_b32 v6, v1, v2', 'v_lshlrev_b32 v6, 4, v6')
    for t in range(4): A(f'v_xor_b32 v7, {64*t}, v6', f'v_add_u32 v{20+t}, v4, v7')
    A('v_lshlrev_b32 v7, 8, v16', 'v_lshl_add_u32 v7, v1, 4, v7', f'v_add_u32 v7, {QL}, v7', f'v_mov_b32 v8, {ZL}')
    versions(32, 7, 8)
    A('s_lshl_b32 s59, s6, 8', f's_add_u32 s59, s59, {QL}')
    A('v_bfe_u32 v9, v0, 3, 2', 'v_lshlrev_b32 v9, 6, v9', 'v_and_b32 v8, 1, v0', 'v_lshl_add_u32 v9, v8, 3, v9')
    A('v_bfe_u32 v8, v0, 1, 2', 'v_lshl_add_u32 v9, v8, 1, v9', 'v_add_u32 v9, s59, v9')
    A('v_lshlrev_b32 v18, 4, v16', 's_lshl_b32 s59, s6, 2', f's_add_u32 s59, s59, {ML}', 'v_add_u32 v18, s59, v18')
    A('v_lshl_add_u32 v17, v1, 2, v16', 'v_lshlrev_b32 v17, 4, v17')
    A('v_lshrrev_b32 v8, 1, v5', 'v_lshl_add_u32 v17, v8, 8, v17', 'v_and_b32 v8, 1, v5', 'v_lshl_add_u32 v17, v8, 3, v17')
    A('s_lshl_b32 s59, s6, 10', f's_add_u32 s59, s59, {PX}', 'v_add_u32 v17, s59, v17')
    A('s_waitcnt lgkmcnt(0)')
    A(f's_add_u32 s7, s7, 0x{TAGC:x}')
    A(f's_mov_b32 s59, {spin}', 's_add_u32 s62, s7, s12')
    if qd:
        A('s_waitcnt vmcnt(0)'); pollq()
    A.lab('L_pollq')
    A('s_waitcnt vmcnt(0)')
    A(f'v_subrev_u32 v24, s7, v{QP+3}', f'v_subrev_u32 v25, s7, v{QP+7}')
    A('v_or_b32 v6, v24, v25', 'v_cmp_lt_u32 vcc, 7, v6')
    A('s_cbranch_vccz L_gotq', 's_sub_u32 s59, s59, 1', 's_cbranch_scc1 L_gotq')
    pollq()
    A('s_branch L_pollq')
    A.lab('L_gotq')
    stamp(3)
    A(f'v_xor_b32 v6, s62, v{QP+3}', f'v_bitop3_b32 v6, v{QP+7}, s62, v6 bitop3:0xbe', 'v_cmp_ne_u32 vcc, 0, v6')
    A('s_mov_b32 s56, 0x04000c0c', 's_mov_b32 s57, 0x0706000c')
    for k in range(2):
        q = QP + 4 * k
        A(f'v_perm_b32 v{28+k}, v{q}, v{q+1}, s56', f'v_perm_b32 v{28+k}, v{28+k}, v{q+2}, s57')
    A('s_cmp_eq_u64 vcc, 0', 's_cselect_b32 s59, 1, 0x101')
    for i in range(3): A(f'v_add_f32 v{24+i}, v{QP+i}, v{QP+4+i}')
    A('v_add_f32 v27, v28, v29')
    swapadd32(24, 28)
    A('v_cvt_pk_bf16_f32 v24, v24, v25', 'v_cvt_pk_bf16_f32 v25, v26, v27')
    A(f'v_mov_b32 v6, {CNT+4}', 'v_mov_b32 v7, s59')
    A('ds_write_b16 v9, v24', 'ds_write_b16_d16_hi v9, v24 offset:16', 'ds_write_b16 v9, v25 offset:32', 'ds_write_b16_d16_hi v9, v25 offset:48')
    A('s_mov_b64 exec, 1', 'ds_add_u32 v6, v7', 's_mov_b64 exec, -1')
    Qb = [R1, R1 + 16]; Kb = [R1 + 32, R1 + 48]
    def rdq(x):
        for t in range(4): A(f'ds_read_b128 {vr(Qb[x&1]+4*t,4)}, v{32+x} offset:{64*t}')
    def rdk(T_, buf):
        for t in range(4): A(f'ds_read_b128 {vr(Kb[buf]+4*t,4)}, v{20+t} offset:{4096*T_}')
    def mm(T_, buf):
        x = T_ & 3; a = T_ >> 2
        for t in range(4):
            c = '0' if (x == 0 and t == 0) else vr(ACC+4*a, 4)
            A(f'v_mfma_f32_16x16x32_bf16 {vr(ACC+4*a,4)}, {vr(Kb[buf]+4*t,4)}, {vr(Qb[x&1]+4*t,4)}, {c}')
    rdk(0, 0); rdk(4, 1)
    A(f's_mov_b32 s59, {spin}', f's_mov_b32 s62, 0x{SCALE:x}', f's_mov_b32 s14, 0x{LOG2E:x}')
    A.lab('L_qspin')
    A('ds_read_b32 v7, v6', 's_waitcnt lgkmcnt(0)', 'v_readfirstlane_b32 s13, v7', 's_and_b32 s56, s13, 255', 's_cmp_eq_u32 s56, 4', 's_cbranch_scc1 L_qall')
    A('s_sub_u32 s59, s59, 1', 's_cbranch_scc0 L_qspin')
    A.lab('L_qall')
    rdq(0)
    A('s_lshr_b32 s13, s13, 8')
    if qloc:
        A('s_cbranch_scc0 L_norep')
        A.c("some member sits on another XCD: write this workgroup's q partials through for it")
        A('s_lshl2_add_u32 s57, s3, s6', 's_lshl4_add_u32 s57, s57, s5', 's_lshl_b32 s57, s57, 9', f's_add_u32 s57, s57, 0x{WS_Q:x}')
        A('s_add_u32 s56, s7, s12', f's_mov_b32 s59, {spin}', 's_mov_b32 exec_hi, 0')
        A.lab('L_rep')
        A('buffer_load_dwordx4 v[24:27], v14, s[20:23], s57 offen sc1', 's_waitcnt vmcnt(0)', 'v_cmp_ne_u32 vcc, s56, v27')
        A('s_cbranch_vccz L_rep2', 's_sub_u32 s59, s59, 1', 's_cbranch_scc0 L_rep')
        A.lab('L_rep2')
        A('buffer_store_dwordx4 v[24:27], v14, s[20:23], s57 offen sc1', 's_mov_b32 exec_hi, -1')
        A.lab('L_norep')
    if pre:
        A.c("team on one XCD: put this workgroup's O lines into the L2 now, untagged, so that early polls stay inside the L2")
        A('s_cmp_lg_u32 s13, 0', 's_cbranch_scc1 L_nopre')
        A('s_lshl_b32 s57, s63, 11', 's_lshl_b32 s59, s6, 9', 's_add_u32 s57, s57, s59', f's_add_u32 s57, s57, 0x{WS_O:x}')
        A('s_not_b32 s59, s7', 'v_mov_b32 v24, s59', 'v_mov_b32 v25, s59', 'v_mov_b32 v26, s59', 'v_mov_b32 v27, s59')
        A('s_mov_b32 exec_hi, 0', 'buffer_store_dwordx4 v[24:27], v14, s[20:23], s57 offen', 's_mov_b32 exec_hi, -1')
        A.lab('L_nopre')
    for x in range(4):
        A('s_waitcnt lgkmcnt(%d)' % (0 if x == 0 else 4))
        mm(x, 0)
        if x < 3:
            rdq(x + 1)
            A('s_waitcnt lgkmcnt(4)')
        else:
            A('s_waitcnt lgkmcnt(0)')
        mm(x + 4, 1)
        if x < 3:
            rdk(x + 1, 0); rdk(x + 5, 1)
    A('s_nop 7')
    S = ACC
    for p in range(4): A(f'v_cvt_pk_bf16_f32 v{28+p}, v{S+2*p}, v{S+2*p+1}')
    for p in range(4): A(f'v_lshlrev_b32 v{S+2*p}, 16, v{28+p}', f'v_and_b32 v{S+2*p+1}, 0xffff0000, v{28+p}')
    for i in range(8): A(f'v_mul_f32 v{S+i}, s62, v{S+i}')
    for p in range(4): A(f'v_cvt_pk_bf16_f32 v{28+p}, v{S+2*p}, v{S+2*p+1}')
    for p in range(4): A(f'v_lshlrev_b32 v{S+2*p}, 16, v{28+p}', f'v_and_b32 v{S+2*p+1}, 0xffff0000, v{28+p}')
    A(f'v_max3_f32 v28, v{S}, v{S+1}, v{S+2}', f'v_max3_f32 v29, v{S+3}, v{S+4}, v{S+5}', f'v_max3_f32 v28, v28, v{S+6}, v{S+7}', 'v_max_f32 v28, v28, v29')
    allred('v_max_f32', 28, 29)
    A('v_mul_f32 v36, s14, v28')
    for i in range(8): A(f'v_fma_f32 v{S+i}, v{S+i}, s14, -v36')
    for i in range(8): A(f'v_exp_f32 v{S+i}, v{S+i}')
    A('ds_write_b32 v18, v36')
    for p in range(4): A(f'v_cvt_pk_bf16_f32 v{32+p}, v{S+2*p}, v{S+2*p+1}')
    A('ds_write_b64 v17, v[32:33]', 'ds_write_b64 v17, v[34:35] offset:512')
    A(f'v_add_f32 v28, v{S}, v{S+1}', f'v_add_f32 v29, v{S+2}, v{S+3}', f'v_add_f32 v30, v{S+4}, v{S+5}', f'v_add_f32 v31, v{S+6}, v{S+7}')
    A('v_add_f32 v28, v28, v29', 'v_add_f32 v30, v30, v31', 'v_add_f32 v28, v28, v30')
    allred('v_add_f32', 28, 29)
    A('ds_write_b32 v18, v28 offset:64')
    A('v_lshlrev_b32 v7, 4, v16', f'v_add_u32 v7, {ML}, v7', f'v_mov_b32 v6, {CNT+12}', 'v_mov_b32 v8, 1')
    A('s_mov_b64 exec, 1', 'ds_add_rtn_u32 v8, v6, v8', 's_mov_b64 exec, -1')
    A('ds_read_b128 v[20:23], v7', 'ds_read_b128 v[24:27], v7 offset:64')
    A('v_mov_b32 v37, s7', 'v_mov_b32 v39, s7')
    A('s_lshl_b32 s56, s63, 7', f's_add_u32 s56, s56, 0x{WS_ML:x}')
    A('s_waitcnt vmcnt(0) lgkmcnt(0)' if pre else 's_waitcnt lgkmcnt(0)')
    A('v_readfirstlane_b32 s59, v8', 's_cmp_lg_u32 s59, 3', 's_cbranch_scc1 L_noml')
    A.c('last K wave to finish its softmax publishes (m, l) of this workgroup, lane = head')
    A('v_max3_f32 v36, v20, v21, v22', 'v_max_f32 v36, v36, v23')
    for w in range(4): A(f'v_sub_f32 v{20+w}, v{20+w}, v36')
    for w in range(4): A(f'v_exp_f32 v{20+w}, v{20+w}')
    A('s_nop 0', 'v_mul_f32 v38, v20, v24')
    for w in range(1, 4): A(f'v_fmac_f32 v38, v{20+w}, v{24+w}')
    A('s_mov_b64 exec, 15')
    team_store('buffer_store_dwordx4 v[36:39], v14, s[20:23], s56 offen')
    A('s_mov_b64 exec, -1')
    A.lab('L_noml')
    A('v_lshrrev_b32 v13, 3, v0', 'v_lshlrev_b32 v12, 11, v13', 'v_and_b32 v8, 7, v0', 'v_lshl_add_u32 v12, v8, 4, v12', 'v_lshlrev_b32 v13, 7, v13')
    A('s_lshl_b32 s59, s6, 8', f's_add_u32 s59, s59, {OX}')
    A('v_and_b32 v17, 31, v0', 'v_lshlrev_b32 v17, 3, v17', 'v_add_u32 v17, s59, v17')
    if trim: A('v_lshrrev_b32 v8, 5, v0', 'v_lshl_add_u32 v17, v8, 2, v17')
    A('v_lshlrev_b32 v8, 6, v16', 'v_lshl_add_u32 v8, v1, 4, v8', 'v_add_u32 v8, s59, v8', f'v_mov_b32 v9, {ZL}')
    versions(208, 8, 9)
    A('s_lshl_b32 s59, s6, 11', 'v_add_u32 v19, s59, v14')
    A('s_lshl_b32 s59, s6, 9', 'v_and_b32 v18, 31, v0', 'v_lshlrev_b32 v18, 4, v18', 'v_add_u32 v18, s59, v18')
    A('v_mov_b32 v9, s7', 'v_mov_b32 v11, s7')
    A('s_lshr_b32 s58, s5, 2', 's_and_b32 s59, s5, 3')
    A('s_lshl_b32 s52, s3, 11', 's_lshl_b32 s53, s58, 4', 's_add_u32 s52, s52, s53', f's_add_u32 s52, s52, 0x{WS_ML:x}')
    A('s_lshl_b32 s50, s3, 15', 's_lshl_b32 s53, s58, 9', 's_add_u32 s50, s50, s53', 's_lshl_b32 s53, s6, 7', 's_add_u32 s50, s50, s53')
    A(f's_add_u32 s50, s50, 0x{WS_O:x}', 's_add_u32 s51, s50, 16384')
    A('s_lshl_b32 s57, s3, 2', 's_add_u32 s57, s57, s58')
    A('s_lshl_b32 s53, s59, 6', 's_add_u32 s53, s53, s57', 's_lshl_b32 s53, s53, 11')
    A('s_lshl_b32 s56, s6, 9', 's_add_u32 s53, s53, s56', f's_add_u32 s53, s53, 0x{WS_P:x}')
    A('s_and_b32 s58, s57, 31', 's_lshl_b32 s58, s58, 17', 's_add_u32 s58, s58, s55', 's_lshl_b32 s59, s59, 8', 's_add_u32 s58, s58, s59')
    A('s_and_b32 s56, s2, 7', 's_lshr_b32 s59, s2, 5', 's_lshl_b32 s59, s59, 3', 's_add_u32 s56, s56, s59', 's_lshr_b32 s57, s56, 4')
    A('s_and_b32 s56, s56, 15', 's_lshl_b32 s56, s56, 3', 's_bfe_u32 s59, s2, 0x20003', 's_lshl_b32 s59, s59, 1', 's_add_u32 s56, s56, s59')
    A('s_lshl_b32 s97, s57, 17', 's_lshl_b32 s59, s56, 4', 's_add_u32 s97, s97, s59', f's_add_u32 s97, s97, 0x{WS_P:x}')
    A('s_add_u32 s98, s97, 65536')
    A('v_lshrrev_b32 v212, 1, v0', 'v_lshlrev_b32 v212, 11, v212', 'v_and_b32 v7, 1, v0', 'v_lshl_add_u32 v212, v7, 4, v212')
    A('v_add_u32 v4, s56, v7', 'v_and_b32 v7, 3, v4', 'v_lshlrev_b32 v214, 3, v7', f'v_add_u32 v214, {GL}, v214')
    A('v_lshlrev_b32 v213, 9, v7', 's_lshl_b32 s57, s57, 7', 'v_add_u32 v213, s57, v213')
    A('v_bfe_u32 v7, v4, 4, 2', 'v_lshl_add_u32 v213, v7, 5, v213', 'v_lshrrev_b32 v7, 6, v4', 'v_lshl_add_u32 v213, v7, 2, v213')
    A('v_bfe_u32 v7, v4, 2, 2', 'v_add_u32 v213, v213, v7')
    A('v_bfe_u32 v7, v0, 1, 1', 'v_lshl_add_u32 v213, v7, 4, v213', 'v_and_b32 v7, 1, v1', 'v_lshl_add_u32 v213, v7, 3, v213')
    A('v_lshlrev_b32 v213, 1, v213')
    A('v_and_b32 v7, 2, v0', 'v_cmp_ne_u32 s[100:101], 0, v7')
    stamp(4)
    A('s_barrier')
    MLR = 216; FA = 224
    def pollml():
        A(f'buffer_load_dwordx4 v[{MLR}:{MLR+3}], v13, s[20:23], s52 offen sc1')
        A(f'buffer_load_dwordx4 v[{MLR+4}:{MLR+7}], v13, s[20:23], s52 offen offset:1024 sc1')
    def mlfactors():
        A(f'v_max_f32 v6, v{MLR}, v{MLR+4}')
        A('v_mov_b32 v7, v6', 's_nop 1', 'v_permlane32_swap_b32 v6, v7', 's_nop 1', 'v_max_f32 v6, v6, v7')
        A(f'v_sub_f32 v{FA}, v{MLR}, v6', f'v_sub_f32 v{FA+1}, v{MLR+4}, v6', f'v_exp_f32 v{FA}, v{FA}', f'v_exp_f32 v{FA+1}, v{FA+1}', 's_nop 0')
        A(f'v_mul_f32 v6, v{FA}, v{MLR+2}', f'v_fmac_f32 v6, v{FA+1}, v{MLR+6}')
        A('v_mov_b32 v7, v6', 's_nop 1', 'v_permlane32_swap_b32 v6, v7', 's_nop 1', 'v_add_f32 v6, v6, v7')
        A('v_rcp_f32 v6, v6', 's_nop 0', f'v_mul_f32 v{FA}, v{FA}, v6', f'v_mul_f32 v{FA+1}, v{FA+1}, v6')
    def poll1():
        A('buffer_load_dwordx4 v[20:23], v12, s[20:23], s50 offen sc1', 'buffer_load_dwordx4 v[24:27], v12, s[20:23], s51 offen sc1')
    if mlp == 0: pollml()
    for n in range(8):
        ro = 8 * (n & 3) + 4 * (n >> 2)
        A(f's_add_u32 s59, s58, {ro*1024}', f'buffer_load_dwordx4 {vr(WO+4*n,4)}, v15, s[16:19], s59 offen{WP}')
    if pd < 0: poll1()
    A('ds_read_b64 v[214:215], v214')
    if not st0: stamp(5)
    if mlp == 0:
        A(f's_waitcnt vmcnt({10 if pd < 0 else 8})')
        tagcheck([MLR, MLR + 4])
        A('s_mov_b32 s62, 0', 's_cbranch_vccnz L_mllate')
        mlfactors()
        A('s_mov_b32 s62, 1')
        A.lab('L_mllate')
    else: A('s_mov_b32 s62, 0')
    for d in range(4):
        A(f's_waitcnt vmcnt({(8 if d > pd else 6)-2*d})')
        if d == pd: poll1()
        for dp in range(4):
            A(f'v_perm_b32 v{WT+8*dp+d}, v{WO+4*(2*d+1)+dp}, v{WO+8*d+dp}, {SLO}', f'v_perm_b32 v{WT+8*dp+4+d}, v{WO+4*(2*d+1)+dp}, v{WO+8*d+dp}, {SHI}')
    stamp(2)
    A(f's_mov_b32 s59, {spin}', 's_cmp_eq_u32 s62, 1', 's_cbranch_scc1 L_poll1')
    A.lab('L_pollml')
    pollml()
    A('s_waitcnt vmcnt(0)')
    tagcheck([MLR, MLR + 4])
    A('s_cbranch_vccz L_gotml', 's_sub_u32 s59, s59, 1', 's_cbranch_scc0 L_pollml')
    A.lab('L_gotml')
    mlfactors()
    A.lab('L_poll1')
    A('s_waitcnt vmcnt(0)')
    tagcheck([20, 24])
    A('s_cbranch_vccz L_got1', 's_sub_u32 s59, s59, 1', 's_cbranch_scc1 L_got1')
    if sleep: A(f's_sleep {sleep}')
    if mask1: A('s_mov_b64 exec, vcc')
    poll1()
    A('s_branch L_poll1')
    A.lab('L_got1')
    if mask1: A('s_mov_b64 exec, -1')
    stamp(8)
    unpack(28, 20, 22); unpack(36, 24, 26)
    if trim:
        for r in range(2): A(f'v_pk_mul_f32 v[{28+2*r}:{29+2*r}], v[{28+2*r}:{29+2*r}], v[{FA}:{FA+1}] op_sel_hi:[1,0]')
        for r in range(2): A(f'v_pk_fma_f32 v[{28+2*r}:{29+2*r}], v[{36+2*r}:{37+2*r}], v[{FA}:{FA+1}], v[{28+2*r}:{29+2*r}] op_sel:[0,1,0] op_sel_hi:[1,1,1]')
        A('s_nop 1', 'v_permlane32_swap_b32 v28, v30', 'v_permlane32_swap_b32 v29, v31', 's_nop 0')
        A('v_pk_add_f32 v[28:29], v[28:29], v[30:31]')
        A('v_cvt_pk_bf16_f32 v20, v28, v29', 'ds_write_b32 v17, v20')
    else:
        for r in range(4): A(f'v_mul_f32 v{28+r}, v{FA}, v{28+r}')
        for r in range(4): A(f'v_fmac_f32 v{28+r}, v{FA+1}, v{36+r}')
        swapadd32(28, 36)
        A('v_cvt_pk_bf16_f32 v20, v28, v29', 'v_cvt_pk_bf16_f32 v21, v30, v31')
        A('ds_write_b64 v17, v[20:21]')
    for e in range(4): A(f'ds_read_b128 {vr(PB+4*e,4)}, v{208+e}')
    for e in range(4):
        A(f's_waitcnt lgkmcnt({3-e})')
        for idx in range(2):
            c = '0' if e == 0 else vr(ACC + 4 * idx, 4)
            A(f'v_mfma_f32_16x16x32_bf16 {vr(ACC+4*idx,4)}, {vr(WT+4*(4*idx+e),4)}, {vr(PB+4*e,4)}, {c}')
    A('s_nop 6')
    A(f'ds_write_b128 v19, {vr(ACC,4)}', f'ds_write_b128 v19, {vr(ACC+4,4)} offset:1024')
    A('s_waitcnt lgkmcnt(0)')
    if not st0: stamp(15)
    A('s_barrier')
    for w in range(4): A(f'ds_read_b128 {vr(20+4*w,4)}, v18 offset:{2048*w}')
    def pkadd(d, a):
        for i in range(2): A(f'v_pk_add_f32 v[{d+2*i}:{d+2*i+1}], v[{d+2*i}:{d+2*i+1}], v[{a+2*i}:{a+2*i+1}]')
    A('s_waitcnt lgkmcnt(2)'); pkadd(20, 24)
    A('s_waitcnt lgkmcnt(1)'); pkadd(20, 28)
    A('s_waitcnt lgkmcnt(0)'); pkadd(20, 32)
    A('v_cvt_pk_bf16_f32 v8, v20, v21', 'v_cvt_pk_bf16_f32 v10, v22, v23')
    A('s_mov_b32 exec_hi, 0', 'buffer_store_dwordx4 v[8:11], v14, s[20:23], s53 offen sc1', 's_mov_b32 exec_hi, -1')
    stamp(9)
    A('s_cmp_lg_u32 s6, 0', 's_cbranch_scc1 L_end')
    if ackfirst: A('s_waitcnt vmcnt(0)')
    A(f's_mov_b32 s59, {spin}')
    def poll2(r):
        for k in range(2): A(f'buffer_load_dwordx4 v[{r+4*k}:{r+3+4*k}], v212, s[20:23], s{97+k} offen sc1')
    if h2 < 2:
        A.lab('L_poll2')
        poll2(20)
        A('s_waitcnt vmcnt(0)')
        tagcheck([20, 24])
        A('s_cbranch_vccz L_got2', 's_sub_u32 s59, s59, 1', 's_cbranch_scc1 L_got2')
        if sleep2: A(f's_sleep {sleep2}')
        if h2 == 1: A('s_mov_b64 exec, vcc')
        A('s_branch L_poll2')
    else:
        poll2(44)
        A('s_mov_b64 s[32:33], -1', 's_mov_b64 s[34:35], -1', 's_mov_b64 s[36:37], -1', 's_mov_b64 s[38:39], 0')
        if stag: A(f's_sleep {stag}')
        poll2(52)
        A.lab('L_poll2')
        A('s_mov_b64 exec, s[32:33]', 's_waitcnt vmcnt(2)')
        tagcheck([44, 48])
        A('s_andn2_b64 s[40:41], exec, vcc', 's_or_b64 s[38:39], s[38:39], s[40:41]', 's_andn2_b64 s[36:37], s[36:37], s[40:41]', 's_cbranch_scc0 L_got2')
        A('s_mov_b64 exec, s[36:37]', 's_mov_b64 s[32:33], s[36:37]')
        poll2(44)
        A('s_mov_b64 exec, s[34:35]', 's_waitcnt vmcnt(2)')
        tagcheck([52, 56])
        A('s_andn2_b64 s[40:41], exec, vcc', 's_andn2_b64 s[36:37], s[36:37], s[40:41]', 's_cbranch_scc0 L_got2')
        A('s_mov_b64 exec, s[36:37]', 's_mov_b64 s[34:35], s[36:37]')
        poll2(52)
        A('s_sub_u32 s59, s59, 1', 's_cbranch_scc0 L_poll2')
    A.lab('L_got2')
    if h2: A('s_mov_b64 exec, -1')
    if h2 == 2:
        for i in range(4): A(f'v_cndmask_b32 v{20+2*i}, v{52+2*i}, v{44+2*i}, s[38:39]')
    stamp(10)
    unpack(28, 20, 22); unpack(32, 24, 26)
    A('s_nop 0')
    for i in range(4): A(f'v_permlane32_swap_b32 v{28+i}, v{32+i}')
    A('s_nop 0')
    for i in range(4): A(f'v_add_f32 v{28+i}, v{28+i}, v{32+i}')
    A('s_nop 0', 'v_permlane16_swap_b32 v28, v29', 'v_permlane16_swap_b32 v30, v31', 's_nop 0')
    A('v_add_f32 v28, v28, v29', 'v_add_f32 v30, v30, v31')
    A('s_nop 0', 'v_add_f32_dpp v28, v28, v28 quad_perm:[2,3,0,1] row_mask:0xf bank_mask:0xf', 'v_add_f32_dpp v30, v30, v30 quad_perm:[2,3,0,1] row_mask:0xf bank_mask:0xf')
    A('s_nop 0', 'v_cndmask_b32 v20, v28, v30, s[100:101]')
    A('s_nop 1', 'v_add_f32_dpp v20, v20, v20 row_ror:4 row_mask:0xf bank_mask:0xf')
    A('s_nop 1', 'v_add_f32_dpp v20, v20, v20 row_ror:8 row_mask:0xf bank_mask:0xf')
    A('v_mov_b32 v21, v20', 's_nop 1', 'v_permlane32_swap_b32 v20, v21', 's_nop 1')
    A('v_cvt_pk_bf16_f32 v20, v20, v21')
    A('v_lshlrev_b32 v21, 16, v20', 'v_and_b32 v22, 0xffff0000, v20')
    A('v_mul_f32 v21, v21, v214', 'v_mul_f32 v22, v22, v215')
    A('v_cvt_pk_bf16_f32 v20, v21, v22')
    A('v_lshlrev_b32 v21, 16, v20', 'v_and_b32 v22, 0xffff0000, v20', 'v_add_f32 v21, v21, v22')
    A('v_cvt_pk_bf16_f32 v20, v21, v21')
    A('s_mov_b64 exec, 0x000f000f', 'buffer_store_short v20, v213, s[24:27], 0 offen')
    A('s_cmp_lg_u32 s2, 0', 's_cbranch_scc1 L_fin')
    A('s_mov_b64 exec, 1', 'v_mov_b32 v6, s7', f'buffer_store_dword v6, v14, s[20:23], 0 offen offset:{WS_EPOCH}')
    A.lab('L_fin')
    if echo >= 0:
        stamp(11)
        A('s_memrealtime s[30:31]', 's_waitcnt lgkmcnt(0)')
        A(f's_sub_u32 s28, s{64+2*echo}, s64', 's_add_u32 s28, s28, s30')
        if echog >= 0: A('s_lshr_b32 s29, s3, 3', f's_cmp_lg_u32 s29, {echog}', 's_cbranch_scc1 L_end')
        A.lab('L_echo')
        A('s_memrealtime s[30:31]', 's_waitcnt lgkmcnt(0)', 's_sub_u32 s29, s30, s28', 's_cmp_lt_i32 s29, 0', 's_cbranch_scc1 L_echo')
    if stamps:
        stamp(11)
        A('s_mov_b64 exec, -1')
        if xdbg: A('s_waitcnt lgkmcnt(0)', 's_mul_i32 s94, s12, 100', 's_add_u32 s94, s94, s64', 's_addc_u32 s95, s65, 0')
        dump_stamps([0, 1, 2, 3, 4, 5, 8, 9, 10, 11, 15])
    A('s_endpgm')

    V0 = 128; PB = 64; T = 32; ACC = 24
    WQ = 64; XB = 96
    A('.p2align 6')
    A.lab('L_vwave')
    if vprio: A(f's_setprio {vprio}')
    A('s_and_b32 s6, s6, 3')
    if prefetch:
        A.c("warm L2 with this kernel's own code: one dword per 64 bytes")
        A('s_getpc_b64 s[56:57]')
        A.lab('L_pc')
        A(f's_sub_u32 s56, s56, L_pc-{KN}_kernel', 's_subb_u32 s57, s57, 0')
        A('s_lshl_b32 s59, s6, 12', 'v_lshl_add_u32 v2, v14, 2, s59')
        A(f'v_min_u32 v2, L_code_end-{KN}_kernel-4, v2')
        A('v_mov_b32 v3, s57', 'v_add_co_u32 v2, vcc, s56, v2', 's_nop 1', 'v_addc_co_u32 v3, vcc, 0, v3, vcc')
        A('global_load_dword v40, v[2:3], off')
    kvbase()
    common()
    XG = 128; GA = XG + 8
    assert kb0 >= 0
    A('s_lshl_b32 s57, s6, 8', f's_add_u32 s57, s57, {ZL}', 'v_lshlrev_b32 v4, 2, v0', 'v_add_u32 v4, s57, v4')
    A('v_mov_b32 v6, 0', 'v_lshlrev_b32 v7, 2, v16', f'v_add_u32 v7, {CNT}, v7')
    A('ds_write_b32 v4, v6', 'ds_write_b32 v7, v6')
    A('v_lshlrev_b32 v9, 16, v1', 'v_lshl_add_u32 v9, v2, 4, v9')
    A('s_lshl2_add_u32 s57, s59, s6')
    A('s_lshl_b32 s56, s57, 10', 's_lshl2_add_u32 s59, s4, s58', 's_add_u32 s56, s56, s59', 's_lshl_b32 s56, s56, 8')
    A('s_lshl_b32 s57, s57, 6', 's_lshl_b32 s53, s6, 10')
    A('v_lshlrev_b32 v8, 4, v1', 'v_lshl_add_u32 v8, v16, 10, v8')
    A('v_bfrev_b32 v10, 1')
    A('s_mov_b32 s30, 1024', 's_mov_b32 s31, 0x20000')
    A('s_waitcnt lgkmcnt(0)')
    A('s_mov_b64 s[16:17], s[36:37]', 's_mov_b64 s[24:25], s[40:41]', 's_mov_b64 s[28:29], s[44:45]')
    if st0: stamp(12)
    A(f'buffer_load_dwordx4 {vr(XG,4)}, v14, s[24:27], s53 offen')
    A(f'buffer_load_dwordx4 {vr(XG+4,4)}, v14, s[28:31], 0 offen')
    for i in range(8):
        A(f'buffer_load_dwordx4 {vr(WQ+4*i,4)}, v9, s[16:19], s56 offen{WP}')
        if i < 7: A('s_addk_i32 s56, 0x2000')
    if kb0 >= 0: A('s_barrier')
    versions(20, 8, 10)
    for e in range(4): A(f'buffer_load_dwordx4 {vr(XB+4*e,4)}, v{20+e}, s[24:27], s57 offen')
    A('s_load_dword s7, s[50:51], 0x%x' % WS_EPOCH)
    A('s_mov_b64 s[20:21], s[50:51]', 's_mov_b64 s[8:9], s[34:35]')
    A('s_lshl_b32 s59, s6, 11', f's_add_u32 s59, s59, {OL}', 'v_add_u32 v19, s59, v14')
    A('v_bfe_u32 v12, v0, 1, 4', 'v_lshlrev_b32 v12, 6, v12', 'v_and_b32 v8, 1, v0', 'v_lshl_add_u32 v12, v8, 10, v12')
    A('s_lshl_b32 s59, s6, 4', f's_add_u32 s59, s59, {OL}', 'v_add_u32 v12, s59, v12')
    A('v_add_u32 v15, s54, v14')
    A(f'v_mov_b32 v10, {CNT}', 'v_mov_b32 v11, 1')
    A('s_lshl2_add_u32 s57, s3, s6', 's_lshl4_add_u32 s57, s57, s5', 's_lshl_b32 s57, s57, 9', f's_add_u32 s57, s57, 0x{WS_Q:x}')
    A('s_waitcnt vmcnt(12)')
    A.c('gate of batch cw')
    for i in range(4):
        x = XG + i; g = XG + 4 + i
        unpack(36, x, g)
        A('v_mul_f32 v36, v36, v38', 'v_mul_f32 v37, v37, v39', 'v_cvt_pk_bf16_f32 v36, v36, v37')
        if i == 0:
            A(f'v_lshlrev_b32 v{GA}, 16, v36', f'v_and_b32 v{GA+1}, 0xffff0000, v36')
        else:
            A('v_lshlrev_b32 v38, 16, v36', 'v_and_b32 v39, 0xffff0000, v36', f'v_add_f32 v{GA}, v{GA}, v38', f'v_add_f32 v{GA+1}, v{GA+1}, v39')
    A(f'v_add_f32 v{GA}, v{GA}, v{GA+1}')
    allred('v_add_f32', GA, GA + 1, quad=True)
    A(f'v_cvt_pk_bf16_f32 v{GA}, v{GA}, v{GA}', f'v_lshlrev_b32 v{GA}, 16, v{GA}')
    A(f'v_mul_f32 v{GA}, 0x{LOG2E ^ 0x80000000:x}, v{GA}', f'v_exp_f32 v{GA}, v{GA}', 's_nop 0')
    A(f'v_add_f32 v{GA}, 1.0, v{GA}', f'v_rcp_f32 v{GA}, v{GA}', 's_nop 0')
    A(f'v_cvt_pk_bf16_f32 v{GA}, v{GA}, v{GA}', f'v_lshlrev_b32 v{GA}, 16, v{GA}')
    A(f'v_sub_f32 v{GA+1}, 1.0, v{GA}', f'v_cvt_pk_bf16_f32 v{GA+1}, v{GA+1}, v{GA+1}', f'v_lshlrev_b32 v{GA+1}, 16, v{GA+1}')
    A('s_lshl_b32 s59, s6, 3', f's_add_u32 s59, s59, {GL}', 'v_mov_b32 v6, s59', f'ds_write_b64 v6, v[{GA}:{GA+1}]')
    A('s_waitcnt vmcnt(0) lgkmcnt(0)')
    A(f's_add_u32 s7, s7, 0x{TAGC:x}')
    if st0: stamp(13)
    def mfq(e):
        idx = e >> 2
        c = '0' if (e & 3) == 0 else vr(ACC + 4 * idx, 4)
        A(f'v_mfma_f32_16x16x32_bf16 {vr(ACC+4*idx,4)}, {vr(T+4*e,4)}, {vr(XB+4*(e&3),4)}, {c}')
    perm_mfma(WQ, T, mfq)
    A('s_nop 6')
    A(f'ds_write_b128 v19, {vr(ACC,4)}', f'ds_write_b128 v19, {vr(ACC+4,4)} offset:1024')
    A('s_mov_b64 exec, 1', 'ds_add_u32 v10, v11', 's_mov_b64 exec, -1')
    A('s_add_u32 s59, s7, s12', 's_mov_b32 s56, 0x07060503', 's_mov_b32 s58, 0x07060502', 's_mov_b32 s62, 0x07060501')
    A('v_mov_b32 v67, s59', f's_mov_b32 s59, {spin}')
    A.lab('L_xspin')
    A('ds_read_b32 v4, v10')
    for w in range(4): A(f'ds_read_b128 {vr(T+4*w,4)}, v12 offset:{2048*w}')
    A('s_waitcnt lgkmcnt(4)')
    A('v_readfirstlane_b32 s53, v4', 's_cmp_eq_u32 s53, 4', 's_cbranch_scc1 L_xall')
    A('s_sub_u32 s59, s59, 1', 's_cbranch_scc0 L_xspin')
    A.lab('L_xall')
    A.c("add the four waves' partials of batch cw and publish them; the tag also carries the XCD number")
    A('s_waitcnt lgkmcnt(2)')
    for i in range(4): A(f'v_add_f32 v{T+i}, v{T+i}, v{T+4+i}')
    A('s_waitcnt lgkmcnt(0)')
    for i in range(4): A(f'v_add_f32 v{T+8+i}, v{T+8+i}, v{T+12+i}')
    for i in range(4): A(f'v_add_f32 v{T+i}, v{T+i}, v{T+8+i}')
    A(f'v_perm_b32 v64, v{T}, v{T+3}, s56', f'v_perm_b32 v65, v{T+1}, v{T+3}, s58', f'v_perm_b32 v66, v{T+2}, v{T+3}, s62')
    A('s_mov_b32 exec_hi, 0')
    if qloc:
        A.c('on the XCD that round-robin placement gives the team the shared L2 carries it; anywhere else it is written through')
        A('s_cmp_eq_u32 s12, s4', 's_cbranch_scc1 L_ql')
    A('buffer_store_dwordx4 v[64:67], v14, s[20:23], s57 offen sc1')
    if qloc:
        A('s_branch L_qd')
        A.lab('L_ql'); A('buffer_store_dwordx4 v[64:67], v14, s[20:23], s57 offen'); A.lab('L_qd')
    A('s_mov_b32 exec_hi, -1')
    A('v_lshl_add_u32 v8, v1, 2, v16', 's_lshl_b32 s57, s6, 10', f's_add_u32 s57, s57, {PX}')
    A('v_lshlrev_b32 v8, 4, v8', 'v_add_u32 v8, s57, v8', f'v_mov_b32 v9, {ZL}')
    versions(20, 8, 9)
    A('s_lshl_b32 s59, s6, 4', f's_add_u32 s59, s59, {ML}', 'v_mov_b32 v13, s59')
    A('s_lshl_b32 s57, s63, 11', 's_lshl_b32 s59, s6, 9', 's_add_u32 s57, s57, s59', f's_add_u32 s57, s57, 0x{WS_O:x}')
    A(f'v_mov_b32 v2, {CNT+8}', 'v_mov_b32 v3, 1', 'v_mov_b32 v9, s7', 'v_mov_b32 v11, s7')
    if vprio: A('s_setprio 0')
    A('s_barrier')
    for n in range(32):
        if n % 4 == 0: A(f's_lshr_b32 s56, s96, {ISH}', 's_add_u32 s96, s96, s97')
        A(f'buffer_load_dwordx4 {vr(V0+4*n,4)}, v15, s[8:11], s56 offen offset:{(n%4)*1024}{P}')
    stamp(14)
    A('s_barrier')
    A('ds_read_b128 v[4:7], v13', 'ds_read_b32 v8, v10 offset:4')
    for G_ in range(4):
        for e in range(4): A(f'ds_read_b128 {vr(PB+16*G_+4*e,4)}, v{20+e} offset:{256*G_}')
        if G_ == 1: A('s_waitcnt lgkmcnt(0)')
    A('v_readfirstlane_b32 s13, v8')
    A('v_max3_f32 v8, v4, v5, v6', 'v_max_f32 v8, v8, v7')
    for w in range(4): A(f'v_sub_f32 v{4+w}, v{4+w}, v8')
    for w in range(4): A(f'v_exp_f32 v{4+w}, v{4+w}')
    A('s_lshr_b32 s13, s13, 8')
    for G_ in range(4):
        if G_ == 2: A(f's_waitcnt vmcnt({8*(3-G_)}) lgkmcnt(0)')
        elif trim and G_ == 3: A('s_nop 4')
        else: A(f's_waitcnt vmcnt({8*(3-G_)})')
        if G_ == 3 and not trim: stamp(6)
        def mf(e):
            idx = e >> 2
            c = '0' if (G_ == 0 and (e & 3) == 0) else vr(ACC + 4 * idx, 4)
            A(f'v_mfma_f32_16x16x32_bf16 {vr(ACC+4*idx,4)}, {vr(T+4*e,4)}, {vr(PB+16*G_+4*(e&3),4)}, {c}')
        if trim and G_ == 3:
            src = V0 + 96
            for d in range(4):
                A(f's_waitcnt vmcnt({6-2*d})')
                if d == 3: stamp(6)
                for dp in range(4):
                    A(f'v_perm_b32 v{T+8*dp+d}, v{src+4*(2*d+1)+dp}, v{src+8*d+dp}, {SLO}', f'v_perm_b32 v{T+8*dp+4+d}, v{src+4*(2*d+1)+dp}, v{src+8*d+dp}, {SHI}')
            for e in (0, 4, 1, 5, 2, 6, 3, 7): mf(e)
        else:
            perm_mfma(V0 + 32 * G_, T, mf)
    if not st0: stamp(12)
    A(f's_mov_b32 s59, {spin}', 's_nop 5')
    A(f'ds_write_b128 v19, {vr(ACC,4)}', f'ds_write_b128 v19, {vr(ACC+4,4)} offset:1024')
    A('s_mov_b64 exec, 1', 'ds_add_u32 v2, v3', 's_mov_b64 exec, -1')
    A.lab('L_ospin')
    A('ds_read_b32 v3, v2')
    for w in range(4): A(f'ds_read_b128 v[{64+4*w}:{67+4*w}], v12 offset:{2048*w}')
    A('s_waitcnt lgkmcnt(4)')
    A('v_readfirstlane_b32 s56, v3', 's_cmp_eq_u32 s56, 4', 's_cbranch_scc1 L_oall')
    A('s_sub_u32 s59, s59, 1', 's_cbranch_scc0 L_ospin')
    A.lab('L_oall')
    if not st0: stamp(13)
    A('s_waitcnt lgkmcnt(3)')
    if trim:
        for r in range(2): A(f'v_pk_mul_f32 v[{24+2*r}:{25+2*r}], v[{64+2*r}:{65+2*r}], v[4:5] op_sel_hi:[1,0]')
        for w in range(1, 4):
            A(f's_waitcnt lgkmcnt({3-w})')
            o = w & 1
            for r in range(2): A(f'v_pk_fma_f32 v[{24+2*r}:{25+2*r}], v[{64+4*w+2*r}:{65+4*w+2*r}], v[{4+(w&2)}:{5+(w&2)}], v[{24+2*r}:{25+2*r}] op_sel:[0,{o},0] op_sel_hi:[1,{o},1]')
    else:
        for r in range(4): A(f'v_mul_f32 v{24+r}, v4, v{64+r}')
        for w in range(1, 4):
            A(f's_waitcnt lgkmcnt({3-w})')
            for r in range(4): A(f'v_fmac_f32 v{24+r}, v{4+w}, v{64+4*w+r}')
    A('v_cvt_pk_bf16_f32 v8, v24, v25', 'v_cvt_pk_bf16_f32 v10, v26, v27')
    A('s_mov_b32 exec_hi, 0')
    team_store('buffer_store_dwordx4 v[8:11], v14, s[20:23], s57 offen')
    if stamps:
        A('s_mov_b32 exec_hi, -1')
        stamp(7)
        A('s_cmp_lg_u32 s6, 0', 's_cbranch_scc1 L_end')
        dump_stamps([6, 7, 12, 13, 14])
    A('s_endpgm')

    A.lab('L_end')
    A('s_endpgm')
    A.lab('L_code_end')
    out += A.L
    out += ['.section .rodata,"a"', '.p2align 6', f'.amdhsa_kernel {KN}_kernel',
            '  .amdhsa_next_free_vgpr 256', '  .amdhsa_next_free_sgpr 102', '  .amdhsa_accum_offset 256',
            '  .amdhsa_group_segment_fixed_size 0', '  .amdhsa_kernarg_size 112', '  .amdhsa_user_sgpr_count 2',
            '  .amdhsa_user_sgpr_kernarg_segment_ptr 1', '  .amdhsa_system_sgpr_workgroup_id_x 1', '.end_amdhsa_kernel']
    return '\n'.join(out) + '\n'

if __name__ == '__main__':
    ap = argparse.ArgumentParser()
    ap.add_argument('-o', default='k.s')
    ap.add_argument('--set', action='append', default=[])
    a = ap.parse_args()
    kw = {}
    for s in a.set:
        k, v = s.split('=')
        try: v = int(v)
        except ValueError: pass
        kw[k] = v
    open(a.o, 'w').write(gen(**kw))
```

```python
import sys, argparse
KN = 'gated_mix__sliding_block_cached__sliding_block_cached__decode'
HEADER = open('cdna_kernels/' + KN + '.s.ref').read().split('; Override launch')[0]

WS_EPOCH = 0x0
WS_ML = 0x1000
WS_O = 0x40000
WS_P = 0xC0000
WS_Q = 0x140000
WS_BYTES = 285221888
STAMP_OFF = 64 << 20
TAGC = 0x9E3779B1
KL = 0
QL = 131072
ZL = QL + 1024
PX = ZL + 1024
ML = PX + 4096
LL = ML + 64
CNT = LL + 64
GL = CNT + 64
OX = GL + 64
OL = OX + 1024
LDS_BYTES = OL + 8192
LOG2E = 0x3FB8AA3B
SCALE = 0x3DB504F3

class G:
    def __init__(s): s.L = []
    def __call__(s, *ts):
        for t in ts: s.L.append('  ' + t)
    def lab(s, t): s.L.append(t + ':')
    def c(s, t): s.L.append('  ; ' + t)

def vr(a, n=1):
    return f'v{a}' if n == 1 else f'v[{a}:{a+n-1}]'

def gen(stamps=False, pol='nt', wpol='nt', spin=200000, prefetch=0, sleep=0, touch=1, kprio=1, vprio=3,
        gran=4, rotmul=4, ackfirst=1, local=1, echo=-1, sleep2=-1, echog=-1, pre=0, mask1=1, h2=1, stag=6, qplain=0, st0=0, kb0=0, pat=1, rot=0, qloc=1, xdbg=0, trim=1, pd=3, mlp=0, qd=0, vw=0, bvst=0, ost='', ppl='sc1', pst='sc1', pl=1, cut=0, skip=0, esh=0, b0st=0):
    if sleep2 < 0: sleep2 = sleep
    A = G()
    P = (' ' + pol) if pol else ''
    WP = (' ' + wpol) if wpol else ''
    out = [HEADER.rstrip('\n'),
           '; Override launch geometry by editing the next line (default: block=256,',
           '; grid=ceil(out_elems/256), lds=0). Harness parses it; keep it on one line.',
           f'; @launch grid=(256,1,1) block=(512,1,1) lds={LDS_BYTES}',
           '.amdgcn_target "amdgcn-amd-amdhsa--gfx950"', '.text', f'.globl {KN}_kernel', '.p2align 8',
           f'.type {KN}_kernel,@function', f'{KN}_kernel:']
    SLO, SHI = 's60', 's61'
    def stamp(i):
        if stamps or (echo >= 0 and i in (0, echo)): A(f's_memrealtime s[{64+2*i}:{65+2*i}]')
    def allred(op, r, t, quad=False):
        if quad:
            A('s_nop 1', f'{op}_dpp v{r}, v{r}, v{r} quad_perm:[1,0,3,2] row_mask:0xf bank_mask:0xf')
            A('s_nop 1', f'{op}_dpp v{r}, v{r}, v{r} quad_perm:[2,3,0,1] row_mask:0xf bank_mask:0xf')
        A('s_nop 1', f'{op}_dpp v{r}, v{r}, v{r} row_ror:4 row_mask:0xf bank_mask:0xf')
        A('s_nop 1', f'{op}_dpp v{r}, v{r}, v{r} row_ror:8 row_mask:0xf bank_mask:0xf')
        A(f'v_mov_b32 v{t}, v{r}', 's_nop 1', f'v_permlane16_swap_b32 v{r}, v{t}', 's_nop 1', f'{op} v{r}, v{r}, v{t}')
        A(f'v_mov_b32 v{t}, v{r}', 's_nop 1', f'v_permlane32_swap_b32 v{r}, v{t}', 's_nop 1', f'{op} v{r}, v{r}, v{t}')
    def perm_mfma(src, T, mf):
        for dp in range(4):
            for d in range(4):
                A(f'v_perm_b32 v{T+4*(2*dp)+d}, v{src+4*(2*d+1)+dp}, v{src+4*(2*d)+dp}, {SLO}')
            if dp > 0 and mf: mf(2 * dp - 1)
            for d in range(4):
                A(f'v_perm_b32 v{T+4*(2*dp+1)+d}, v{src+4*(2*d+1)+dp}, v{src+4*(2*d)+dp}, {SHI}')
            if mf: mf(2 * dp)
        if mf:
            A('s_nop 1'); mf(7)
    def tagcheck(regs):
        A(f'v_xor_b32 v6, s7, v{regs[0]+1}', f'v_xor_b32 v7, s7, v{regs[0]+3}')
        for r in regs[1:]:
            A(f'v_bitop3_b32 v6, v{r+1}, s7, v6 bitop3:0xbe', f'v_bitop3_b32 v7, v{r+3}, s7, v7 bitop3:0xbe')
        A('v_or_b32 v6, v6, v7', 'v_cmp_ne_u32 vcc, 0, v6')
    def versions(dst, good, bad):
        for e in range(4):
            A(f'v_cmp_eq_u32 vcc, {e}, v5', 's_nop 1', f'v_cndmask_b32 v{dst+e}, v{bad}, v{good}, vcc')
    def unpack(dst, a, b):
        A(f'v_lshlrev_b32 v{dst}, 16, v{a}', f'v_and_b32 v{dst+1}, 0xffff0000, v{a}', f'v_lshlrev_b32 v{dst+2}, 16, v{b}', f'v_and_b32 v{dst+3}, 0xffff0000, v{b}')
    def swapadd32(r, t):
        for i in range(4): A(f'v_mov_b32 v{t+i}, v{r+i}')
        A('s_nop 0')
        for i in range(4): A(f'v_permlane32_swap_b32 v{r+i}, v{t+i}')
        A('s_nop 0')
        for i in range(4): A(f'v_add_f32 v{r+i}, v{r+i}, v{t+i}')
    def swapadd16(r, t):
        for i in range(4): A(f'v_mov_b32 v{t+i}, v{r+i}')
        A('s_nop 0')
        for i in range(4): A(f'v_permlane16_swap_b32 v{r+i}, v{t+i}')
        A('s_nop 0')
        for i in range(4): A(f'v_add_f32 v{r+i}, v{r+i}, v{t+i}')
    nteam = [0]
    def team_store(txt):
        if not local:
            A(txt + ' sc1'); return
        n = nteam[0]; nteam[0] += 1
        A('s_cmp_eq_u32 s13, 0', f's_cbranch_scc1 L_tl{n}', txt + ' sc1', f's_branch L_td{n}')
        A.lab(f'L_tl{n}'); A(txt); A.lab(f'L_td{n}')
    def dump_stamps(idx):
        A('s_waitcnt lgkmcnt(0)')
        A('s_lshl_b32 s59, s2, 7', f's_add_u32 s59, s59, 0x{STAMP_OFF:x}', 'v_mov_b32 v7, 0')
        for i in idx:
            A(f'v_mov_b32 v8, s{64+2*i}', f'v_mov_b32 v9, s{65+2*i}')
            A(f'buffer_store_dwordx2 v[8:9], v7, s[20:23], s59 offen offset:{8*i}', 's_nop 1')

    A('s_cmpk_ge_u32 s2, 0x100', 's_cbranch_scc1 L_end')
    stamp(0)
    A('s_and_b32 s52, s2, 8', 's_mul_i32 s52, s52, 5')
    A('s_load_dwordx8 s[32:39], s[0:1], s52 offset:8')
    A('s_load_dwordx2 s[40:41], s[0:1], 0')
    A('s_load_dwordx8 s[44:51], s[0:1], 80')
    A('v_lshrrev_b32 v1, 6, v0', 'v_and_b32 v0, 63, v0', 'v_readfirstlane_b32 s6, v1', 'v_lshlrev_b32 v14, 4, v0')
    A('s_bitcmp1_b32 s6, 2', 's_cbranch_scc1 L_vwave')
    ISH = 13 if pat else 15
    def kvbase():
        A('s_lshr_b32 s58, s2, 6', 's_and_b32 s4, s2, 7', 's_lshl3_add_u32 s54, s58, s4', 's_lshr_b32 s5, s2, 4')
        if pat:
            A('s_and_b32 s59, s5, 3', 's_lshl2_add_u32 s54, s54, 3', 's_lshl_b32 s54, s54, 7', 's_lshl2_add_u32 s59, s59, s6', 's_add_u32 s54, s54, s59', 's_lshl_b32 s54, s54, 12')
        else:
            A('s_or_b32 s59, s5, 12', 's_lshl4_add_u32 s54, s54, s59', 's_lshl_b32 s54, s54, 5', 's_add_u32 s54, s54, s6', 's_lshl_b32 s54, s54, 12')
        A('s_lshl_b32 s96, s2, 29' if rot else 's_mov_b32 s96, 0', 's_lshl_b32 s97, 1, 29')
        A('s_lshl_b32 s10, 1, 26', 's_mov_b32 s11, 0x20000')
    kvbase()
    A('v_and_b32 v3, 48, v0', 'v_lshlrev_b32 v3, 2, v3', 'v_xor_b32 v10, v14, v3', 'v_add_u32 v10, s54, v10')
    for n in range(1, 4): A(f'v_xor_b32 v{10+n}, {16*n}, v10')
    A('s_lshl_b32 m0, s6, 15', 's_mov_b32 s59, 7')
    if kprio: A(f's_setprio {kprio}')
    A('s_waitcnt lgkmcnt(0)', 's_mov_b64 s[8:9], s[32:33]')
    if st0: stamp(5)
    A.lab('L_kloop')
    A(f's_lshr_b32 s56, s96, {ISH}')
    if kb0 >= 0:
        A(f's_cmp_lg_u32 s59, {7-kb0}', 's_cbranch_scc1 L_knob', 's_barrier')
        if b0st: stamp(5)
        A.lab('L_knob')
    for n in range(4): A(f'buffer_load_dwordx4 v{10+n}, s[8:11], s56 offen offset:{n*1024}{P} lds')
    A('s_add_u32 s96, s96, s97', 's_addk_i32 m0, 0x1000', 's_sub_u32 s59, s59, 1', 's_cbranch_scc0 L_kloop')
    A.lab('L_entry_end')
    def common():
        A('s_and_b32 s3, s2, 15', 's_and_b32 s59, s5, 3')
        A(f's_mov_b32 {SLO}, 0x05040100', f's_mov_b32 {SHI}, 0x07060302')
        A('s_mov_b32 s18, 0x400000', 's_mov_b32 s19, 0x20000')
        A(f's_mov_b32 s22, {WS_BYTES}', 's_mov_b32 s23, 0x20000')
        A('s_mov_b32 s26, 4096', 's_mov_b32 s27, 0x20000')
        A('s_lshl_b32 s55, s6, 15')
        A('s_lshl2_add_u32 s63, s59, s58', 's_lshl4_add_u32 s63, s3, s63')
        A('s_getreg_b32 s12, hwreg(HW_REG_XCC_ID, 0, 3)')
        A('v_lshrrev_b32 v1, 4, v0')
        A('v_and_b32 v2, 15, v0')
        A('v_bfe_u32 v5, v0, 2, 2')
        A('v_and_b32 v16, 3, v0')

    R1 = 64; PB = 48; ACC = 40; WO = 128; WT = 160
    stamp(1)
    A('s_barrier')
    A('s_load_dword s7, s[50:51], 0x%x' % WS_EPOCH)
    common()
    A('s_mov_b64 s[20:21], s[50:51]')
    A('s_lshl2_add_u32 s57, s3, s58', 's_lshl2_add_u32 s57, s57, s6', 's_lshl_b32 s57, s57, 10', f's_add_u32 s57, s57, 0x{WS_Q:x}')
    QP = 64
    def pollq(): A(f'buffer_load_dwordx4 {vr(QP,4)}, v14, s[20:23], s57 offen sc1')
    pollq()
    A('s_mov_b32 s24, s46', 's_mov_b32 s25, s47', 's_mov_b32 s16, s38', 's_mov_b32 s17, s39')
    NT = 0
    if touch:
        A.c('first touch of the output page')
        A('s_mov_b64 exec, 1', 'buffer_load_dword v237, v14, s[24:27], 0 offen', 's_mov_b64 exec, -1'); NT = 1
    A('v_lshlrev_b32 v15, 10, v1', 'v_lshl_add_u32 v15, v2, 4, v15')
    A('v_lshl_add_u32 v4, v16, 2, v5', 'v_lshlrev_b32 v4, 8, v4', 'v_add_u32 v4, s55, v4')
    A('v_xor_b32 v6, v1, v2', 'v_lshlrev_b32 v6, 4, v6')
    for t in range(4): A(f'v_xor_b32 v7, {64*t}, v6', f'v_add_u32 v{20+t}, v4, v7')
    A('v_lshlrev_b32 v7, 8, v16', 'v_lshl_add_u32 v7, v1, 4, v7', f'v_add_u32 v7, {QL}, v7', f'v_mov_b32 v8, {ZL}')
    versions(32, 7, 8)
    A('s_lshl_b32 s59, s6, 8', f's_add_u32 s59, s59, {QL}')
    A('v_lshrrev_b32 v9, 5, v0', 'v_lshlrev_b32 v9, 7, v9', 'v_bfe_u32 v8, v0, 3, 1', 'v_lshl_add_u32 v9, v8, 6, v9')
    A('v_and_b32 v8, 7, v0', 'v_lshl_add_u32 v9, v8, 1, v9', 'v_add_u32 v9, s59, v9')
    A('v_lshlrev_b32 v18, 4, v16', 's_lshl_b32 s59, s6, 2', f's_add_u32 s59, s59, {ML}', 'v_add_u32 v18, s59, v18')
    A('v_lshl_add_u32 v17, v1, 2, v16', 'v_lshlrev_b32 v17, 4, v17')
    A('v_lshrrev_b32 v8, 1, v5', 'v_lshl_add_u32 v17, v8, 8, v17', 'v_and_b32 v8, 1, v5', 'v_lshl_add_u32 v17, v8, 3, v17')
    A('s_lshl_b32 s59, s6, 10', f's_add_u32 s59, s59, {PX}', 'v_add_u32 v17, s59, v17')
    A('s_waitcnt lgkmcnt(0)')
    A(f's_add_u32 s7, s7, 0x{TAGC:x}')
    A(f's_mov_b32 s59, {spin}', 's_add_u32 s62, s7, s12')
    A.lab('L_pollq')
    A('s_waitcnt vmcnt(0)')
    A(f'v_subrev_u32 v6, s7, v{QP+3}', 'v_cmp_lt_u32 vcc, 7, v6')
    A('s_cbranch_vccz L_gotq', 's_sub_u32 s59, s59, 1', 's_cbranch_scc1 L_gotq')
    pollq()
    A('s_branch L_pollq')
    A.lab('L_gotq')
    stamp(3)
    A(f'v_cmp_ne_u32 vcc, s62, v{QP+3}')
    A('s_mov_b32 s56, 0x04000c0c', 's_mov_b32 s57, 0x0706000c')
    A(f'v_perm_b32 v27, v{QP}, v{QP+1}, s56', f'v_perm_b32 v27, v27, v{QP+2}, s57')
    A('s_cmp_eq_u64 vcc, 0', 's_cselect_b32 s59, 1, 0x101')
    for i in range(3): A(f'v_mov_b32 v{24+i}, v{QP+i}')
    swapadd16(24, 28)
    A('v_cvt_pk_bf16_f32 v24, v24, v25', 'v_cvt_pk_bf16_f32 v25, v26, v27')
    A(f'v_mov_b32 v6, {CNT+4}', 'v_mov_b32 v7, s59')
    A('ds_write_b16 v9, v24', 'ds_write_b16_d16_hi v9, v24 offset:16', 'ds_write_b16 v9, v25 offset:32', 'ds_write_b16_d16_hi v9, v25 offset:48')
    A('s_mov_b64 exec, 1', 'ds_add_u32 v6, v7', 's_mov_b64 exec, -1')
    Qb = [R1, R1 + 16]; Kb = [R1 + 32, R1 + 48]
    def rdq(x):
        for t in range(4): A(f'ds_read_b128 {vr(Qb[x&1]+4*t,4)}, v{32+x} offset:{64*t}')
    def rdk(T_, buf):
        for t in range(4): A(f'ds_read_b128 {vr(Kb[buf]+4*t,4)}, v{20+t} offset:{4096*T_}')
    def mm(T_, buf):
        x = T_ & 3; a = T_ >> 2
        for t in range(4):
            c = '0' if (x == 0 and t == 0) else vr(ACC+4*a, 4)
            A(f'v_mfma_f32_16x16x32_bf16 {vr(ACC+4*a,4)}, {vr(Kb[buf]+4*t,4)}, {vr(Qb[x&1]+4*t,4)}, {c}')
    rdk(0, 0); rdk(4, 1)
    A(f's_mov_b32 s59, {spin}', f's_mov_b32 s62, 0x{SCALE:x}', f's_mov_b32 s14, 0x{LOG2E:x}')
    A.lab('L_qspin')
    A('ds_read_b32 v7, v6', 's_waitcnt lgkmcnt(0)', 'v_readfirstlane_b32 s13, v7', 's_and_b32 s56, s13, 255', 's_cmp_eq_u32 s56, 4', 's_cbranch_scc1 L_qall')
    A('s_sub_u32 s59, s59, 1', 's_cbranch_scc0 L_qspin')
    A.lab('L_qall')
    rdq(0)
    A('s_lshr_b32 s13, s13, 8')
    if qloc:
        A('s_cbranch_scc0 L_norep')
        A.c("some member sits on another XCD: write this workgroup's q partials through for it")
        A('s_lshl2_add_u32 s57, s3, s6', 's_lshl4_add_u32 s57, s57, s5', 's_lshl_b32 s57, s57, 8', f's_add_u32 s57, s57, 0x{WS_Q:x}')
        A('s_add_u32 s56, s7, s12', f's_mov_b32 s59, {spin}', 's_mov_b64 exec, 0xffff')
        A.lab('L_rep')
        A('buffer_load_dwordx4 v[24:27], v14, s[20:23], s57 offen sc1', 's_waitcnt vmcnt(0)', 'v_cmp_ne_u32 vcc, s56, v27')
        A('s_cbranch_vccz L_rep2', 's_sub_u32 s59, s59, 1', 's_cbranch_scc0 L_rep')
        A.lab('L_rep2')
        A('buffer_store_dwordx4 v[24:27], v14, s[20:23], s57 offen sc1', 's_mov_b64 exec, -1')
        A.lab('L_norep')
    for x in range(4):
        A('s_waitcnt lgkmcnt(%d)' % (0 if x == 0 else 4))
        mm(x, 0)
        if x < 3:
            rdq(x + 1)
            A('s_waitcnt lgkmcnt(4)')
        else:
            A('s_waitcnt lgkmcnt(0)')
        mm(x + 4, 1)
        if x < 3:
            rdk(x + 1, 0); rdk(x + 5, 1)
    A('s_nop 7')
    S = ACC
    for p in range(4): A(f'v_cvt_pk_bf16_f32 v{28+p}, v{S+2*p}, v{S+2*p+1}')
    for p in range(4): A(f'v_lshlrev_b32 v{S+2*p}, 16, v{28+p}', f'v_and_b32 v{S+2*p+1}, 0xffff0000, v{28+p}')
    for i in range(8): A(f'v_mul_f32 v{S+i}, s62, v{S+i}')
    for p in range(4): A(f'v_cvt_pk_bf16_f32 v{28+p}, v{S+2*p}, v{S+2*p+1}')
    for p in range(4): A(f'v_lshlrev_b32 v{S+2*p}, 16, v{28+p}', f'v_and_b32 v{S+2*p+1}, 0xffff0000, v{28+p}')
    A(f'v_max3_f32 v28, v{S}, v{S+1}, v{S+2}', f'v_max3_f32 v29, v{S+3}, v{S+4}, v{S+5}', f'v_max3_f32 v28, v28, v{S+6}, v{S+7}', 'v_max_f32 v28, v28, v29')
    allred('v_max_f32', 28, 29)
    A('v_mul_f32 v36, s14, v28')
    for i in range(8): A(f'v_fma_f32 v{S+i}, v{S+i}, s14, -v36')
    for i in range(8): A(f'v_exp_f32 v{S+i}, v{S+i}')
    A('ds_write_b32 v18, v36')
    for p in range(4): A(f'v_cvt_pk_bf16_f32 v{32+p}, v{S+2*p}, v{S+2*p+1}')
    A('ds_write_b64 v17, v[32:33]', 'ds_write_b64 v17, v[34:35] offset:512')
    A(f'v_add_f32 v28, v{S}, v{S+1}', f'v_add_f32 v29, v{S+2}, v{S+3}', f'v_add_f32 v30, v{S+4}, v{S+5}', f'v_add_f32 v31, v{S+6}, v{S+7}')
    A('v_add_f32 v28, v28, v29', 'v_add_f32 v30, v30, v31', 'v_add_f32 v28, v28, v30')
    allred('v_add_f32', 28, 29)
    A('ds_write_b32 v18, v28 offset:64')
    A('v_lshlrev_b32 v7, 4, v16', f'v_add_u32 v7, {ML}, v7', f'v_mov_b32 v6, {CNT+12}', 'v_mov_b32 v8, 1')
    A('s_mov_b64 exec, 1', 'ds_add_rtn_u32 v8, v6, v8', 's_mov_b64 exec, -1')
    A('ds_read_b128 v[20:23], v7', 'ds_read_b128 v[24:27], v7 offset:64')
    A('s_add_u32 s15, s7, s12', 'v_mov_b32 v37, s7', 'v_mov_b32 v39, s15')
    A('s_and_b32 s56, s63, 15', 's_lshl_b32 s59, s3, 6', 's_add_u32 s56, s56, s59', 's_lshl_b32 s56, s56, 4', f's_add_u32 s56, s56, 0x{WS_ML:x}', 'v_lshlrev_b32 v7, 8, v0')
    A('s_waitcnt lgkmcnt(0)')
    A('v_readfirstlane_b32 s59, v8', 's_cmp_lg_u32 s59, 3', 's_cbranch_scc1 L_noml')
    A.c('last K wave to finish its softmax publishes (m, l) of this workgroup, lane = head')
    A('v_max3_f32 v36, v20, v21, v22', 'v_max_f32 v36, v36, v23')
    for w in range(4): A(f'v_sub_f32 v{20+w}, v{20+w}, v36')
    for w in range(4): A(f'v_exp_f32 v{20+w}, v{20+w}')
    A('s_nop 0', 'v_mul_f32 v38, v20, v24')
    for w in range(1, 4): A(f'v_fmac_f32 v38, v{20+w}, v{24+w}')
    A('s_mov_b64 exec, 15')
    team_store('buffer_store_dwordx4 v[36:39], v7, s[20:23], s56 offen')
    A('s_mov_b64 exec, -1')
    A.lab('L_noml')
    A('v_lshrrev_b32 v13, 3, v0', 'v_lshlrev_b32 v12, 11, v13', 'v_and_b32 v8, 7, v0', 'v_lshl_add_u32 v12, v8, 4, v12', 'v_lshlrev_b32 v13, 4, v13')
    A('s_lshl_b32 s59, s6, 8', f's_add_u32 s59, s59, {OX}')
    A('v_and_b32 v17, 31, v0', 'v_lshlrev_b32 v17, 3, v17', 'v_add_u32 v17, s59, v17')
    if trim: A('v_lshrrev_b32 v8, 5, v0', 'v_lshl_add_u32 v17, v8, 2, v17')
    A('v_lshlrev_b32 v8, 6, v16', 'v_lshl_add_u32 v8, v1, 4, v8', 'v_add_u32 v8, s59, v8', f'v_mov_b32 v9, {ZL}')
    versions(208, 8, 9)
    A('s_lshl_b32 s59, s6, 11', 'v_add_u32 v19, s59, v14')
    A('s_lshl_b32 s59, s6, 9', 'v_and_b32 v18, 31, v0', 'v_lshlrev_b32 v18, 4, v18', 'v_add_u32 v18, s59, v18')
    A('v_mov_b32 v9, s7', 'v_mov_b32 v11, s7')
    A('s_lshr_b32 s58, s5, 2', 's_and_b32 s59, s5, 3')
    A('s_lshl2_add_u32 s52, s3, s58', 's_lshl_b32 s52, s52, 8', f's_add_u32 s52, s52, 0x{WS_ML:x}')
    A('s_lshl_b32 s50, s3, 15', 's_lshl_b32 s53, s58, 9', 's_add_u32 s50, s50, s53', 's_lshl_b32 s53, s6, 7', 's_add_u32 s50, s50, s53')
    A(f's_add_u32 s50, s50, 0x{WS_O:x}', 's_add_u32 s51, s50, 16384')
    A('s_lshl_b32 s57, s3, 2', 's_add_u32 s57, s57, s58')
    A('s_lshl_b32 s53, s59, 6', 's_add_u32 s53, s53, s57', 's_lshl_b32 s53, s53, 11')
    A('s_lshl_b32 s56, s6, 9', 's_add_u32 s53, s53, s56', f's_add_u32 s53, s53, 0x{WS_P:x}')
    A('s_and_b32 s58, s57, 31', 's_lshl_b32 s58, s58, 17', 's_add_u32 s58, s58, s55', 's_lshl_b32 s59, s59, 8', 's_add_u32 s58, s58, s59')
    A('s_and_b32 s56, s2, 7', 's_lshr_b32 s59, s2, 5', 's_lshl_b32 s59, s59, 3', 's_add_u32 s56, s56, s59', 's_lshr_b32 s57, s56, 4')
    A('s_and_b32 s56, s56, 15', 's_lshl_b32 s56, s56, 3', 's_bfe_u32 s59, s2, 0x20003', 's_lshl_b32 s59, s59, 1', 's_add_u32 s56, s56, s59')
    A('s_lshl_b32 s97, s57, 17', 's_lshl_b32 s59, s56, 4', 's_add_u32 s97, s97, s59', f's_add_u32 s97, s97, 0x{WS_P:x}')
    A('s_add_u32 s98, s97, 65536')
    A('v_lshrrev_b32 v212, 1, v0', 'v_lshlrev_b32 v212, 11, v212', 'v_and_b32 v7, 1, v0', 'v_lshl_add_u32 v212, v7, 4, v212')
    A('v_add_u32 v4, s56, v7', 'v_and_b32 v7, 3, v4', 'v_lshlrev_b32 v226, 3, v7', f'v_add_u32 v226, {GL}, v226')
    A('v_lshlrev_b32 v213, 9, v7', 's_lshl_b32 s57, s57, 7', 'v_add_u32 v213, s57, v213')
    A('v_bfe_u32 v7, v4, 4, 2', 'v_lshl_add_u32 v213, v7, 5, v213', 'v_lshrrev_b32 v7, 6, v4', 'v_lshl_add_u32 v213, v7, 2, v213')
    A('v_bfe_u32 v7, v4, 2, 2', 'v_add_u32 v213, v213, v7')
    A('v_bfe_u32 v7, v0, 1, 1', 'v_lshl_add_u32 v213, v7, 4, v213', 'v_and_b32 v7, 1, v1', 'v_lshl_add_u32 v213, v7, 3, v213')
    A('v_lshlrev_b32 v213, 1, v213')
    A('v_and_b32 v7, 2, v0', 'v_cmp_ne_u32 s[100:101], 0, v7')
    if pl:
        A.c('s99: lanes of the line that workgroups of this XCD will read, when the team sits where round-robin placement puts it')
        A('s_and_b32 s56, s12, 3', 's_lshl_b32 s56, s56, 3', 's_lshl_b32 s99, 0xff, s56', 's_lshr_b32 s56, s12, 2', 's_and_b32 s59, s6, 1')
        A('s_xor_b32 s56, s56, s59', 's_xor_b32 s59, s12, s4', 's_or_b32 s56, s56, s59', 's_or_b32 s56, s56, s13', 's_cbranch_scc0 L_ppl0', 's_mov_b32 s99, 0', 's_branch L_ppl')
        A.lab('L_ppl0')
        A.c('put that line into the L2 now, untagged, so that early polls stay inside the L2')
        A('s_mov_b32 exec_hi, 0', 's_mov_b32 exec_lo, s99', 'v_not_b32 v21, v9', 'v_not_b32 v23, v9')
        A('buffer_store_dwordx4 v[20:23], v14, s[20:23], s53 offen', 's_mov_b64 exec, -1')
        A.lab('L_ppl')
        A('s_xor_b32 s43, s3, 8', 's_lshl_b32 s43, s43, 10', f's_add_u32 s43, s43, 0x{WS_ML:x}', 'v_lshlrev_b32 v228, 4, v2')
    stamp(4)
    A('s_barrier')
    if bvst: stamp(15)
    MLR = 216; FA = 224
    def pollml():
        A(f'buffer_load_dwordx4 v[{MLR}:{MLR+3}], v13, s[20:23], s52 offen sc1')
        A(f'buffer_load_dwordx4 v[{MLR+4}:{MLR+7}], v13, s[20:23], s52 offen offset:128 sc1')
    def mlfactors():
        A(f'v_max_f32 v6, v{MLR}, v{MLR+4}')
        A('v_mov_b32 v7, v6', 's_nop 1', 'v_permlane32_swap_b32 v6, v7', 's_nop 1', 'v_max_f32 v6, v6, v7')
        A(f'v_sub_f32 v{FA}, v{MLR}, v6', f'v_sub_f32 v{FA+1}, v{MLR+4}, v6', f'v_exp_f32 v{FA}, v{FA}', f'v_exp_f32 v{FA+1}, v{FA+1}', 's_nop 0')
        A(f'v_mul_f32 v6, v{FA}, v{MLR+2}', f'v_fmac_f32 v6, v{FA+1}, v{MLR+6}')
        A('v_mov_b32 v7, v6', 's_nop 1', 'v_permlane32_swap_b32 v6, v7', 's_nop 1', 'v_add_f32 v6, v6, v7')
        A('v_rcp_f32 v6, v6', 's_nop 0', f'v_mul_f32 v{FA}, v{FA}, v6', f'v_mul_f32 v{FA+1}, v{FA+1}, v6')
    def mlcheck():
        A(f'v_xor_b32 v6, s7, v{MLR+1}', f'v_bitop3_b32 v6, v{MLR+5}, s7, v6 bitop3:0xbe', 'v_cmp_ne_u32 vcc, 0, v6')
    def poll1():
        A('buffer_load_dwordx4 v[20:23], v12, s[20:23], s50 offen sc1', 'buffer_load_dwordx4 v[24:27], v12, s[20:23], s51 offen sc1')
    if mlp == 0 and cut != 2: pollml()
    for n in range(8):
        ro = 8 * (n & 3) + 4 * (n >> 2)
        A(f's_add_u32 s59, s58, {ro*1024}', f'buffer_load_dwordx4 {vr(WO+4*n,4)}, v15, s[16:19], s59 offen{WP}')
    if pd < 0: poll1()
    if not st0 and not b0st: stamp(5)
    if mlp == 0:
        A(f's_waitcnt vmcnt({10 if pd < 0 else 8})')
        mlcheck()
        A('s_mov_b32 s62, 0', 's_cbranch_vccnz L_mllate')
        mlfactors()
        A('s_mov_b32 s62, 1')
        A.lab('L_mllate')
    else: A('s_mov_b32 s62, 0')
    for d in range(4):
        A(f's_waitcnt vmcnt({(8 if d > pd else 6)-2*d})')
        if d == pd and cut not in (1, 2):
            poll1()
            if pl: A('buffer_load_dword v227, v228, s[20:23], s43 offen offset:12 sc1')
        for dp in range(4):
            A(f'v_perm_b32 v{WT+8*dp+d}, v{WO+4*(2*d+1)+dp}, v{WO+8*d+dp}, {SLO}', f'v_perm_b32 v{WT+8*dp+4+d}, v{WO+4*(2*d+1)+dp}, v{WO+8*d+dp}, {SHI}')
    stamp(2)
    if cut in (1, 2):
        A('s_waitcnt vmcnt(0)', 's_cmp_lg_u32 s6, 0', 's_cbranch_scc1 L_end', 's_branch L_fin')
    A(f's_mov_b32 s59, {spin}', 's_cmp_eq_u32 s62, 1', 's_cbranch_scc1 L_poll1')
    A.lab('L_pollml')
    pollml()
    A('s_waitcnt vmcnt(0)')
    mlcheck()
    A('s_cbranch_vccz L_gotml', 's_sub_u32 s59, s59, 1', 's_cbranch_scc0 L_pollml')
    A.lab('L_gotml')
    mlfactors()
    A.lab('L_poll1')
    A('s_waitcnt vmcnt(0)')
    tagcheck([20, 24])
    A('s_cbranch_vccz L_got1', 's_sub_u32 s59, s59, 1', 's_cbranch_scc1 L_got1')
    if sleep: A(f's_sleep {sleep}')
    if mask1: A('s_mov_b64 exec, vcc')
    poll1()
    A('s_branch L_poll1')
    A.lab('L_got1')
    if mask1: A('s_mov_b64 exec, -1')
    stamp(8)
    unpack(28, 20, 22); unpack(36, 24, 26)
    if trim:
        for r in range(2): A(f'v_pk_mul_f32 v[{28+2*r}:{29+2*r}], v[{28+2*r}:{29+2*r}], v[{FA}:{FA+1}] op_sel_hi:[1,0]')
        for r in range(2): A(f'v_pk_fma_f32 v[{28+2*r}:{29+2*r}], v[{36+2*r}:{37+2*r}], v[{FA}:{FA+1}], v[{28+2*r}:{29+2*r}] op_sel:[0,1,0] op_sel_hi:[1,1,1]')
        A('s_nop 1', 'v_permlane32_swap_b32 v28, v30', 'v_permlane32_swap_b32 v29, v31', 's_nop 0')
        A('v_pk_add_f32 v[28:29], v[28:29], v[30:31]')
        A('v_cvt_pk_bf16_f32 v20, v28, v29', 'ds_write_b32 v17, v20')
    else:
        for r in range(4): A(f'v_mul_f32 v{28+r}, v{FA}, v{28+r}')
        for r in range(4): A(f'v_fmac_f32 v{28+r}, v{FA+1}, v{36+r}')
        swapadd32(28, 36)
        A('v_cvt_pk_bf16_f32 v20, v28, v29', 'v_cvt_pk_bf16_f32 v21, v30, v31')
        A('ds_write_b64 v17, v[20:21]')
    for e in range(4): A(f'ds_read_b128 {vr(PB+4*e,4)}, v{208+e}')
    for e in range(4):
        A(f's_waitcnt lgkmcnt({3-e})')
        for idx in range(2):
            c = '0' if e == 0 else vr(ACC + 4 * idx, 4)
            A(f'v_mfma_f32_16x16x32_bf16 {vr(ACC+4*idx,4)}, {vr(WT+4*(4*idx+e),4)}, {vr(PB+4*e,4)}, {c}')
    if pl: A('v_cmp_ne_u32 vcc, s15, v227', 's_nop 3', 's_cmp_eq_u64 vcc, 0', 's_cselect_b32 s99, s99, 0')
    else: A('s_nop 6')
    A(f'ds_write_b128 v19, {vr(ACC,4)}', f'ds_write_b128 v19, {vr(ACC+4,4)} offset:1024')
    A('s_waitcnt lgkmcnt(0)')
    if not st0 and not bvst: stamp(15)
    A('s_barrier')
    for w in range(4): A(f'ds_read_b128 {vr(20+4*w,4)}, v18 offset:{2048*w}')
    def pkadd(d, a):
        for i in range(2): A(f'v_pk_add_f32 v[{d+2*i}:{d+2*i+1}], v[{d+2*i}:{d+2*i+1}], v[{a+2*i}:{a+2*i+1}]')
    A('s_waitcnt lgkmcnt(2)'); pkadd(20, 24)
    A('s_waitcnt lgkmcnt(1)'); pkadd(20, 28)
    A('s_waitcnt lgkmcnt(0)'); pkadd(20, 32)
    A('v_cvt_pk_bf16_f32 v8, v20, v21', 'v_cvt_pk_bf16_f32 v10, v22, v23')
    if pl:
        A('s_mov_b32 exec_hi, 0', 's_not_b32 exec_lo, s99', 'buffer_store_dwordx4 v[8:11], v14, s[20:23], s53 offen sc1')
        A('s_cmp_eq_u32 s99, 0', 's_cbranch_scc1 L_pnl', 's_mov_b32 exec_lo, s99', 'buffer_store_dwordx4 v[8:11], v14, s[20:23], s53 offen')
        A.lab('L_pnl')
        A('s_mov_b64 exec, -1')
    else:
        A('s_mov_b32 exec_hi, 0', 'buffer_store_dwordx4 v[8:11], v14, s[20:23], s53 offen ' + pst.replace('_', ' '), 's_mov_b32 exec_hi, -1')
    stamp(9)
    if cut == 3:
        A('s_waitcnt vmcnt(0)', 's_cmp_lg_u32 s6, 0', 's_cbranch_scc1 L_end', 's_branch L_fin')
    A('s_cmp_lg_u32 s6, 0', 's_cbranch_scc1 L_gate')
    if ackfirst == 1: A('s_waitcnt vmcnt(0)')
    A(f's_mov_b32 s59, {spin}')
    def poll2(r):
        for k in range(2): A(f'buffer_load_dwordx4 v[{r+4*k}:{r+3+4*k}], v212, s[20:23], s{97+k} offen ' + ppl.replace('_', ' '))
    if ackfirst == 2:
        A('s_lshl_b32 s56, s4, 3', 's_lshl_b64 s[32:33], 0xff, s56', 's_not_b64 exec, s[32:33]')
        poll2(20)
        A('s_waitcnt vmcnt(0)')
        tagcheck([20, 24])
        A('s_or_b64 exec, vcc, s[32:33]')
    if h2 < 2:
        A.lab('L_poll2')
        poll2(20)
        A('s_waitcnt vmcnt(0)')
        tagcheck([20, 24])
        A('s_cbranch_vccz L_got2', 's_sub_u32 s59, s59, 1', 's_cbranch_scc1 L_got2')
        if sleep2: A(f's_sleep {sleep2}')
        if h2 == 1: A('s_mov_b64 exec, vcc')
        A('s_branch L_poll2')
    else:
        poll2(44)
        A('s_mov_b64 s[32:33], -1', 's_mov_b64 s[34:35], -1', 's_mov_b64 s[36:37], -1', 's_mov_b64 s[38:39], 0')
        if stag: A(f's_sleep {stag}')
        poll2(52)
        A.lab('L_poll2')
        A('s_mov_b64 exec, s[32:33]', 's_waitcnt vmcnt(2)')
        tagcheck([44, 48])
        A('s_andn2_b64 s[40:41], exec, vcc', 's_or_b64 s[38:39], s[38:39], s[40:41]', 's_andn2_b64 s[36:37], s[36:37], s[40:41]', 's_cbranch_scc0 L_got2')
        A('s_mov_b64 exec, s[36:37]', 's_mov_b64 s[32:33], s[36:37]')
        poll2(44)
        A('s_mov_b64 exec, s[34:35]', 's_waitcnt vmcnt(2)')
        tagcheck([52, 56])
        A('s_andn2_b64 s[40:41], exec, vcc', 's_andn2_b64 s[36:37], s[36:37], s[40:41]', 's_cbranch_scc0 L_got2')
        A('s_mov_b64 exec, s[36:37]', 's_mov_b64 s[34:35], s[36:37]')
        poll2(52)
        A('s_sub_u32 s59, s59, 1', 's_cbranch_scc0 L_poll2')
    A.lab('L_got2')
    if h2: A('s_mov_b64 exec, -1')
    if h2 == 2:
        for i in range(4): A(f'v_cndmask_b32 v{20+2*i}, v{52+2*i}, v{44+2*i}, s[38:39]')
    stamp(10)
    A('ds_read_b64 v[214:215], v226', f's_mov_b32 s59, {spin}')
    unpack(28, 20, 22); unpack(32, 24, 26)
    A('s_nop 0')
    for i in range(4): A(f'v_permlane32_swap_b32 v{28+i}, v{32+i}')
    A('s_nop 0')
    for i in range(4): A(f'v_add_f32 v{28+i}, v{28+i}, v{32+i}')
    A('s_nop 0', 'v_permlane16_swap_b32 v28, v29', 'v_permlane16_swap_b32 v30, v31', 's_nop 0')
    A('v_add_f32 v28, v28, v29', 'v_add_f32 v30, v30, v31')
    A('s_nop 0', 'v_add_f32_dpp v28, v28, v28 quad_perm:[2,3,0,1] row_mask:0xf bank_mask:0xf', 'v_add_f32_dpp v30, v30, v30 quad_perm:[2,3,0,1] row_mask:0xf bank_mask:0xf')
    A('s_nop 0', 'v_cndmask_b32 v20, v28, v30, s[100:101]')
    A('s_nop 1', 'v_add_f32_dpp v20, v20, v20 row_ror:4 row_mask:0xf bank_mask:0xf')
    A('s_nop 1', 'v_add_f32_dpp v20, v20, v20 row_ror:8 row_mask:0xf bank_mask:0xf')
    A('v_mov_b32 v21, v20', 's_waitcnt lgkmcnt(0)', 'v_or_b32 v7, v214, v215', 'v_permlane32_swap_b32 v20, v21', 'v_cmp_eq_u32 vcc, 0, v7', 's_nop 0')
    A('v_cvt_pk_bf16_f32 v20, v20, v21')
    A('v_lshlrev_b32 v21, 16, v20', 'v_and_b32 v22, 0xffff0000, v20')
    A('s_cbranch_vccnz L_glate')
    A.lab('L_gok')
    A('v_mul_f32 v21, v21, v214', 'v_mul_f32 v22, v22, v215')
    A('v_cvt_pk_bf16_f32 v20, v21, v22')
    A('v_lshlrev_b32 v21, 16, v20', 'v_and_b32 v22, 0xffff0000, v20', 'v_add_f32 v21, v21, v22')
    A('v_cvt_pk_bf16_f32 v20, v21, v21')
    A('s_mov_b64 exec, 0x000f000f', 'buffer_store_short v20, v213, s[24:27], 0 offen' + (' ' + ost.replace('_', ' ') if ost else ''))
    A('s_cmp_lg_u32 s2, 0', 's_cbranch_scc1 L_fin')
    A('s_mov_b64 exec, 1', 'v_mov_b32 v6, s7', f'buffer_store_dword v6, v14, s[20:23], 0 offen offset:{WS_EPOCH}')
    A.lab('L_fin')
    if echo >= 0:
        stamp(11)
        A('s_memrealtime s[30:31]', 's_waitcnt lgkmcnt(0)')
        A(f's_sub_u32 s28, s{64+2*echo}, s64', f's_lshl_b32 s28, s28, {esh}', 's_add_u32 s28, s28, s30')
        if echog >= 0: A('s_lshr_b32 s29, s3, 3', f's_cmp_lg_u32 s29, {echog}', 's_cbranch_scc1 L_end')
        A.lab('L_echo')
        A('s_memrealtime s[30:31]', 's_waitcnt lgkmcnt(0)', 's_sub_u32 s29, s30, s28', 's_cmp_lt_i32 s29, 0', 's_cbranch_scc1 L_echo')
    if stamps:
        stamp(11)
        A('s_mov_b64 exec, -1')
        if xdbg: A('s_waitcnt lgkmcnt(0)', 's_mul_i32 s94, s12, 100', 's_add_u32 s94, s94, s64', 's_addc_u32 s95, s65, 0')
        dump_stamps([0, 1, 2, 3, 4, 5, 8, 9, 10, 11, 15])
    A('s_endpgm')
    A.lab('L_glate')
    A('ds_read_b64 v[214:215], v226', 's_waitcnt lgkmcnt(0)', 'v_or_b32 v7, v214, v215', 'v_cmp_eq_u32 vcc, 0, v7')
    A('s_cbranch_vccz L_gok', 's_sub_u32 s59, s59, 1', 's_cbranch_scc0 L_glate', 's_branch L_gok')
    A.lab('L_gate')
    A.c('waves 1 and 2: the gates of the two batches this workgroup finishes')
    XG = 128; GA = XG + 8
    A('s_cmp_eq_u32 s6, 3', 's_cbranch_scc1 L_end')
    A('s_bfe_u32 s56, s2, 0x10003', 's_lshl1_add_u32 s56, s56, s6', 's_sub_u32 s56, s56, 1', 's_lshl_b32 s53, s56, 10')
    A('s_mov_b64 s[24:25], s[40:41]', 's_mov_b64 s[28:29], s[44:45]', 's_mov_b32 s30, 1024', 's_mov_b32 s31, 0x20000')
    A(f'buffer_load_dwordx4 {vr(XG,4)}, v14, s[24:27], s53 offen')
    A(f'buffer_load_dwordx4 {vr(XG+4,4)}, v14, s[28:31], 0 offen')
    A('s_waitcnt vmcnt(0)')
    for i in range(4):
        x = XG + i; g = XG + 4 + i
        unpack(36, x, g)
        A('v_mul_f32 v36, v36, v38', 'v_mul_f32 v37, v37, v39', 'v_cvt_pk_bf16_f32 v36, v36, v37')
        if i == 0:
            A(f'v_lshlrev_b32 v{GA}, 16, v36', f'v_and_b32 v{GA+1}, 0xffff0000, v36')
        else:
            A('v_lshlrev_b32 v38, 16, v36', 'v_and_b32 v39, 0xffff0000, v36', f'v_add_f32 v{GA}, v{GA}, v38', f'v_add_f32 v{GA+1}, v{GA+1}, v39')
    A(f'v_add_f32 v{GA}, v{GA}, v{GA+1}')
    allred('v_add_f32', GA, GA + 1, quad=True)
    A(f'v_cvt_pk_bf16_f32 v{GA}, v{GA}, v{GA}', f'v_lshlrev_b32 v{GA}, 16, v{GA}')
    A(f'v_mul_f32 v{GA}, 0x{LOG2E ^ 0x80000000:x}, v{GA}', f'v_exp_f32 v{GA}, v{GA}', 's_nop 0')
    A(f'v_add_f32 v{GA}, 1.0, v{GA}', f'v_rcp_f32 v{GA}, v{GA}', 's_nop 0')
    A(f'v_cvt_pk_bf16_f32 v{GA}, v{GA}, v{GA}', f'v_lshlrev_b32 v{GA}, 16, v{GA}')
    A(f'v_sub_f32 v{GA+1}, 1.0, v{GA}', f'v_cvt_pk_bf16_f32 v{GA+1}, v{GA+1}, v{GA+1}', f'v_lshlrev_b32 v{GA+1}, 16, v{GA+1}')
    A('s_lshl_b32 s59, s56, 3', f's_add_u32 s59, s59, {GL}', 'v_mov_b32 v6, s59', f'ds_write_b64 v6, v[{GA}:{GA+1}]')
    A('s_endpgm')

    V0 = 128; PB = 64; T = 32; ACC = 24
    WQ = 64; XB = 96
    A('.p2align 6')
    A.lab('L_vwave')
    if vprio: A(f's_setprio {vprio}')
    A('s_and_b32 s6, s6, 3')
    if prefetch:
        A.c("warm L2 with this kernel's own code: one dword per 64 bytes")
        A('s_getpc_b64 s[56:57]')
        A.lab('L_pc')
        A(f's_sub_u32 s56, s56, L_pc-{KN}_kernel', 's_subb_u32 s57, s57, 0')
        A('s_lshl_b32 s59, s6, 12', 'v_lshl_add_u32 v2, v14, 2, s59')
        A(f'v_min_u32 v2, L_code_end-{KN}_kernel-4, v2')
        A('v_mov_b32 v3, s57', 'v_add_co_u32 v2, vcc, s56, v2', 's_nop 1', 'v_addc_co_u32 v3, vcc, 0, v3, vcc')
        A('global_load_dword v40, v[2:3], off')
    kvbase()
    common()
    assert kb0 >= 0
    QA = 112; XR = 104
    A('s_lshl_b32 s57, s6, 8', f's_add_u32 s57, s57, {ZL}', 'v_lshlrev_b32 v4, 2, v0', 'v_add_u32 v7, s57, v4')
    A('v_mov_b32 v6, 0', 'v_and_b32 v4, 0x7c, v4', f'v_add_u32 v4, {CNT}, v4')
    A('ds_write_b32 v7, v6', 'ds_write_b32 v4, v6')
    A('v_lshrrev_b32 v8, 3, v0', 'v_and_b32 v7, 7, v0', 'v_lshlrev_b32 v9, 16, v8', 'v_lshl_add_u32 v9, v7, 4, v9')
    A('s_and_b32 s57, s5, 1', 's_lshl2_add_u32 s57, s57, s6')
    A('s_lshl_b32 s56, s57, 12', 's_lshr_b32 s59, s5, 1', 's_lshl3_add_u32 s59, s4, s59', 's_add_u32 s56, s56, s59', 's_lshl_b32 s56, s56, 7')
    A('s_lshl_b32 s57, s57, 7')
    A('v_lshlrev_b32 v8, 4, v8', 'v_lshl_add_u32 v8, v16, 10, v8')
    A('s_waitcnt lgkmcnt(0)')
    A('s_mov_b64 s[16:17], s[36:37]', 's_mov_b64 s[24:25], s[40:41]')
    if st0: stamp(12)
    for i in range(8):
        A(f'buffer_load_dwordx4 {vr(WQ+4*i,4)}, v9, s[16:19], s56 offen{WP}')
        if i < 7: A('s_addk_i32 s56, 0x2000')
    A(f'buffer_load_dwordx4 {vr(XR,4)}, v8, s[24:27], s57 offen')
    A('s_barrier')
    A('s_load_dword s7, s[50:51], 0x%x' % WS_EPOCH)
    A('s_mov_b64 s[20:21], s[50:51]', 's_mov_b64 s[8:9], s[34:35]')
    A('s_lshl_b32 s59, s6, 11', f's_add_u32 s59, s59, {OL}', 'v_add_u32 v19, s59, v14')
    A('v_lshlrev_b32 v17, 9, v1', 'v_lshl_add_u32 v17, v7, 4, v17', 'v_add_u32 v17, s59, v17')
    A('v_bfe_u32 v12, v0, 1, 4', 'v_lshlrev_b32 v12, 6, v12', 'v_and_b32 v8, 1, v0', 'v_lshl_add_u32 v12, v8, 10, v12')
    A('s_lshl_b32 s59, s6, 4', f's_add_u32 s59, s59, {OL}', 'v_add_u32 v12, s59, v12')
    A('v_lshlrev_b32 v18, 11, v1', 'v_lshl_add_u32 v18, v2, 6, v18', 'v_add_u32 v18, s59, v18')
    A('v_add_u32 v15, s54, v14')
    A(f'v_mov_b32 v10, {CNT}', 'v_mov_b32 v11, 1')
    A('s_lshl2_add_u32 s57, s3, s6', 's_lshl4_add_u32 s57, s57, s5', 's_lshl_b32 s57, s57, 8', f's_add_u32 s57, s57, 0x{WS_Q:x}')
    A('v_and_b32 v8, 4, v0', 'v_cmp_eq_u32 vcc, 0, v8')
    A('s_waitcnt vmcnt(0) lgkmcnt(0)')
    A(f's_add_u32 s7, s7, 0x{TAGC:x}')
    if st0: stamp(13)
    for i in range(4): A(f'v_cndmask_b32 v{XB+i}, 0, v{XR+i}, vcc', f'v_cndmask_b32 v{XB+4+i}, v{XR+i}, 0, vcc')
    def mfq(e):
        c = '0' if (e & 1) == 0 else vr(QA + 4 * (e >> 1), 4)
        A(f'v_mfma_f32_16x16x32_bf16 {vr(QA+4*(e>>1),4)}, {vr(T+4*e,4)}, {vr(XB+4*(e&1),4)}, {c}')
    perm_mfma(WQ, T, mfq)
    A('s_mov_b32 exec_lo, 0x00ff00ff', 's_mov_b32 exec_hi, 0xff00ff00', 's_nop 6')
    for a_ in range(4): A(f'ds_write_b128 v17, {vr(QA+4*a_,4)} offset:{128*a_}')
    A('s_mov_b64 exec, 1', 'ds_add_u32 v10, v11', 's_mov_b64 exec, -1')
    A('s_add_u32 s59, s7, s12', 's_mov_b32 s56, 0x07060503', 's_mov_b32 s58, 0x07060502', 's_mov_b32 s62, 0x07060501')
    A('v_mov_b32 v67, s59', f's_mov_b32 s59, {spin}')
    A.lab('L_xspin')
    A('ds_read_b32 v4, v10')
    for w in range(2): A(f'ds_read_b128 {vr(T+4*w,4)}, v18 offset:{1024*w}')
    A('s_waitcnt lgkmcnt(2)')
    A('v_readfirstlane_b32 s53, v4', 's_cmp_eq_u32 s53, 4', 's_cbranch_scc1 L_xall')
    A('s_sub_u32 s59, s59, 1', 's_cbranch_scc0 L_xspin')
    A.lab('L_xall')
    A.c("add the partials of batch cw and publish them; the tag also carries the XCD number")
    A('s_waitcnt lgkmcnt(0)')
    for i in range(4): A(f'v_add_f32 v{T+i}, v{T+i}, v{T+4+i}')
    swapadd32(T, T + 4); swapadd16(T, T + 4)
    A(f'v_perm_b32 v64, v{T}, v{T+3}, s56', f'v_perm_b32 v65, v{T+1}, v{T+3}, s58', f'v_perm_b32 v66, v{T+2}, v{T+3}, s62')
    A('s_mov_b64 exec, 0xffff')
    if qloc:
        A.c('on the XCD that round-robin placement gives the team the shared L2 carries it; anywhere else it is written through')
        A('s_cmp_eq_u32 s12, s4', 's_cbranch_scc1 L_ql')
    A('buffer_store_dwordx4 v[64:67], v14, s[20:23], s57 offen sc1')
    if qloc:
        A('s_branch L_qd')
        A.lab('L_ql'); A('buffer_store_dwordx4 v[64:67], v14, s[20:23], s57 offen'); A.lab('L_qd')
    A('s_mov_b64 exec, -1')
    A('v_lshl_add_u32 v8, v1, 2, v16', 's_lshl_b32 s57, s6, 10', f's_add_u32 s57, s57, {PX}')
    A('v_lshlrev_b32 v8, 4, v8', 'v_add_u32 v8, s57, v8', f'v_mov_b32 v9, {ZL}')
    versions(20, 8, 9)
    A('s_lshl_b32 s59, s6, 4', f's_add_u32 s59, s59, {ML}', 'v_mov_b32 v13, s59')
    A('s_lshl_b32 s57, s63, 11', 's_lshl_b32 s59, s6, 9', 's_add_u32 s57, s57, s59', f's_add_u32 s57, s57, 0x{WS_O:x}')
    A(f'v_mov_b32 v2, {CNT+8}', 'v_mov_b32 v3, 1', 'v_mov_b32 v9, s7', 'v_mov_b32 v11, s7')
    if vprio: A('s_setprio 0')
    A('s_barrier')
    for n in range(32):
        if n % 4 == 0: A(f's_lshr_b32 s56, s96, {ISH}', 's_add_u32 s96, s96, s97')
        A(f'buffer_load_dwordx4 {vr(V0+4*n,4)}, v15, s[8:11], s56 offen offset:{(n%4)*1024}{P}')
    stamp(14)
    A('s_barrier')
    A('ds_read_b128 v[4:7], v13', 'ds_read_b32 v8, v10 offset:4')
    for G_ in range(4):
        for e in range(4): A(f'ds_read_b128 {vr(PB+16*G_+4*e,4)}, v{20+e} offset:{256*G_}')
        if G_ == 1: A('s_waitcnt lgkmcnt(0)')
    A('v_readfirstlane_b32 s13, v8')
    A('v_max3_f32 v8, v4, v5, v6', 'v_max_f32 v8, v8, v7')
    for w in range(4): A(f'v_sub_f32 v{4+w}, v{4+w}, v8')
    for w in range(4): A(f'v_exp_f32 v{4+w}, v{4+w}')
    A('s_lshr_b32 s13, s13, 8')
    for G_ in range(4):
        if G_ == 2: A(f's_waitcnt vmcnt({8*(3-G_)}) lgkmcnt(0)')
        elif trim and G_ == 3: A('s_nop 4')
        else: A(f's_waitcnt vmcnt({8*(3-G_)})')
        if G_ == 3 and not trim: stamp(6)
        def mf(e):
            idx = e >> 2
            c = '0' if (G_ == 0 and (e & 3) == 0) else vr(ACC + 4 * idx, 4)
            A(f'v_mfma_f32_16x16x32_bf16 {vr(ACC+4*idx,4)}, {vr(T+4*e,4)}, {vr(PB+16*G_+4*(e&3),4)}, {c}')
        if trim and G_ == 3:
            src = V0 + 96
            for d in range(4):
                A(f's_waitcnt vmcnt({6-2*d})')
                if d == 3: stamp(6)
                for dp in range(4):
                    A(f'v_perm_b32 v{T+8*dp+d}, v{src+4*(2*d+1)+dp}, v{src+8*d+dp}, {SLO}', f'v_perm_b32 v{T+8*dp+4+d}, v{src+4*(2*d+1)+dp}, v{src+8*d+dp}, {SHI}')
            for e in (0, 4, 1, 5, 2, 6, 3, 7): mf(e)
        else:
            perm_mfma(V0 + 32 * G_, T, mf)
    if not st0: stamp(12)
    A(f's_mov_b32 s59, {spin}', 's_nop 5')
    A(f'ds_write_b128 v19, {vr(ACC,4)}', f'ds_write_b128 v19, {vr(ACC+4,4)} offset:1024')
    A('s_mov_b64 exec, 1', 'ds_add_u32 v2, v3', 's_mov_b64 exec, -1')
    A.lab('L_ospin')
    A('ds_read_b32 v3, v2')
    for w in range(4): A(f'ds_read_b128 v[{64+4*w}:{67+4*w}], v12 offset:{2048*w}')
    A('s_waitcnt lgkmcnt(4)')
    A('v_readfirstlane_b32 s56, v3', 's_cmp_eq_u32 s56, 4', 's_cbranch_scc1 L_oall')
    A('s_sub_u32 s59, s59, 1', 's_cbranch_scc0 L_ospin')
    A.lab('L_oall')
    if not st0: stamp(13)
    A('s_waitcnt lgkmcnt(3)')
    if trim:
        for r in range(2): A(f'v_pk_mul_f32 v[{24+2*r}:{25+2*r}], v[{64+2*r}:{65+2*r}], v[4:5] op_sel_hi:[1,0]')
        for w in range(1, 4):
            A(f's_waitcnt lgkmcnt({3-w})')
            o = w & 1
            for r in range(2): A(f'v_pk_fma_f32 v[{24+2*r}:{25+2*r}], v[{64+4*w+2*r}:{65+4*w+2*r}], v[{4+(w&2)}:{5+(w&2)}], v[{24+2*r}:{25+2*r}] op_sel:[0,{o},0] op_sel_hi:[1,{o},1]')
    else:
        for r in range(4): A(f'v_mul_f32 v{24+r}, v4, v{64+r}')
        for w in range(1, 4):
            A(f's_waitcnt lgkmcnt({3-w})')
            for r in range(4): A(f'v_fmac_f32 v{24+r}, v{4+w}, v{64+4*w+r}')
    A('v_cvt_pk_bf16_f32 v8, v24, v25', 'v_cvt_pk_bf16_f32 v10, v26, v27')
    A('s_mov_b32 exec_hi, 0')
    if cut != 2: team_store('buffer_store_dwordx4 v[8:11], v14, s[20:23], s57 offen')
    if stamps:
        A('s_mov_b32 exec_hi, -1')
        stamp(7)
        A(f's_cmp_lg_u32 s6, {vw}', 's_cbranch_scc1 L_end')
        dump_stamps([6, 7, 12, 13, 14])
    A('s_endpgm')

    A.lab('L_end')
    A('s_endpgm')
    A.lab('L_code_end')
    out += A.L
    out += ['.section .rodata,"a"', '.p2align 6', f'.amdhsa_kernel {KN}_kernel',
            '  .amdhsa_next_free_vgpr 256', '  .amdhsa_next_free_sgpr 102', '  .amdhsa_accum_offset 256',
            '  .amdhsa_group_segment_fixed_size 0', '  .amdhsa_kernarg_size 112', '  .amdhsa_user_sgpr_count 2',
            '  .amdhsa_user_sgpr_kernarg_segment_ptr 1', '  .amdhsa_system_sgpr_workgroup_id_x 1', '.end_amdhsa_kernel']
    return '\n'.join(out) + '\n'

if __name__ == '__main__':
    ap = argparse.ArgumentParser()
    ap.add_argument('-o', default='k.s')
    ap.add_argument('--set', action='append', default=[])
    a = ap.parse_args()
    kw = {}
    for s in a.set:
        k, v = s.split('=')
        try: v = int(v)
        except ValueError: pass
        kw[k] = v
    open(a.o, 'w').write(gen(**kw))
```

```python
import sys, argparse
KN = 'gated_mix__sliding_block_cached__sliding_block_cached__decode'
HEADER = open('cdna_kernels/' + KN + '.s.ref').read().split('; Override launch')[0]

WS_EPOCH = 0x0
WS_ML = 0x1000
WS_O = 0x40000
WS_P = 0xC0000
WS_Q = 0x140000
WS_BYTES = 285221888
STAMP_OFF = 64 << 20
TAGC = 0x9E3779B1
KL = 0
QL = 131072
ZL = QL + 1024
PX = ZL + 1024
ML = PX + 4096
LL = ML + 64
CNT = LL + 64
GL = CNT + 64
OX = GL + 64
OL = OX + 1024
LDS_BYTES = OL + 8192
LOG2E = 0x3FB8AA3B
SCALE = 0x3DB504F3

class G:
    def __init__(s): s.L = []
    def __call__(s, *ts):
        for t in ts: s.L.append('  ' + t)
    def lab(s, t): s.L.append(t + ':')
    def c(s, t): s.L.append('  ; ' + t)

def vr(a, n=1):
    return f'v{a}' if n == 1 else f'v[{a}:{a+n-1}]'

def gen(stamps=False, pol='nt', wpol='nt', spin=200000, prefetch=0, sleep=0, touch=1, kprio=1, vprio=3,
        gran=4, rotmul=4, ackfirst=1, local=1, echo=-1, sleep2=-1, echog=-1, pre=0, mask1=1, h2=1, stag=6, qplain=0, st0=0, kb0=0, pat=1, rot=0, qloc=1, xdbg=0, trim=1, pd=3, mlp=0, qd=0, vw=0, bvst=0, ost='', ppl='sc1', pst='sc1', pl=1, cut=0, skip=0, esh=0, b0st=0, kthr=6, vthr=8, kgrp=2, kx=0, qperm=0, b0w=-1, xq=0, qv=0, nost=0, qf='sc1_nt', mf='sc1_nt', of='sc1_nt', pr='nt', prq=0, prm=0, pro=-1, prp=0, eneg=-1, ex=-1, lv='7.8-12.12', wo_=0, ws_=1, orc=''):
    if sleep2 < 0: sleep2 = sleep
    A = G()
    P = (' ' + pol) if pol else ''
    WP = (' ' + wpol) if wpol else ''
    PR = (' ' + pr) if pr != 'p' else ''
    out = [HEADER.rstrip('\n'),
           '; Override launch geometry by editing the next line (default: block=256,',
           '; grid=ceil(out_elems/256), lds=0). Harness parses it; keep it on one line.',
           f'; @launch grid=(256,1,1) block=(512,1,1) lds={LDS_BYTES}',
           '.amdgcn_target "amdgcn-amd-amdhsa--gfx950"', '.text', f'.globl {KN}_kernel', '.p2align 8',
           f'.type {KN}_kernel,@function', f'{KN}_kernel:']
    SLO, SHI = 's60', 's61'
    def stamp(i):
        if stamps or (echo >= 0 and i in (0, echo, eneg)): A(f's_memrealtime s[{64+2*i}:{65+2*i}]')
    def allred(op, r, t, quad=False):
        if quad:
            A('s_nop 1', f'{op}_dpp v{r}, v{r}, v{r} quad_perm:[1,0,3,2] row_mask:0xf bank_mask:0xf')
            A('s_nop 1', f'{op}_dpp v{r}, v{r}, v{r} quad_perm:[2,3,0,1] row_mask:0xf bank_mask:0xf')
        A('s_nop 1', f'{op}_dpp v{r}, v{r}, v{r} row_ror:4 row_mask:0xf bank_mask:0xf')
        A('s_nop 1', f'{op}_dpp v{r}, v{r}, v{r} row_ror:8 row_mask:0xf bank_mask:0xf')
        A(f'v_mov_b32 v{t}, v{r}', 's_nop 1', f'v_permlane16_swap_b32 v{r}, v{t}', 's_nop 1', f'{op} v{r}, v{r}, v{t}')
        A(f'v_mov_b32 v{t}, v{r}', 's_nop 1', f'v_permlane32_swap_b32 v{r}, v{t}', 's_nop 1', f'{op} v{r}, v{r}, v{t}')
    def perm_mfma(src, T, mf):
        for dp in range(4):
            for d in range(4):
                A(f'v_perm_b32 v{T+4*(2*dp)+d}, v{src+4*(2*d+1)+dp}, v{src+4*(2*d)+dp}, {SLO}')
            if dp > 0 and mf: mf(2 * dp - 1)
            for d in range(4):
                A(f'v_perm_b32 v{T+4*(2*dp+1)+d}, v{src+4*(2*d+1)+dp}, v{src+4*(2*d)+dp}, {SHI}')
            if mf: mf(2 * dp)
        if mf:
            A('s_nop 1'); mf(7)
    def tagcheck(regs):
        A(f'v_xor_b32 v6, s7, v{regs[0]+1}', f'v_xor_b32 v7, s7, v{regs[0]+3}')
        for r in regs[1:]:
            A(f'v_bitop3_b32 v6, v{r+1}, s7, v6 bitop3:0xbe', f'v_bitop3_b32 v7, v{r+3}, s7, v7 bitop3:0xbe')
        A('v_or_b32 v6, v6, v7', 'v_cmp_ne_u32 vcc, 0, v6')
    def versions(dst, good, bad):
        for e in range(4):
            A(f'v_cmp_eq_u32 vcc, {e}, v5', 's_nop 1', f'v_cndmask_b32 v{dst+e}, v{bad}, v{good}, vcc')
    def unpack(dst, a, b):
        A(f'v_lshlrev_b32 v{dst}, 16, v{a}', f'v_and_b32 v{dst+1}, 0xffff0000, v{a}', f'v_lshlrev_b32 v{dst+2}, 16, v{b}', f'v_and_b32 v{dst+3}, 0xffff0000, v{b}')
    def swapadd32(r, t):
        for i in range(4): A(f'v_mov_b32 v{t+i}, v{r+i}')
        A('s_nop 0')
        for i in range(4): A(f'v_permlane32_swap_b32 v{r+i}, v{t+i}')
        A('s_nop 0')
        for i in range(4): A(f'v_add_f32 v{r+i}, v{r+i}, v{t+i}')
    def swapadd16(r, t):
        for i in range(4): A(f'v_mov_b32 v{t+i}, v{r+i}')
        A('s_nop 0')
        for i in range(4): A(f'v_permlane16_swap_b32 v{r+i}, v{t+i}')
        A('s_nop 0')
        for i in range(4): A(f'v_add_f32 v{r+i}, v{r+i}, v{t+i}')
    nteam = [0]
    def team_store(txt):
        if not local:
            A(txt + ' sc1'); return
        n = nteam[0]; nteam[0] += 1
        A('s_cmp_eq_u32 s13, 0', f's_cbranch_scc1 L_tl{n}', txt + ' sc1', f's_branch L_td{n}')
        A.lab(f'L_tl{n}'); A(txt); A.lab(f'L_td{n}')
    def dump_stamps(idx):
        A('s_waitcnt lgkmcnt(0)')
        A('s_lshl_b32 s59, s2, 7', f's_add_u32 s59, s59, 0x{STAMP_OFF:x}', 'v_mov_b32 v7, 0')
        for i in idx:
            A(f'v_mov_b32 v8, s{64+2*i}', f'v_mov_b32 v9, s{65+2*i}')
            A(f'buffer_store_dwordx2 v[8:9], v7, s[20:23], s59 offen offset:{8*i}', 's_nop 1')

    A('s_cmpk_ge_u32 s2, 0x100', 's_cbranch_scc1 L_end')
    stamp(0)
    A('s_and_b32 s52, s2, 8', 's_mul_i32 s52, s52, 5')
    A('s_load_dwordx8 s[32:39], s[0:1], s52 offset:8')
    A('s_load_dwordx2 s[40:41], s[0:1], 0')
    A('s_load_dwordx8 s[44:51], s[0:1], 80')
    A('v_lshrrev_b32 v1, 6, v0', 'v_and_b32 v0, 63, v0', 'v_readfirstlane_b32 s6, v1', 'v_lshlrev_b32 v14, 4, v0')
    A('s_bitcmp1_b32 s6, 2', 's_cbranch_scc1 L_vwave')
    ISH = 13 if pat else 15
    def kvbase():
        if kx: A('s_lshr_b32 s58, s2, 6', 's_lshr_b32 s4, s52, 5', 's_xor_b32 s4, s4, s2', 's_and_b32 s4, s4, 7', 's_lshl3_add_u32 s54, s58, s4', 's_lshr_b32 s5, s2, 4')
        else: A('s_lshr_b32 s58, s2, 6', 's_and_b32 s4, s2, 7', 's_lshl3_add_u32 s54, s58, s4', 's_lshr_b32 s5, s2, 4')
        if pat:
            A('s_and_b32 s59, s5, 3', 's_lshl2_add_u32 s54, s54, 3', 's_lshl_b32 s54, s54, 7', 's_lshl2_add_u32 s59, s59, s6', 's_add_u32 s54, s54, s59', 's_lshl_b32 s54, s54, 12')
        else:
            A('s_or_b32 s59, s5, 12', 's_lshl4_add_u32 s54, s54, s59', 's_lshl_b32 s54, s54, 5', 's_add_u32 s54, s54, s6', 's_lshl_b32 s54, s54, 12')
        A('s_lshl_b32 s96, s2, 29' if rot else 's_mov_b32 s96, 0', 's_lshl_b32 s97, 1, 29')
        A('s_lshl_b32 s10, 1, 26', 's_mov_b32 s11, 0x20000')
    LV = [tuple(int(z) for z in p.split('.')) for p in lv.split('-')] if lv else []
    def level():
        A('s_getreg_b32 s98, hwreg(HW_REG_XCC_ID, 0, 1)', f's_mul_i32 s98, s98, {wo_}', 's_lshr_b32 s59, s5, 1', 's_cmp_eq_u32 s59, 3', f's_cselect_b32 s59, {ws_}, 0')
        A('s_add_u32 s98, s98, s59', f's_min_u32 s98, s98, {len(LV) - 1}')
    kvbase()
    if LV: level()
    A('v_and_b32 v3, 48, v0', 'v_lshlrev_b32 v3, 2, v3', 'v_xor_b32 v10, v14, v3', 'v_add_u32 v10, s54, v10')
    for n in range(1, 4): A(f'v_xor_b32 v{10+n}, {16*n}, v10')
    A('s_lshl_b32 m0, s6, 15', 's_mov_b32 s59, 7')
    if kprio: A(f's_setprio {kprio}')
    A('s_waitcnt lgkmcnt(0)', 's_mov_b64 s[8:9], s[32:33]')
    if st0: stamp(5)
    def kloop(tag, thr, grp):
        A.lab(f'L_kloop{tag}')
        A(f's_lshr_b32 s56, s96, {ISH}')
        if kb0 > 0:
            A(f's_cmp_lg_u32 s59, {7-kb0}', f's_cbranch_scc1 L_knob{tag}', 's_barrier')
            A.lab(f'L_knob{tag}')
        for n in range(4):
            if thr and (not grp or n % grp == 0): A(f's_waitcnt vmcnt({thr - max(grp, 1)})')
            A(f'buffer_load_dwordx4 v{10+n}, s[8:11], s56 offen offset:{n*1024}{P} lds')
        A('s_add_u32 s96, s96, s97', 's_addk_i32 m0, 0x1000', 's_sub_u32 s59, s59, 1', f's_cbranch_scc0 L_kloop{tag}')
    if kb0 == 0:
        A('s_barrier')
        if b0st: stamp(5)
    if LV:
        for i in range(1, len(LV)): A(f's_cmp_eq_u32 s98, {i}', f's_cbranch_scc1 L_kloop{i}')
        for i, (kt, vt) in enumerate(LV):
            kloop(i, kt, 0)
            if i + 1 < len(LV): A('s_branch L_entry_end')
    else: kloop('', kthr, kgrp)
    A.lab('L_entry_end')
    def common():
        A('s_and_b32 s3, s2, 15', 's_and_b32 s59, s5, 3', 's_and_b32 s42, s2, 7')
        A(f's_mov_b32 {SLO}, 0x05040100', f's_mov_b32 {SHI}, 0x07060302')
        A('s_mov_b32 s18, 0x400000', 's_mov_b32 s19, 0x20000')
        A(f's_mov_b32 s22, {WS_BYTES}', 's_mov_b32 s23, 0x20000')
        A('s_mov_b32 s26, 4096', 's_mov_b32 s27, 0x20000')
        A('s_lshl_b32 s55, s6, 15')
        A('s_lshl2_add_u32 s63, s59, s58', 's_lshl4_add_u32 s63, s3, s63')
        A('s_getreg_b32 s12, hwreg(HW_REG_XCC_ID, 0, 3)')
        A('v_lshrrev_b32 v1, 4, v0')
        A('v_and_b32 v2, 15, v0')
        A('v_bfe_u32 v5, v0, 2, 2')
        A('v_and_b32 v16, 3, v0')

    R1 = 64; PB = 48; ACC = 40; WO = 128; WT = 160
    stamp(1)
    A('s_barrier')
    A('s_load_dword s7, s[50:51], 0x%x' % WS_EPOCH)
    common()
    A('s_mov_b64 s[20:21], s[50:51]')
    A('s_lshl2_add_u32 s57, s3, s58', 's_lshl2_add_u32 s57, s57, s6', 's_lshl_b32 s57, s57, 10', f's_add_u32 s57, s57, 0x{WS_Q:x}')
    QP = 64
    def pollq(f=' sc1'): A(f'buffer_load_dwordx4 {vr(QP,4)}, v14, s[20:23], s57 offen{f}')
    if qv in (0, 5): pollq(' ' + qf.replace('_', ' '))
    if qv == 2: A('s_mov_b64 s[24:25], s[40:41]', 's_lshl_b32 s56, s6, 10', f'buffer_load_dwordx4 {vr(QP,4)}, v14, s[24:27], s56 offen sc1')
    if qv == 3: A('s_add_u32 s56, s57, 0x200000', f'buffer_load_dwordx4 {vr(QP,4)}, v14, s[20:23], s56 offen nt')
    if qv == 4: A('s_add_u32 s56, s57, 0x40000', f'buffer_load_dwordx4 {vr(QP,4)}, v14, s[20:23], s56 offen nt')
    for e in range(xq): A(f's_xor_b32 s56, s57, {4096 * (e + 1)}', f'buffer_load_dwordx4 v[{232}:{235}], v14, s[20:23], s56 offen' + ('' if qplain else ' sc1'))
    A('s_mov_b32 s24, s46', 's_mov_b32 s25, s47', 's_mov_b32 s16, s38', 's_mov_b32 s17, s39')
    NT = 0
    if touch == 1:
        A.c('first touch of the output page')
        A('s_mov_b64 exec, 1', 'buffer_load_dword v237, v14, s[24:27], 0 offen', 's_mov_b64 exec, -1'); NT = 1
    if prm:
        A('s_lshl_b32 s56, s3, 10', f's_add_u32 s56, s56, 0x{WS_ML:x}', 'v_lshlrev_b32 v7, 7, v0', 's_mov_b64 exec, 0xff', f'buffer_load_dword v236, v7, s[20:23], s56 offen{PR}', 's_mov_b64 exec, -1')
    A('v_lshlrev_b32 v15, 10, v1', 'v_lshl_add_u32 v15, v2, 4, v15')
    A('v_lshl_add_u32 v4, v16, 2, v5', 'v_lshlrev_b32 v4, 8, v4', 'v_add_u32 v4, s55, v4')
    A('v_xor_b32 v6, v1, v2', 'v_lshlrev_b32 v6, 4, v6')
    for t in range(4): A(f'v_xor_b32 v7, {64*t}, v6', f'v_add_u32 v{20+t}, v4, v7')
    A('v_lshlrev_b32 v7, 8, v16', 'v_lshl_add_u32 v7, v1, 4, v7', f'v_add_u32 v7, {QL}, v7', f'v_mov_b32 v8, {ZL}')
    versions(32, 7, 8)
    A('s_lshl_b32 s59, s6, 8', f's_add_u32 s59, s59, {QL}')
    A('v_lshrrev_b32 v9, 5, v0', 'v_lshlrev_b32 v9, 7, v9', 'v_bfe_u32 v8, v0, 3, 1', 'v_lshl_add_u32 v9, v8, 6, v9')
    A('v_and_b32 v8, 7, v0', 'v_lshl_add_u32 v9, v8, 1, v9', 'v_add_u32 v9, s59, v9')
    A('v_lshlrev_b32 v18, 4, v16', 's_lshl_b32 s59, s6, 2', f's_add_u32 s59, s59, {ML}', 'v_add_u32 v18, s59, v18')
    A('v_lshl_add_u32 v17, v1, 2, v16', 'v_lshlrev_b32 v17, 4, v17')
    A('v_lshrrev_b32 v8, 1, v5', 'v_lshl_add_u32 v17, v8, 8, v17', 'v_and_b32 v8, 1, v5', 'v_lshl_add_u32 v17, v8, 3, v17')
    A('s_lshl_b32 s59, s6, 10', f's_add_u32 s59, s59, {PX}', 'v_add_u32 v17, s59, v17')
    A('s_waitcnt lgkmcnt(0)')
    A(f's_add_u32 s7, s7, 0x{TAGC:x}')
    A(f's_mov_b32 s59, {spin}', 's_add_u32 s62, s7, s12')
    if qv: A('s_waitcnt vmcnt(0)', 's_mov_b32 s13, 0', 's_branch L_noml')
    A.lab('L_pollq')
    A('s_waitcnt vmcnt(0)')
    A(f'v_subrev_u32 v6, s7, v{QP+3}', 'v_cmp_lt_u32 vcc, 7, v6')
    A('s_cbranch_vccz L_gotq', 's_sub_u32 s59, s59, 1', 's_cbranch_scc1 L_gotq')
    pollq()
    A('s_branch L_pollq')
    A.lab('L_gotq')
    stamp(3)
    A(f'v_cmp_ne_u32 vcc, s62, v{QP+3}')
    A('s_mov_b32 s56, 0x04000c0c', 's_mov_b32 s57, 0x0706000c')
    A(f'v_perm_b32 v27, v{QP}, v{QP+1}, s56', f'v_perm_b32 v27, v27, v{QP+2}, s57')
    A('s_cmp_eq_u64 vcc, 0', 's_cselect_b32 s59, 1, 0x101')
    for i in range(3): A(f'v_mov_b32 v{24+i}, v{QP+i}')
    swapadd16(24, 28)
    A('v_cvt_pk_bf16_f32 v24, v24, v25', 'v_cvt_pk_bf16_f32 v25, v26, v27')
    A(f'v_mov_b32 v6, {CNT+4}', 'v_mov_b32 v7, s59')
    A('ds_write_b16 v9, v24', 'ds_write_b16_d16_hi v9, v24 offset:16', 'ds_write_b16 v9, v25 offset:32', 'ds_write_b16_d16_hi v9, v25 offset:48')
    A('s_mov_b64 exec, 1', 'ds_add_u32 v6, v7', 's_mov_b64 exec, -1')
    Qb = [R1, R1 + 16]; Kb = [R1 + 32, R1 + 48]
    def rdq(x):
        for t in range(4): A(f'ds_read_b128 {vr(Qb[x&1]+4*t,4)}, v{32+x} offset:{64*t}')
    def rdk(T_, buf):
        for t in range(4): A(f'ds_read_b128 {vr(Kb[buf]+4*t,4)}, v{20+t} offset:{4096*T_}')
    def mm(T_, buf):
        x = T_ & 3; a = T_ >> 2
        for t in range(4):
            c = '0' if (x == 0 and t == 0) else vr(ACC+4*a, 4)
            A(f'v_mfma_f32_16x16x32_bf16 {vr(ACC+4*a,4)}, {vr(Kb[buf]+4*t,4)}, {vr(Qb[x&1]+4*t,4)}, {c}')
    rdk(0, 0); rdk(4, 1)
    A(f's_mov_b32 s59, {spin}', f's_mov_b32 s62, 0x{SCALE:x}', f's_mov_b32 s14, 0x{LOG2E:x}')
    A.lab('L_qspin')
    A('ds_read_b32 v7, v6', 's_waitcnt lgkmcnt(0)', 'v_readfirstlane_b32 s13, v7', 's_and_b32 s56, s13, 255', 's_cmp_eq_u32 s56, 4', 's_cbranch_scc1 L_qall')
    A('s_sub_u32 s59, s59, 1', 's_cbranch_scc0 L_qspin')
    A.lab('L_qall')
    rdq(0)
    A('s_lshr_b32 s13, s13, 8')
    if qloc:
        A('s_cbranch_scc0 L_norep')
        A.c("some member sits on another XCD: write this workgroup's q partials through for it")
        A('s_lshl2_add_u32 s57, s3, s6', 's_lshl4_add_u32 s57, s57, s5', 's_lshl_b32 s57, s57, 8', f's_add_u32 s57, s57, 0x{WS_Q:x}')
        A('s_add_u32 s56, s7, s12', f's_mov_b32 s59, {spin}', 's_mov_b64 exec, 0xffff')
        A.lab('L_rep')
        A('buffer_load_dwordx4 v[24:27], v14, s[20:23], s57 offen sc1', 's_waitcnt vmcnt(0)', 'v_cmp_ne_u32 vcc, s56, v27')
        A('s_cbranch_vccz L_rep2', 's_sub_u32 s59, s59, 1', 's_cbranch_scc0 L_rep')
        A.lab('L_rep2')
        A('buffer_store_dwordx4 v[24:27], v14, s[20:23], s57 offen sc1', 's_mov_b64 exec, -1')
        A.lab('L_norep')
    for x in range(4):
        A('s_waitcnt lgkmcnt(%d)' % (0 if x == 0 else 4))
        mm(x, 0)
        if x < 3:
            rdq(x + 1)
            A('s_waitcnt lgkmcnt(4)')
        else:
            A('s_waitcnt lgkmcnt(0)')
        mm(x + 4, 1)
        if x < 3:
            rdk(x + 1, 0); rdk(x + 5, 1)
    A('s_nop 7')
    S = ACC
    for p in range(4): A(f'v_cvt_pk_bf16_f32 v{28+p}, v{S+2*p}, v{S+2*p+1}')
    for p in range(4): A(f'v_lshlrev_b32 v{S+2*p}, 16, v{28+p}', f'v_and_b32 v{S+2*p+1}, 0xffff0000, v{28+p}')
    for i in range(8): A(f'v_mul_f32 v{S+i}, s62, v{S+i}')
    for p in range(4): A(f'v_cvt_pk_bf16_f32 v{28+p}, v{S+2*p}, v{S+2*p+1}')
    for p in range(4): A(f'v_lshlrev_b32 v{S+2*p}, 16, v{28+p}', f'v_and_b32 v{S+2*p+1}, 0xffff0000, v{28+p}')
    A(f'v_max3_f32 v28, v{S}, v{S+1}, v{S+2}', f'v_max3_f32 v29, v{S+3}, v{S+4}, v{S+5}', f'v_max3_f32 v28, v28, v{S+6}, v{S+7}', 'v_max_f32 v28, v28, v29')
    allred('v_max_f32', 28, 29)
    A('v_mul_f32 v36, s14, v28')
    for i in range(8): A(f'v_fma_f32 v{S+i}, v{S+i}, s14, -v36')
    for i in range(8): A(f'v_exp_f32 v{S+i}, v{S+i}')
    A('ds_write_b32 v18, v36')
    for p in range(4): A(f'v_cvt_pk_bf16_f32 v{32+p}, v{S+2*p}, v{S+2*p+1}')
    A('ds_write_b64 v17, v[32:33]', 'ds_write_b64 v17, v[34:35] offset:512')
    A(f'v_add_f32 v28, v{S}, v{S+1}', f'v_add_f32 v29, v{S+2}, v{S+3}', f'v_add_f32 v30, v{S+4}, v{S+5}', f'v_add_f32 v31, v{S+6}, v{S+7}')
    A('v_add_f32 v28, v28, v29', 'v_add_f32 v30, v30, v31', 'v_add_f32 v28, v28, v30')
    allred('v_add_f32', 28, 29)
    A('ds_write_b32 v18, v28 offset:64')
    A('v_lshlrev_b32 v7, 4, v16', f'v_add_u32 v7, {ML}, v7', f'v_mov_b32 v6, {CNT+12}', 'v_mov_b32 v8, 1')
    A('s_mov_b64 exec, 1', 'ds_add_rtn_u32 v8, v6, v8', 's_mov_b64 exec, -1')
    A('ds_read_b128 v[20:23], v7', 'ds_read_b128 v[24:27], v7 offset:64')
    A('s_add_u32 s15, s7, s12', 'v_mov_b32 v37, s7', 'v_mov_b32 v39, s15')
    A('s_and_b32 s56, s63, 15', 's_lshl_b32 s59, s3, 6', 's_add_u32 s56, s56, s59', 's_lshl_b32 s56, s56, 4', f's_add_u32 s56, s56, 0x{WS_ML:x}', 'v_lshlrev_b32 v7, 8, v0')
    A('s_waitcnt lgkmcnt(0)')
    A('v_readfirstlane_b32 s59, v8', 's_cmp_lg_u32 s59, 3', 's_cbranch_scc1 L_noml')
    A.c('last K wave to finish its softmax publishes (m, l) of this workgroup, lane = head')
    A('v_max3_f32 v36, v20, v21, v22', 'v_max_f32 v36, v36, v23')
    for w in range(4): A(f'v_sub_f32 v{20+w}, v{20+w}, v36')
    for w in range(4): A(f'v_exp_f32 v{20+w}, v{20+w}')
    A('s_nop 0', 'v_mul_f32 v38, v20, v24')
    for w in range(1, 4): A(f'v_fmac_f32 v38, v{20+w}, v{24+w}')
    A('s_mov_b64 exec, 15')
    team_store('buffer_store_dwordx4 v[36:39], v7, s[20:23], s56 offen')
    A('s_mov_b64 exec, -1')
    A.lab('L_noml')
    A('v_lshrrev_b32 v13, 3, v0', 'v_lshlrev_b32 v12, 11, v13', 'v_and_b32 v8, 7, v0', 'v_lshl_add_u32 v12, v8, 4, v12', 'v_lshlrev_b32 v13, 4, v13')
    A('s_lshl_b32 s59, s6, 8', f's_add_u32 s59, s59, {OX}')
    A('v_and_b32 v17, 31, v0', 'v_lshlrev_b32 v17, 3, v17', 'v_add_u32 v17, s59, v17')
    if trim: A('v_lshrrev_b32 v8, 5, v0', 'v_lshl_add_u32 v17, v8, 2, v17')
    A('v_lshlrev_b32 v8, 6, v16', 'v_lshl_add_u32 v8, v1, 4, v8', 'v_add_u32 v8, s59, v8', f'v_mov_b32 v9, {ZL}')
    versions(208, 8, 9)
    A('s_lshl_b32 s59, s6, 11', 'v_add_u32 v19, s59, v14')
    A('s_lshl_b32 s59, s6, 9', 'v_and_b32 v18, 31, v0', 'v_lshlrev_b32 v18, 4, v18', 'v_add_u32 v18, s59, v18')
    A('v_mov_b32 v9, s7', 'v_mov_b32 v11, s7')
    A('s_lshr_b32 s58, s5, 2', 's_and_b32 s59, s5, 3')
    A('s_lshl2_add_u32 s52, s3, s58', 's_lshl_b32 s52, s52, 8', f's_add_u32 s52, s52, 0x{WS_ML:x}')
    A('s_lshl_b32 s50, s3, 15', 's_lshl_b32 s53, s58, 9', 's_add_u32 s50, s50, s53', 's_lshl_b32 s53, s6, 7', 's_add_u32 s50, s50, s53')
    A(f's_add_u32 s50, s50, 0x{WS_O:x}', 's_add_u32 s51, s50, 16384')
    A('s_lshl_b32 s57, s3, 2', 's_add_u32 s57, s57, s58')
    A('s_lshl_b32 s53, s59, 6', 's_add_u32 s53, s53, s57', 's_lshl_b32 s53, s53, 11')
    A('s_lshl_b32 s56, s6, 9', 's_add_u32 s53, s53, s56', f's_add_u32 s53, s53, 0x{WS_P:x}')
    A('s_lshl2_add_u32 s58, s4, s58', 's_lshl_b32 s58, s58, 17', 's_add_u32 s58, s58, s55', 's_lshl_b32 s59, s59, 8', 's_add_u32 s58, s58, s59')
    A('s_and_b32 s56, s2, 7', 's_lshr_b32 s59, s2, 5', 's_lshl_b32 s59, s59, 3', 's_add_u32 s56, s56, s59', 's_lshr_b32 s57, s56, 4')
    A('s_and_b32 s56, s56, 15', 's_lshl_b32 s56, s56, 3', 's_bfe_u32 s59, s2, 0x20003', 's_lshl_b32 s59, s59, 1', 's_add_u32 s56, s56, s59')
    A('s_lshl_b32 s97, s57, 17', 's_lshl_b32 s59, s56, 4', 's_add_u32 s97, s97, s59', f's_add_u32 s97, s97, 0x{WS_P:x}')
    A('s_add_u32 s98, s97, 65536')
    A('v_lshrrev_b32 v212, 1, v0', 'v_lshlrev_b32 v212, 11, v212', 'v_and_b32 v7, 1, v0', 'v_lshl_add_u32 v212, v7, 4, v212')
    A('v_add_u32 v4, s56, v7', 'v_and_b32 v7, 3, v4', 'v_lshlrev_b32 v226, 3, v7', f'v_add_u32 v226, {GL}, v226')
    A('v_lshlrev_b32 v213, 9, v7', 's_lshl_b32 s57, s57, 7', 'v_add_u32 v213, s57, v213')
    A('v_bfe_u32 v7, v4, 4, 2', 'v_lshl_add_u32 v213, v7, 5, v213', 'v_lshrrev_b32 v7, 6, v4', 'v_lshl_add_u32 v213, v7, 2, v213')
    A('v_bfe_u32 v7, v4, 2, 2', 'v_add_u32 v213, v213, v7')
    A('v_bfe_u32 v7, v0, 1, 1', 'v_lshl_add_u32 v213, v7, 4, v213', 'v_and_b32 v7, 1, v1', 'v_lshl_add_u32 v213, v7, 3, v213')
    A('v_lshlrev_b32 v213, 1, v213')
    A('v_and_b32 v7, 2, v0', 'v_cmp_ne_u32 s[100:101], 0, v7')
    if pl:
        A.c('s99: lanes of the line that workgroups of this XCD will read, when the team sits where round-robin placement puts it')
        A('s_and_b32 s56, s12, 3', 's_lshl_b32 s56, s56, 3', 's_lshl_b32 s99, 0xff, s56', 's_lshr_b32 s56, s12, 2', 's_and_b32 s59, s6, 1')
        A('s_xor_b32 s56, s56, s59', 's_xor_b32 s59, s12, s42', 's_or_b32 s56, s56, s59', 's_or_b32 s56, s56, s13', 's_cbranch_scc0 L_ppl0', 's_mov_b32 s99, 0', 's_branch L_ppl')
        A.lab('L_ppl0')
        A.c('put that line into the L2 now, untagged, so that early polls stay inside the L2')
        A('s_mov_b32 exec_hi, 0', 's_mov_b32 exec_lo, s99', 'v_not_b32 v21, v9', 'v_not_b32 v23, v9')
        A(f'buffer_load_dword v236, v14, s[20:23], s53 offen{PR}' if prp else 'buffer_store_dwordx4 v[20:23], v14, s[20:23], s53 offen', 's_mov_b64 exec, -1')
        A.lab('L_ppl')
        A('s_xor_b32 s43, s3, 8', 's_lshl_b32 s43, s43, 10', f's_add_u32 s43, s43, 0x{WS_ML:x}', 'v_lshlrev_b32 v228, 4, v2')
    if touch == 2:
        A('s_cmp_lg_u32 s6, 0', 's_cbranch_scc1 L_nt', 's_mov_b64 exec, 3', 'buffer_load_ushort v237, v213, s[24:27], 0 offen', 's_mov_b64 exec, -1')
        A.lab('L_nt')
    stamp(4)
    A('s_barrier')
    if bvst: stamp(15)
    MLR = 216; FA = 224
    def pollml():
        A(f'buffer_load_dwordx4 v[{MLR}:{MLR+3}], v13, s[20:23], s52 offen ' + mf.replace('_', ' '))
        A(f'buffer_load_dwordx4 v[{MLR+4}:{MLR+7}], v13, s[20:23], s52 offen offset:128 ' + mf.replace('_', ' '))
    def mlfactors():
        A(f'v_max_f32 v6, v{MLR}, v{MLR+4}')
        A('v_mov_b32 v7, v6', 's_nop 1', 'v_permlane32_swap_b32 v6, v7', 's_nop 1', 'v_max_f32 v6, v6, v7')
        A(f'v_sub_f32 v{FA}, v{MLR}, v6', f'v_sub_f32 v{FA+1}, v{MLR+4}, v6', f'v_exp_f32 v{FA}, v{FA}', f'v_exp_f32 v{FA+1}, v{FA+1}', 's_nop 0')
        A(f'v_mul_f32 v6, v{FA}, v{MLR+2}', f'v_fmac_f32 v6, v{FA+1}, v{MLR+6}')
        A('v_mov_b32 v7, v6', 's_nop 1', 'v_permlane32_swap_b32 v6, v7', 's_nop 1', 'v_add_f32 v6, v6, v7')
        A('v_rcp_f32 v6, v6', 's_nop 0', f'v_mul_f32 v{FA}, v{FA}, v6', f'v_mul_f32 v{FA+1}, v{FA+1}, v6')
    def mlcheck():
        A(f'v_xor_b32 v6, s7, v{MLR+1}', f'v_bitop3_b32 v6, v{MLR+5}, s7, v6 bitop3:0xbe', 'v_cmp_ne_u32 vcc, 0, v6')
    def poll1():
        A('buffer_load_dwordx4 v[20:23], v12, s[20:23], s50 offen ' + of.replace('_', ' '), 'buffer_load_dwordx4 v[24:27], v12, s[20:23], s51 offen ' + of.replace('_', ' '))
    if mlp == 0 and cut != 2: pollml()
    for n in range(8):
        ro = 8 * (n & 3) + 4 * (n >> 2)
        A(f's_add_u32 s59, s58, {ro*1024}', f'buffer_load_dwordx4 {vr(WO+4*n,4)}, v15, s[16:19], s59 offen{WP}')
    if pd < 0: poll1()
    if not st0 and not b0st: stamp(5)
    if mlp == 0:
        A(f's_waitcnt vmcnt({10 if pd < 0 else 8})')
        mlcheck()
        A('s_mov_b32 s62, 0', 's_cbranch_vccnz L_mllate')
        mlfactors()
        A('s_mov_b32 s62, 1')
        A.lab('L_mllate')
    else: A('s_mov_b32 s62, 0')
    for d in range(4):
        A(f's_waitcnt vmcnt({(8 if d > pd else 6)-2*d})')
        if d == pd and cut not in (1, 2):
            poll1()
            if pl: A('buffer_load_dword v227, v228, s[20:23], s43 offen offset:12 sc1')
        for dp in range(4):
            A(f'v_perm_b32 v{WT+8*dp+d}, v{WO+4*(2*d+1)+dp}, v{WO+8*d+dp}, {SLO}', f'v_perm_b32 v{WT+8*dp+4+d}, v{WO+4*(2*d+1)+dp}, v{WO+8*d+dp}, {SHI}')
    stamp(2)
    if cut in (1, 2):
        A('s_waitcnt vmcnt(0)', 's_cmp_lg_u32 s6, 0', 's_cbranch_scc1 L_end', 's_branch L_fin')
    A(f's_mov_b32 s59, {spin}', 's_cmp_eq_u32 s62, 1', 's_cbranch_scc1 L_poll1')
    A.lab('L_pollml')
    pollml()
    A('s_waitcnt vmcnt(0)')
    mlcheck()
    A('s_cbranch_vccz L_gotml', 's_sub_u32 s59, s59, 1', 's_cbranch_scc0 L_pollml')
    A.lab('L_gotml')
    mlfactors()
    A.lab('L_poll1')
    A('s_waitcnt vmcnt(0)')
    tagcheck([20, 24])
    A('s_cbranch_vccz L_got1', 's_sub_u32 s59, s59, 1', 's_cbranch_scc1 L_got1')
    if sleep: A(f's_sleep {sleep}')
    if mask1: A('s_mov_b64 exec, vcc')
    poll1()
    A('s_branch L_poll1')
    A.lab('L_got1')
    if mask1: A('s_mov_b64 exec, -1')
    stamp(8)
    unpack(28, 20, 22); unpack(36, 24, 26)
    if trim:
        for r in range(2): A(f'v_pk_mul_f32 v[{28+2*r}:{29+2*r}], v[{28+2*r}:{29+2*r}], v[{FA}:{FA+1}] op_sel_hi:[1,0]')
        for r in range(2): A(f'v_pk_fma_f32 v[{28+2*r}:{29+2*r}], v[{36+2*r}:{37+2*r}], v[{FA}:{FA+1}], v[{28+2*r}:{29+2*r}] op_sel:[0,1,0] op_sel_hi:[1,1,1]')
        A('s_nop 1', 'v_permlane32_swap_b32 v28, v30', 'v_permlane32_swap_b32 v29, v31', 's_nop 0')
        A('v_pk_add_f32 v[28:29], v[28:29], v[30:31]')
        A('v_cvt_pk_bf16_f32 v20, v28, v29', 'ds_write_b32 v17, v20')
    else:
        for r in range(4): A(f'v_mul_f32 v{28+r}, v{FA}, v{28+r}')
        for r in range(4): A(f'v_fmac_f32 v{28+r}, v{FA+1}, v{36+r}')
        swapadd32(28, 36)
        A('v_cvt_pk_bf16_f32 v20, v28, v29', 'v_cvt_pk_bf16_f32 v21, v30, v31')
        A('ds_write_b64 v17, v[20:21]')
    for e in range(4): A(f'ds_read_b128 {vr(PB+4*e,4)}, v{208+e}')
    for e in range(4):
        A(f's_waitcnt lgkmcnt({3-e})')
        for idx in range(2):
            c = '0' if e == 0 else vr(ACC + 4 * idx, 4)
            A(f'v_mfma_f32_16x16x32_bf16 {vr(ACC+4*idx,4)}, {vr(WT+4*(4*idx+e),4)}, {vr(PB+4*e,4)}, {c}')
    if pl: A('v_cmp_ne_u32 vcc, s15, v227', 's_nop 3', 's_cmp_eq_u64 vcc, 0', 's_cselect_b32 s99, s99, 0')
    else: A('s_nop 6')
    A(f'ds_write_b128 v19, {vr(ACC,4)}', f'ds_write_b128 v19, {vr(ACC+4,4)} offset:1024')
    A('s_waitcnt lgkmcnt(0)')
    if not st0 and not bvst: stamp(15)
    A('s_barrier')
    for w in range(4): A(f'ds_read_b128 {vr(20+4*w,4)}, v18 offset:{2048*w}')
    def pkadd(d, a):
        for i in range(2): A(f'v_pk_add_f32 v[{d+2*i}:{d+2*i+1}], v[{d+2*i}:{d+2*i+1}], v[{a+2*i}:{a+2*i+1}]')
    A('s_waitcnt lgkmcnt(2)'); pkadd(20, 24)
    A('s_waitcnt lgkmcnt(1)'); pkadd(20, 28)
    A('s_waitcnt lgkmcnt(0)'); pkadd(20, 32)
    A('v_cvt_pk_bf16_f32 v8, v20, v21', 'v_cvt_pk_bf16_f32 v10, v22, v23')
    if pl:
        A('s_mov_b32 exec_hi, 0', 's_not_b32 exec_lo, s99', 'buffer_store_dwordx4 v[8:11], v14, s[20:23], s53 offen sc1')
        A('s_cmp_eq_u32 s99, 0', 's_cbranch_scc1 L_pnl', 's_mov_b32 exec_lo, s99', 'buffer_store_dwordx4 v[8:11], v14, s[20:23], s53 offen')
        A.lab('L_pnl')
        A('s_mov_b64 exec, -1')
    else:
        A('s_mov_b32 exec_hi, 0', 'buffer_store_dwordx4 v[8:11], v14, s[20:23], s53 offen ' + pst.replace('_', ' '), 's_mov_b32 exec_hi, -1')
    stamp(9)
    if cut == 3:
        A('s_waitcnt vmcnt(0)', 's_cmp_lg_u32 s6, 0', 's_cbranch_scc1 L_end', 's_branch L_fin')
    A('s_cmp_lg_u32 s6, 0', 's_cbranch_scc1 L_gate')
    if ackfirst == 1: A('s_waitcnt vmcnt(0)')
    A(f's_mov_b32 s59, {spin}')
    def poll2(r):
        for k in range(2): A(f'buffer_load_dwordx4 v[{r+4*k}:{r+3+4*k}], v212, s[20:23], s{97+k} offen ' + ppl.replace('_', ' '))
    if ackfirst == 2:
        A('s_lshl_b32 s56, s42, 3', 's_lshl_b64 s[32:33], 0xff, s56', 's_not_b64 exec, s[32:33]')
        poll2(20)
        A('s_waitcnt vmcnt(0)')
        tagcheck([20, 24])
        A('s_or_b64 exec, vcc, s[32:33]')
    if h2 < 2:
        A.lab('L_poll2')
        poll2(20)
        A('s_waitcnt vmcnt(0)')
        tagcheck([20, 24])
        A('s_cbranch_vccz L_got2', 's_sub_u32 s59, s59, 1', 's_cbranch_scc1 L_got2')
        if sleep2: A(f's_sleep {sleep2}')
        if h2 == 1: A('s_mov_b64 exec, vcc')
        A('s_branch L_poll2')
    else:
        poll2(44)
        A('s_mov_b64 s[32:33], -1', 's_mov_b64 s[34:35], -1', 's_mov_b64 s[36:37], -1', 's_mov_b64 s[38:39], 0')
        if stag: A(f's_sleep {stag}')
        poll2(52)
        A.lab('L_poll2')
        A('s_mov_b64 exec, s[32:33]', 's_waitcnt vmcnt(2)')
        tagcheck([44, 48])
        A('s_andn2_b64 s[40:41], exec, vcc', 's_or_b64 s[38:39], s[38:39], s[40:41]', 's_andn2_b64 s[36:37], s[36:37], s[40:41]', 's_cbranch_scc0 L_got2')
        A('s_mov_b64 exec, s[36:37]', 's_mov_b64 s[32:33], s[36:37]')
        poll2(44)
        A('s_mov_b64 exec, s[34:35]', 's_waitcnt vmcnt(2)')
        tagcheck([52, 56])
        A('s_andn2_b64 s[40:41], exec, vcc', 's_andn2_b64 s[36:37], s[36:37], s[40:41]', 's_cbranch_scc0 L_got2')
        A('s_mov_b64 exec, s[36:37]', 's_mov_b64 s[34:35], s[36:37]')
        poll2(52)
        A('s_sub_u32 s59, s59, 1', 's_cbranch_scc0 L_poll2')
    A.lab('L_got2')
    if h2: A('s_mov_b64 exec, -1')
    if h2 == 2:
        for i in range(4): A(f'v_cndmask_b32 v{20+2*i}, v{52+2*i}, v{44+2*i}, s[38:39]')
    stamp(10)
    A('ds_read_b64 v[214:215], v226', f's_mov_b32 s59, {spin}')
    unpack(28, 20, 22); unpack(32, 24, 26)
    A('s_nop 0')
    for i in range(4): A(f'v_permlane32_swap_b32 v{28+i}, v{32+i}')
    A('s_nop 0')
    for i in range(4): A(f'v_add_f32 v{28+i}, v{28+i}, v{32+i}')
    A('s_nop 0', 'v_permlane16_swap_b32 v28, v29', 'v_permlane16_swap_b32 v30, v31', 's_nop 0')
    A('v_add_f32 v28, v28, v29', 'v_add_f32 v30, v30, v31')
    A('s_nop 0', 'v_add_f32_dpp v28, v28, v28 quad_perm:[2,3,0,1] row_mask:0xf bank_mask:0xf', 'v_add_f32_dpp v30, v30, v30 quad_perm:[2,3,0,1] row_mask:0xf bank_mask:0xf')
    A('s_nop 0', 'v_cndmask_b32 v20, v28, v30, s[100:101]')
    A('s_nop 1', 'v_add_f32_dpp v20, v20, v20 row_ror:4 row_mask:0xf bank_mask:0xf')
    A('s_nop 1', 'v_add_f32_dpp v20, v20, v20 row_ror:8 row_mask:0xf bank_mask:0xf')
    A('v_mov_b32 v21, v20', 's_waitcnt lgkmcnt(0)', 'v_or_b32 v7, v214, v215', 'v_permlane32_swap_b32 v20, v21', 'v_cmp_eq_u32 vcc, 0, v7', 's_nop 0')
    A('v_cvt_pk_bf16_f32 v20, v20, v21')
    A('v_lshlrev_b32 v21, 16, v20', 'v_and_b32 v22, 0xffff0000, v20')
    A('s_cbranch_vccnz L_glate')
    A.lab('L_gok')
    A('v_mul_f32 v21, v21, v214', 'v_mul_f32 v22, v22, v215')
    A('v_cvt_pk_bf16_f32 v20, v21, v22')
    A('v_lshlrev_b32 v21, 16, v20', 'v_and_b32 v22, 0xffff0000, v20', 'v_add_f32 v21, v21, v22')
    A('v_cvt_pk_bf16_f32 v20, v21, v21')
    A('s_mov_b64 exec, 0x000f000f', 'buffer_store_short v20, v213, s[24:27], 0 offen' + (' ' + ost.replace('_', ' ') if ost else ''))
    A('s_cmp_lg_u32 s2, 0', 's_cbranch_scc1 L_fin')
    A('s_mov_b64 exec, 1', 'v_mov_b32 v6, s7', f'buffer_store_dword v6, v14, s[20:23], 0 offen offset:{WS_EPOCH}')
    A.lab('L_fin')
    if echo >= 0:
        stamp(11)
        A('s_memrealtime s[30:31]', 's_waitcnt lgkmcnt(0)')
        if eneg >= 0: A(f's_sub_u32 s28, s{64+2*eneg}, s{64+2*echo}', 's_add_u32 s28, s28, 300', 's_max_i32 s28, s28, 0')
        else: A(f's_sub_u32 s28, s{64+2*echo}, s64')
        A(f's_lshl_b32 s28, s28, {esh}', 's_add_u32 s28, s28, s30')
        if echog >= 0: A('s_lshr_b32 s29, s3, 3', f's_cmp_lg_u32 s29, {echog}', 's_cbranch_scc1 L_end')
        if ex >= 0: A(f's_cmp_lg_u32 s12, {ex}', 's_cbranch_scc1 L_end')
        A.lab('L_echo')
        A('s_memrealtime s[30:31]', 's_waitcnt lgkmcnt(0)', 's_sub_u32 s29, s30, s28', 's_cmp_lt_i32 s29, 0', 's_cbranch_scc1 L_echo')
    if stamps:
        stamp(11)
        A('s_mov_b64 exec, -1')
        if xdbg: A('s_waitcnt lgkmcnt(0)', 's_mul_i32 s94, s12, 100', 's_add_u32 s94, s94, s64', 's_addc_u32 s95, s65, 0')
        dump_stamps([0, 1, 2, 3, 4, 5, 8, 9, 10, 11, 15])
    A('s_endpgm')
    A.lab('L_glate')
    A('ds_read_b64 v[214:215], v226', 's_waitcnt lgkmcnt(0)', 'v_or_b32 v7, v214, v215', 'v_cmp_eq_u32 vcc, 0, v7')
    A('s_cbranch_vccz L_gok', 's_sub_u32 s59, s59, 1', 's_cbranch_scc0 L_glate', 's_branch L_gok')
    A.lab('L_gate')
    A.c('waves 1 and 2: the gates of the two batches this workgroup finishes')
    XG = 128; GA = XG + 8
    A('s_cmp_eq_u32 s6, 3', 's_cbranch_scc1 L_end')
    A('s_bfe_u32 s56, s2, 0x10003', 's_lshl1_add_u32 s56, s56, s6', 's_sub_u32 s56, s56, 1', 's_lshl_b32 s53, s56, 10')
    A('s_mov_b64 s[24:25], s[40:41]', 's_mov_b64 s[28:29], s[44:45]', 's_mov_b32 s30, 1024', 's_mov_b32 s31, 0x20000')
    A(f'buffer_load_dwordx4 {vr(XG,4)}, v14, s[24:27], s53 offen')
    A(f'buffer_load_dwordx4 {vr(XG+4,4)}, v14, s[28:31], 0 offen')
    A('s_waitcnt vmcnt(0)')
    for i in range(4):
        x = XG + i; g = XG + 4 + i
        unpack(36, x, g)
        A('v_mul_f32 v36, v36, v38', 'v_mul_f32 v37, v37, v39', 'v_cvt_pk_bf16_f32 v36, v36, v37')
        if i == 0:
            A(f'v_lshlrev_b32 v{GA}, 16, v36', f'v_and_b32 v{GA+1}, 0xffff0000, v36')
        else:
            A('v_lshlrev_b32 v38, 16, v36', 'v_and_b32 v39, 0xffff0000, v36', f'v_add_f32 v{GA}, v{GA}, v38', f'v_add_f32 v{GA+1}, v{GA+1}, v39')
    A(f'v_add_f32 v{GA}, v{GA}, v{GA+1}')
    allred('v_add_f32', GA, GA + 1, quad=True)
    A(f'v_cvt_pk_bf16_f32 v{GA}, v{GA}, v{GA}', f'v_lshlrev_b32 v{GA}, 16, v{GA}')
    A(f'v_mul_f32 v{GA}, 0x{LOG2E ^ 0x80000000:x}, v{GA}', f'v_exp_f32 v{GA}, v{GA}', 's_nop 0')
    A(f'v_add_f32 v{GA}, 1.0, v{GA}', f'v_rcp_f32 v{GA}, v{GA}', 's_nop 0')
    A(f'v_cvt_pk_bf16_f32 v{GA}, v{GA}, v{GA}', f'v_lshlrev_b32 v{GA}, 16, v{GA}')
    A(f'v_sub_f32 v{GA+1}, 1.0, v{GA}', f'v_cvt_pk_bf16_f32 v{GA+1}, v{GA+1}, v{GA+1}', f'v_lshlrev_b32 v{GA+1}, 16, v{GA+1}')
    A('s_lshl_b32 s59, s56, 3', f's_add_u32 s59, s59, {GL}', 'v_mov_b32 v6, s59', f'ds_write_b64 v6, v[{GA}:{GA+1}]')
    A('s_endpgm')

    V0 = 128; PB = 64; T = 32; ACC = 24
    WQ = 64; XB = 96
    A('.p2align 6')
    A.lab('L_vwave')
    if vprio: A(f's_setprio {vprio}')
    A('s_and_b32 s6, s6, 3')
    if prefetch:
        A.c("warm L2 with this kernel's own code: one dword per 64 bytes")
        A('s_getpc_b64 s[56:57]')
        A.lab('L_pc')
        A(f's_sub_u32 s56, s56, L_pc-{KN}_kernel', 's_subb_u32 s57, s57, 0')
        A('s_lshl_b32 s59, s6, 12', 'v_lshl_add_u32 v2, v14, 2, s59')
        A(f'v_min_u32 v2, L_code_end-{KN}_kernel-4, v2')
        A('v_mov_b32 v3, s57', 'v_add_co_u32 v2, vcc, s56, v2', 's_nop 1', 'v_addc_co_u32 v3, vcc, 0, v3, vcc')
        A('global_load_dword v40, v[2:3], off')
    kvbase()
    if LV: level()
    common()
    assert kb0 >= 0 and (pd == 3 or not pl)
    QA = 112; XR = 104
    A('s_lshl_b32 s57, s6, 8', f's_add_u32 s57, s57, {ZL}', 'v_lshlrev_b32 v4, 2, v0', 'v_add_u32 v7, s57, v4')
    A('v_mov_b32 v6, 0', 'v_and_b32 v4, 0x7c, v4', f'v_add_u32 v4, {CNT}, v4')
    A('ds_write_b32 v7, v6', 'ds_write_b32 v4, v6')
    A('v_lshrrev_b32 v8, 3, v0', 'v_and_b32 v7, 7, v0', 'v_lshlrev_b32 v9, 16, v8', 'v_lshl_add_u32 v9, v7, 4, v9')
    if qperm: A(f's_xor_b32 s5, s5, {qperm}')
    A('s_and_b32 s57, s5, 1', 's_lshl2_add_u32 s57, s57, s6')
    A('s_lshl_b32 s56, s57, 12', 's_lshr_b32 s59, s5, 1', 's_lshl3_add_u32 s59, s4, s59', 's_add_u32 s56, s56, s59', 's_lshl_b32 s56, s56, 7')
    A('s_lshl_b32 s57, s57, 7')
    A('v_lshlrev_b32 v8, 4, v8', 'v_lshl_add_u32 v8, v16, 10, v8')
    A('s_waitcnt lgkmcnt(0)')
    A('s_mov_b64 s[16:17], s[36:37]', 's_mov_b64 s[24:25], s[40:41]')
    if st0: stamp(12)
    for i in range(8):
        A(f'buffer_load_dwordx4 {vr(WQ+4*i,4)}, v9, s[16:19], s56 offen{WP}')
        if i < 7: A('s_addk_i32 s56, 0x2000')
    A(f'buffer_load_dwordx4 {vr(XR,4)}, v8, s[24:27], s57 offen')
    if b0w >= 0:
        A('s_add_u32 s59, s16, s56', 's_bfe_u32 s59, s59, 0x30007', 's_cmp_eq_u32 s59, 3', 's_cbranch_scc1 L_b0', f's_waitcnt vmcnt({b0w})')
        A.lab('L_b0')
    A('s_barrier')
    A('s_load_dword s7, s[50:51], 0x%x' % WS_EPOCH)
    A('s_mov_b64 s[20:21], s[50:51]', 's_mov_b64 s[8:9], s[34:35]')
    A('s_lshl_b32 s59, s6, 11', f's_add_u32 s59, s59, {OL}', 'v_add_u32 v19, s59, v14')
    A('v_lshlrev_b32 v17, 9, v1', 'v_lshl_add_u32 v17, v7, 4, v17', 'v_add_u32 v17, s59, v17')
    A('v_bfe_u32 v12, v0, 1, 4', 'v_lshlrev_b32 v12, 6, v12', 'v_and_b32 v8, 1, v0', 'v_lshl_add_u32 v12, v8, 10, v12')
    A('s_lshl_b32 s59, s6, 4', f's_add_u32 s59, s59, {OL}', 'v_add_u32 v12, s59, v12')
    A('v_lshlrev_b32 v18, 11, v1', 'v_lshl_add_u32 v18, v2, 6, v18', 'v_add_u32 v18, s59, v18')
    A('v_add_u32 v15, s54, v14')
    A(f'v_mov_b32 v10, {CNT}', 'v_mov_b32 v11, 1')
    A('s_lshl2_add_u32 s57, s3, s6', 's_lshl4_add_u32 s57, s57, s5', 's_lshl_b32 s57, s57, 8', f's_add_u32 s57, s57, 0x{WS_Q:x}')
    if prq: A('s_mov_b64 exec, 0xffff', f'buffer_load_dword v68, v14, s[20:23], s57 offen{PR}', 's_mov_b64 exec, -1')
    A('v_and_b32 v8, 4, v0', 'v_cmp_eq_u32 vcc, 0, v8')
    A('s_waitcnt vmcnt(0) lgkmcnt(0)')
    A(f's_add_u32 s7, s7, 0x{TAGC:x}')
    if st0: stamp(13)
    for i in range(4): A(f'v_cndmask_b32 v{XB+i}, 0, v{XR+i}, vcc', f'v_cndmask_b32 v{XB+4+i}, v{XR+i}, 0, vcc')
    def mfq(e):
        c = '0' if (e & 1) == 0 else vr(QA + 4 * (e >> 1), 4)
        A(f'v_mfma_f32_16x16x32_bf16 {vr(QA+4*(e>>1),4)}, {vr(T+4*e,4)}, {vr(XB+4*(e&1),4)}, {c}')
    perm_mfma(WQ, T, mfq)
    A('s_mov_b32 exec_lo, 0x00ff00ff', 's_mov_b32 exec_hi, 0xff00ff00', 's_nop 6')
    for a_ in range(4): A(f'ds_write_b128 v17, {vr(QA+4*a_,4)} offset:{128*a_}')
    A('s_mov_b64 exec, 1', 'ds_add_u32 v10, v11', 's_mov_b64 exec, -1')
    A('s_add_u32 s59, s7, s12', 's_mov_b32 s56, 0x07060503', 's_mov_b32 s58, 0x07060502', 's_mov_b32 s62, 0x07060501')
    A('v_mov_b32 v67, s59', f's_mov_b32 s59, {spin}')
    A.lab('L_xspin')
    A('ds_read_b32 v4, v10')
    for w in range(2): A(f'ds_read_b128 {vr(T+4*w,4)}, v18 offset:{1024*w}')
    A('s_waitcnt lgkmcnt(2)')
    A('v_readfirstlane_b32 s53, v4', 's_cmp_eq_u32 s53, 4', 's_cbranch_scc1 L_xall')
    A('s_sub_u32 s59, s59, 1', 's_cbranch_scc0 L_xspin')
    A.lab('L_xall')
    A.c("add the partials of batch cw and publish them; the tag also carries the XCD number")
    A('s_waitcnt lgkmcnt(0)')
    for i in range(4): A(f'v_add_f32 v{T+i}, v{T+i}, v{T+4+i}')
    swapadd32(T, T + 4); swapadd16(T, T + 4)
    A(f'v_perm_b32 v64, v{T}, v{T+3}, s56', f'v_perm_b32 v65, v{T+1}, v{T+3}, s58', f'v_perm_b32 v66, v{T+2}, v{T+3}, s62')
    A('s_mov_b64 exec, 0xffff')
    if nost: A('s_branch L_qd')
    if qloc:
        A.c('on the XCD that round-robin placement gives the team the shared L2 carries it; anywhere else it is written through')
        A('s_cmp_eq_u32 s12, s42', 's_cbranch_scc1 L_ql')
    A('buffer_store_dwordx4 v[64:67], v14, s[20:23], s57 offen sc1')
    if qloc:
        A('s_branch L_qd')
        A.lab('L_ql'); A('buffer_store_dwordx4 v[64:67], v14, s[20:23], s57 offen'); A.lab('L_qd')
    A('s_mov_b64 exec, -1')
    A('v_lshl_add_u32 v8, v1, 2, v16', 's_lshl_b32 s57, s6, 10', f's_add_u32 s57, s57, {PX}')
    A('v_lshlrev_b32 v8, 4, v8', 'v_add_u32 v8, s57, v8', f'v_mov_b32 v9, {ZL}')
    versions(20, 8, 9)
    A('s_lshl_b32 s59, s6, 4', f's_add_u32 s59, s59, {ML}', 'v_mov_b32 v13, s59')
    A('s_lshl_b32 s57, s63, 11', 's_lshl_b32 s59, s6, 9', 's_add_u32 s57, s57, s59', f's_add_u32 s57, s57, 0x{WS_O:x}')
    A(f'v_mov_b32 v2, {CNT+8}', 'v_mov_b32 v3, 1', 'v_mov_b32 v9, s7', 'v_mov_b32 v11, s7')
    if vprio: A('s_setprio 0')
    A('s_barrier')
    def vseq(thr):
        for n in range(32):
            if n % 4 == 0: A(f's_lshr_b32 s56, s96, {ISH}', 's_add_u32 s96, s96, s97')
            if thr and n >= thr: A(f's_waitcnt vmcnt({thr-1})')
            A(f'buffer_load_dwordx4 {vr(V0+4*n,4)}, v15, s[8:11], s56 offen offset:{(n%4)*1024}{P}')
    if orc:
        th = [int(z) for z in orc.split('-')]
        A('s_memrealtime s[92:93]', 's_waitcnt lgkmcnt(0)', 's_sub_u32 s92, s92, s64', f's_cmp_ge_u32 s92, {th[1]}', 's_cbranch_scc1 L_vo2', f's_cmp_ge_u32 s92, {th[0]}', 's_cbranch_scc1 L_vo1')
        for i in range(3):
            A.lab(f'L_vo{i}'); vseq(th[2 + i])
            if i < 2: A('s_branch L_vod')
        A.lab('L_vod')
    elif LV:
        for i in range(1, len(LV)): A(f's_cmp_eq_u32 s98, {i}', f's_cbranch_scc1 L_vs{i}')
        for i, (kt, vt) in enumerate(LV):
            A.lab(f'L_vs{i}'); vseq(vt)
            if i + 1 < len(LV): A('s_branch L_vsd')
        A.lab('L_vsd')
    else: vseq(vthr)
    stamp(14)
    A('s_barrier')
    A('ds_read_b128 v[4:7], v13', 'ds_read_b32 v8, v10 offset:4')
    for G_ in range(4):
        for e in range(4): A(f'ds_read_b128 {vr(PB+16*G_+4*e,4)}, v{20+e} offset:{256*G_}')
        if G_ == 1: A('s_waitcnt lgkmcnt(0)')
    A('v_readfirstlane_b32 s13, v8')
    A('v_max3_f32 v8, v4, v5, v6', 'v_max_f32 v8, v8, v7')
    for w in range(4): A(f'v_sub_f32 v{4+w}, v{4+w}, v8')
    for w in range(4): A(f'v_exp_f32 v{4+w}, v{4+w}')
    A('s_lshr_b32 s13, s13, 8')
    for G_ in range(4):
        xo = int(0 <= pro <= 24 and pro >= 8 * (G_ + 1))
        if G_ == 2: A(f's_waitcnt vmcnt({8*(3-G_)+xo}) lgkmcnt(0)')
        elif trim and G_ == 3: A('s_nop 4')
        else: A(f's_waitcnt vmcnt({8*(3-G_)+xo})')
        if G_ == 3 and not trim: stamp(6)
        def mf(e):
            idx = e >> 2
            c = '0' if (G_ == 0 and (e & 3) == 0) else vr(ACC + 4 * idx, 4)
            A(f'v_mfma_f32_16x16x32_bf16 {vr(ACC+4*idx,4)}, {vr(T+4*e,4)}, {vr(PB+16*G_+4*(e&3),4)}, {c}')
        if trim and G_ == 3:
            src = V0 + 96
            for d in range(4):
                A(f's_waitcnt vmcnt({6-2*d})')
                if d == 3: stamp(6)
                for dp in range(4):
                    A(f'v_perm_b32 v{T+8*dp+d}, v{src+4*(2*d+1)+dp}, v{src+8*d+dp}, {SLO}', f'v_perm_b32 v{T+8*dp+4+d}, v{src+4*(2*d+1)+dp}, v{src+8*d+dp}, {SHI}')
            for e in (0, 4, 1, 5, 2, 6, 3, 7): mf(e)
        else:
            perm_mfma(V0 + 32 * G_, T, mf)
    if not st0: stamp(12)
    A(f's_mov_b32 s59, {spin}', 's_nop 5')
    A(f'ds_write_b128 v19, {vr(ACC,4)}', f'ds_write_b128 v19, {vr(ACC+4,4)} offset:1024')
    A('s_mov_b64 exec, 1', 'ds_add_u32 v2, v3', 's_mov_b64 exec, -1')
    A.lab('L_ospin')
    A('ds_read_b32 v3, v2')
    for w in range(4): A(f'ds_read_b128 v[{64+4*w}:{67+4*w}], v12 offset:{2048*w}')
    A('s_waitcnt lgkmcnt(4)')
    A('v_readfirstlane_b32 s56, v3', 's_cmp_eq_u32 s56, 4', 's_cbranch_scc1 L_oall')
    A('s_sub_u32 s59, s59, 1', 's_cbranch_scc0 L_ospin')
    A.lab('L_oall')
    if not st0: stamp(13)
    A('s_waitcnt lgkmcnt(3)')
    if trim:
        for r in range(2): A(f'v_pk_mul_f32 v[{24+2*r}:{25+2*r}], v[{64+2*r}:{65+2*r}], v[4:5] op_sel_hi:[1,0]')
        for w in range(1, 4):
            A(f's_waitcnt lgkmcnt({3-w})')
            o = w & 1
            for r in range(2): A(f'v_pk_fma_f32 v[{24+2*r}:{25+2*r}], v[{64+4*w+2*r}:{65+4*w+2*r}], v[{4+(w&2)}:{5+(w&2)}], v[{24+2*r}:{25+2*r}] op_sel:[0,{o},0] op_sel_hi:[1,{o},1]')
    else:
        for r in range(4): A(f'v_mul_f32 v{24+r}, v4, v{64+r}')
        for w in range(1, 4):
            A(f's_waitcnt lgkmcnt({3-w})')
            for r in range(4): A(f'v_fmac_f32 v{24+r}, v{4+w}, v{64+4*w+r}')
    A('v_cvt_pk_bf16_f32 v8, v24, v25', 'v_cvt_pk_bf16_f32 v10, v26, v27')
    A('s_mov_b32 exec_hi, 0')
    if cut != 2: team_store('buffer_store_dwordx4 v[8:11], v14, s[20:23], s57 offen')
    if stamps:
        A('s_mov_b32 exec_hi, -1')
        stamp(7)
        A(f's_cmp_lg_u32 s6, {vw}', 's_cbranch_scc1 L_end')
        dump_stamps([6, 7, 12, 13, 14])
    A('s_endpgm')

    A.lab('L_end')
    A('s_endpgm')
    A.lab('L_code_end')
    out += A.L
    out += ['.section .rodata,"a"', '.p2align 6', f'.amdhsa_kernel {KN}_kernel',
            '  .amdhsa_next_free_vgpr 256', '  .amdhsa_next_free_sgpr 102', '  .amdhsa_accum_offset 256',
            '  .amdhsa_group_segment_fixed_size 0', '  .amdhsa_kernarg_size 112', '  .amdhsa_user_sgpr_count 2',
            '  .amdhsa_user_sgpr_kernarg_segment_ptr 1', '  .amdhsa_system_sgpr_workgroup_id_x 1', '.end_amdhsa_kernel']
    return '\n'.join(out) + '\n'

if __name__ == '__main__':
    ap = argparse.ArgumentParser()
    ap.add_argument('-o', default='k.s')
    ap.add_argument('--set', action='append', default=[])
    a = ap.parse_args()
    kw = {}
    for s in a.set:
        k, v = s.split('=')
        try: v = int(v)
        except ValueError: pass
        kw[k] = v
    open(a.o, 'w').write(gen(**kw))
```

```python
import sys, argparse
KN = 'gated_mix__sliding_block_cached__sliding_block_cached__decode'
HEADER = open('cdna_kernels/' + KN + '.s.ref').read().split('; Override launch')[0]

WS_EPOCH = 0x0
WS_ML = 0x1000
WS_O = 0x40000
WS_P = 0xC0000
WS_Q = 0x140000
WS_BYTES = 285221888
STAMP_OFF = 64 << 20
TAGC = 0x9E3779B1
KL = 0
QL = 131072
ZL = QL + 1024
PX = ZL + 1024
ML = PX + 4096
LL = ML + 64
CNT = LL + 64
GL = CNT + 64
OX = GL + 64
OL = OX + 1024
LDS_BYTES = OL + 8192
LOG2E = 0x3FB8AA3B
SCALE = 0x3DB504F3

class G:
    def __init__(s): s.L = []
    def __call__(s, *ts):
        for t in ts: s.L.append('  ' + t)
    def lab(s, t): s.L.append(t + ':')
    def c(s, t): s.L.append('  ; ' + t)

def vr(a, n=1):
    return f'v{a}' if n == 1 else f'v[{a}:{a+n-1}]'

def gen(stamps=False, pol='nt', wpol='nt', spin=200000, prefetch=0, sleep=0, touch=1, kprio=1, vprio=3,
        gran=4, rotmul=4, ackfirst=1, local=1, echo=-1, sleep2=-1, echog=-1, pre=0, mask1=1, h2=1, stag=6, qplain=0, st0=0, kb0=0, pat=1, rot=0, qloc=1, xdbg=0, trim=1, pd=3, mlp=0, qd=0, vw=0, bvst=0, ost='', ppl='sc1', pst='sc1', pl=1, cut=0, skip=0, esh=0, b0st=0, kthr=6, vthr=8, kgrp=2, kx=0, qperm=0, b0w=-1, xq=0, qv=0, nost=0, qf='sc1_nt', mf='sc1_nt', of='sc1_nt', pr='nt', prq=0, prm=0, pro=-1, prp=0, eneg=-1, ex=-1, lv='7.8-12.12', wo_=0, ws_=1, orc='', om=1):
    if sleep2 < 0: sleep2 = sleep
    A = G()
    P = (' ' + pol) if pol else ''
    WP = (' ' + wpol) if wpol else ''
    PR = (' ' + pr) if pr != 'p' else ''
    out = [HEADER.rstrip('\n'),
           '; Override launch geometry by editing the next line (default: block=256,',
           '; grid=ceil(out_elems/256), lds=0). Harness parses it; keep it on one line.',
           f'; @launch grid=(256,1,1) block=(512,1,1) lds={LDS_BYTES}',
           '.amdgcn_target "amdgcn-amd-amdhsa--gfx950"', '.text', f'.globl {KN}_kernel', '.p2align 8',
           f'.type {KN}_kernel,@function', f'{KN}_kernel:']
    SLO, SHI = 's60', 's61'
    def stamp(i):
        if stamps or (echo >= 0 and i in (0, echo, eneg)): A(f's_memrealtime s[{64+2*i}:{65+2*i}]')
    def allred(op, r, t, quad=False):
        if quad:
            A('s_nop 1', f'{op}_dpp v{r}, v{r}, v{r} quad_perm:[1,0,3,2] row_mask:0xf bank_mask:0xf')
            A('s_nop 1', f'{op}_dpp v{r}, v{r}, v{r} quad_perm:[2,3,0,1] row_mask:0xf bank_mask:0xf')
        A('s_nop 1', f'{op}_dpp v{r}, v{r}, v{r} row_ror:4 row_mask:0xf bank_mask:0xf')
        A('s_nop 1', f'{op}_dpp v{r}, v{r}, v{r} row_ror:8 row_mask:0xf bank_mask:0xf')
        A(f'v_mov_b32 v{t}, v{r}', 's_nop 1', f'v_permlane16_swap_b32 v{r}, v{t}', 's_nop 1', f'{op} v{r}, v{r}, v{t}')
        A(f'v_mov_b32 v{t}, v{r}', 's_nop 1', f'v_permlane32_swap_b32 v{r}, v{t}', 's_nop 1', f'{op} v{r}, v{r}, v{t}')
    def perm_mfma(src, T, mf):
        for dp in range(4):
            for d in range(4):
                A(f'v_perm_b32 v{T+4*(2*dp)+d}, v{src+4*(2*d+1)+dp}, v{src+4*(2*d)+dp}, {SLO}')
            if dp > 0 and mf: mf(2 * dp - 1)
            for d in range(4):
                A(f'v_perm_b32 v{T+4*(2*dp+1)+d}, v{src+4*(2*d+1)+dp}, v{src+4*(2*d)+dp}, {SHI}')
            if mf: mf(2 * dp)
        if mf:
            A('s_nop 1'); mf(7)
    def tagcheck(regs):
        A(f'v_xor_b32 v6, s7, v{regs[0]+1}', f'v_xor_b32 v7, s7, v{regs[0]+3}')
        for r in regs[1:]:
            A(f'v_bitop3_b32 v6, v{r+1}, s7, v6 bitop3:0xbe', f'v_bitop3_b32 v7, v{r+3}, s7, v7 bitop3:0xbe')
        A('v_or_b32 v6, v6, v7', 'v_cmp_ne_u32 vcc, 0, v6')
    def versions(dst, good, bad):
        for e in range(4):
            A(f'v_cmp_eq_u32 vcc, {e}, v5', 's_nop 1', f'v_cndmask_b32 v{dst+e}, v{bad}, v{good}, vcc')
    def unpack(dst, a, b):
        A(f'v_lshlrev_b32 v{dst}, 16, v{a}', f'v_and_b32 v{dst+1}, 0xffff0000, v{a}', f'v_lshlrev_b32 v{dst+2}, 16, v{b}', f'v_and_b32 v{dst+3}, 0xffff0000, v{b}')
    def swapadd32(r, t):
        for i in range(4): A(f'v_mov_b32 v{t+i}, v{r+i}')
        A('s_nop 0')
        for i in range(4): A(f'v_permlane32_swap_b32 v{r+i}, v{t+i}')
        A('s_nop 0')
        for i in range(4): A(f'v_add_f32 v{r+i}, v{r+i}, v{t+i}')
    def swapadd16(r, t):
        for i in range(4): A(f'v_mov_b32 v{t+i}, v{r+i}')
        A('s_nop 0')
        for i in range(4): A(f'v_permlane16_swap_b32 v{r+i}, v{t+i}')
        A('s_nop 0')
        for i in range(4): A(f'v_add_f32 v{r+i}, v{r+i}, v{t+i}')
    nteam = [0]
    def team_store(txt):
        if not local:
            A(txt + ' sc1'); return
        n = nteam[0]; nteam[0] += 1
        A('s_cmp_eq_u32 s13, 0', f's_cbranch_scc1 L_tl{n}', txt + ' sc1', f's_branch L_td{n}')
        A.lab(f'L_tl{n}'); A(txt); A.lab(f'L_td{n}')
    def dump_stamps(idx):
        A('s_waitcnt lgkmcnt(0)')
        A('s_lshl_b32 s59, s2, 7', f's_add_u32 s59, s59, 0x{STAMP_OFF:x}', 'v_mov_b32 v7, 0')
        for i in idx:
            A(f'v_mov_b32 v8, s{64+2*i}', f'v_mov_b32 v9, s{65+2*i}')
            A(f'buffer_store_dwordx2 v[8:9], v7, s[20:23], s59 offen offset:{8*i}', 's_nop 1')

    A('s_cmpk_ge_u32 s2, 0x100', 's_cbranch_scc1 L_end')
    stamp(0)
    A('s_and_b32 s52, s2, 8', 's_mul_i32 s52, s52, 5')
    A('s_load_dwordx8 s[32:39], s[0:1], s52 offset:8')
    A('s_load_dwordx2 s[40:41], s[0:1], 0')
    A('s_load_dwordx8 s[44:51], s[0:1], 80')
    A('v_lshrrev_b32 v1, 6, v0', 'v_and_b32 v0, 63, v0', 'v_readfirstlane_b32 s6, v1', 'v_lshlrev_b32 v14, 4, v0')
    A('s_bitcmp1_b32 s6, 2', 's_cbranch_scc1 L_vwave')
    ISH = 13 if pat else 15
    def kvbase():
        if kx: A('s_lshr_b32 s58, s2, 6', 's_lshr_b32 s4, s52, 5', 's_xor_b32 s4, s4, s2', 's_and_b32 s4, s4, 7', 's_lshl3_add_u32 s54, s58, s4', 's_lshr_b32 s5, s2, 4')
        else: A('s_lshr_b32 s58, s2, 6', 's_and_b32 s4, s2, 7', 's_lshl3_add_u32 s54, s58, s4', 's_lshr_b32 s5, s2, 4')
        if pat:
            A('s_and_b32 s59, s5, 3', 's_lshl2_add_u32 s54, s54, 3', 's_lshl_b32 s54, s54, 7', 's_lshl2_add_u32 s59, s59, s6', 's_add_u32 s54, s54, s59', 's_lshl_b32 s54, s54, 12')
        else:
            A('s_or_b32 s59, s5, 12', 's_lshl4_add_u32 s54, s54, s59', 's_lshl_b32 s54, s54, 5', 's_add_u32 s54, s54, s6', 's_lshl_b32 s54, s54, 12')
        A('s_lshl_b32 s96, s2, 29' if rot else 's_mov_b32 s96, 0', 's_lshl_b32 s97, 1, 29')
        A('s_lshl_b32 s10, 1, 26', 's_mov_b32 s11, 0x20000')
    LV = [tuple(int(z) for z in p.split('.')) for p in lv.split('-')] if lv else []
    def level():
        A('s_getreg_b32 s98, hwreg(HW_REG_XCC_ID, 0, 1)', f's_mul_i32 s98, s98, {wo_}', 's_lshr_b32 s59, s5, 1', 's_cmp_eq_u32 s59, 3', f's_cselect_b32 s59, {ws_}, 0')
        A('s_add_u32 s98, s98, s59', f's_min_u32 s98, s98, {len(LV) - 1}')
    kvbase()
    if LV: level()
    A('v_and_b32 v3, 48, v0', 'v_lshlrev_b32 v3, 2, v3', 'v_xor_b32 v10, v14, v3', 'v_add_u32 v10, s54, v10')
    for n in range(1, 4): A(f'v_xor_b32 v{10+n}, {16*n}, v10')
    A('s_lshl_b32 m0, s6, 15', 's_mov_b32 s59, 7')
    if kprio: A(f's_setprio {kprio}')
    A('s_waitcnt lgkmcnt(0)', 's_mov_b64 s[8:9], s[32:33]')
    if st0: stamp(5)
    def kloop(tag, thr, grp):
        A.lab(f'L_kloop{tag}')
        A(f's_lshr_b32 s56, s96, {ISH}')
        if kb0 > 0:
            A(f's_cmp_lg_u32 s59, {7-kb0}', f's_cbranch_scc1 L_knob{tag}', 's_barrier')
            A.lab(f'L_knob{tag}')
        for n in range(4):
            if thr and (not grp or n % grp == 0): A(f's_waitcnt vmcnt({thr - max(grp, 1)})')
            A(f'buffer_load_dwordx4 v{10+n}, s[8:11], s56 offen offset:{n*1024}{P} lds')
        A('s_add_u32 s96, s96, s97', 's_addk_i32 m0, 0x1000', 's_sub_u32 s59, s59, 1', f's_cbranch_scc0 L_kloop{tag}')
    if kb0 == 0:
        A('s_barrier')
        if b0st: stamp(5)
    if LV:
        for i in range(1, len(LV)): A(f's_cmp_eq_u32 s98, {i}', f's_cbranch_scc1 L_kloop{i}')
        for i, (kt, vt) in enumerate(LV):
            kloop(i, kt, 0)
            if i + 1 < len(LV): A('s_branch L_entry_end')
    else: kloop('', kthr, kgrp)
    A.lab('L_entry_end')
    def common():
        A('s_and_b32 s3, s2, 15', 's_and_b32 s59, s5, 3', 's_and_b32 s42, s2, 7')
        A(f's_mov_b32 {SLO}, 0x05040100', f's_mov_b32 {SHI}, 0x07060302')
        A('s_mov_b32 s18, 0x400000', 's_mov_b32 s19, 0x20000')
        A(f's_mov_b32 s22, {WS_BYTES}', 's_mov_b32 s23, 0x20000')
        A('s_mov_b32 s26, 4096', 's_mov_b32 s27, 0x20000')
        A('s_lshl_b32 s55, s6, 15')
        A('s_lshl2_add_u32 s63, s59, s58', 's_lshl4_add_u32 s63, s3, s63')
        A('s_getreg_b32 s12, hwreg(HW_REG_XCC_ID, 0, 3)')
        A('v_lshrrev_b32 v1, 4, v0')
        A('v_and_b32 v2, 15, v0')
        A('v_bfe_u32 v5, v0, 2, 2')
        A('v_and_b32 v16, 3, v0')

    R1 = 64; PB = 48; ACC = 40; WO = 128; WT = 160
    stamp(1)
    A('s_barrier')
    A('s_load_dword s7, s[50:51], 0x%x' % WS_EPOCH)
    common()
    A('s_mov_b64 s[20:21], s[50:51]')
    A('s_lshl2_add_u32 s57, s3, s58', 's_lshl2_add_u32 s57, s57, s6', 's_lshl_b32 s57, s57, 10', f's_add_u32 s57, s57, 0x{WS_Q:x}')
    QP = 64
    def pollq(f=' sc1'): A(f'buffer_load_dwordx4 {vr(QP,4)}, v14, s[20:23], s57 offen{f}')
    if qv in (0, 5): pollq(' ' + qf.replace('_', ' '))
    if qv == 2: A('s_mov_b64 s[24:25], s[40:41]', 's_lshl_b32 s56, s6, 10', f'buffer_load_dwordx4 {vr(QP,4)}, v14, s[24:27], s56 offen sc1')
    if qv == 3: A('s_add_u32 s56, s57, 0x200000', f'buffer_load_dwordx4 {vr(QP,4)}, v14, s[20:23], s56 offen nt')
    if qv == 4: A('s_add_u32 s56, s57, 0x40000', f'buffer_load_dwordx4 {vr(QP,4)}, v14, s[20:23], s56 offen nt')
    for e in range(xq): A(f's_xor_b32 s56, s57, {4096 * (e + 1)}', f'buffer_load_dwordx4 v[{232}:{235}], v14, s[20:23], s56 offen' + ('' if qplain else ' sc1'))
    A('s_mov_b32 s24, s46', 's_mov_b32 s25, s47', 's_mov_b32 s16, s38', 's_mov_b32 s17, s39')
    NT = 0
    if touch == 1:
        A.c('first touch of the output page')
        A('s_mov_b64 exec, 1', 'buffer_load_dword v237, v14, s[24:27], 0 offen', 's_mov_b64 exec, -1'); NT = 1
    if prm:
        A('s_lshl_b32 s56, s3, 10', f's_add_u32 s56, s56, 0x{WS_ML:x}', 'v_lshlrev_b32 v7, 7, v0', 's_mov_b64 exec, 0xff', f'buffer_load_dword v236, v7, s[20:23], s56 offen{PR}', 's_mov_b64 exec, -1')
    A('v_lshlrev_b32 v15, 10, v1', 'v_lshl_add_u32 v15, v2, 4, v15')
    A('v_lshl_add_u32 v4, v16, 2, v5', 'v_lshlrev_b32 v4, 8, v4', 'v_add_u32 v4, s55, v4')
    A('v_xor_b32 v6, v1, v2', 'v_lshlrev_b32 v6, 4, v6')
    for t in range(4): A(f'v_xor_b32 v7, {64*t}, v6', f'v_add_u32 v{20+t}, v4, v7')
    A('v_lshlrev_b32 v7, 8, v16', 'v_lshl_add_u32 v7, v1, 4, v7', f'v_add_u32 v7, {QL}, v7', f'v_mov_b32 v8, {ZL}')
    versions(32, 7, 8)
    A('s_lshl_b32 s59, s6, 8', f's_add_u32 s59, s59, {QL}')
    A('v_lshrrev_b32 v9, 5, v0', 'v_lshlrev_b32 v9, 7, v9', 'v_bfe_u32 v8, v0, 3, 1', 'v_lshl_add_u32 v9, v8, 6, v9')
    A('v_and_b32 v8, 7, v0', 'v_lshl_add_u32 v9, v8, 1, v9', 'v_add_u32 v9, s59, v9')
    A('v_lshlrev_b32 v18, 4, v16', 's_lshl_b32 s59, s6, 2', f's_add_u32 s59, s59, {ML}', 'v_add_u32 v18, s59, v18')
    A('v_lshl_add_u32 v17, v1, 2, v16', 'v_lshlrev_b32 v17, 4, v17')
    A('v_lshrrev_b32 v8, 1, v5', 'v_lshl_add_u32 v17, v8, 8, v17', 'v_and_b32 v8, 1, v5', 'v_lshl_add_u32 v17, v8, 3, v17')
    A('s_lshl_b32 s59, s6, 10', f's_add_u32 s59, s59, {PX}', 'v_add_u32 v17, s59, v17')
    A('s_waitcnt lgkmcnt(0)')
    A(f's_add_u32 s7, s7, 0x{TAGC:x}')
    A(f's_mov_b32 s59, {spin}', 's_add_u32 s62, s7, s12')
    if qv: A('s_waitcnt vmcnt(0)', 's_mov_b32 s13, 0', 's_branch L_noml')
    A.lab('L_pollq')
    A('s_waitcnt vmcnt(0)')
    A(f'v_subrev_u32 v6, s7, v{QP+3}', 'v_cmp_lt_u32 vcc, 7, v6')
    A('s_cbranch_vccz L_gotq', 's_sub_u32 s59, s59, 1', 's_cbranch_scc1 L_gotq')
    pollq()
    A('s_branch L_pollq')
    A.lab('L_gotq')
    stamp(3)
    A(f'v_cmp_ne_u32 vcc, s62, v{QP+3}')
    A('s_mov_b32 s56, 0x04000c0c', 's_mov_b32 s57, 0x0706000c')
    A(f'v_perm_b32 v27, v{QP}, v{QP+1}, s56', f'v_perm_b32 v27, v27, v{QP+2}, s57')
    A('s_cmp_eq_u64 vcc, 0', 's_cselect_b32 s59, 1, 0x101')
    for i in range(3): A(f'v_mov_b32 v{24+i}, v{QP+i}')
    swapadd16(24, 28)
    A('v_cvt_pk_bf16_f32 v24, v24, v25', 'v_cvt_pk_bf16_f32 v25, v26, v27')
    A(f'v_mov_b32 v6, {CNT+4}', 'v_mov_b32 v7, s59')
    A('ds_write_b16 v9, v24', 'ds_write_b16_d16_hi v9, v24 offset:16', 'ds_write_b16 v9, v25 offset:32', 'ds_write_b16_d16_hi v9, v25 offset:48')
    A('s_mov_b64 exec, 1', 'ds_add_u32 v6, v7', 's_mov_b64 exec, -1')
    Qb = [R1, R1 + 16]; Kb = [R1 + 32, R1 + 48]
    def rdq(x):
        for t in range(4): A(f'ds_read_b128 {vr(Qb[x&1]+4*t,4)}, v{32+x} offset:{64*t}')
    def rdk(T_, buf):
        for t in range(4): A(f'ds_read_b128 {vr(Kb[buf]+4*t,4)}, v{20+t} offset:{4096*T_}')
    def mm(T_, buf):
        x = T_ & 3; a = T_ >> 2
        for t in range(4):
            c = '0' if (x == 0 and t == 0) else vr(ACC+4*a, 4)
            A(f'v_mfma_f32_16x16x32_bf16 {vr(ACC+4*a,4)}, {vr(Kb[buf]+4*t,4)}, {vr(Qb[x&1]+4*t,4)}, {c}')
    rdk(0, 0); rdk(4, 1)
    A(f's_mov_b32 s59, {spin}', f's_mov_b32 s62, 0x{SCALE:x}', f's_mov_b32 s14, 0x{LOG2E:x}')
    A.lab('L_qspin')
    A('ds_read_b32 v7, v6', 's_waitcnt lgkmcnt(0)', 'v_readfirstlane_b32 s13, v7', 's_and_b32 s56, s13, 255', 's_cmp_eq_u32 s56, 4', 's_cbranch_scc1 L_qall')
    A('s_sub_u32 s59, s59, 1', 's_cbranch_scc0 L_qspin')
    A.lab('L_qall')
    rdq(0)
    A('s_lshr_b32 s13, s13, 8')
    if qloc:
        A('s_cbranch_scc0 L_norep')
        A.c("some member sits on another XCD: write this workgroup's q partials through for it")
        A('s_lshl2_add_u32 s57, s3, s6', 's_lshl4_add_u32 s57, s57, s5', 's_lshl_b32 s57, s57, 8', f's_add_u32 s57, s57, 0x{WS_Q:x}')
        A('s_add_u32 s56, s7, s12', f's_mov_b32 s59, {spin}', 's_mov_b64 exec, 0xffff')
        A.lab('L_rep')
        A('buffer_load_dwordx4 v[24:27], v14, s[20:23], s57 offen sc1', 's_waitcnt vmcnt(0)', 'v_cmp_ne_u32 vcc, s56, v27')
        A('s_cbranch_vccz L_rep2', 's_sub_u32 s59, s59, 1', 's_cbranch_scc0 L_rep')
        A.lab('L_rep2')
        A('buffer_store_dwordx4 v[24:27], v14, s[20:23], s57 offen sc1', 's_mov_b64 exec, -1')
        A.lab('L_norep')
    for x in range(4):
        A('s_waitcnt lgkmcnt(%d)' % (0 if x == 0 else 4))
        mm(x, 0)
        if x < 3:
            rdq(x + 1)
            A('s_waitcnt lgkmcnt(4)')
        else:
            A('s_waitcnt lgkmcnt(0)')
        mm(x + 4, 1)
        if x < 3:
            rdk(x + 1, 0); rdk(x + 5, 1)
    A('s_nop 7')
    S = ACC
    for p in range(4): A(f'v_cvt_pk_bf16_f32 v{28+p}, v{S+2*p}, v{S+2*p+1}')
    for p in range(4): A(f'v_lshlrev_b32 v{S+2*p}, 16, v{28+p}', f'v_and_b32 v{S+2*p+1}, 0xffff0000, v{28+p}')
    for i in range(8): A(f'v_mul_f32 v{S+i}, s62, v{S+i}')
    for p in range(4): A(f'v_cvt_pk_bf16_f32 v{28+p}, v{S+2*p}, v{S+2*p+1}')
    for p in range(4): A(f'v_lshlrev_b32 v{S+2*p}, 16, v{28+p}', f'v_and_b32 v{S+2*p+1}, 0xffff0000, v{28+p}')
    A(f'v_max3_f32 v28, v{S}, v{S+1}, v{S+2}', f'v_max3_f32 v29, v{S+3}, v{S+4}, v{S+5}', f'v_max3_f32 v28, v28, v{S+6}, v{S+7}', 'v_max_f32 v28, v28, v29')
    allred('v_max_f32', 28, 29)
    A('v_mul_f32 v36, s14, v28')
    for i in range(8): A(f'v_fma_f32 v{S+i}, v{S+i}, s14, -v36')
    for i in range(8): A(f'v_exp_f32 v{S+i}, v{S+i}')
    A('ds_write_b32 v18, v36')
    for p in range(4): A(f'v_cvt_pk_bf16_f32 v{32+p}, v{S+2*p}, v{S+2*p+1}')
    A('ds_write_b64 v17, v[32:33]', 'ds_write_b64 v17, v[34:35] offset:512')
    A(f'v_add_f32 v28, v{S}, v{S+1}', f'v_add_f32 v29, v{S+2}, v{S+3}', f'v_add_f32 v30, v{S+4}, v{S+5}', f'v_add_f32 v31, v{S+6}, v{S+7}')
    A('v_add_f32 v28, v28, v29', 'v_add_f32 v30, v30, v31', 'v_add_f32 v28, v28, v30')
    allred('v_add_f32', 28, 29)
    A('ds_write_b32 v18, v28 offset:64')
    A('v_lshlrev_b32 v7, 4, v16', f'v_add_u32 v7, {ML}, v7', f'v_mov_b32 v6, {CNT+12}', 'v_mov_b32 v8, 1')
    A('s_mov_b64 exec, 1', 'ds_add_rtn_u32 v8, v6, v8', 's_mov_b64 exec, -1')
    A('ds_read_b128 v[20:23], v7', 'ds_read_b128 v[24:27], v7 offset:64')
    A('s_add_u32 s15, s7, s12', 'v_mov_b32 v37, s7', 'v_mov_b32 v39, s15')
    A('s_and_b32 s56, s63, 15', 's_lshl_b32 s59, s3, 6', 's_add_u32 s56, s56, s59', 's_lshl_b32 s56, s56, 4', f's_add_u32 s56, s56, 0x{WS_ML:x}', 'v_lshlrev_b32 v7, 8, v0')
    A('s_waitcnt lgkmcnt(0)')
    A('v_readfirstlane_b32 s59, v8', 's_cmp_lg_u32 s59, 3', 's_cbranch_scc1 L_noml')
    A.c('last K wave to finish its softmax publishes (m, l) of this workgroup, lane = head')
    A('v_max3_f32 v36, v20, v21, v22', 'v_max_f32 v36, v36, v23')
    for w in range(4): A(f'v_sub_f32 v{20+w}, v{20+w}, v36')
    for w in range(4): A(f'v_exp_f32 v{20+w}, v{20+w}')
    A('s_nop 0', 'v_mul_f32 v38, v20, v24')
    for w in range(1, 4): A(f'v_fmac_f32 v38, v{20+w}, v{24+w}')
    A('s_mov_b64 exec, 15')
    team_store('buffer_store_dwordx4 v[36:39], v7, s[20:23], s56 offen')
    A('s_mov_b64 exec, -1')
    A.lab('L_noml')
    A('v_lshrrev_b32 v13, 3, v0', 'v_lshlrev_b32 v12, 11, v13', 'v_and_b32 v8, 7, v0', 'v_lshl_add_u32 v12, v8, 4, v12', 'v_lshlrev_b32 v13, 4, v13')
    A('s_lshl_b32 s59, s6, 8', f's_add_u32 s59, s59, {OX}')
    A('v_and_b32 v17, 31, v0', 'v_lshlrev_b32 v17, 3, v17', 'v_add_u32 v17, s59, v17')
    if trim: A('v_lshrrev_b32 v8, 5, v0', 'v_lshl_add_u32 v17, v8, 2, v17')
    A('v_lshlrev_b32 v8, 6, v16', 'v_lshl_add_u32 v8, v1, 4, v8', 'v_add_u32 v8, s59, v8', f'v_mov_b32 v9, {ZL}')
    versions(208, 8, 9)
    A('s_lshl_b32 s59, s6, 11', 'v_add_u32 v19, s59, v14')
    A('s_lshl_b32 s59, s6, 9', 'v_and_b32 v18, 31, v0', 'v_lshlrev_b32 v18, 4, v18', 'v_add_u32 v18, s59, v18')
    A('v_mov_b32 v9, s7', 'v_mov_b32 v11, s7')
    A('s_lshr_b32 s58, s5, 2', 's_and_b32 s59, s5, 3')
    A('s_lshl2_add_u32 s52, s3, s58', 's_lshl_b32 s52, s52, 8', f's_add_u32 s52, s52, 0x{WS_ML:x}')
    A('s_lshl_b32 s50, s3, 15', 's_lshl_b32 s53, s58, 9', 's_add_u32 s50, s50, s53', 's_lshl_b32 s53, s6, 7', 's_add_u32 s50, s50, s53')
    A(f's_add_u32 s50, s50, 0x{WS_O:x}', 's_add_u32 s51, s50, 16384')
    A('s_lshl_b32 s57, s3, 2', 's_add_u32 s57, s57, s58')
    A('s_lshl_b32 s53, s59, 6', 's_add_u32 s53, s53, s57', 's_lshl_b32 s53, s53, 11')
    A('s_lshl_b32 s56, s6, 9', 's_add_u32 s53, s53, s56', f's_add_u32 s53, s53, 0x{WS_P:x}')
    A('s_lshl2_add_u32 s58, s4, s58', 's_lshl_b32 s58, s58, 17', 's_add_u32 s58, s58, s55', 's_lshl_b32 s59, s59, 8', 's_add_u32 s58, s58, s59')
    if om:
        A('s_lshr_b32 s57, s42, 1', 's_and_b32 s56, s2, 1', 's_lshr_b32 s59, s2, 7', 's_lshl1_add_u32 s56, s59, s56', 's_bfe_u32 s59, s2, 0x20005', 's_lshl2_add_u32 s56, s56, s59')
        A('s_bfe_u32 s59, s2, 0x20003', 's_lshl2_add_u32 s56, s56, s59', 's_lshl_b32 s56, s56, 1')
    else:
        A('s_and_b32 s56, s2, 7', 's_lshr_b32 s59, s2, 5', 's_lshl_b32 s59, s59, 3', 's_add_u32 s56, s56, s59', 's_lshr_b32 s57, s56, 4')
        A('s_and_b32 s56, s56, 15', 's_lshl_b32 s56, s56, 3', 's_bfe_u32 s59, s2, 0x20003', 's_lshl_b32 s59, s59, 1', 's_add_u32 s56, s56, s59')
    A('s_lshl_b32 s97, s57, 17', 's_lshl_b32 s59, s56, 4', 's_add_u32 s97, s97, s59', f's_add_u32 s97, s97, 0x{WS_P:x}')
    A('s_add_u32 s98, s97, 65536')
    A('v_lshrrev_b32 v212, 1, v0', 'v_lshlrev_b32 v212, 11, v212', 'v_and_b32 v7, 1, v0', 'v_lshl_add_u32 v212, v7, 4, v212')
    A('v_add_u32 v4, s56, v7', 'v_and_b32 v7, 3, v4', 'v_lshlrev_b32 v226, 3, v7', f'v_add_u32 v226, {GL}, v226')
    A('v_lshlrev_b32 v213, 9, v7', 's_lshl_b32 s57, s57, 7', 'v_add_u32 v213, s57, v213')
    A('v_bfe_u32 v7, v4, 4, 2', 'v_lshl_add_u32 v213, v7, 5, v213', 'v_lshrrev_b32 v7, 6, v4', 'v_lshl_add_u32 v213, v7, 2, v213')
    A('v_bfe_u32 v7, v4, 2, 2', 'v_add_u32 v213, v213, v7')
    A('v_bfe_u32 v7, v0, 1, 1', 'v_lshl_add_u32 v213, v7, 4, v213', 'v_and_b32 v7, 1, v1', 'v_lshl_add_u32 v213, v7, 3, v213')
    A('v_lshlrev_b32 v213, 1, v213')
    A('v_and_b32 v7, 2, v0', 'v_cmp_ne_u32 s[100:101], 0, v7')
    if pl:
        A.c('s99: lanes of the line that workgroups of this XCD will read, when the team sits where round-robin placement puts it')
        if om: A('s_mov_b32 s99, -1', 's_and_b32 s56, s5, 3', 's_and_b32 s59, s6, 1', 's_lshl1_add_u32 s56, s56, s59', 's_xor_b32 s56, s56, s12')
        else: A('s_and_b32 s56, s12, 3', 's_lshl_b32 s56, s56, 3', 's_lshl_b32 s99, 0xff, s56', 's_lshr_b32 s56, s12, 2', 's_and_b32 s59, s6, 1', 's_xor_b32 s56, s56, s59')
        A('s_xor_b32 s59, s12, s42', 's_or_b32 s56, s56, s59', 's_or_b32 s56, s56, s13', 's_cbranch_scc0 L_ppl0', 's_mov_b32 s99, 0', 's_branch L_ppl')
        A.lab('L_ppl0')
        A.c('put that line into the L2 now, untagged, so that early polls stay inside the L2')
        A('s_mov_b32 exec_hi, 0', 's_mov_b32 exec_lo, s99', 'v_not_b32 v21, v9', 'v_not_b32 v23, v9')
        A(f'buffer_load_dword v236, v14, s[20:23], s53 offen{PR}' if prp else 'buffer_store_dwordx4 v[20:23], v14, s[20:23], s53 offen', 's_mov_b64 exec, -1')
        A.lab('L_ppl')
        A('s_xor_b32 s43, s3, 8', 's_lshl_b32 s43, s43, 10', f's_add_u32 s43, s43, 0x{WS_ML:x}', 'v_lshlrev_b32 v228, 4, v2')
    if touch == 2:
        A('s_cmp_lg_u32 s6, 0', 's_cbranch_scc1 L_nt', 's_mov_b64 exec, 3', 'buffer_load_ushort v237, v213, s[24:27], 0 offen', 's_mov_b64 exec, -1')
        A.lab('L_nt')
    stamp(4)
    A('s_barrier')
    if bvst: stamp(15)
    MLR = 216; FA = 224
    def pollml():
        A(f'buffer_load_dwordx4 v[{MLR}:{MLR+3}], v13, s[20:23], s52 offen ' + mf.replace('_', ' '))
        A(f'buffer_load_dwordx4 v[{MLR+4}:{MLR+7}], v13, s[20:23], s52 offen offset:128 ' + mf.replace('_', ' '))
    def mlfactors():
        A(f'v_max_f32 v6, v{MLR}, v{MLR+4}')
        A('v_mov_b32 v7, v6', 's_nop 1', 'v_permlane32_swap_b32 v6, v7', 's_nop 1', 'v_max_f32 v6, v6, v7')
        A(f'v_sub_f32 v{FA}, v{MLR}, v6', f'v_sub_f32 v{FA+1}, v{MLR+4}, v6', f'v_exp_f32 v{FA}, v{FA}', f'v_exp_f32 v{FA+1}, v{FA+1}', 's_nop 0')
        A(f'v_mul_f32 v6, v{FA}, v{MLR+2}', f'v_fmac_f32 v6, v{FA+1}, v{MLR+6}')
        A('v_mov_b32 v7, v6', 's_nop 1', 'v_permlane32_swap_b32 v6, v7', 's_nop 1', 'v_add_f32 v6, v6, v7')
        A('v_rcp_f32 v6, v6', 's_nop 0', f'v_mul_f32 v{FA}, v{FA}, v6', f'v_mul_f32 v{FA+1}, v{FA+1}, v6')
    def mlcheck():
        A(f'v_xor_b32 v6, s7, v{MLR+1}', f'v_bitop3_b32 v6, v{MLR+5}, s7, v6 bitop3:0xbe', 'v_cmp_ne_u32 vcc, 0, v6')
    def poll1():
        A('buffer_load_dwordx4 v[20:23], v12, s[20:23], s50 offen ' + of.replace('_', ' '), 'buffer_load_dwordx4 v[24:27], v12, s[20:23], s51 offen ' + of.replace('_', ' '))
    if mlp == 0 and cut != 2: pollml()
    for n in range(8):
        ro = 8 * (n & 3) + 4 * (n >> 2)
        A(f's_add_u32 s59, s58, {ro*1024}', f'buffer_load_dwordx4 {vr(WO+4*n,4)}, v15, s[16:19], s59 offen{WP}')
    if pd < 0: poll1()
    if not st0 and not b0st: stamp(5)
    if mlp == 0:
        A(f's_waitcnt vmcnt({10 if pd < 0 else 8})')
        mlcheck()
        A('s_mov_b32 s62, 0', 's_cbranch_vccnz L_mllate')
        mlfactors()
        A('s_mov_b32 s62, 1')
        A.lab('L_mllate')
    else: A('s_mov_b32 s62, 0')
    for d in range(4):
        A(f's_waitcnt vmcnt({(8 if d > pd else 6)-2*d})')
        if d == pd and cut not in (1, 2):
            poll1()
            if pl: A('buffer_load_dword v227, v228, s[20:23], s43 offen offset:12 sc1')
        for dp in range(4):
            A(f'v_perm_b32 v{WT+8*dp+d}, v{WO+4*(2*d+1)+dp}, v{WO+8*d+dp}, {SLO}', f'v_perm_b32 v{WT+8*dp+4+d}, v{WO+4*(2*d+1)+dp}, v{WO+8*d+dp}, {SHI}')
    stamp(2)
    if cut in (1, 2):
        A('s_waitcnt vmcnt(0)', 's_cmp_lg_u32 s6, 0', 's_cbranch_scc1 L_end', 's_branch L_fin')
    A(f's_mov_b32 s59, {spin}', 's_cmp_eq_u32 s62, 1', 's_cbranch_scc1 L_poll1')
    A.lab('L_pollml')
    pollml()
    A('s_waitcnt vmcnt(0)')
    mlcheck()
    A('s_cbranch_vccz L_gotml', 's_sub_u32 s59, s59, 1', 's_cbranch_scc0 L_pollml')
    A.lab('L_gotml')
    mlfactors()
    A.lab('L_poll1')
    A('s_waitcnt vmcnt(0)')
    tagcheck([20, 24])
    A('s_cbranch_vccz L_got1', 's_sub_u32 s59, s59, 1', 's_cbranch_scc1 L_got1')
    if sleep: A(f's_sleep {sleep}')
    if mask1: A('s_mov_b64 exec, vcc')
    poll1()
    A('s_branch L_poll1')
    A.lab('L_got1')
    if mask1: A('s_mov_b64 exec, -1')
    stamp(8)
    unpack(28, 20, 22); unpack(36, 24, 26)
    if trim:
        for r in range(2): A(f'v_pk_mul_f32 v[{28+2*r}:{29+2*r}], v[{28+2*r}:{29+2*r}], v[{FA}:{FA+1}] op_sel_hi:[1,0]')
        for r in range(2): A(f'v_pk_fma_f32 v[{28+2*r}:{29+2*r}], v[{36+2*r}:{37+2*r}], v[{FA}:{FA+1}], v[{28+2*r}:{29+2*r}] op_sel:[0,1,0] op_sel_hi:[1,1,1]')
        A('s_nop 1', 'v_permlane32_swap_b32 v28, v30', 'v_permlane32_swap_b32 v29, v31', 's_nop 0')
        A('v_pk_add_f32 v[28:29], v[28:29], v[30:31]')
        A('v_cvt_pk_bf16_f32 v20, v28, v29', 'ds_write_b32 v17, v20')
    else:
        for r in range(4): A(f'v_mul_f32 v{28+r}, v{FA}, v{28+r}')
        for r in range(4): A(f'v_fmac_f32 v{28+r}, v{FA+1}, v{36+r}')
        swapadd32(28, 36)
        A('v_cvt_pk_bf16_f32 v20, v28, v29', 'v_cvt_pk_bf16_f32 v21, v30, v31')
        A('ds_write_b64 v17, v[20:21]')
    for e in range(4): A(f'ds_read_b128 {vr(PB+4*e,4)}, v{208+e}')
    for e in range(4):
        A(f's_waitcnt lgkmcnt({3-e})')
        for idx in range(2):
            c = '0' if e == 0 else vr(ACC + 4 * idx, 4)
            A(f'v_mfma_f32_16x16x32_bf16 {vr(ACC+4*idx,4)}, {vr(WT+4*(4*idx+e),4)}, {vr(PB+4*e,4)}, {c}')
    if pl: A('v_cmp_ne_u32 vcc, s15, v227', 's_nop 3', 's_cmp_eq_u64 vcc, 0', 's_cselect_b32 s99, s99, 0')
    else: A('s_nop 6')
    A(f'ds_write_b128 v19, {vr(ACC,4)}', f'ds_write_b128 v19, {vr(ACC+4,4)} offset:1024')
    A('s_waitcnt lgkmcnt(0)')
    if not st0 and not bvst: stamp(15)
    A('s_barrier')
    for w in range(4): A(f'ds_read_b128 {vr(20+4*w,4)}, v18 offset:{2048*w}')
    def pkadd(d, a):
        for i in range(2): A(f'v_pk_add_f32 v[{d+2*i}:{d+2*i+1}], v[{d+2*i}:{d+2*i+1}], v[{a+2*i}:{a+2*i+1}]')
    A('s_waitcnt lgkmcnt(2)'); pkadd(20, 24)
    A('s_waitcnt lgkmcnt(1)'); pkadd(20, 28)
    A('s_waitcnt lgkmcnt(0)'); pkadd(20, 32)
    A('v_cvt_pk_bf16_f32 v8, v20, v21', 'v_cvt_pk_bf16_f32 v10, v22, v23')
    if pl and om:
        A('s_mov_b32 exec_hi, 0', 's_cmp_lg_u32 s99, 0', 's_cbranch_scc1 L_pl', 'buffer_store_dwordx4 v[8:11], v14, s[20:23], s53 offen sc1', 's_branch L_pnl')
        A.lab('L_pl')
        A('buffer_store_dwordx4 v[8:11], v14, s[20:23], s53 offen')
        A.lab('L_pnl')
        A('s_mov_b32 exec_hi, -1')
    elif pl:
        A('s_mov_b32 exec_hi, 0', 's_not_b32 exec_lo, s99', 'buffer_store_dwordx4 v[8:11], v14, s[20:23], s53 offen sc1')
        A('s_cmp_eq_u32 s99, 0', 's_cbranch_scc1 L_pnl', 's_mov_b32 exec_lo, s99', 'buffer_store_dwordx4 v[8:11], v14, s[20:23], s53 offen')
        A.lab('L_pnl')
        A('s_mov_b64 exec, -1')
    else:
        A('s_mov_b32 exec_hi, 0', 'buffer_store_dwordx4 v[8:11], v14, s[20:23], s53 offen ' + pst.replace('_', ' '), 's_mov_b32 exec_hi, -1')
    stamp(9)
    if cut == 3:
        A('s_waitcnt vmcnt(0)', 's_cmp_lg_u32 s6, 0', 's_cbranch_scc1 L_end', 's_branch L_fin')
    A('s_cmp_lg_u32 s6, 0', 's_cbranch_scc1 L_gate')
    if ackfirst == 1: A('s_waitcnt vmcnt(0)')
    A(f's_mov_b32 s59, {spin}')
    def poll2(r):
        for k in range(2): A(f'buffer_load_dwordx4 v[{r+4*k}:{r+3+4*k}], v212, s[20:23], s{97+k} offen ' + ppl.replace('_', ' '))
    if ackfirst == 2:
        A('s_lshl_b32 s56, s42, 3', 's_lshl_b64 s[32:33], 0xff, s56', 's_not_b64 exec, s[32:33]')
        poll2(20)
        A('s_waitcnt vmcnt(0)')
        tagcheck([20, 24])
        A('s_or_b64 exec, vcc, s[32:33]')
    if h2 < 2:
        A.lab('L_poll2')
        poll2(20)
        A('s_waitcnt vmcnt(0)')
        tagcheck([20, 24])
        A('s_cbranch_vccz L_got2', 's_sub_u32 s59, s59, 1', 's_cbranch_scc1 L_got2')
        if sleep2: A(f's_sleep {sleep2}')
        if h2 == 1: A('s_mov_b64 exec, vcc')
        A('s_branch L_poll2')
    else:
        poll2(44)
        A('s_mov_b64 s[32:33], -1', 's_mov_b64 s[34:35], -1', 's_mov_b64 s[36:37], -1', 's_mov_b64 s[38:39], 0')
        if stag: A(f's_sleep {stag}')
        poll2(52)
        A.lab('L_poll2')
        A('s_mov_b64 exec, s[32:33]', 's_waitcnt vmcnt(2)')
        tagcheck([44, 48])
        A('s_andn2_b64 s[40:41], exec, vcc', 's_or_b64 s[38:39], s[38:39], s[40:41]', 's_andn2_b64 s[36:37], s[36:37], s[40:41]', 's_cbranch_scc0 L_got2')
        A('s_mov_b64 exec, s[36:37]', 's_mov_b64 s[32:33], s[36:37]')
        poll2(44)
        A('s_mov_b64 exec, s[34:35]', 's_waitcnt vmcnt(2)')
        tagcheck([52, 56])
        A('s_andn2_b64 s[40:41], exec, vcc', 's_andn2_b64 s[36:37], s[36:37], s[40:41]', 's_cbranch_scc0 L_got2')
        A('s_mov_b64 exec, s[36:37]', 's_mov_b64 s[34:35], s[36:37]')
        poll2(52)
        A('s_sub_u32 s59, s59, 1', 's_cbranch_scc0 L_poll2')
    A.lab('L_got2')
    if h2: A('s_mov_b64 exec, -1')
    if h2 == 2:
        for i in range(4): A(f'v_cndmask_b32 v{20+2*i}, v{52+2*i}, v{44+2*i}, s[38:39]')
    stamp(10)
    A('ds_read_b64 v[214:215], v226', f's_mov_b32 s59, {spin}')
    unpack(28, 20, 22); unpack(32, 24, 26)
    A('s_nop 0')
    for i in range(4): A(f'v_permlane32_swap_b32 v{28+i}, v{32+i}')
    A('s_nop 0')
    for i in range(4): A(f'v_add_f32 v{28+i}, v{28+i}, v{32+i}')
    A('s_nop 0', 'v_permlane16_swap_b32 v28, v29', 'v_permlane16_swap_b32 v30, v31', 's_nop 0')
    A('v_add_f32 v28, v28, v29', 'v_add_f32 v30, v30, v31')
    A('s_nop 0', 'v_add_f32_dpp v28, v28, v28 quad_perm:[2,3,0,1] row_mask:0xf bank_mask:0xf', 'v_add_f32_dpp v30, v30, v30 quad_perm:[2,3,0,1] row_mask:0xf bank_mask:0xf')
    A('s_nop 0', 'v_cndmask_b32 v20, v28, v30, s[100:101]')
    A('s_nop 1', 'v_add_f32_dpp v20, v20, v20 row_ror:4 row_mask:0xf bank_mask:0xf')
    A('s_nop 1', 'v_add_f32_dpp v20, v20, v20 row_ror:8 row_mask:0xf bank_mask:0xf')
    A('v_mov_b32 v21, v20', 's_waitcnt lgkmcnt(0)', 'v_or_b32 v7, v214, v215', 'v_permlane32_swap_b32 v20, v21', 'v_cmp_eq_u32 vcc, 0, v7', 's_nop 0')
    A('v_cvt_pk_bf16_f32 v20, v20, v21')
    A('v_lshlrev_b32 v21, 16, v20', 'v_and_b32 v22, 0xffff0000, v20')
    A('s_cbranch_vccnz L_glate')
    A.lab('L_gok')
    A('v_mul_f32 v21, v21, v214', 'v_mul_f32 v22, v22, v215')
    A('v_cvt_pk_bf16_f32 v20, v21, v22')
    A('v_lshlrev_b32 v21, 16, v20', 'v_and_b32 v22, 0xffff0000, v20', 'v_add_f32 v21, v21, v22')
    A('v_cvt_pk_bf16_f32 v20, v21, v21')
    A('s_mov_b64 exec, 0x000f000f', 'buffer_store_short v20, v213, s[24:27], 0 offen' + (' ' + ost.replace('_', ' ') if ost else ''))
    A('s_cmp_lg_u32 s2, 0', 's_cbranch_scc1 L_fin')
    A('s_mov_b64 exec, 1', 'v_mov_b32 v6, s7', f'buffer_store_dword v6, v14, s[20:23], 0 offen offset:{WS_EPOCH}')
    A.lab('L_fin')
    if echo >= 0:
        stamp(11)
        A('s_memrealtime s[30:31]', 's_waitcnt lgkmcnt(0)')
        if eneg >= 0: A(f's_sub_u32 s28, s{64+2*eneg}, s{64+2*echo}', 's_add_u32 s28, s28, 300', 's_max_i32 s28, s28, 0')
        else: A(f's_sub_u32 s28, s{64+2*echo}, s64')
        A(f's_lshl_b32 s28, s28, {esh}', 's_add_u32 s28, s28, s30')
        if echog >= 0: A('s_lshr_b32 s29, s3, 3', f's_cmp_lg_u32 s29, {echog}', 's_cbranch_scc1 L_end')
        if ex >= 0: A(f's_cmp_lg_u32 s12, {ex}', 's_cbranch_scc1 L_end')
        A.lab('L_echo')
        A('s_memrealtime s[30:31]', 's_waitcnt lgkmcnt(0)', 's_sub_u32 s29, s30, s28', 's_cmp_lt_i32 s29, 0', 's_cbranch_scc1 L_echo')
    if stamps:
        stamp(11)
        A('s_mov_b64 exec, -1')
        if xdbg: A('s_waitcnt lgkmcnt(0)', 's_mul_i32 s94, s12, 100', 's_add_u32 s94, s94, s64', 's_addc_u32 s95, s65, 0')
        dump_stamps([0, 1, 2, 3, 4, 5, 8, 9, 10, 11, 15])
    A('s_endpgm')
    A.lab('L_glate')
    A('ds_read_b64 v[214:215], v226', 's_waitcnt lgkmcnt(0)', 'v_or_b32 v7, v214, v215', 'v_cmp_eq_u32 vcc, 0, v7')
    A('s_cbranch_vccz L_gok', 's_sub_u32 s59, s59, 1', 's_cbranch_scc0 L_glate', 's_branch L_gok')
    A.lab('L_gate')
    A.c('waves 1 and 2: the gates of the two batches this workgroup finishes')
    XG = 128; GA = XG + 8
    A('s_cmp_eq_u32 s6, 3', 's_cbranch_scc1 L_end')
    A('s_bfe_u32 s56, s2, 0x10003', 's_lshl1_add_u32 s56, s56, s6', 's_sub_u32 s56, s56, 1', 's_lshl_b32 s53, s56, 10')
    A('s_mov_b64 s[24:25], s[40:41]', 's_mov_b64 s[28:29], s[44:45]', 's_mov_b32 s30, 1024', 's_mov_b32 s31, 0x20000')
    A(f'buffer_load_dwordx4 {vr(XG,4)}, v14, s[24:27], s53 offen')
    A(f'buffer_load_dwordx4 {vr(XG+4,4)}, v14, s[28:31], 0 offen')
    A('s_waitcnt vmcnt(0)')
    for i in range(4):
        x = XG + i; g = XG + 4 + i
        unpack(36, x, g)
        A('v_mul_f32 v36, v36, v38', 'v_mul_f32 v37, v37, v39', 'v_cvt_pk_bf16_f32 v36, v36, v37')
        if i == 0:
            A(f'v_lshlrev_b32 v{GA}, 16, v36', f'v_and_b32 v{GA+1}, 0xffff0000, v36')
        else:
            A('v_lshlrev_b32 v38, 16, v36', 'v_and_b32 v39, 0xffff0000, v36', f'v_add_f32 v{GA}, v{GA}, v38', f'v_add_f32 v{GA+1}, v{GA+1}, v39')
    A(f'v_add_f32 v{GA}, v{GA}, v{GA+1}')
    allred('v_add_f32', GA, GA + 1, quad=True)
    A(f'v_cvt_pk_bf16_f32 v{GA}, v{GA}, v{GA}', f'v_lshlrev_b32 v{GA}, 16, v{GA}')
    A(f'v_mul_f32 v{GA}, 0x{LOG2E ^ 0x80000000:x}, v{GA}', f'v_exp_f32 v{GA}, v{GA}', 's_nop 0')
    A(f'v_add_f32 v{GA}, 1.0, v{GA}', f'v_rcp_f32 v{GA}, v{GA}', 's_nop 0')
    A(f'v_cvt_pk_bf16_f32 v{GA}, v{GA}, v{GA}', f'v_lshlrev_b32 v{GA}, 16, v{GA}')
    A(f'v_sub_f32 v{GA+1}, 1.0, v{GA}', f'v_cvt_pk_bf16_f32 v{GA+1}, v{GA+1}, v{GA+1}', f'v_lshlrev_b32 v{GA+1}, 16, v{GA+1}')
    A('s_lshl_b32 s59, s56, 3', f's_add_u32 s59, s59, {GL}', 'v_mov_b32 v6, s59', f'ds_write_b64 v6, v[{GA}:{GA+1}]')
    A('s_endpgm')

    V0 = 128; PB = 64; T = 32; ACC = 24
    WQ = 64; XB = 96
    A('.p2align 6')
    A.lab('L_vwave')
    if vprio: A(f's_setprio {vprio}')
    A('s_and_b32 s6, s6, 3')
    if prefetch:
        A.c("warm L2 with this kernel's own code: one dword per 64 bytes")
        A('s_getpc_b64 s[56:57]')
        A.lab('L_pc')
        A(f's_sub_u32 s56, s56, L_pc-{KN}_kernel', 's_subb_u32 s57, s57, 0')
        A('s_lshl_b32 s59, s6, 12', 'v_lshl_add_u32 v2, v14, 2, s59')
        A(f'v_min_u32 v2, L_code_end-{KN}_kernel-4, v2')
        A('v_mov_b32 v3, s57', 'v_add_co_u32 v2, vcc, s56, v2', 's_nop 1', 'v_addc_co_u32 v3, vcc, 0, v3, vcc')
        A('global_load_dword v40, v[2:3], off')
    kvbase()
    if LV: level()
    common()
    assert kb0 >= 0 and (pd == 3 or not pl)
    QA = 112; XR = 104
    A('s_lshl_b32 s57, s6, 8', f's_add_u32 s57, s57, {ZL}', 'v_lshlrev_b32 v4, 2, v0', 'v_add_u32 v7, s57, v4')
    A('v_mov_b32 v6, 0', 'v_and_b32 v4, 0x7c, v4', f'v_add_u32 v4, {CNT}, v4')
    A('ds_write_b32 v7, v6', 'ds_write_b32 v4, v6')
    A('v_lshrrev_b32 v8, 3, v0', 'v_and_b32 v7, 7, v0', 'v_lshlrev_b32 v9, 16, v8', 'v_lshl_add_u32 v9, v7, 4, v9')
    if qperm: A(f's_xor_b32 s5, s5, {qperm}')
    A('s_and_b32 s57, s5, 1', 's_lshl2_add_u32 s57, s57, s6')
    A('s_lshl_b32 s56, s57, 12', 's_lshr_b32 s59, s5, 1', 's_lshl3_add_u32 s59, s4, s59', 's_add_u32 s56, s56, s59', 's_lshl_b32 s56, s56, 7')
    A('s_lshl_b32 s57, s57, 7')
    A('v_lshlrev_b32 v8, 4, v8', 'v_lshl_add_u32 v8, v16, 10, v8')
    A('s_waitcnt lgkmcnt(0)')
    A('s_mov_b64 s[16:17], s[36:37]', 's_mov_b64 s[24:25], s[40:41]')
    if st0: stamp(12)
    for i in range(8):
        A(f'buffer_load_dwordx4 {vr(WQ+4*i,4)}, v9, s[16:19], s56 offen{WP}')
        if i < 7: A('s_addk_i32 s56, 0x2000')
    A(f'buffer_load_dwordx4 {vr(XR,4)}, v8, s[24:27], s57 offen')
    if b0w >= 0:
        A('s_add_u32 s59, s16, s56', 's_bfe_u32 s59, s59, 0x30007', 's_cmp_eq_u32 s59, 3', 's_cbranch_scc1 L_b0', f's_waitcnt vmcnt({b0w})')
        A.lab('L_b0')
    A('s_barrier')
    A('s_load_dword s7, s[50:51], 0x%x' % WS_EPOCH)
    A('s_mov_b64 s[20:21], s[50:51]', 's_mov_b64 s[8:9], s[34:35]')
    A('s_lshl_b32 s59, s6, 11', f's_add_u32 s59, s59, {OL}', 'v_add_u32 v19, s59, v14')
    A('v_lshlrev_b32 v17, 9, v1', 'v_lshl_add_u32 v17, v7, 4, v17', 'v_add_u32 v17, s59, v17')
    A('v_bfe_u32 v12, v0, 1, 4', 'v_lshlrev_b32 v12, 6, v12', 'v_and_b32 v8, 1, v0', 'v_lshl_add_u32 v12, v8, 10, v12')
    A('s_lshl_b32 s59, s6, 4', f's_add_u32 s59, s59, {OL}', 'v_add_u32 v12, s59, v12')
    A('v_lshlrev_b32 v18, 11, v1', 'v_lshl_add_u32 v18, v2, 6, v18', 'v_add_u32 v18, s59, v18')
    A('v_add_u32 v15, s54, v14')
    A(f'v_mov_b32 v10, {CNT}', 'v_mov_b32 v11, 1')
    A('s_lshl2_add_u32 s57, s3, s6', 's_lshl4_add_u32 s57, s57, s5', 's_lshl_b32 s57, s57, 8', f's_add_u32 s57, s57, 0x{WS_Q:x}')
    if prq: A('s_mov_b64 exec, 0xffff', f'buffer_load_dword v68, v14, s[20:23], s57 offen{PR}', 's_mov_b64 exec, -1')
    A('v_and_b32 v8, 4, v0', 'v_cmp_eq_u32 vcc, 0, v8')
    A('s_waitcnt vmcnt(0) lgkmcnt(0)')
    A(f's_add_u32 s7, s7, 0x{TAGC:x}')
    if st0: stamp(13)
    for i in range(4): A(f'v_cndmask_b32 v{XB+i}, 0, v{XR+i}, vcc', f'v_cndmask_b32 v{XB+4+i}, v{XR+i}, 0, vcc')
    def mfq(e):
        c = '0' if (e & 1) == 0 else vr(QA + 4 * (e >> 1), 4)
        A(f'v_mfma_f32_16x16x32_bf16 {vr(QA+4*(e>>1),4)}, {vr(T+4*e,4)}, {vr(XB+4*(e&1),4)}, {c}')
    perm_mfma(WQ, T, mfq)
    A('s_mov_b32 exec_lo, 0x00ff00ff', 's_mov_b32 exec_hi, 0xff00ff00', 's_nop 6')
    for a_ in range(4): A(f'ds_write_b128 v17, {vr(QA+4*a_,4)} offset:{128*a_}')
    A('s_mov_b64 exec, 1', 'ds_add_u32 v10, v11', 's_mov_b64 exec, -1')
    A('s_add_u32 s59, s7, s12', 's_mov_b32 s56, 0x07060503', 's_mov_b32 s58, 0x07060502', 's_mov_b32 s62, 0x07060501')
    A('v_mov_b32 v67, s59', f's_mov_b32 s59, {spin}')
    A.lab('L_xspin')
    A('ds_read_b32 v4, v10')
    for w in range(2): A(f'ds_read_b128 {vr(T+4*w,4)}, v18 offset:{1024*w}')
    A('s_waitcnt lgkmcnt(2)')
    A('v_readfirstlane_b32 s53, v4', 's_cmp_eq_u32 s53, 4', 's_cbranch_scc1 L_xall')
    A('s_sub_u32 s59, s59, 1', 's_cbranch_scc0 L_xspin')
    A.lab('L_xall')
    A.c("add the partials of batch cw and publish them; the tag also carries the XCD number")
    A('s_waitcnt lgkmcnt(0)')
    for i in range(4): A(f'v_add_f32 v{T+i}, v{T+i}, v{T+4+i}')
    swapadd32(T, T + 4); swapadd16(T, T + 4)
    A(f'v_perm_b32 v64, v{T}, v{T+3}, s56', f'v_perm_b32 v65, v{T+1}, v{T+3}, s58', f'v_perm_b32 v66, v{T+2}, v{T+3}, s62')
    A('s_mov_b64 exec, 0xffff')
    if nost: A('s_branch L_qd')
    if qloc:
        A.c('on the XCD that round-robin placement gives the team the shared L2 carries it; anywhere else it is written through')
        A('s_cmp_eq_u32 s12, s42', 's_cbranch_scc1 L_ql')
    A('buffer_store_dwordx4 v[64:67], v14, s[20:23], s57 offen sc1')
    if qloc:
        A('s_branch L_qd')
        A.lab('L_ql'); A('buffer_store_dwordx4 v[64:67], v14, s[20:23], s57 offen'); A.lab('L_qd')
    A('s_mov_b64 exec, -1')
    A('v_lshl_add_u32 v8, v1, 2, v16', 's_lshl_b32 s57, s6, 10', f's_add_u32 s57, s57, {PX}')
    A('v_lshlrev_b32 v8, 4, v8', 'v_add_u32 v8, s57, v8', f'v_mov_b32 v9, {ZL}')
    versions(20, 8, 9)
    A('s_lshl_b32 s59, s6, 4', f's_add_u32 s59, s59, {ML}', 'v_mov_b32 v13, s59')
    A('s_lshl_b32 s57, s63, 11', 's_lshl_b32 s59, s6, 9', 's_add_u32 s57, s57, s59', f's_add_u32 s57, s57, 0x{WS_O:x}')
    A(f'v_mov_b32 v2, {CNT+8}', 'v_mov_b32 v3, 1', 'v_mov_b32 v9, s7', 'v_mov_b32 v11, s7')
    if vprio: A('s_setprio 0')
    A('s_barrier')
    def vseq(thr):
        for n in range(32):
            if n % 4 == 0: A(f's_lshr_b32 s56, s96, {ISH}', 's_add_u32 s96, s96, s97')
            if thr and n >= thr: A(f's_waitcnt vmcnt({thr-1})')
            A(f'buffer_load_dwordx4 {vr(V0+4*n,4)}, v15, s[8:11], s56 offen offset:{(n%4)*1024}{P}')
    if orc:
        th = [int(z) for z in orc.split('-')]
        A('s_memrealtime s[92:93]', 's_waitcnt lgkmcnt(0)', 's_sub_u32 s92, s92, s64', f's_cmp_ge_u32 s92, {th[1]}', 's_cbranch_scc1 L_vo2', f's_cmp_ge_u32 s92, {th[0]}', 's_cbranch_scc1 L_vo1')
        for i in range(3):
            A.lab(f'L_vo{i}'); vseq(th[2 + i])
            if i < 2: A('s_branch L_vod')
        A.lab('L_vod')
    elif LV:
        for i in range(1, len(LV)): A(f's_cmp_eq_u32 s98, {i}', f's_cbranch_scc1 L_vs{i}')
        for i, (kt, vt) in enumerate(LV):
            A.lab(f'L_vs{i}'); vseq(vt)
            if i + 1 < len(LV): A('s_branch L_vsd')
        A.lab('L_vsd')
    else: vseq(vthr)
    stamp(14)
    A('s_barrier')
    A('ds_read_b128 v[4:7], v13', 'ds_read_b32 v8, v10 offset:4')
    for G_ in range(4):
        for e in range(4): A(f'ds_read_b128 {vr(PB+16*G_+4*e,4)}, v{20+e} offset:{256*G_}')
        if G_ == 1: A('s_waitcnt lgkmcnt(0)')
    A('v_readfirstlane_b32 s13, v8')
    A('v_max3_f32 v8, v4, v5, v6', 'v_max_f32 v8, v8, v7')
    for w in range(4): A(f'v_sub_f32 v{4+w}, v{4+w}, v8')
    for w in range(4): A(f'v_exp_f32 v{4+w}, v{4+w}')
    A('s_lshr_b32 s13, s13, 8')
    for G_ in range(4):
        xo = int(0 <= pro <= 24 and pro >= 8 * (G_ + 1))
        if G_ == 2: A(f's_waitcnt vmcnt({8*(3-G_)+xo}) lgkmcnt(0)')
        elif trim and G_ == 3: A('s_nop 4')
        else: A(f's_waitcnt vmcnt({8*(3-G_)+xo})')
        if G_ == 3 and not trim: stamp(6)
        def mf(e):
            idx = e >> 2
            c = '0' if (G_ == 0 and (e & 3) == 0) else vr(ACC + 4 * idx, 4)
            A(f'v_mfma_f32_16x16x32_bf16 {vr(ACC+4*idx,4)}, {vr(T+4*e,4)}, {vr(PB+16*G_+4*(e&3),4)}, {c}')
        if trim and G_ == 3:
            src = V0 + 96
            for d in range(4):
                A(f's_waitcnt vmcnt({6-2*d})')
                if d == 3: stamp(6)
                for dp in range(4):
                    A(f'v_perm_b32 v{T+8*dp+d}, v{src+4*(2*d+1)+dp}, v{src+8*d+dp}, {SLO}', f'v_perm_b32 v{T+8*dp+4+d}, v{src+4*(2*d+1)+dp}, v{src+8*d+dp}, {SHI}')
            for e in (0, 4, 1, 5, 2, 6, 3, 7): mf(e)
        else:
            perm_mfma(V0 + 32 * G_, T, mf)
    if not st0: stamp(12)
    A(f's_mov_b32 s59, {spin}', 's_nop 5')
    A(f'ds_write_b128 v19, {vr(ACC,4)}', f'ds_write_b128 v19, {vr(ACC+4,4)} offset:1024')
    A('s_mov_b64 exec, 1', 'ds_add_u32 v2, v3', 's_mov_b64 exec, -1')
    A.lab('L_ospin')
    A('ds_read_b32 v3, v2')
    for w in range(4): A(f'ds_read_b128 v[{64+4*w}:{67+4*w}], v12 offset:{2048*w}')
    A('s_waitcnt lgkmcnt(4)')
    A('v_readfirstlane_b32 s56, v3', 's_cmp_eq_u32 s56, 4', 's_cbranch_scc1 L_oall')
    A('s_sub_u32 s59, s59, 1', 's_cbranch_scc0 L_ospin')
    A.lab('L_oall')
    if not st0: stamp(13)
    A('s_waitcnt lgkmcnt(3)')
    if trim:
        for r in range(2): A(f'v_pk_mul_f32 v[{24+2*r}:{25+2*r}], v[{64+2*r}:{65+2*r}], v[4:5] op_sel_hi:[1,0]')
        for w in range(1, 4):
            A(f's_waitcnt lgkmcnt({3-w})')
            o = w & 1
            for r in range(2): A(f'v_pk_fma_f32 v[{24+2*r}:{25+2*r}], v[{64+4*w+2*r}:{65+4*w+2*r}], v[{4+(w&2)}:{5+(w&2)}], v[{24+2*r}:{25+2*r}] op_sel:[0,{o},0] op_sel_hi:[1,{o},1]')
    else:
        for r in range(4): A(f'v_mul_f32 v{24+r}, v4, v{64+r}')
        for w in range(1, 4):
            A(f's_waitcnt lgkmcnt({3-w})')
            for r in range(4): A(f'v_fmac_f32 v{24+r}, v{4+w}, v{64+4*w+r}')
    A('v_cvt_pk_bf16_f32 v8, v24, v25', 'v_cvt_pk_bf16_f32 v10, v26, v27')
    A('s_mov_b32 exec_hi, 0')
    if cut != 2: team_store('buffer_store_dwordx4 v[8:11], v14, s[20:23], s57 offen')
    if stamps:
        A('s_mov_b32 exec_hi, -1')
        stamp(7)
        A(f's_cmp_lg_u32 s6, {vw}', 's_cbranch_scc1 L_end')
        dump_stamps([6, 7, 12, 13, 14])
    A('s_endpgm')

    A.lab('L_end')
    A('s_endpgm')
    A.lab('L_code_end')
    out += A.L
    out += ['.section .rodata,"a"', '.p2align 6', f'.amdhsa_kernel {KN}_kernel',
            '  .amdhsa_next_free_vgpr 256', '  .amdhsa_next_free_sgpr 102', '  .amdhsa_accum_offset 256',
            '  .amdhsa_group_segment_fixed_size 0', '  .amdhsa_kernarg_size 112', '  .amdhsa_user_sgpr_count 2',
            '  .amdhsa_user_sgpr_kernarg_segment_ptr 1', '  .amdhsa_system_sgpr_workgroup_id_x 1', '.end_amdhsa_kernel']
    return '\n'.join(out) + '\n'

if __name__ == '__main__':
    ap = argparse.ArgumentParser()
    ap.add_argument('-o', default='k.s')
    ap.add_argument('--set', action='append', default=[])
    a = ap.parse_args()
    kw = {}
    for s in a.set:
        k, v = s.split('=')
        try: v = int(v)
        except ValueError: pass
        kw[k] = v
    open(a.o, 'w').write(gen(**kw))
```

```python
import sys, argparse
KN = 'gated_mix__sliding_block_cached__sliding_block_cached__decode'
HEADER = open('cdna_kernels/' + KN + '.s.ref').read().split('; Override launch')[0]

WS_EPOCH = 0x0
WS_ML = 0x1000
WS_O = 0x40000
WS_P = 0xC0000
WS_Q = 0x140000
WS_BYTES = 285221888
STAMP_OFF = 64 << 20
TAGC = 0x9E3779B1
KL = 0
QL = 131072
ZL = QL + 1024
PX = ZL + 1024
ML = PX + 4096
LL = ML + 64
CNT = LL + 64
GL = CNT + 64
OX = GL + 64
OL = OX + 1024
LDS_BYTES = OL + 8192
LOG2E = 0x3FB8AA3B
SCALE = 0x3DB504F3

class G:
    def __init__(s): s.L = []
    def __call__(s, *ts):
        for t in ts: s.L.append('  ' + t)
    def lab(s, t): s.L.append(t + ':')
    def c(s, t): s.L.append('  ; ' + t)

def vr(a, n=1):
    return f'v{a}' if n == 1 else f'v[{a}:{a+n-1}]'

def gen(stamps=False, pol='nt', wpol='nt', spin=200000, prefetch=0, sleep=0, touch=1, kprio=1, vprio=3,
        gran=4, rotmul=4, ackfirst=1, local=1, echo=-1, sleep2=-1, echog=-1, pre=0, mask1=1, h2=1, stag=6, qplain=0, st0=0, kb0=0, pat=1, rot=0, qloc=1, xdbg=0, trim=1, pd=3, mlp=0, qd=0, vw=0, bvst=0, ost='', ppl='sc1', pst='sc1', pl=1, cut=0, skip=0, esh=0, b0st=0, kthr=6, vthr=8, kgrp=2, kx=0, qperm=0, b0w=-1, xq=0, qv=0, nost=0, qf='sc1_nt', mf='sc1_nt', of='sc1_nt', pr='nt', prq=0, prm=0, pro=-1, prp=0, eneg=-1, ex=-1, lv='7.8-12.12', wo_=0, ws_=1, orc='', om=1, wb=0, vp2=0):
    if sleep2 < 0: sleep2 = sleep
    A = G()
    P = (' ' + pol) if pol else ''
    WP = (' ' + wpol) if wpol else ''
    PR = (' ' + pr) if pr != 'p' else ''
    out = [HEADER.rstrip('\n'),
           '; Override launch geometry by editing the next line (default: block=256,',
           '; grid=ceil(out_elems/256), lds=0). Harness parses it; keep it on one line.',
           f'; @launch grid=(256,1,1) block=(512,1,1) lds={LDS_BYTES}',
           '.amdgcn_target "amdgcn-amd-amdhsa--gfx950"', '.text', f'.globl {KN}_kernel', '.p2align 8',
           f'.type {KN}_kernel,@function', f'{KN}_kernel:']
    SLO, SHI = 's60', 's61'
    def stamp(i):
        if stamps or (echo >= 0 and i in (0, echo, eneg)): A(f's_memrealtime s[{64+2*i}:{65+2*i}]')
    def allred(op, r, t, quad=False):
        if quad:
            A('s_nop 1', f'{op}_dpp v{r}, v{r}, v{r} quad_perm:[1,0,3,2] row_mask:0xf bank_mask:0xf')
            A('s_nop 1', f'{op}_dpp v{r}, v{r}, v{r} quad_perm:[2,3,0,1] row_mask:0xf bank_mask:0xf')
        A('s_nop 1', f'{op}_dpp v{r}, v{r}, v{r} row_ror:4 row_mask:0xf bank_mask:0xf')
        A('s_nop 1', f'{op}_dpp v{r}, v{r}, v{r} row_ror:8 row_mask:0xf bank_mask:0xf')
        A(f'v_mov_b32 v{t}, v{r}', 's_nop 1', f'v_permlane16_swap_b32 v{r}, v{t}', 's_nop 1', f'{op} v{r}, v{r}, v{t}')
        A(f'v_mov_b32 v{t}, v{r}', 's_nop 1', f'v_permlane32_swap_b32 v{r}, v{t}', 's_nop 1', f'{op} v{r}, v{r}, v{t}')
    def perm_mfma(src, T, mf):
        for dp in range(4):
            for d in range(4):
                A(f'v_perm_b32 v{T+4*(2*dp)+d}, v{src+4*(2*d+1)+dp}, v{src+4*(2*d)+dp}, {SLO}')
            if dp > 0 and mf: mf(2 * dp - 1)
            for d in range(4):
                A(f'v_perm_b32 v{T+4*(2*dp+1)+d}, v{src+4*(2*d+1)+dp}, v{src+4*(2*d)+dp}, {SHI}')
            if mf: mf(2 * dp)
        if mf:
            A('s_nop 1'); mf(7)
    def tagcheck(regs):
        A(f'v_xor_b32 v6, s7, v{regs[0]+1}', f'v_xor_b32 v7, s7, v{regs[0]+3}')
        for r in regs[1:]:
            A(f'v_bitop3_b32 v6, v{r+1}, s7, v6 bitop3:0xbe', f'v_bitop3_b32 v7, v{r+3}, s7, v7 bitop3:0xbe')
        A('v_or_b32 v6, v6, v7', 'v_cmp_ne_u32 vcc, 0, v6')
    def versions(dst, good, bad):
        for e in range(4):
            A(f'v_cmp_eq_u32 vcc, {e}, v5', 's_nop 1', f'v_cndmask_b32 v{dst+e}, v{bad}, v{good}, vcc')
    def unpack(dst, a, b):
        A(f'v_lshlrev_b32 v{dst}, 16, v{a}', f'v_and_b32 v{dst+1}, 0xffff0000, v{a}', f'v_lshlrev_b32 v{dst+2}, 16, v{b}', f'v_and_b32 v{dst+3}, 0xffff0000, v{b}')
    def swapadd32(r, t):
        for i in range(4): A(f'v_mov_b32 v{t+i}, v{r+i}')
        A('s_nop 0')
        for i in range(4): A(f'v_permlane32_swap_b32 v{r+i}, v{t+i}')
        A('s_nop 0')
        for i in range(4): A(f'v_add_f32 v{r+i}, v{r+i}, v{t+i}')
    def swapadd16(r, t):
        for i in range(4): A(f'v_mov_b32 v{t+i}, v{r+i}')
        A('s_nop 0')
        for i in range(4): A(f'v_permlane16_swap_b32 v{r+i}, v{t+i}')
        A('s_nop 0')
        for i in range(4): A(f'v_add_f32 v{r+i}, v{r+i}, v{t+i}')
    nteam = [0]
    def team_store(txt):
        if not local:
            A(txt + ' sc1'); return
        n = nteam[0]; nteam[0] += 1
        A('s_cmp_eq_u32 s13, 0', f's_cbranch_scc1 L_tl{n}', txt + ' sc1', f's_branch L_td{n}')
        A.lab(f'L_tl{n}'); A(txt); A.lab(f'L_td{n}')
    def dump_stamps(idx):
        A('s_waitcnt lgkmcnt(0)')
        A('s_lshl_b32 s59, s2, 7', f's_add_u32 s59, s59, 0x{STAMP_OFF:x}', 'v_mov_b32 v7, 0')
        for i in idx:
            A(f'v_mov_b32 v8, s{64+2*i}', f'v_mov_b32 v9, s{65+2*i}')
            A(f'buffer_store_dwordx2 v[8:9], v7, s[20:23], s59 offen offset:{8*i}', 's_nop 1')

    A('s_cmpk_ge_u32 s2, 0x100', 's_cbranch_scc1 L_end')
    stamp(0)
    A('s_and_b32 s52, s2, 8', 's_mul_i32 s52, s52, 5')
    A('s_load_dwordx8 s[32:39], s[0:1], s52 offset:8')
    A('s_load_dwordx2 s[40:41], s[0:1], 0')
    A('s_load_dwordx8 s[44:51], s[0:1], 80')
    A('v_lshrrev_b32 v1, 6, v0', 'v_and_b32 v0, 63, v0', 'v_readfirstlane_b32 s6, v1', 'v_lshlrev_b32 v14, 4, v0')
    A('s_bitcmp1_b32 s6, 2', 's_cbranch_scc1 L_vwave')
    ISH = 13 if pat else 15
    def kvbase():
        if kx: A('s_lshr_b32 s58, s2, 6', 's_lshr_b32 s4, s52, 5', 's_xor_b32 s4, s4, s2', 's_and_b32 s4, s4, 7', 's_lshl3_add_u32 s54, s58, s4', 's_lshr_b32 s5, s2, 4')
        else: A('s_lshr_b32 s58, s2, 6', 's_and_b32 s4, s2, 7', 's_lshl3_add_u32 s54, s58, s4', 's_lshr_b32 s5, s2, 4')
        if pat:
            A('s_and_b32 s59, s5, 3', 's_lshl2_add_u32 s54, s54, 3', 's_lshl_b32 s54, s54, 7', 's_lshl2_add_u32 s59, s59, s6', 's_add_u32 s54, s54, s59', 's_lshl_b32 s54, s54, 12')
        else:
            A('s_or_b32 s59, s5, 12', 's_lshl4_add_u32 s54, s54, s59', 's_lshl_b32 s54, s54, 5', 's_add_u32 s54, s54, s6', 's_lshl_b32 s54, s54, 12')
        A('s_lshl_b32 s96, s2, 29' if rot else 's_mov_b32 s96, 0', 's_lshl_b32 s97, 1, 29')
        A('s_lshl_b32 s10, 1, 26', 's_mov_b32 s11, 0x20000')
    LV = [tuple(int(z) for z in p.split('.')) for p in lv.split('-')] if lv else []
    def level():
        if wo_:
            A('s_getreg_b32 s98, hwreg(HW_REG_XCC_ID, 0, 1)', f's_mul_i32 s98, s98, {wo_}', 's_lshr_b32 s59, s5, 1', 's_cmp_eq_u32 s59, 3', f's_cselect_b32 s59, {ws_}, 0')
            A('s_add_u32 s98, s98, s59', f's_min_u32 s98, s98, {len(LV) - 1}')
        else: A('s_lshr_b32 s59, s5, 1', 's_cmp_eq_u32 s59, 3', f's_cselect_b32 s98, {min(ws_, len(LV) - 1)}, 0')
    kvbase()
    if LV: level()
    A('v_and_b32 v3, 48, v0', 'v_lshlrev_b32 v3, 2, v3', 'v_xor_b32 v10, v14, v3', 'v_add_u32 v10, s54, v10')
    for n in range(1, 4): A(f'v_xor_b32 v{10+n}, {16*n}, v10')
    A('s_lshl_b32 m0, s6, 15', 's_mov_b32 s59, 7')
    if kprio: A(f's_setprio {kprio}')
    A('s_waitcnt lgkmcnt(0)', 's_mov_b64 s[8:9], s[32:33]')
    if st0: stamp(5)
    def kloop(tag, thr, grp):
        A.lab(f'L_kloop{tag}')
        A(f's_lshr_b32 s56, s96, {ISH}')
        if kb0 > 0:
            A(f's_cmp_lg_u32 s59, {7-kb0}', f's_cbranch_scc1 L_knob{tag}', 's_barrier')
            A.lab(f'L_knob{tag}')
        for n in range(4):
            if thr and (not grp or n % grp == 0): A(f's_waitcnt vmcnt({thr - max(grp, 1)})')
            A(f'buffer_load_dwordx4 v{10+n}, s[8:11], s56 offen offset:{n*1024}{P} lds')
        A('s_add_u32 s96, s96, s97', 's_addk_i32 m0, 0x1000', 's_sub_u32 s59, s59, 1', f's_cbranch_scc0 L_kloop{tag}')
    if kb0 == 0:
        A('s_barrier')
        if b0st: stamp(5)
    if LV:
        for i in range(1, len(LV)): A(f's_cmp_eq_u32 s98, {i}', f's_cbranch_scc1 L_kloop{i}')
        for i, (kt, vt) in enumerate(LV):
            kloop(i, kt, 0)
            if i + 1 < len(LV): A('s_branch L_entry_end')
    else: kloop('', kthr, kgrp)
    A.lab('L_entry_end')
    def common():
        A('s_and_b32 s3, s2, 15', 's_and_b32 s59, s5, 3', 's_and_b32 s42, s2, 7')
        A(f's_mov_b32 {SLO}, 0x05040100', f's_mov_b32 {SHI}, 0x07060302')
        A('s_mov_b32 s18, 0x400000', 's_mov_b32 s19, 0x20000')
        A(f's_mov_b32 s22, {WS_BYTES}', 's_mov_b32 s23, 0x20000')
        A('s_mov_b32 s26, 4096', 's_mov_b32 s27, 0x20000')
        A('s_lshl_b32 s55, s6, 15')
        A('s_lshl2_add_u32 s63, s59, s58', 's_lshl4_add_u32 s63, s3, s63')
        A('s_getreg_b32 s12, hwreg(HW_REG_XCC_ID, 0, 3)')
        A('v_lshrrev_b32 v1, 4, v0')
        A('v_and_b32 v2, 15, v0')
        A('v_bfe_u32 v5, v0, 2, 2')
        A('v_and_b32 v16, 3, v0')

    R1 = 64; PB = 48; ACC = 40; WO = 128; WT = 160
    stamp(1)
    A('s_barrier')
    A('s_load_dword s7, s[50:51], 0x%x' % WS_EPOCH)
    common()
    A('s_mov_b64 s[20:21], s[50:51]')
    A('s_lshl2_add_u32 s57, s3, s58', 's_lshl2_add_u32 s57, s57, s6', 's_lshl_b32 s57, s57, 10', f's_add_u32 s57, s57, 0x{WS_Q:x}')
    QP = 64
    def pollq(f=' sc1'): A(f'buffer_load_dwordx4 {vr(QP,4)}, v14, s[20:23], s57 offen{f}')
    if qv in (0, 5): pollq(' ' + qf.replace('_', ' '))
    if qv == 2: A('s_mov_b64 s[24:25], s[40:41]', 's_lshl_b32 s56, s6, 10', f'buffer_load_dwordx4 {vr(QP,4)}, v14, s[24:27], s56 offen sc1')
    if qv == 3: A('s_add_u32 s56, s57, 0x200000', f'buffer_load_dwordx4 {vr(QP,4)}, v14, s[20:23], s56 offen nt')
    if qv == 4: A('s_add_u32 s56, s57, 0x40000', f'buffer_load_dwordx4 {vr(QP,4)}, v14, s[20:23], s56 offen nt')
    for e in range(xq): A(f's_xor_b32 s56, s57, {4096 * (e + 1)}', f'buffer_load_dwordx4 v[{232}:{235}], v14, s[20:23], s56 offen' + ('' if qplain else ' sc1'))
    A('s_mov_b32 s24, s46', 's_mov_b32 s25, s47', 's_mov_b32 s16, s38', 's_mov_b32 s17, s39')
    NT = 0
    if touch == 1:
        A.c('first touch of the output page')
        A('s_mov_b64 exec, 1', 'buffer_load_dword v237, v14, s[24:27], 0 offen', 's_mov_b64 exec, -1'); NT = 1
    if prm:
        A('s_lshl_b32 s56, s3, 10', f's_add_u32 s56, s56, 0x{WS_ML:x}', 'v_lshlrev_b32 v7, 7, v0', 's_mov_b64 exec, 0xff', f'buffer_load_dword v236, v7, s[20:23], s56 offen{PR}', 's_mov_b64 exec, -1')
    A('v_lshlrev_b32 v15, 10, v1', 'v_lshl_add_u32 v15, v2, 4, v15')
    A('v_lshl_add_u32 v4, v16, 2, v5', 'v_lshlrev_b32 v4, 8, v4', 'v_add_u32 v4, s55, v4')
    A('v_xor_b32 v6, v1, v2', 'v_lshlrev_b32 v6, 4, v6')
    for t in range(4): A(f'v_xor_b32 v7, {64*t}, v6', f'v_add_u32 v{20+t}, v4, v7')
    A('v_lshlrev_b32 v7, 8, v16', 'v_lshl_add_u32 v7, v1, 4, v7', f'v_add_u32 v7, {QL}, v7', f'v_mov_b32 v8, {ZL}')
    versions(32, 7, 8)
    A('s_lshl_b32 s59, s6, 8', f's_add_u32 s59, s59, {QL}')
    A('v_lshrrev_b32 v9, 5, v0', 'v_lshlrev_b32 v9, 7, v9', 'v_bfe_u32 v8, v0, 3, 1', 'v_lshl_add_u32 v9, v8, 6, v9')
    A('v_and_b32 v8, 7, v0', 'v_lshl_add_u32 v9, v8, 1, v9', 'v_add_u32 v9, s59, v9')
    A('v_lshlrev_b32 v18, 4, v16', 's_lshl_b32 s59, s6, 2', f's_add_u32 s59, s59, {ML}', 'v_add_u32 v18, s59, v18')
    A('v_lshl_add_u32 v17, v1, 2, v16', 'v_lshlrev_b32 v17, 4, v17')
    A('v_lshrrev_b32 v8, 1, v5', 'v_lshl_add_u32 v17, v8, 8, v17', 'v_and_b32 v8, 1, v5', 'v_lshl_add_u32 v17, v8, 3, v17')
    A('s_lshl_b32 s59, s6, 10', f's_add_u32 s59, s59, {PX}', 'v_add_u32 v17, s59, v17')
    A('s_waitcnt lgkmcnt(0)')
    A(f's_add_u32 s7, s7, 0x{TAGC:x}')
    A(f's_mov_b32 s59, {spin}', 's_add_u32 s62, s7, s12')
    if qv: A('s_waitcnt vmcnt(0)', 's_mov_b32 s13, 0', 's_branch L_noml')
    A.lab('L_pollq')
    A('s_waitcnt vmcnt(0)')
    A(f'v_subrev_u32 v6, s7, v{QP+3}', 'v_cmp_lt_u32 vcc, 7, v6')
    A('s_cbranch_vccz L_gotq', 's_sub_u32 s59, s59, 1', 's_cbranch_scc1 L_gotq')
    pollq()
    A('s_branch L_pollq')
    A.lab('L_gotq')
    stamp(3)
    A(f'v_cmp_ne_u32 vcc, s62, v{QP+3}')
    A('s_mov_b32 s56, 0x04000c0c', 's_mov_b32 s57, 0x0706000c')
    A(f'v_perm_b32 v27, v{QP}, v{QP+1}, s56', f'v_perm_b32 v27, v27, v{QP+2}, s57')
    A('s_cmp_eq_u64 vcc, 0', 's_cselect_b32 s59, 1, 0x101')
    for i in range(3): A(f'v_mov_b32 v{24+i}, v{QP+i}')
    swapadd16(24, 28)
    A('v_cvt_pk_bf16_f32 v24, v24, v25', 'v_cvt_pk_bf16_f32 v25, v26, v27')
    A(f'v_mov_b32 v6, {CNT+4}', 'v_mov_b32 v7, s59')
    A('ds_write_b16 v9, v24', 'ds_write_b16_d16_hi v9, v24 offset:16', 'ds_write_b16 v9, v25 offset:32', 'ds_write_b16_d16_hi v9, v25 offset:48')
    A('s_mov_b64 exec, 1', 'ds_add_u32 v6, v7', 's_mov_b64 exec, -1')
    Qb = [R1, R1 + 16]; Kb = [R1 + 32, R1 + 48]
    def rdq(x):
        for t in range(4): A(f'ds_read_b128 {vr(Qb[x&1]+4*t,4)}, v{32+x} offset:{64*t}')
    def rdk(T_, buf):
        for t in range(4): A(f'ds_read_b128 {vr(Kb[buf]+4*t,4)}, v{20+t} offset:{4096*T_}')
    def mm(T_, buf):
        x = T_ & 3; a = T_ >> 2
        for t in range(4):
            c = '0' if (x == 0 and t == 0) else vr(ACC+4*a, 4)
            A(f'v_mfma_f32_16x16x32_bf16 {vr(ACC+4*a,4)}, {vr(Kb[buf]+4*t,4)}, {vr(Qb[x&1]+4*t,4)}, {c}')
    rdk(0, 0); rdk(4, 1)
    A(f's_mov_b32 s59, {spin}', f's_mov_b32 s62, 0x{SCALE:x}', f's_mov_b32 s14, 0x{LOG2E:x}')
    A.lab('L_qspin')
    A('ds_read_b32 v7, v6', 's_waitcnt lgkmcnt(0)', 'v_readfirstlane_b32 s13, v7', 's_and_b32 s56, s13, 255', 's_cmp_eq_u32 s56, 4', 's_cbranch_scc1 L_qall')
    A('s_sub_u32 s59, s59, 1', 's_cbranch_scc0 L_qspin')
    A.lab('L_qall')
    rdq(0)
    A('s_lshr_b32 s13, s13, 8')
    if qloc:
        A('s_cbranch_scc0 L_norep')
        A.c("some member sits on another XCD: write this workgroup's q partials through for it")
        A('s_lshl2_add_u32 s57, s3, s6', 's_lshl4_add_u32 s57, s57, s5', 's_lshl_b32 s57, s57, 8', f's_add_u32 s57, s57, 0x{WS_Q:x}')
        A('s_add_u32 s56, s7, s12', f's_mov_b32 s59, {spin}', 's_mov_b64 exec, 0xffff')
        A.lab('L_rep')
        A('buffer_load_dwordx4 v[24:27], v14, s[20:23], s57 offen sc1', 's_waitcnt vmcnt(0)', 'v_cmp_ne_u32 vcc, s56, v27')
        A('s_cbranch_vccz L_rep2', 's_sub_u32 s59, s59, 1', 's_cbranch_scc0 L_rep')
        A.lab('L_rep2')
        A('buffer_store_dwordx4 v[24:27], v14, s[20:23], s57 offen sc1', 's_mov_b64 exec, -1')
        A.lab('L_norep')
    for x in range(4):
        A('s_waitcnt lgkmcnt(%d)' % (0 if x == 0 else 4))
        mm(x, 0)
        if x < 3:
            rdq(x + 1)
            A('s_waitcnt lgkmcnt(4)')
        else:
            A('s_waitcnt lgkmcnt(0)')
        mm(x + 4, 1)
        if x < 3:
            rdk(x + 1, 0); rdk(x + 5, 1)
    A('s_nop 7')
    S = ACC
    for p in range(4): A(f'v_cvt_pk_bf16_f32 v{28+p}, v{S+2*p}, v{S+2*p+1}')
    for p in range(4): A(f'v_lshlrev_b32 v{S+2*p}, 16, v{28+p}', f'v_and_b32 v{S+2*p+1}, 0xffff0000, v{28+p}')
    for i in range(8): A(f'v_mul_f32 v{S+i}, s62, v{S+i}')
    for p in range(4): A(f'v_cvt_pk_bf16_f32 v{28+p}, v{S+2*p}, v{S+2*p+1}')
    for p in range(4): A(f'v_lshlrev_b32 v{S+2*p}, 16, v{28+p}', f'v_and_b32 v{S+2*p+1}, 0xffff0000, v{28+p}')
    A(f'v_max3_f32 v28, v{S}, v{S+1}, v{S+2}', f'v_max3_f32 v29, v{S+3}, v{S+4}, v{S+5}', f'v_max3_f32 v28, v28, v{S+6}, v{S+7}', 'v_max_f32 v28, v28, v29')
    allred('v_max_f32', 28, 29)
    A('v_mul_f32 v36, s14, v28')
    for i in range(8): A(f'v_fma_f32 v{S+i}, v{S+i}, s14, -v36')
    for i in range(8): A(f'v_exp_f32 v{S+i}, v{S+i}')
    A('ds_write_b32 v18, v36')
    for p in range(4): A(f'v_cvt_pk_bf16_f32 v{32+p}, v{S+2*p}, v{S+2*p+1}')
    A('ds_write_b64 v17, v[32:33]', 'ds_write_b64 v17, v[34:35] offset:512')
    A(f'v_add_f32 v28, v{S}, v{S+1}', f'v_add_f32 v29, v{S+2}, v{S+3}', f'v_add_f32 v30, v{S+4}, v{S+5}', f'v_add_f32 v31, v{S+6}, v{S+7}')
    A('v_add_f32 v28, v28, v29', 'v_add_f32 v30, v30, v31', 'v_add_f32 v28, v28, v30')
    allred('v_add_f32', 28, 29)
    A('ds_write_b32 v18, v28 offset:64')
    A('v_lshlrev_b32 v7, 4, v16', f'v_add_u32 v7, {ML}, v7', f'v_mov_b32 v6, {CNT+12}', 'v_mov_b32 v8, 1')
    A('s_mov_b64 exec, 1', 'ds_add_rtn_u32 v8, v6, v8', 's_mov_b64 exec, -1')
    A('ds_read_b128 v[20:23], v7', 'ds_read_b128 v[24:27], v7 offset:64')
    A('s_add_u32 s15, s7, s12', 'v_mov_b32 v37, s7', 'v_mov_b32 v39, s15')
    A('s_and_b32 s56, s63, 15', 's_lshl_b32 s59, s3, 6', 's_add_u32 s56, s56, s59', 's_lshl_b32 s56, s56, 4', f's_add_u32 s56, s56, 0x{WS_ML:x}', 'v_lshlrev_b32 v7, 8, v0')
    A('s_waitcnt lgkmcnt(0)')
    A('v_readfirstlane_b32 s59, v8', 's_cmp_lg_u32 s59, 3', 's_cbranch_scc1 L_noml')
    A.c('last K wave to finish its softmax publishes (m, l) of this workgroup, lane = head')
    A('v_max3_f32 v36, v20, v21, v22', 'v_max_f32 v36, v36, v23')
    for w in range(4): A(f'v_sub_f32 v{20+w}, v{20+w}, v36')
    for w in range(4): A(f'v_exp_f32 v{20+w}, v{20+w}')
    A('s_nop 0', 'v_mul_f32 v38, v20, v24')
    for w in range(1, 4): A(f'v_fmac_f32 v38, v{20+w}, v{24+w}')
    A('s_mov_b64 exec, 15')
    team_store('buffer_store_dwordx4 v[36:39], v7, s[20:23], s56 offen')
    A('s_mov_b64 exec, -1')
    A.lab('L_noml')
    A('v_lshrrev_b32 v13, 3, v0', 'v_lshlrev_b32 v12, 11, v13', 'v_and_b32 v8, 7, v0', 'v_lshl_add_u32 v12, v8, 4, v12', 'v_lshlrev_b32 v13, 4, v13')
    A('s_lshl_b32 s59, s6, 8', f's_add_u32 s59, s59, {OX}')
    A('v_and_b32 v17, 31, v0', 'v_lshlrev_b32 v17, 3, v17', 'v_add_u32 v17, s59, v17')
    if trim: A('v_lshrrev_b32 v8, 5, v0', 'v_lshl_add_u32 v17, v8, 2, v17')
    A('v_lshlrev_b32 v8, 6, v16', 'v_lshl_add_u32 v8, v1, 4, v8', 'v_add_u32 v8, s59, v8', f'v_mov_b32 v9, {ZL}')
    versions(208, 8, 9)
    A('s_lshl_b32 s59, s6, 11', 'v_add_u32 v19, s59, v14')
    A('s_lshl_b32 s59, s6, 9', 'v_and_b32 v18, 31, v0', 'v_lshlrev_b32 v18, 4, v18', 'v_add_u32 v18, s59, v18')
    A('v_mov_b32 v9, s7', 'v_mov_b32 v11, s7')
    A('s_lshr_b32 s58, s5, 2', 's_and_b32 s59, s5, 3')
    A('s_lshl2_add_u32 s52, s3, s58', 's_lshl_b32 s52, s52, 8', f's_add_u32 s52, s52, 0x{WS_ML:x}')
    A('s_lshl_b32 s50, s3, 15', 's_lshl_b32 s53, s58, 9', 's_add_u32 s50, s50, s53', 's_lshl_b32 s53, s6, 7', 's_add_u32 s50, s50, s53')
    A(f's_add_u32 s50, s50, 0x{WS_O:x}', 's_add_u32 s51, s50, 16384')
    A('s_lshl_b32 s57, s3, 2', 's_add_u32 s57, s57, s58')
    A('s_lshl_b32 s53, s59, 6', 's_add_u32 s53, s53, s57', 's_lshl_b32 s53, s53, 11')
    A('s_lshl_b32 s56, s6, 9', 's_add_u32 s53, s53, s56', f's_add_u32 s53, s53, 0x{WS_P:x}')
    A('s_lshl2_add_u32 s58, s4, s58', 's_lshl_b32 s58, s58, 17', 's_add_u32 s58, s58, s55', 's_lshl_b32 s59, s59, 8', 's_add_u32 s58, s58, s59')
    if om:
        A('s_lshr_b32 s57, s42, 1', 's_and_b32 s56, s2, 1', 's_lshr_b32 s59, s2, 7', 's_lshl1_add_u32 s56, s59, s56', 's_bfe_u32 s59, s2, 0x20005', 's_lshl2_add_u32 s56, s56, s59')
        A('s_bfe_u32 s59, s2, 0x20003', 's_lshl2_add_u32 s56, s56, s59', 's_lshl_b32 s56, s56, 1')
    else:
        A('s_and_b32 s56, s2, 7', 's_lshr_b32 s59, s2, 5', 's_lshl_b32 s59, s59, 3', 's_add_u32 s56, s56, s59', 's_lshr_b32 s57, s56, 4')
        A('s_and_b32 s56, s56, 15', 's_lshl_b32 s56, s56, 3', 's_bfe_u32 s59, s2, 0x20003', 's_lshl_b32 s59, s59, 1', 's_add_u32 s56, s56, s59')
    A('s_lshl_b32 s97, s57, 17', 's_lshl_b32 s59, s56, 4', 's_add_u32 s97, s97, s59', f's_add_u32 s97, s97, 0x{WS_P:x}')
    A('s_add_u32 s98, s97, 65536')
    A('v_lshrrev_b32 v212, 1, v0', 'v_lshlrev_b32 v212, 11, v212', 'v_and_b32 v7, 1, v0', 'v_lshl_add_u32 v212, v7, 4, v212')
    A('v_lshrrev_b32 v7, 5, v0', 'v_add_u32 v4, s56, v7', 'v_and_b32 v7, 3, v4', 'v_lshlrev_b32 v226, 3, v7', f'v_add_u32 v226, {GL}, v226')
    A('v_lshlrev_b32 v213, 9, v7', 's_lshl_b32 s57, s57, 7', 'v_add_u32 v213, s57, v213')
    A('v_bfe_u32 v7, v4, 4, 2', 'v_lshl_add_u32 v213, v7, 5, v213', 'v_lshrrev_b32 v7, 6, v4', 'v_lshl_add_u32 v213, v7, 2, v213')
    A('v_bfe_u32 v7, v4, 2, 2', 'v_add_u32 v213, v213, v7', 'v_lshl_add_u32 v213, v16, 3, v213')
    A('v_lshlrev_b32 v213, 1, v213')
    A('v_and_b32 v7, 1, v0', 'v_lshlrev_b32 v7, 4, v7', 'v_mov_b32 v6, 0x3f80', 'v_lshlrev_b32 v6, v7, v6', 'v_lshrrev_b32 v7, 1, v2')
    for d in range(4): A(f'v_cmp_eq_u32 vcc, {d}, v7', 's_nop 1', f'v_cndmask_b32 v{232+d}, 0, v6, vcc')
    if pl:
        A.c('s99: lanes of the line that workgroups of this XCD will read, when the team sits where round-robin placement puts it')
        if om: A('s_mov_b32 s99, -1', 's_and_b32 s56, s5, 3', 's_and_b32 s59, s6, 1', 's_lshl1_add_u32 s56, s56, s59', 's_xor_b32 s56, s56, s12')
        else: A('s_and_b32 s56, s12, 3', 's_lshl_b32 s56, s56, 3', 's_lshl_b32 s99, 0xff, s56', 's_lshr_b32 s56, s12, 2', 's_and_b32 s59, s6, 1', 's_xor_b32 s56, s56, s59')
        A('s_xor_b32 s59, s12, s42', 's_or_b32 s56, s56, s59', 's_or_b32 s56, s56, s13', 's_cbranch_scc0 L_ppl0', 's_mov_b32 s99, 0', 's_branch L_ppl')
        A.lab('L_ppl0')
        A.c('put that line into the L2 now, untagged, so that early polls stay inside the L2')
        A('s_mov_b32 exec_hi, 0', 's_mov_b32 exec_lo, s99', 'v_not_b32 v21, v9', 'v_not_b32 v23, v9')
        A(f'buffer_load_dword v236, v14, s[20:23], s53 offen{PR}' if prp else 'buffer_store_dwordx4 v[20:23], v14, s[20:23], s53 offen', 's_mov_b64 exec, -1')
        A.lab('L_ppl')
        A('s_xor_b32 s43, s3, 8', 's_lshl_b32 s43, s43, 10', f's_add_u32 s43, s43, 0x{WS_ML:x}', 'v_lshlrev_b32 v228, 4, v2')
    if touch == 2:
        A('s_cmp_lg_u32 s6, 0', 's_cbranch_scc1 L_nt', 's_mov_b64 exec, 3', 'buffer_load_ushort v237, v213, s[24:27], 0 offen', 's_mov_b64 exec, -1')
        A.lab('L_nt')
    stamp(4)
    A('s_barrier')
    if bvst: stamp(15)
    MLR = 216; FA = 224
    def pollml():
        A(f'buffer_load_dwordx4 v[{MLR}:{MLR+3}], v13, s[20:23], s52 offen ' + mf.replace('_', ' '))
        A(f'buffer_load_dwordx4 v[{MLR+4}:{MLR+7}], v13, s[20:23], s52 offen offset:128 ' + mf.replace('_', ' '))
    def mlfactors():
        A(f'v_max_f32 v6, v{MLR}, v{MLR+4}')
        A('v_mov_b32 v7, v6', 's_nop 1', 'v_permlane32_swap_b32 v6, v7', 's_nop 1', 'v_max_f32 v6, v6, v7')
        A(f'v_sub_f32 v{FA}, v{MLR}, v6', f'v_sub_f32 v{FA+1}, v{MLR+4}, v6', f'v_exp_f32 v{FA}, v{FA}', f'v_exp_f32 v{FA+1}, v{FA+1}', 's_nop 0')
        A(f'v_mul_f32 v6, v{FA}, v{MLR+2}', f'v_fmac_f32 v6, v{FA+1}, v{MLR+6}')
        A('v_mov_b32 v7, v6', 's_nop 1', 'v_permlane32_swap_b32 v6, v7', 's_nop 1', 'v_add_f32 v6, v6, v7')
        A('v_rcp_f32 v6, v6', 's_nop 0', f'v_mul_f32 v{FA}, v{FA}, v6', f'v_mul_f32 v{FA+1}, v{FA+1}, v6')
    def mlcheck():
        A(f'v_xor_b32 v6, s7, v{MLR+1}', f'v_bitop3_b32 v6, v{MLR+5}, s7, v6 bitop3:0xbe', 'v_cmp_ne_u32 vcc, 0, v6')
    def poll1():
        A('buffer_load_dwordx4 v[20:23], v12, s[20:23], s50 offen ' + of.replace('_', ' '), 'buffer_load_dwordx4 v[24:27], v12, s[20:23], s51 offen ' + of.replace('_', ' '))
    if mlp == 0 and cut != 2: pollml()
    for n in range(8):
        ro = 8 * (n & 3) + 4 * (n >> 2)
        A(f's_add_u32 s59, s58, {ro*1024}', f'buffer_load_dwordx4 {vr(WO+4*n,4)}, v15, s[16:19], s59 offen{WP}')
    if pd < 0: poll1()
    if not st0 and not b0st: stamp(5)
    if mlp == 0:
        A(f's_waitcnt vmcnt({10 if pd < 0 else 8})')
        mlcheck()
        A('s_mov_b32 s62, 0', 's_cbranch_vccnz L_mllate')
        mlfactors()
        A('s_mov_b32 s62, 1')
        A.lab('L_mllate')
    else: A('s_mov_b32 s62, 0')
    for d in range(4):
        A(f's_waitcnt vmcnt({(8 if d > pd else 6)-2*d})')
        if d == pd and cut not in (1, 2):
            poll1()
            if pl: A('buffer_load_dword v227, v228, s[20:23], s43 offen offset:12 sc1')
        for dp in range(4):
            A(f'v_perm_b32 v{WT+8*dp+d}, v{WO+4*(2*d+1)+dp}, v{WO+8*d+dp}, {SLO}', f'v_perm_b32 v{WT+8*dp+4+d}, v{WO+4*(2*d+1)+dp}, v{WO+8*d+dp}, {SHI}')
    stamp(2)
    if cut in (1, 2):
        A('s_waitcnt vmcnt(0)', 's_cmp_lg_u32 s6, 0', 's_cbranch_scc1 L_end', 's_branch L_fin')
    A(f's_mov_b32 s59, {spin}', 's_cmp_eq_u32 s62, 1', 's_cbranch_scc1 L_poll1')
    A.lab('L_pollml')
    pollml()
    A('s_waitcnt vmcnt(0)')
    mlcheck()
    A('s_cbranch_vccz L_gotml', 's_sub_u32 s59, s59, 1', 's_cbranch_scc0 L_pollml')
    A.lab('L_gotml')
    mlfactors()
    A.lab('L_poll1')
    A('s_waitcnt vmcnt(0)')
    tagcheck([20, 24])
    A('s_cbranch_vccz L_got1', 's_sub_u32 s59, s59, 1', 's_cbranch_scc1 L_got1')
    if sleep: A(f's_sleep {sleep}')
    if mask1: A('s_mov_b64 exec, vcc')
    poll1()
    A('s_branch L_poll1')
    A.lab('L_got1')
    if mask1: A('s_mov_b64 exec, -1')
    stamp(8)
    unpack(28, 20, 22); unpack(36, 24, 26)
    if trim:
        for r in range(2): A(f'v_pk_mul_f32 v[{28+2*r}:{29+2*r}], v[{28+2*r}:{29+2*r}], v[{FA}:{FA+1}] op_sel_hi:[1,0]')
        for r in range(2): A(f'v_pk_fma_f32 v[{28+2*r}:{29+2*r}], v[{36+2*r}:{37+2*r}], v[{FA}:{FA+1}], v[{28+2*r}:{29+2*r}] op_sel:[0,1,0] op_sel_hi:[1,1,1]')
        A('s_nop 1', 'v_permlane32_swap_b32 v28, v30', 'v_permlane32_swap_b32 v29, v31', 's_nop 0')
        A('v_pk_add_f32 v[28:29], v[28:29], v[30:31]')
        A('v_cvt_pk_bf16_f32 v20, v28, v29', 'ds_write_b32 v17, v20')
    else:
        for r in range(4): A(f'v_mul_f32 v{28+r}, v{FA}, v{28+r}')
        for r in range(4): A(f'v_fmac_f32 v{28+r}, v{FA+1}, v{36+r}')
        swapadd32(28, 36)
        A('v_cvt_pk_bf16_f32 v20, v28, v29', 'v_cvt_pk_bf16_f32 v21, v30, v31')
        A('ds_write_b64 v17, v[20:21]')
    for e in range(4): A(f'ds_read_b128 {vr(PB+4*e,4)}, v{208+e}')
    for e in range(4):
        A(f's_waitcnt lgkmcnt({3-e})')
        for idx in range(2):
            c = '0' if e == 0 else vr(ACC + 4 * idx, 4)
            A(f'v_mfma_f32_16x16x32_bf16 {vr(ACC+4*idx,4)}, {vr(WT+4*(4*idx+e),4)}, {vr(PB+4*e,4)}, {c}')
    if pl: A('v_cmp_ne_u32 vcc, s15, v227', 's_nop 3', 's_cmp_eq_u64 vcc, 0', 's_cselect_b32 s99, s99, 0')
    else: A('s_nop 6')
    A(f'ds_write_b128 v19, {vr(ACC,4)}', f'ds_write_b128 v19, {vr(ACC+4,4)} offset:1024')
    A('s_waitcnt lgkmcnt(0)')
    if not st0 and not bvst: stamp(15)
    A('s_barrier')
    for w in range(4): A(f'ds_read_b128 {vr(20+4*w,4)}, v18 offset:{2048*w}')
    def pkadd(d, a):
        for i in range(2): A(f'v_pk_add_f32 v[{d+2*i}:{d+2*i+1}], v[{d+2*i}:{d+2*i+1}], v[{a+2*i}:{a+2*i+1}]')
    A('s_waitcnt lgkmcnt(2)'); pkadd(20, 24)
    A('s_waitcnt lgkmcnt(1)'); pkadd(20, 28)
    A('s_waitcnt lgkmcnt(0)'); pkadd(20, 32)
    A('v_cvt_pk_bf16_f32 v8, v20, v21', 'v_cvt_pk_bf16_f32 v10, v22, v23')
    if pl and om:
        A('s_mov_b32 exec_hi, 0', 's_cmp_lg_u32 s99, 0', 's_cbranch_scc1 L_pl', 'buffer_store_dwordx4 v[8:11], v14, s[20:23], s53 offen sc1', 's_branch L_pnl')
        A.lab('L_pl')
        A('buffer_store_dwordx4 v[8:11], v14, s[20:23], s53 offen')
        A.lab('L_pnl')
        A('s_mov_b32 exec_hi, -1')
    elif pl:
        A('s_mov_b32 exec_hi, 0', 's_not_b32 exec_lo, s99', 'buffer_store_dwordx4 v[8:11], v14, s[20:23], s53 offen sc1')
        A('s_cmp_eq_u32 s99, 0', 's_cbranch_scc1 L_pnl', 's_mov_b32 exec_lo, s99', 'buffer_store_dwordx4 v[8:11], v14, s[20:23], s53 offen')
        A.lab('L_pnl')
        A('s_mov_b64 exec, -1')
    else:
        A('s_mov_b32 exec_hi, 0', 'buffer_store_dwordx4 v[8:11], v14, s[20:23], s53 offen ' + pst.replace('_', ' '), 's_mov_b32 exec_hi, -1')
    stamp(9)
    if cut == 3:
        A('s_waitcnt vmcnt(0)', 's_cmp_lg_u32 s6, 0', 's_cbranch_scc1 L_end', 's_branch L_fin')
    A('s_cmp_lg_u32 s6, 0', 's_cbranch_scc1 L_gate')
    if ackfirst == 1: A('s_waitcnt vmcnt(0)')
    A(f's_mov_b32 s59, {spin}')
    def poll2(r):
        for k in range(2): A(f'buffer_load_dwordx4 v[{r+4*k}:{r+3+4*k}], v212, s[20:23], s{97+k} offen ' + ppl.replace('_', ' '))
    if ackfirst == 2:
        A('s_lshl_b32 s56, s42, 3', 's_lshl_b64 s[32:33], 0xff, s56', 's_not_b64 exec, s[32:33]')
        poll2(20)
        A('s_waitcnt vmcnt(0)')
        tagcheck([20, 24])
        A('s_or_b64 exec, vcc, s[32:33]')
    if h2 < 2:
        A.lab('L_poll2')
        poll2(20)
        A('s_waitcnt vmcnt(0)')
        tagcheck([20, 24])
        A('s_cbranch_vccz L_got2', 's_sub_u32 s59, s59, 1', 's_cbranch_scc1 L_got2')
        if sleep2: A(f's_sleep {sleep2}')
        if h2 == 1: A('s_mov_b64 exec, vcc')
        A('s_branch L_poll2')
    else:
        poll2(44)
        A('s_mov_b64 s[32:33], -1', 's_mov_b64 s[34:35], -1', 's_mov_b64 s[36:37], -1', 's_mov_b64 s[38:39], 0')
        if stag: A(f's_sleep {stag}')
        poll2(52)
        A.lab('L_poll2')
        A('s_mov_b64 exec, s[32:33]', 's_waitcnt vmcnt(2)')
        tagcheck([44, 48])
        A('s_andn2_b64 s[40:41], exec, vcc', 's_or_b64 s[38:39], s[38:39], s[40:41]', 's_andn2_b64 s[36:37], s[36:37], s[40:41]', 's_cbranch_scc0 L_got2')
        A('s_mov_b64 exec, s[36:37]', 's_mov_b64 s[32:33], s[36:37]')
        poll2(44)
        A('s_mov_b64 exec, s[34:35]', 's_waitcnt vmcnt(2)')
        tagcheck([52, 56])
        A('s_andn2_b64 s[40:41], exec, vcc', 's_andn2_b64 s[36:37], s[36:37], s[40:41]', 's_cbranch_scc0 L_got2')
        A('s_mov_b64 exec, s[36:37]', 's_mov_b64 s[34:35], s[36:37]')
        poll2(52)
        A('s_sub_u32 s59, s59, 1', 's_cbranch_scc0 L_poll2')
    A.lab('L_got2')
    if h2: A('s_mov_b64 exec, -1')
    if h2 == 2:
        for i in range(4): A(f'v_cndmask_b32 v{20+2*i}, v{52+2*i}, v{44+2*i}, s[38:39]')
    stamp(10)
    A('ds_read_b64 v[214:215], v226', f's_mov_b32 s59, {spin}')
    A('v_mov_b32 v21, v22', 'v_mov_b32 v22, v24', 'v_mov_b32 v23, v26', 's_nop 1')
    A('v_mfma_f32_16x16x32_bf16 v[28:31], v[20:23], v[232:235], 0', 's_nop 7')
    A('v_pk_add_f32 v[28:29], v[28:29], v[30:31]', 's_waitcnt lgkmcnt(0)', 'v_or_b32 v7, v214, v215')
    A('v_permlane32_swap_b32 v28, v29', 'v_cmp_eq_u32 vcc, 0, v7', 'v_add_f32 v28, v28, v29')
    A('v_mov_b32 v29, v28', 's_nop 1', 'v_permlane16_swap_b32 v28, v29', 's_nop 0', 'v_add_f32 v20, v28, v29')
    A('s_nop 1', 'v_mov_b32_dpp v21, v20 row_ror:12 row_mask:0xf bank_mask:0xf')
    A('v_cvt_pk_bf16_f32 v20, v20, v21')
    A('v_lshlrev_b32 v21, 16, v20', 'v_and_b32 v22, 0xffff0000, v20')
    A('s_cbranch_vccnz L_glate')
    A.lab('L_gok')
    A('v_mul_f32 v21, v21, v214', 'v_mul_f32 v22, v22, v215')
    A('v_cvt_pk_bf16_f32 v20, v21, v22')
    A('v_lshlrev_b32 v21, 16, v20', 'v_and_b32 v22, 0xffff0000, v20', 'v_add_f32 v21, v21, v22')
    A('v_cvt_pk_bf16_f32 v20, v21, v21')
    A('s_mov_b32 exec_lo, 15', 's_mov_b32 exec_hi, 15', 'buffer_store_short v20, v213, s[24:27], 0 offen' + (' ' + ost.replace('_', ' ') if ost else ''))
    A('s_cmp_lg_u32 s2, 0', 's_cbranch_scc1 L_fin')
    A('s_mov_b64 exec, 1', 'v_mov_b32 v6, s7', f'buffer_store_dword v6, v14, s[20:23], 0 offen offset:{WS_EPOCH}')
    A.lab('L_fin')
    if echo >= 0:
        stamp(11)
        A('s_memrealtime s[30:31]', 's_waitcnt lgkmcnt(0)')
        if eneg >= 0: A(f's_sub_u32 s28, s{64+2*eneg}, s{64+2*echo}', 's_add_u32 s28, s28, 300', 's_max_i32 s28, s28, 0')
        else: A(f's_sub_u32 s28, s{64+2*echo}, s64')
        A(f's_lshl_b32 s28, s28, {esh}', 's_add_u32 s28, s28, s30')
        if echog >= 0: A('s_lshr_b32 s29, s3, 3', f's_cmp_lg_u32 s29, {echog}', 's_cbranch_scc1 L_end')
        if ex >= 0: A(f's_cmp_lg_u32 s12, {ex}', 's_cbranch_scc1 L_end')
        A.lab('L_echo')
        A('s_memrealtime s[30:31]', 's_waitcnt lgkmcnt(0)', 's_sub_u32 s29, s30, s28', 's_cmp_lt_i32 s29, 0', 's_cbranch_scc1 L_echo')
    if stamps:
        stamp(11)
        A('s_mov_b64 exec, -1')
        if xdbg: A('s_waitcnt lgkmcnt(0)', 's_mul_i32 s94, s12, 100', 's_add_u32 s94, s94, s64', 's_addc_u32 s95, s65, 0')
        dump_stamps([0, 1, 2, 3, 4, 5, 8, 9, 10, 11, 15])
    A('s_endpgm')
    A.lab('L_glate')
    A('ds_read_b64 v[214:215], v226', 's_waitcnt lgkmcnt(0)', 'v_or_b32 v7, v214, v215', 'v_cmp_eq_u32 vcc, 0, v7')
    A('s_cbranch_vccz L_gok', 's_sub_u32 s59, s59, 1', 's_cbranch_scc0 L_glate', 's_branch L_gok')
    A.lab('L_gate')
    A.c('waves 1 and 2: the gates of the two batches this workgroup finishes')
    XG = 128; GA = XG + 8
    if wb:
        A('s_cmp_lg_u32 s6, 3', 's_cbranch_scc1 L_g2')
        if wb == 2: A('s_cmp_lg_u32 s5, 15', 's_cbranch_scc1 L_end')
        A('s_waitcnt vmcnt(0)', 'buffer_wbl2 sc1', 's_endpgm')
        A.lab('L_g2')
    else: A('s_cmp_eq_u32 s6, 3', 's_cbranch_scc1 L_end')
    A('s_bfe_u32 s56, s2, 0x10003', 's_lshl1_add_u32 s56, s56, s6', 's_sub_u32 s56, s56, 1', 's_lshl_b32 s53, s56, 10')
    A('s_mov_b64 s[24:25], s[40:41]', 's_mov_b64 s[28:29], s[44:45]', 's_mov_b32 s30, 1024', 's_mov_b32 s31, 0x20000')
    A(f'buffer_load_dwordx4 {vr(XG,4)}, v14, s[24:27], s53 offen')
    A(f'buffer_load_dwordx4 {vr(XG+4,4)}, v14, s[28:31], 0 offen')
    A('s_waitcnt vmcnt(0)')
    for i in range(4):
        x = XG + i; g = XG + 4 + i
        unpack(36, x, g)
        A('v_mul_f32 v36, v36, v38', 'v_mul_f32 v37, v37, v39', 'v_cvt_pk_bf16_f32 v36, v36, v37')
        if i == 0:
            A(f'v_lshlrev_b32 v{GA}, 16, v36', f'v_and_b32 v{GA+1}, 0xffff0000, v36')
        else:
            A('v_lshlrev_b32 v38, 16, v36', 'v_and_b32 v39, 0xffff0000, v36', f'v_add_f32 v{GA}, v{GA}, v38', f'v_add_f32 v{GA+1}, v{GA+1}, v39')
    A(f'v_add_f32 v{GA}, v{GA}, v{GA+1}')
    allred('v_add_f32', GA, GA + 1, quad=True)
    A(f'v_cvt_pk_bf16_f32 v{GA}, v{GA}, v{GA}', f'v_lshlrev_b32 v{GA}, 16, v{GA}')
    A(f'v_mul_f32 v{GA}, 0x{LOG2E ^ 0x80000000:x}, v{GA}', f'v_exp_f32 v{GA}, v{GA}', 's_nop 0')
    A(f'v_add_f32 v{GA}, 1.0, v{GA}', f'v_rcp_f32 v{GA}, v{GA}', 's_nop 0')
    A(f'v_cvt_pk_bf16_f32 v{GA}, v{GA}, v{GA}', f'v_lshlrev_b32 v{GA}, 16, v{GA}')
    A(f'v_sub_f32 v{GA+1}, 1.0, v{GA}', f'v_cvt_pk_bf16_f32 v{GA+1}, v{GA+1}, v{GA+1}', f'v_lshlrev_b32 v{GA+1}, 16, v{GA+1}')
    A('s_lshl_b32 s59, s56, 3', f's_add_u32 s59, s59, {GL}', 'v_mov_b32 v6, s59', f'ds_write_b64 v6, v[{GA}:{GA+1}]')
    A('s_endpgm')

    V0 = 128; PB = 64; T = 32; ACC = 24
    WQ = 64; XB = 96
    A('.p2align 6')
    A.lab('L_vwave')
    if vprio: A(f's_setprio {vprio}')
    A('s_and_b32 s6, s6, 3')
    if prefetch:
        A.c("warm L2 with this kernel's own code: one dword per 64 bytes")
        A('s_getpc_b64 s[56:57]')
        A.lab('L_pc')
        A(f's_sub_u32 s56, s56, L_pc-{KN}_kernel', 's_subb_u32 s57, s57, 0')
        A('s_lshl_b32 s59, s6, 12', 'v_lshl_add_u32 v2, v14, 2, s59')
        A(f'v_min_u32 v2, L_code_end-{KN}_kernel-4, v2')
        A('v_mov_b32 v3, s57', 'v_add_co_u32 v2, vcc, s56, v2', 's_nop 1', 'v_addc_co_u32 v3, vcc, 0, v3, vcc')
        A('global_load_dword v40, v[2:3], off')
    kvbase()
    if LV: level()
    common()
    assert kb0 >= 0 and (pd == 3 or not pl)
    QA = 112; XR = 104
    A('s_lshl_b32 s57, s6, 8', f's_add_u32 s57, s57, {ZL}', 'v_lshlrev_b32 v4, 2, v0', 'v_add_u32 v7, s57, v4')
    A('v_mov_b32 v6, 0', 'v_and_b32 v4, 0x7c, v4', f'v_add_u32 v4, {CNT}, v4')
    A('ds_write_b32 v7, v6', 'ds_write_b32 v4, v6')
    A('v_lshrrev_b32 v8, 3, v0', 'v_and_b32 v7, 7, v0', 'v_lshlrev_b32 v9, 16, v8', 'v_lshl_add_u32 v9, v7, 4, v9')
    if qperm: A(f's_xor_b32 s5, s5, {qperm}')
    A('s_and_b32 s57, s5, 1', 's_lshl2_add_u32 s57, s57, s6')
    A('s_lshl_b32 s56, s57, 12', 's_lshr_b32 s59, s5, 1', 's_lshl3_add_u32 s59, s4, s59', 's_add_u32 s56, s56, s59', 's_lshl_b32 s56, s56, 7')
    A('s_lshl_b32 s57, s57, 7')
    A('v_lshlrev_b32 v8, 4, v8', 'v_lshl_add_u32 v8, v16, 10, v8')
    A('s_waitcnt lgkmcnt(0)')
    A('s_mov_b64 s[16:17], s[36:37]', 's_mov_b64 s[24:25], s[40:41]')
    if st0: stamp(12)
    for i in range(8):
        A(f'buffer_load_dwordx4 {vr(WQ+4*i,4)}, v9, s[16:19], s56 offen{WP}')
        if i < 7: A('s_addk_i32 s56, 0x2000')
    A(f'buffer_load_dwordx4 {vr(XR,4)}, v8, s[24:27], s57 offen')
    if b0w >= 0:
        A('s_add_u32 s59, s16, s56', 's_bfe_u32 s59, s59, 0x30007', 's_cmp_eq_u32 s59, 3', 's_cbranch_scc1 L_b0', f's_waitcnt vmcnt({b0w})')
        A.lab('L_b0')
    A('s_barrier')
    A('s_load_dword s7, s[50:51], 0x%x' % WS_EPOCH)
    A('s_mov_b64 s[20:21], s[50:51]', 's_mov_b64 s[8:9], s[34:35]')
    A('s_lshl_b32 s59, s6, 11', f's_add_u32 s59, s59, {OL}', 'v_add_u32 v19, s59, v14')
    A('v_lshlrev_b32 v17, 9, v1', 'v_lshl_add_u32 v17, v7, 4, v17', 'v_add_u32 v17, s59, v17')
    A('v_bfe_u32 v12, v0, 1, 4', 'v_lshlrev_b32 v12, 6, v12', 'v_and_b32 v8, 1, v0', 'v_lshl_add_u32 v12, v8, 10, v12')
    A('s_lshl_b32 s59, s6, 4', f's_add_u32 s59, s59, {OL}', 'v_add_u32 v12, s59, v12')
    A('v_lshlrev_b32 v18, 11, v1', 'v_lshl_add_u32 v18, v2, 6, v18', 'v_add_u32 v18, s59, v18')
    A('v_add_u32 v15, s54, v14')
    A(f'v_mov_b32 v10, {CNT}', 'v_mov_b32 v11, 1')
    A('s_lshl2_add_u32 s57, s3, s6', 's_lshl4_add_u32 s57, s57, s5', 's_lshl_b32 s57, s57, 8', f's_add_u32 s57, s57, 0x{WS_Q:x}')
    if prq: A('s_mov_b64 exec, 0xffff', f'buffer_load_dword v68, v14, s[20:23], s57 offen{PR}', 's_mov_b64 exec, -1')
    A('v_and_b32 v8, 4, v0', 'v_cmp_eq_u32 vcc, 0, v8')
    A('s_waitcnt vmcnt(0) lgkmcnt(0)')
    A(f's_add_u32 s7, s7, 0x{TAGC:x}')
    if st0: stamp(13)
    for i in range(4): A(f'v_cndmask_b32 v{XB+i}, 0, v{XR+i}, vcc', f'v_cndmask_b32 v{XB+4+i}, v{XR+i}, 0, vcc')
    def mfq(e):
        c = '0' if (e & 1) == 0 else vr(QA + 4 * (e >> 1), 4)
        A(f'v_mfma_f32_16x16x32_bf16 {vr(QA+4*(e>>1),4)}, {vr(T+4*e,4)}, {vr(XB+4*(e&1),4)}, {c}')
    perm_mfma(WQ, T, mfq)
    A('s_mov_b32 exec_lo, 0x00ff00ff', 's_mov_b32 exec_hi, 0xff00ff00', 's_nop 6')
    for a_ in range(4): A(f'ds_write_b128 v17, {vr(QA+4*a_,4)} offset:{128*a_}')
    A('s_mov_b64 exec, 1', 'ds_add_u32 v10, v11', 's_mov_b64 exec, -1')
    A('s_add_u32 s59, s7, s12', 's_mov_b32 s56, 0x07060503', 's_mov_b32 s58, 0x07060502', 's_mov_b32 s62, 0x07060501')
    A('v_mov_b32 v67, s59', f's_mov_b32 s59, {spin}')
    A.lab('L_xspin')
    A('ds_read_b32 v4, v10')
    for w in range(2): A(f'ds_read_b128 {vr(T+4*w,4)}, v18 offset:{1024*w}')
    A('s_waitcnt lgkmcnt(2)')
    A('v_readfirstlane_b32 s53, v4', 's_cmp_eq_u32 s53, 4', 's_cbranch_scc1 L_xall')
    A('s_sub_u32 s59, s59, 1', 's_cbranch_scc0 L_xspin')
    A.lab('L_xall')
    A.c("add the partials of batch cw and publish them; the tag also carries the XCD number")
    A('s_waitcnt lgkmcnt(0)')
    for i in range(4): A(f'v_add_f32 v{T+i}, v{T+i}, v{T+4+i}')
    swapadd32(T, T + 4); swapadd16(T, T + 4)
    A(f'v_perm_b32 v64, v{T}, v{T+3}, s56', f'v_perm_b32 v65, v{T+1}, v{T+3}, s58', f'v_perm_b32 v66, v{T+2}, v{T+3}, s62')
    A('s_mov_b64 exec, 0xffff')
    if nost: A('s_branch L_qd')
    if qloc:
        A.c('on the XCD that round-robin placement gives the team the shared L2 carries it; anywhere else it is written through')
        A('s_cmp_eq_u32 s12, s42', 's_cbranch_scc1 L_ql')
    A('buffer_store_dwordx4 v[64:67], v14, s[20:23], s57 offen sc1')
    if qloc:
        A('s_branch L_qd')
        A.lab('L_ql'); A('buffer_store_dwordx4 v[64:67], v14, s[20:23], s57 offen'); A.lab('L_qd')
    A('s_mov_b64 exec, -1')
    A('v_lshl_add_u32 v8, v1, 2, v16', 's_lshl_b32 s57, s6, 10', f's_add_u32 s57, s57, {PX}')
    A('v_lshlrev_b32 v8, 4, v8', 'v_add_u32 v8, s57, v8', f'v_mov_b32 v9, {ZL}')
    versions(20, 8, 9)
    A('s_lshl_b32 s59, s6, 4', f's_add_u32 s59, s59, {ML}', 'v_mov_b32 v13, s59')
    A('s_lshl_b32 s57, s63, 11', 's_lshl_b32 s59, s6, 9', 's_add_u32 s57, s57, s59', f's_add_u32 s57, s57, 0x{WS_O:x}')
    A(f'v_mov_b32 v2, {CNT+8}', 'v_mov_b32 v3, 1', 'v_mov_b32 v9, s7', 'v_mov_b32 v11, s7')
    if vprio: A('s_setprio 0')
    A('s_barrier')
    def vseq(thr):
        for n in range(32):
            if n % 4 == 0: A(f's_lshr_b32 s56, s96, {ISH}', 's_add_u32 s96, s96, s97')
            if thr and n >= thr: A(f's_waitcnt vmcnt({thr-1})')
            A(f'buffer_load_dwordx4 {vr(V0+4*n,4)}, v15, s[8:11], s56 offen offset:{(n%4)*1024}{P}')
    if orc:
        th = [int(z) for z in orc.split('-')]
        A('s_memrealtime s[92:93]', 's_waitcnt lgkmcnt(0)', 's_sub_u32 s92, s92, s64', f's_cmp_ge_u32 s92, {th[1]}', 's_cbranch_scc1 L_vo2', f's_cmp_ge_u32 s92, {th[0]}', 's_cbranch_scc1 L_vo1')
        for i in range(3):
            A.lab(f'L_vo{i}'); vseq(th[2 + i])
            if i < 2: A('s_branch L_vod')
        A.lab('L_vod')
    elif LV:
        for i in range(1, len(LV)): A(f's_cmp_eq_u32 s98, {i}', f's_cbranch_scc1 L_vs{i}')
        for i, (kt, vt) in enumerate(LV):
            A.lab(f'L_vs{i}'); vseq(vt)
            if i + 1 < len(LV): A('s_branch L_vsd')
        A.lab('L_vsd')
    else: vseq(vthr)
    stamp(14)
    if vp2: A(f's_setprio {vp2}')
    A('s_barrier')
    A('ds_read_b128 v[4:7], v13', 'ds_read_b32 v8, v10 offset:4')
    for G_ in range(4):
        for e in range(4): A(f'ds_read_b128 {vr(PB+16*G_+4*e,4)}, v{20+e} offset:{256*G_}')
        if G_ == 1: A('s_waitcnt lgkmcnt(0)')
    A('v_readfirstlane_b32 s13, v8')
    A('v_max3_f32 v8, v4, v5, v6', 'v_max_f32 v8, v8, v7')
    for w in range(4): A(f'v_sub_f32 v{4+w}, v{4+w}, v8')
    for w in range(4): A(f'v_exp_f32 v{4+w}, v{4+w}')
    A('s_lshr_b32 s13, s13, 8')
    for G_ in range(4):
        xo = int(0 <= pro <= 24 and pro >= 8 * (G_ + 1))
        if G_ == 2: A(f's_waitcnt vmcnt({8*(3-G_)+xo}) lgkmcnt(0)')
        elif trim and G_ == 3: A('s_nop 4')
        else: A(f's_waitcnt vmcnt({8*(3-G_)+xo})')
        if G_ == 3 and not trim: stamp(6)
        def mf(e):
            idx = e >> 2
            c = '0' if (G_ == 0 and (e & 3) == 0) else vr(ACC + 4 * idx, 4)
            A(f'v_mfma_f32_16x16x32_bf16 {vr(ACC+4*idx,4)}, {vr(T+4*e,4)}, {vr(PB+16*G_+4*(e&3),4)}, {c}')
        if trim and G_ == 3:
            src = V0 + 96
            for d in range(4):
                A(f's_waitcnt vmcnt({6-2*d})')
                if d == 3: stamp(6)
                for dp in range(4):
                    A(f'v_perm_b32 v{T+8*dp+d}, v{src+4*(2*d+1)+dp}, v{src+8*d+dp}, {SLO}', f'v_perm_b32 v{T+8*dp+4+d}, v{src+4*(2*d+1)+dp}, v{src+8*d+dp}, {SHI}')
            for e in (0, 4, 1, 5, 2, 6, 3, 7): mf(e)
        else:
            perm_mfma(V0 + 32 * G_, T, mf)
    if not st0: stamp(12)
    A(f's_mov_b32 s59, {spin}', 's_nop 5')
    A(f'ds_write_b128 v19, {vr(ACC,4)}', f'ds_write_b128 v19, {vr(ACC+4,4)} offset:1024')
    A('s_mov_b64 exec, 1', 'ds_add_u32 v2, v3', 's_mov_b64 exec, -1')
    A.lab('L_ospin')
    A('ds_read_b32 v3, v2')
    for w in range(4): A(f'ds_read_b128 v[{64+4*w}:{67+4*w}], v12 offset:{2048*w}')
    A('s_waitcnt lgkmcnt(4)')
    A('v_readfirstlane_b32 s56, v3', 's_cmp_eq_u32 s56, 4', 's_cbranch_scc1 L_oall')
    A('s_sub_u32 s59, s59, 1', 's_cbranch_scc0 L_ospin')
    A.lab('L_oall')
    if not st0: stamp(13)
    A('s_waitcnt lgkmcnt(3)')
    if trim:
        for r in range(2): A(f'v_pk_mul_f32 v[{24+2*r}:{25+2*r}], v[{64+2*r}:{65+2*r}], v[4:5] op_sel_hi:[1,0]')
        for w in range(1, 4):
            A(f's_waitcnt lgkmcnt({3-w})')
            o = w & 1
            for r in range(2): A(f'v_pk_fma_f32 v[{24+2*r}:{25+2*r}], v[{64+4*w+2*r}:{65+4*w+2*r}], v[{4+(w&2)}:{5+(w&2)}], v[{24+2*r}:{25+2*r}] op_sel:[0,{o},0] op_sel_hi:[1,{o},1]')
    else:
        for r in range(4): A(f'v_mul_f32 v{24+r}, v4, v{64+r}')
        for w in range(1, 4):
            A(f's_waitcnt lgkmcnt({3-w})')
            for r in range(4): A(f'v_fmac_f32 v{24+r}, v{4+w}, v{64+4*w+r}')
    A('v_cvt_pk_bf16_f32 v8, v24, v25', 'v_cvt_pk_bf16_f32 v10, v26, v27')
    A('s_mov_b32 exec_hi, 0')
    if cut != 2: team_store('buffer_store_dwordx4 v[8:11], v14, s[20:23], s57 offen')
    if stamps:
        A('s_mov_b32 exec_hi, -1')
        stamp(7)
        A(f's_cmp_lg_u32 s6, {vw}', 's_cbranch_scc1 L_end')
        dump_stamps([6, 7, 12, 13, 14])
    A('s_endpgm')

    A.lab('L_end')
    A('s_endpgm')
    A.lab('L_code_end')
    out += A.L
    out += ['.section .rodata,"a"', '.p2align 6', f'.amdhsa_kernel {KN}_kernel',
            '  .amdhsa_next_free_vgpr 256', '  .amdhsa_next_free_sgpr 102', '  .amdhsa_accum_offset 256',
            '  .amdhsa_group_segment_fixed_size 0', '  .amdhsa_kernarg_size 112', '  .amdhsa_user_sgpr_count 2',
            '  .amdhsa_user_sgpr_kernarg_segment_ptr 1', '  .amdhsa_system_sgpr_workgroup_id_x 1', '.end_amdhsa_kernel']
    return '\n'.join(out) + '\n'

if __name__ == '__main__':
    ap = argparse.ArgumentParser()
    ap.add_argument('-o', default='k.s')
    ap.add_argument('--set', action='append', default=[])
    a = ap.parse_args()
    kw = {}
    for s in a.set:
        k, v = s.split('=')
        try: v = int(v)
        except ValueError: pass
        kw[k] = v
    open(a.o, 'w').write(gen(**kw))
```

```python
import sys, argparse
KN = 'gated_mix__sliding_block_cached__sliding_block_cached__decode'
HEADER = open('cdna_kernels/' + KN + '.s.ref').read().split('; Override launch')[0]

WS_EPOCH = 0x0
WS_ML = 0x1000
WS_O = 0x40000
WS_P = 0xC0000
WS_Q = 0x140000
WS_BYTES = 285221888
STAMP_OFF = 64 << 20
TAGC = 0x9E3779B1
KL = 0
QL = 131072
ZL = QL + 1024
PX = ZL + 1024
ML = PX + 4096
LL = ML + 64
CNT = LL + 64
GL = CNT + 64
OX = GL + 64
OL = OX + 1024
LDS_BYTES = OL + 8192
LOG2E = 0x3FB8AA3B
SCALE = 0x3DB504F3

class G:
    def __init__(s): s.L = []
    def __call__(s, *ts):
        for t in ts: s.L.append('  ' + t)
    def lab(s, t): s.L.append(t + ':')
    def c(s, t): s.L.append('  ; ' + t)

def vr(a, n=1):
    return f'v{a}' if n == 1 else f'v[{a}:{a+n-1}]'

def gen(stamps=False, pol='nt', wpol='nt', spin=200000, prefetch=0, sleep=0, touch=1, kprio=1, vprio=3,
        gran=4, rotmul=4, ackfirst=1, local=1, echo=-1, sleep2=-1, echog=-1, pre=0, mask1=1, h2=1, stag=6, qplain=0, st0=0, kb0=0, pat=1, rot=1, qloc=1, xdbg=0, trim=1, pd=3, mlp=0, qd=0, vw=0, bvst=0, ost='', ppl='sc1', pst='sc1', pl=0, cut=0, skip=0, esh=0, b0st=0, kthr=6, vthr=8, kgrp=2, kx=0, qperm=0, b0w=-1, xq=0, qv=0, nost=0, qf='sc1_nt', mf='sc1_nt', of='sc1_nt', pr='nt', prq=0, prm=0, pro=-1, prp=0, eneg=-1, ex=-1, lv='7.8-12.12', wo_=0, ws_=1, orc='', om=1, wb=0, vp2=0, spk=0, oat='', dmin=0):
    if sleep2 < 0: sleep2 = sleep
    A = G()
    P = (' ' + pol) if pol else ''
    WP = (' ' + wpol) if wpol else ''
    PR = (' ' + pr) if pr != 'p' else ''
    out = [HEADER.rstrip('\n'),
           '; Override launch geometry by editing the next line (default: block=256,',
           '; grid=ceil(out_elems/256), lds=0). Harness parses it; keep it on one line.',
           f'; @launch grid=(256,1,1) block=(512,1,1) lds={LDS_BYTES}',
           '.amdgcn_target "amdgcn-amd-amdhsa--gfx950"', '.text', f'.globl {KN}_kernel', '.p2align 8',
           f'.type {KN}_kernel,@function', f'{KN}_kernel:']
    SLO, SHI = 's60', 's61'
    def stamp(i):
        if (stamps and (not dmin or i in (0, 11))) or (echo >= 0 and i in (0, echo, eneg)): A(f's_memrealtime s[{64+2*i}:{65+2*i}]')
    def allred(op, r, t, quad=False):
        if quad:
            A('s_nop 1', f'{op}_dpp v{r}, v{r}, v{r} quad_perm:[1,0,3,2] row_mask:0xf bank_mask:0xf')
            A('s_nop 1', f'{op}_dpp v{r}, v{r}, v{r} quad_perm:[2,3,0,1] row_mask:0xf bank_mask:0xf')
        A('s_nop 1', f'{op}_dpp v{r}, v{r}, v{r} row_ror:4 row_mask:0xf bank_mask:0xf')
        A('s_nop 1', f'{op}_dpp v{r}, v{r}, v{r} row_ror:8 row_mask:0xf bank_mask:0xf')
        A(f'v_mov_b32 v{t}, v{r}', 's_nop 1', f'v_permlane16_swap_b32 v{r}, v{t}', 's_nop 1', f'{op} v{r}, v{r}, v{t}')
        A(f'v_mov_b32 v{t}, v{r}', 's_nop 1', f'v_permlane32_swap_b32 v{r}, v{t}', 's_nop 1', f'{op} v{r}, v{r}, v{t}')
    def perm_mfma(src, T, mf):
        for dp in range(4):
            for d in range(4):
                A(f'v_perm_b32 v{T+4*(2*dp)+d}, v{src+4*(2*d+1)+dp}, v{src+4*(2*d)+dp}, {SLO}')
            if dp > 0 and mf: mf(2 * dp - 1)
            for d in range(4):
                A(f'v_perm_b32 v{T+4*(2*dp+1)+d}, v{src+4*(2*d+1)+dp}, v{src+4*(2*d)+dp}, {SHI}')
            if mf: mf(2 * dp)
        if mf:
            A('s_nop 1'); mf(7)
    def tagcheck(regs):
        A(f'v_xor_b32 v6, s7, v{regs[0]+1}', f'v_xor_b32 v7, s7, v{regs[0]+3}')
        for r in regs[1:]:
            A(f'v_bitop3_b32 v6, v{r+1}, s7, v6 bitop3:0xbe', f'v_bitop3_b32 v7, v{r+3}, s7, v7 bitop3:0xbe')
        A('v_or_b32 v6, v6, v7', 'v_cmp_ne_u32 vcc, 0, v6')
    def versions(dst, good, bad):
        for e in range(4):
            A(f'v_cmp_eq_u32 vcc, {e}, v5', 's_nop 1', f'v_cndmask_b32 v{dst+e}, v{bad}, v{good}, vcc')
    def unpack(dst, a, b):
        A(f'v_lshlrev_b32 v{dst}, 16, v{a}', f'v_and_b32 v{dst+1}, 0xffff0000, v{a}', f'v_lshlrev_b32 v{dst+2}, 16, v{b}', f'v_and_b32 v{dst+3}, 0xffff0000, v{b}')
    def swapadd32(r, t):
        for i in range(4): A(f'v_mov_b32 v{t+i}, v{r+i}')
        A('s_nop 0')
        for i in range(4): A(f'v_permlane32_swap_b32 v{r+i}, v{t+i}')
        A('s_nop 0')
        for i in range(4): A(f'v_add_f32 v{r+i}, v{r+i}, v{t+i}')
    def swapadd16(r, t):
        for i in range(4): A(f'v_mov_b32 v{t+i}, v{r+i}')
        A('s_nop 0')
        for i in range(4): A(f'v_permlane16_swap_b32 v{r+i}, v{t+i}')
        A('s_nop 0')
        for i in range(4): A(f'v_add_f32 v{r+i}, v{r+i}, v{t+i}')
    nteam = [0]
    def team_store(txt):
        if not local:
            A(txt + ' sc1'); return
        n = nteam[0]; nteam[0] += 1
        A('s_cmp_eq_u32 s13, 0', f's_cbranch_scc1 L_tl{n}', txt + ' sc1', f's_branch L_td{n}')
        A.lab(f'L_tl{n}'); A(txt); A.lab(f'L_td{n}')
    def dump_stamps(idx):
        A('s_waitcnt lgkmcnt(0)')
        A('s_lshl_b32 s59, s2, 7', f's_add_u32 s59, s59, 0x{STAMP_OFF:x}', 'v_mov_b32 v7, 0')
        for i in idx:
            A(f'v_mov_b32 v8, s{64+2*i}', f'v_mov_b32 v9, s{65+2*i}')
            A(f'buffer_store_dwordx2 v[8:9], v7, s[20:23], s59 offen offset:{8*i}', 's_nop 1')

    A('s_cmpk_ge_u32 s2, 0x100', 's_cbranch_scc1 L_end')
    stamp(0)
    A('s_and_b32 s52, s2, 8', 's_mul_i32 s52, s52, 5')
    A('s_load_dwordx8 s[32:39], s[0:1], s52 offset:8')
    A('s_load_dwordx2 s[40:41], s[0:1], 0')
    A('s_load_dwordx8 s[44:51], s[0:1], 80')
    A('v_lshrrev_b32 v1, 6, v0', 'v_and_b32 v0, 63, v0', 'v_readfirstlane_b32 s6, v1', 'v_lshlrev_b32 v14, 4, v0')
    A('s_bitcmp1_b32 s6, 2', 's_cbranch_scc1 L_vwave')
    ISH = 13 if pat else 15
    def kvbase():
        if kx: A('s_lshr_b32 s58, s2, 6', 's_lshr_b32 s4, s52, 5', 's_xor_b32 s4, s4, s2', 's_and_b32 s4, s4, 7', 's_lshl3_add_u32 s54, s58, s4', 's_lshr_b32 s5, s2, 4')
        else: A('s_lshr_b32 s58, s2, 6', 's_and_b32 s4, s2, 7', 's_lshl3_add_u32 s54, s58, s4', 's_lshr_b32 s5, s2, 4')
        if pat:
            A('s_and_b32 s59, s5, 3', 's_lshl2_add_u32 s54, s54, 3', 's_lshl_b32 s54, s54, 7', 's_lshl2_add_u32 s59, s59, s6', 's_add_u32 s54, s54, s59', 's_lshl_b32 s54, s54, 12')
        else:
            A('s_or_b32 s59, s5, 12', 's_lshl4_add_u32 s54, s54, s59', 's_lshl_b32 s54, s54, 5', 's_add_u32 s54, s54, s6', 's_lshl_b32 s54, s54, 12')
        A('s_lshl_b32 s96, s2, 29' if rot else 's_mov_b32 s96, 0', 's_lshl_b32 s97, 1, 29')
        A('s_lshl_b32 s10, 1, 26', 's_mov_b32 s11, 0x20000')
    LV = [tuple(int(z) for z in p.split('.')) for p in lv.split('-')] if lv else []
    def level():
        if wo_:
            A('s_getreg_b32 s98, hwreg(HW_REG_XCC_ID, 0, 1)', f's_mul_i32 s98, s98, {wo_}', 's_lshr_b32 s59, s5, 1', 's_cmp_eq_u32 s59, 3', f's_cselect_b32 s59, {ws_}, 0')
            A('s_add_u32 s98, s98, s59', f's_min_u32 s98, s98, {len(LV) - 1}')
        else: A('s_lshr_b32 s59, s5, 1', 's_cmp_eq_u32 s59, 3', f's_cselect_b32 s98, {min(ws_, len(LV) - 1)}, 0')
    kvbase()
    if LV: level()
    A('v_and_b32 v3, 48, v0', 'v_lshlrev_b32 v3, 2, v3', 'v_xor_b32 v10, v14, v3', 'v_add_u32 v10, s54, v10')
    for n in range(1, 4): A(f'v_xor_b32 v{10+n}, {16*n}, v10')
    A('s_lshl_b32 m0, s6, 15', 's_mov_b32 s59, 7')
    if kprio: A(f's_setprio {kprio}')
    A('s_waitcnt lgkmcnt(0)', 's_mov_b64 s[8:9], s[32:33]')
    if st0: stamp(5)
    def kloop(tag, thr, grp, kb0=kb0):
        A.lab(f'L_kloop{tag}')
        A(f's_lshr_b32 s56, s96, {ISH}')
        if kb0 > 0:
            A(f's_cmp_lg_u32 s59, {7-kb0}', f's_cbranch_scc1 L_knob{tag}', 's_barrier')
            A.lab(f'L_knob{tag}')
        for n in range(4):
            if thr and (not grp or n % grp == 0): A(f's_waitcnt vmcnt({thr - max(grp, 1)})')
            A(f'buffer_load_dwordx4 v{10+n}, s[8:11], s56 offen offset:{n*1024}{P} lds')
        A('s_add_u32 s96, s96, s97', 's_addk_i32 m0, 0x1000', 's_sub_u32 s59, s59, 1', f's_cbranch_scc0 L_kloop{tag}')
    if spk: A('s_cmp_eq_u32 s98, 1', 's_cbranch_scc1 L_kloop1')
    if kb0 == 0:
        A('s_barrier')
        if b0st: stamp(5)
    if LV:
        for i in range(1, len(LV)):
            if not spk: A(f's_cmp_eq_u32 s98, {i}', f's_cbranch_scc1 L_kloop{i}')
        for i, (kt, vt) in enumerate(LV):
            kloop(i, kt, 0, spk if (spk and i == 1) else kb0)
            if i + 1 < len(LV): A('s_branch L_entry_end')
    else: kloop('', kthr, kgrp)
    A.lab('L_entry_end')
    def common():
        A('s_and_b32 s3, s2, 15', 's_and_b32 s59, s5, 3', 's_and_b32 s42, s2, 7')
        A(f's_mov_b32 {SLO}, 0x05040100', f's_mov_b32 {SHI}, 0x07060302')
        A('s_mov_b32 s18, 0x400000', 's_mov_b32 s19, 0x20000')
        A(f's_mov_b32 s22, {WS_BYTES}', 's_mov_b32 s23, 0x20000')
        A('s_mov_b32 s26, 4096', 's_mov_b32 s27, 0x20000')
        A('s_lshl_b32 s55, s6, 15')
        A('s_lshl2_add_u32 s63, s59, s58', 's_lshl4_add_u32 s63, s3, s63')
        A('s_getreg_b32 s12, hwreg(HW_REG_XCC_ID, 0, 3)')
        A('v_lshrrev_b32 v1, 4, v0')
        A('v_and_b32 v2, 15, v0')
        A('v_bfe_u32 v5, v0, 2, 2')
        A('v_and_b32 v16, 3, v0')

    R1 = 64; PB = 48; ACC = 40; WO = 128; WT = 160
    stamp(1)
    A('s_barrier')
    A('s_load_dword s7, s[50:51], 0x%x' % WS_EPOCH)
    common()
    A('s_mov_b64 s[20:21], s[50:51]')
    A('s_lshl2_add_u32 s57, s3, s58', 's_lshl2_add_u32 s57, s57, s6', 's_lshl_b32 s57, s57, 10', f's_add_u32 s57, s57, 0x{WS_Q:x}')
    QP = 64
    def pollq(f=' sc1'): A(f'buffer_load_dwordx4 {vr(QP,4)}, v14, s[20:23], s57 offen{f}')
    if qv in (0, 5): pollq(' ' + qf.replace('_', ' '))
    if qv == 2: A('s_mov_b64 s[24:25], s[40:41]', 's_lshl_b32 s56, s6, 10', f'buffer_load_dwordx4 {vr(QP,4)}, v14, s[24:27], s56 offen sc1')
    if qv == 3: A('s_add_u32 s56, s57, 0x200000', f'buffer_load_dwordx4 {vr(QP,4)}, v14, s[20:23], s56 offen nt')
    if qv == 4: A('s_add_u32 s56, s57, 0x40000', f'buffer_load_dwordx4 {vr(QP,4)}, v14, s[20:23], s56 offen nt')
    for e in range(xq): A(f's_xor_b32 s56, s57, {4096 * (e + 1)}', f'buffer_load_dwordx4 v[{232}:{235}], v14, s[20:23], s56 offen' + ('' if qplain else ' sc1'))
    A('s_mov_b32 s24, s46', 's_mov_b32 s25, s47', 's_mov_b32 s16, s38', 's_mov_b32 s17, s39')
    NT = 0
    if touch == 1:
        A.c('first touch of the output page')
        A('s_mov_b64 exec, 1', 'buffer_load_dword v237, v14, s[24:27], 0 offen', 's_mov_b64 exec, -1'); NT = 1
    if prm:
        A('s_lshl_b32 s56, s3, 10', f's_add_u32 s56, s56, 0x{WS_ML:x}', 'v_lshlrev_b32 v7, 7, v0', 's_mov_b64 exec, 0xff', f'buffer_load_dword v236, v7, s[20:23], s56 offen{PR}', 's_mov_b64 exec, -1')
    A('v_lshlrev_b32 v15, 10, v1', 'v_lshl_add_u32 v15, v2, 4, v15')
    A('v_lshl_add_u32 v4, v16, 2, v5', 'v_lshlrev_b32 v4, 8, v4', 'v_add_u32 v4, s55, v4')
    A('v_xor_b32 v6, v1, v2', 'v_lshlrev_b32 v6, 4, v6')
    for t in range(4): A(f'v_xor_b32 v7, {64*t}, v6', f'v_add_u32 v{20+t}, v4, v7')
    A('v_lshlrev_b32 v7, 8, v16', 'v_lshl_add_u32 v7, v1, 4, v7', f'v_add_u32 v7, {QL}, v7', f'v_mov_b32 v8, {ZL}')
    versions(32, 7, 8)
    A('s_lshl_b32 s59, s6, 8', f's_add_u32 s59, s59, {QL}')
    A('v_lshrrev_b32 v9, 5, v0', 'v_lshlrev_b32 v9, 7, v9', 'v_bfe_u32 v8, v0, 3, 1', 'v_lshl_add_u32 v9, v8, 6, v9')
    A('v_and_b32 v8, 7, v0', 'v_lshl_add_u32 v9, v8, 1, v9', 'v_add_u32 v9, s59, v9')
    A('v_lshlrev_b32 v18, 4, v16', 's_lshl_b32 s59, s6, 2', f's_add_u32 s59, s59, {ML}', 'v_add_u32 v18, s59, v18')
    A('v_lshl_add_u32 v17, v1, 2, v16', 'v_lshlrev_b32 v17, 4, v17')
    A('v_lshrrev_b32 v8, 1, v5', 'v_lshl_add_u32 v17, v8, 8, v17', 'v_and_b32 v8, 1, v5', 'v_lshl_add_u32 v17, v8, 3, v17')
    A('s_lshl_b32 s59, s6, 10', f's_add_u32 s59, s59, {PX}', 'v_add_u32 v17, s59, v17')
    A('s_waitcnt lgkmcnt(0)')
    A(f's_add_u32 s7, s7, 0x{TAGC:x}')
    A(f's_mov_b32 s59, {spin}', 's_add_u32 s62, s7, s12')
    if qv: A('s_waitcnt vmcnt(0)', 's_mov_b32 s13, 0', 's_branch L_noml')
    A.lab('L_pollq')
    A('s_waitcnt vmcnt(0)')
    A(f'v_subrev_u32 v6, s7, v{QP+3}', 'v_cmp_lt_u32 vcc, 7, v6')
    A('s_cbranch_vccz L_gotq', 's_sub_u32 s59, s59, 1', 's_cbranch_scc1 L_gotq')
    pollq()
    A('s_branch L_pollq')
    A.lab('L_gotq')
    stamp(3)
    A(f'v_cmp_ne_u32 vcc, s62, v{QP+3}')
    A('s_mov_b32 s56, 0x04000c0c', 's_mov_b32 s57, 0x0706000c')
    A(f'v_perm_b32 v27, v{QP}, v{QP+1}, s56', f'v_perm_b32 v27, v27, v{QP+2}, s57')
    A('s_cmp_eq_u64 vcc, 0', 's_cselect_b32 s59, 1, 0x101')
    for i in range(3): A(f'v_mov_b32 v{24+i}, v{QP+i}')
    swapadd16(24, 28)
    A('v_cvt_pk_bf16_f32 v24, v24, v25', 'v_cvt_pk_bf16_f32 v25, v26, v27')
    A(f'v_mov_b32 v6, {CNT+4}', 'v_mov_b32 v7, s59')
    A('ds_write_b16 v9, v24', 'ds_write_b16_d16_hi v9, v24 offset:16', 'ds_write_b16 v9, v25 offset:32', 'ds_write_b16_d16_hi v9, v25 offset:48')
    A('s_mov_b64 exec, 1', 'ds_add_u32 v6, v7', 's_mov_b64 exec, -1')
    Qb = [R1, R1 + 16]; Kb = [R1 + 32, R1 + 48]
    def rdq(x):
        for t in range(4): A(f'ds_read_b128 {vr(Qb[x&1]+4*t,4)}, v{32+x} offset:{64*t}')
    def rdk(T_, buf):
        for t in range(4): A(f'ds_read_b128 {vr(Kb[buf]+4*t,4)}, v{20+t} offset:{4096*T_}')
    def mm(T_, buf):
        x = T_ & 3; a = T_ >> 2
        for t in range(4):
            c = '0' if (x == 0 and t == 0) else vr(ACC+4*a, 4)
            A(f'v_mfma_f32_16x16x32_bf16 {vr(ACC+4*a,4)}, {vr(Kb[buf]+4*t,4)}, {vr(Qb[x&1]+4*t,4)}, {c}')
    rdk(0, 0); rdk(4, 1)
    A(f's_mov_b32 s59, {spin}', f's_mov_b32 s62, 0x{SCALE:x}', f's_mov_b32 s14, 0x{LOG2E:x}')
    A.lab('L_qspin')
    A('ds_read_b32 v7, v6', 's_waitcnt lgkmcnt(0)', 'v_readfirstlane_b32 s13, v7', 's_and_b32 s56, s13, 255', 's_cmp_eq_u32 s56, 4', 's_cbranch_scc1 L_qall')
    A('s_sub_u32 s59, s59, 1', 's_cbranch_scc0 L_qspin')
    A.lab('L_qall')
    rdq(0)
    A('s_lshr_b32 s13, s13, 8')
    if qloc:
        A('s_cbranch_scc0 L_norep')
        A.c("some member sits on another XCD: write this workgroup's q partials through for it")
        A('s_lshl2_add_u32 s57, s3, s6', 's_lshl4_add_u32 s57, s57, s5', 's_lshl_b32 s57, s57, 8', f's_add_u32 s57, s57, 0x{WS_Q:x}')
        A('s_add_u32 s56, s7, s12', f's_mov_b32 s59, {spin}', 's_mov_b64 exec, 0xffff')
        A.lab('L_rep')
        A('buffer_load_dwordx4 v[24:27], v14, s[20:23], s57 offen sc1', 's_waitcnt vmcnt(0)', 'v_cmp_ne_u32 vcc, s56, v27')
        A('s_cbranch_vccz L_rep2', 's_sub_u32 s59, s59, 1', 's_cbranch_scc0 L_rep')
        A.lab('L_rep2')
        A('buffer_store_dwordx4 v[24:27], v14, s[20:23], s57 offen sc1', 's_mov_b64 exec, -1')
        A.lab('L_norep')
    for x in range(4):
        A('s_waitcnt lgkmcnt(%d)' % (0 if x == 0 else 4))
        mm(x, 0)
        if x < 3:
            rdq(x + 1)
            A('s_waitcnt lgkmcnt(4)')
        else:
            A('s_waitcnt lgkmcnt(0)')
        mm(x + 4, 1)
        if x < 3:
            rdk(x + 1, 0); rdk(x + 5, 1)
    A('s_nop 7')
    S = ACC
    for p in range(4): A(f'v_cvt_pk_bf16_f32 v{28+p}, v{S+2*p}, v{S+2*p+1}')
    for p in range(4): A(f'v_lshlrev_b32 v{S+2*p}, 16, v{28+p}', f'v_and_b32 v{S+2*p+1}, 0xffff0000, v{28+p}')
    for i in range(8): A(f'v_mul_f32 v{S+i}, s62, v{S+i}')
    for p in range(4): A(f'v_cvt_pk_bf16_f32 v{28+p}, v{S+2*p}, v{S+2*p+1}')
    for p in range(4): A(f'v_lshlrev_b32 v{S+2*p}, 16, v{28+p}', f'v_and_b32 v{S+2*p+1}, 0xffff0000, v{28+p}')
    A(f'v_max3_f32 v28, v{S}, v{S+1}, v{S+2}', f'v_max3_f32 v29, v{S+3}, v{S+4}, v{S+5}', f'v_max3_f32 v28, v28, v{S+6}, v{S+7}', 'v_max_f32 v28, v28, v29')
    allred('v_max_f32', 28, 29)
    A('v_mul_f32 v36, s14, v28')
    for i in range(8): A(f'v_fma_f32 v{S+i}, v{S+i}, s14, -v36')
    for i in range(8): A(f'v_exp_f32 v{S+i}, v{S+i}')
    A('ds_write_b32 v18, v36')
    for p in range(4): A(f'v_cvt_pk_bf16_f32 v{32+p}, v{S+2*p}, v{S+2*p+1}')
    A('ds_write_b64 v17, v[32:33]', 'ds_write_b64 v17, v[34:35] offset:512')
    A(f'v_add_f32 v28, v{S}, v{S+1}', f'v_add_f32 v29, v{S+2}, v{S+3}', f'v_add_f32 v30, v{S+4}, v{S+5}', f'v_add_f32 v31, v{S+6}, v{S+7}')
    A('v_add_f32 v28, v28, v29', 'v_add_f32 v30, v30, v31', 'v_add_f32 v28, v28, v30')
    allred('v_add_f32', 28, 29)
    A('ds_write_b32 v18, v28 offset:64')
    A('v_lshlrev_b32 v7, 4, v16', f'v_add_u32 v7, {ML}, v7', f'v_mov_b32 v6, {CNT+12}', 'v_mov_b32 v8, 1')
    A('s_mov_b64 exec, 1', 'ds_add_rtn_u32 v8, v6, v8', 's_mov_b64 exec, -1')
    A('ds_read_b128 v[20:23], v7', 'ds_read_b128 v[24:27], v7 offset:64')
    A('s_add_u32 s15, s7, s12', 'v_mov_b32 v37, s7', 'v_mov_b32 v39, s15')
    A('s_and_b32 s56, s63, 15', 's_lshl_b32 s59, s3, 6', 's_add_u32 s56, s56, s59', 's_lshl_b32 s56, s56, 4', f's_add_u32 s56, s56, 0x{WS_ML:x}', 'v_lshlrev_b32 v7, 8, v0')
    A('s_waitcnt lgkmcnt(0)')
    A('v_readfirstlane_b32 s59, v8', 's_cmp_lg_u32 s59, 3', 's_cbranch_scc1 L_noml')
    A.c('last K wave to finish its softmax publishes (m, l) of this workgroup, lane = head')
    A('v_max3_f32 v36, v20, v21, v22', 'v_max_f32 v36, v36, v23')
    for w in range(4): A(f'v_sub_f32 v{20+w}, v{20+w}, v36')
    for w in range(4): A(f'v_exp_f32 v{20+w}, v{20+w}')
    A('s_nop 0', 'v_mul_f32 v38, v20, v24')
    for w in range(1, 4): A(f'v_fmac_f32 v38, v{20+w}, v{24+w}')
    A('s_mov_b64 exec, 15')
    team_store('buffer_store_dwordx4 v[36:39], v7, s[20:23], s56 offen')
    A('s_mov_b64 exec, -1')
    A.lab('L_noml')
    A('v_lshrrev_b32 v13, 3, v0', 'v_lshlrev_b32 v12, 11, v13', 'v_and_b32 v8, 7, v0', 'v_lshl_add_u32 v12, v8, 4, v12', 'v_lshlrev_b32 v13, 4, v13')
    A('s_lshl_b32 s59, s6, 8', f's_add_u32 s59, s59, {OX}')
    A('v_and_b32 v17, 31, v0', 'v_lshlrev_b32 v17, 3, v17', 'v_add_u32 v17, s59, v17')
    if trim: A('v_lshrrev_b32 v8, 5, v0', 'v_lshl_add_u32 v17, v8, 2, v17')
    A('v_lshlrev_b32 v8, 6, v16', 'v_lshl_add_u32 v8, v1, 4, v8', 'v_add_u32 v8, s59, v8', f'v_mov_b32 v9, {ZL}')
    versions(208, 8, 9)
    A('s_lshl_b32 s59, s6, 11', 'v_add_u32 v19, s59, v14')
    A('s_lshl_b32 s59, s6, 9', 'v_and_b32 v18, 31, v0', 'v_lshlrev_b32 v18, 4, v18', 'v_add_u32 v18, s59, v18')
    A('v_mov_b32 v9, s7', 'v_mov_b32 v11, s7')
    A('s_lshr_b32 s58, s5, 2', 's_and_b32 s59, s5, 3')
    A('s_lshl2_add_u32 s52, s3, s58', 's_lshl_b32 s52, s52, 8', f's_add_u32 s52, s52, 0x{WS_ML:x}')
    A('s_lshl_b32 s50, s3, 15', 's_lshl_b32 s53, s58, 9', 's_add_u32 s50, s50, s53', 's_lshl_b32 s53, s6, 7', 's_add_u32 s50, s50, s53')
    A(f's_add_u32 s50, s50, 0x{WS_O:x}', 's_add_u32 s51, s50, 16384')
    A('s_lshl_b32 s57, s3, 2', 's_add_u32 s57, s57, s58')
    A('s_lshl_b32 s53, s59, 6', 's_add_u32 s53, s53, s57', 's_lshl_b32 s53, s53, 11')
    A('s_lshl_b32 s56, s6, 9', 's_add_u32 s53, s53, s56', f's_add_u32 s53, s53, 0x{WS_P:x}')
    A('s_lshl2_add_u32 s58, s4, s58', 's_lshl_b32 s58, s58, 17', 's_add_u32 s58, s58, s55', 's_lshl_b32 s59, s59, 8', 's_add_u32 s58, s58, s59')
    if om:
        A('s_lshr_b32 s57, s42, 1', 's_and_b32 s56, s2, 1', 's_lshr_b32 s59, s2, 7', 's_lshl1_add_u32 s56, s59, s56', 's_bfe_u32 s59, s2, 0x20005', 's_lshl2_add_u32 s56, s56, s59')
        A('s_bfe_u32 s59, s2, 0x20003', 's_lshl2_add_u32 s56, s56, s59', 's_lshl_b32 s56, s56, 1')
    else:
        A('s_and_b32 s56, s2, 7', 's_lshr_b32 s59, s2, 5', 's_lshl_b32 s59, s59, 3', 's_add_u32 s56, s56, s59', 's_lshr_b32 s57, s56, 4')
        A('s_and_b32 s56, s56, 15', 's_lshl_b32 s56, s56, 3', 's_bfe_u32 s59, s2, 0x20003', 's_lshl_b32 s59, s59, 1', 's_add_u32 s56, s56, s59')
    A('s_lshl_b32 s97, s57, 17', 's_lshl_b32 s59, s56, 4', 's_add_u32 s97, s97, s59', f's_add_u32 s97, s97, 0x{WS_P:x}')
    A('s_add_u32 s98, s97, 65536')
    A('v_lshrrev_b32 v212, 1, v0', 'v_lshlrev_b32 v212, 11, v212', 'v_and_b32 v7, 1, v0', 'v_lshl_add_u32 v212, v7, 4, v212')
    A('v_lshrrev_b32 v7, 5, v0', 'v_add_u32 v4, s56, v7', 'v_and_b32 v7, 3, v4', 'v_lshlrev_b32 v226, 3, v7', f'v_add_u32 v226, {GL}, v226')
    A('v_lshlrev_b32 v213, 9, v7', 's_lshl_b32 s57, s57, 7', 'v_add_u32 v213, s57, v213')
    A('v_bfe_u32 v7, v4, 4, 2', 'v_lshl_add_u32 v213, v7, 5, v213', 'v_lshrrev_b32 v7, 6, v4', 'v_lshl_add_u32 v213, v7, 2, v213')
    A('v_bfe_u32 v7, v4, 2, 2', 'v_add_u32 v213, v213, v7', 'v_lshl_add_u32 v213, v16, 3, v213')
    A('v_lshlrev_b32 v213, 1, v213')
    A('v_and_b32 v7, 1, v0', 'v_lshlrev_b32 v7, 4, v7', 'v_mov_b32 v6, 0x3f80', 'v_lshlrev_b32 v6, v7, v6', 'v_lshrrev_b32 v7, 1, v2')
    for d in range(4): A(f'v_cmp_eq_u32 vcc, {d}, v7', 's_nop 1', f'v_cndmask_b32 v{232+d}, 0, v6, vcc')
    if pl:
        A.c('s99: lanes of the line that workgroups of this XCD will read, when the team sits where round-robin placement puts it')
        if om: A('s_mov_b32 s99, -1', 's_and_b32 s56, s5, 3', 's_and_b32 s59, s6, 1', 's_lshl1_add_u32 s56, s56, s59', 's_xor_b32 s56, s56, s12')
        else: A('s_and_b32 s56, s12, 3', 's_lshl_b32 s56, s56, 3', 's_lshl_b32 s99, 0xff, s56', 's_lshr_b32 s56, s12, 2', 's_and_b32 s59, s6, 1', 's_xor_b32 s56, s56, s59')
        A('s_xor_b32 s59, s12, s42', 's_or_b32 s56, s56, s59', 's_or_b32 s56, s56, s13', 's_cbranch_scc0 L_ppl0', 's_mov_b32 s99, 0', 's_branch L_ppl')
        A.lab('L_ppl0')
        A.c('put that line into the L2 now, untagged, so that early polls stay inside the L2')
        A('s_mov_b32 exec_hi, 0', 's_mov_b32 exec_lo, s99', 'v_not_b32 v21, v9', 'v_not_b32 v23, v9')
        A(f'buffer_load_dword v236, v14, s[20:23], s53 offen{PR}' if prp else 'buffer_store_dwordx4 v[20:23], v14, s[20:23], s53 offen', 's_mov_b64 exec, -1')
        A.lab('L_ppl')
        A('s_xor_b32 s43, s3, 8', 's_lshl_b32 s43, s43, 10', f's_add_u32 s43, s43, 0x{WS_ML:x}', 'v_lshlrev_b32 v228, 4, v2')
    if touch == 2:
        A('s_cmp_lg_u32 s6, 0', 's_cbranch_scc1 L_nt', 's_mov_b64 exec, 3', 'buffer_load_ushort v237, v213, s[24:27], 0 offen', 's_mov_b64 exec, -1')
        A.lab('L_nt')
    stamp(4)
    A('s_barrier')
    if bvst: stamp(15)
    MLR = 216; FA = 224
    def pollml():
        A(f'buffer_load_dwordx4 v[{MLR}:{MLR+3}], v13, s[20:23], s52 offen ' + mf.replace('_', ' '))
        A(f'buffer_load_dwordx4 v[{MLR+4}:{MLR+7}], v13, s[20:23], s52 offen offset:128 ' + mf.replace('_', ' '))
    def mlfactors():
        A(f'v_max_f32 v6, v{MLR}, v{MLR+4}')
        A('v_mov_b32 v7, v6', 's_nop 1', 'v_permlane32_swap_b32 v6, v7', 's_nop 1', 'v_max_f32 v6, v6, v7')
        A(f'v_sub_f32 v{FA}, v{MLR}, v6', f'v_sub_f32 v{FA+1}, v{MLR+4}, v6', f'v_exp_f32 v{FA}, v{FA}', f'v_exp_f32 v{FA+1}, v{FA+1}', 's_nop 0')
        A(f'v_mul_f32 v6, v{FA}, v{MLR+2}', f'v_fmac_f32 v6, v{FA+1}, v{MLR+6}')
        A('v_mov_b32 v7, v6', 's_nop 1', 'v_permlane32_swap_b32 v6, v7', 's_nop 1', 'v_add_f32 v6, v6, v7')
        A('v_rcp_f32 v6, v6', 's_nop 0', f'v_mul_f32 v{FA}, v{FA}, v6', f'v_mul_f32 v{FA+1}, v{FA+1}, v6')
    def mlcheck():
        A(f'v_xor_b32 v6, s7, v{MLR+1}', f'v_bitop3_b32 v6, v{MLR+5}, s7, v6 bitop3:0xbe', 'v_cmp_ne_u32 vcc, 0, v6')
    def poll1():
        A('buffer_load_dwordx4 v[20:23], v12, s[20:23], s50 offen ' + of.replace('_', ' '), 'buffer_load_dwordx4 v[24:27], v12, s[20:23], s51 offen ' + of.replace('_', ' '))
    if mlp == 0 and cut != 2: pollml()
    for n in range(8):
        ro = 8 * (n & 3) + 4 * (n >> 2)
        A(f's_add_u32 s59, s58, {ro*1024}', f'buffer_load_dwordx4 {vr(WO+4*n,4)}, v15, s[16:19], s59 offen{WP}')
    if pd < 0: poll1()
    if not st0 and not b0st: stamp(5)
    if mlp == 0:
        A(f's_waitcnt vmcnt({10 if pd < 0 else 8})')
        mlcheck()
        A('s_mov_b32 s62, 0', 's_cbranch_vccnz L_mllate')
        mlfactors()
        A('s_mov_b32 s62, 1')
        A.lab('L_mllate')
    else: A('s_mov_b32 s62, 0')
    for d in range(4):
        A(f's_waitcnt vmcnt({(8 if d > pd else 6)-2*d})')
        if d == pd and cut not in (1, 2):
            poll1()
            if pl: A('buffer_load_dword v227, v228, s[20:23], s43 offen offset:12 sc1')
        for dp in range(4):
            A(f'v_perm_b32 v{WT+8*dp+d}, v{WO+4*(2*d+1)+dp}, v{WO+8*d+dp}, {SLO}', f'v_perm_b32 v{WT+8*dp+4+d}, v{WO+4*(2*d+1)+dp}, v{WO+8*d+dp}, {SHI}')
    stamp(2)
    if cut in (1, 2):
        A('s_waitcnt vmcnt(0)', 's_cmp_lg_u32 s6, 0', 's_cbranch_scc1 L_end', 's_branch L_fin')
    A(f's_mov_b32 s59, {spin}', 's_cmp_eq_u32 s62, 1', 's_cbranch_scc1 L_poll1')
    A.lab('L_pollml')
    pollml()
    A('s_waitcnt vmcnt(0)')
    mlcheck()
    A('s_cbranch_vccz L_gotml', 's_sub_u32 s59, s59, 1', 's_cbranch_scc0 L_pollml')
    A.lab('L_gotml')
    mlfactors()
    A.lab('L_poll1')
    A('s_waitcnt vmcnt(0)')
    tagcheck([20, 24])
    A('s_cbranch_vccz L_got1', 's_sub_u32 s59, s59, 1', 's_cbranch_scc1 L_got1')
    if sleep: A(f's_sleep {sleep}')
    if mask1: A('s_mov_b64 exec, vcc')
    poll1()
    A('s_branch L_poll1')
    A.lab('L_got1')
    if mask1: A('s_mov_b64 exec, -1')
    stamp(8)
    unpack(28, 20, 22); unpack(36, 24, 26)
    if trim:
        for r in range(2): A(f'v_pk_mul_f32 v[{28+2*r}:{29+2*r}], v[{28+2*r}:{29+2*r}], v[{FA}:{FA+1}] op_sel_hi:[1,0]')
        for r in range(2): A(f'v_pk_fma_f32 v[{28+2*r}:{29+2*r}], v[{36+2*r}:{37+2*r}], v[{FA}:{FA+1}], v[{28+2*r}:{29+2*r}] op_sel:[0,1,0] op_sel_hi:[1,1,1]')
        A('s_nop 1', 'v_permlane32_swap_b32 v28, v30', 'v_permlane32_swap_b32 v29, v31', 's_nop 0')
        A('v_pk_add_f32 v[28:29], v[28:29], v[30:31]')
        A('v_cvt_pk_bf16_f32 v20, v28, v29', 'ds_write_b32 v17, v20')
    else:
        for r in range(4): A(f'v_mul_f32 v{28+r}, v{FA}, v{28+r}')
        for r in range(4): A(f'v_fmac_f32 v{28+r}, v{FA+1}, v{36+r}')
        swapadd32(28, 36)
        A('v_cvt_pk_bf16_f32 v20, v28, v29', 'v_cvt_pk_bf16_f32 v21, v30, v31')
        A('ds_write_b64 v17, v[20:21]')
    for e in range(4): A(f'ds_read_b128 {vr(PB+4*e,4)}, v{208+e}')
    for e in range(4):
        A(f's_waitcnt lgkmcnt({3-e})')
        for idx in range(2):
            c = '0' if e == 0 else vr(ACC + 4 * idx, 4)
            A(f'v_mfma_f32_16x16x32_bf16 {vr(ACC+4*idx,4)}, {vr(WT+4*(4*idx+e),4)}, {vr(PB+4*e,4)}, {c}')
    if pl: A('v_cmp_ne_u32 vcc, s15, v227', 's_nop 3', 's_cmp_eq_u64 vcc, 0', 's_cselect_b32 s99, s99, 0')
    else: A('s_nop 6')
    A(f'ds_write_b128 v19, {vr(ACC,4)}', f'ds_write_b128 v19, {vr(ACC+4,4)} offset:1024')
    A('s_waitcnt lgkmcnt(0)')
    if not st0 and not bvst: stamp(15)
    A('s_barrier')
    for w in range(4): A(f'ds_read_b128 {vr(20+4*w,4)}, v18 offset:{2048*w}')
    def pkadd(d, a):
        for i in range(2): A(f'v_pk_add_f32 v[{d+2*i}:{d+2*i+1}], v[{d+2*i}:{d+2*i+1}], v[{a+2*i}:{a+2*i+1}]')
    A('s_waitcnt lgkmcnt(2)'); pkadd(20, 24)
    A('s_waitcnt lgkmcnt(1)'); pkadd(20, 28)
    A('s_waitcnt lgkmcnt(0)'); pkadd(20, 32)
    A('v_cvt_pk_bf16_f32 v8, v20, v21', 'v_cvt_pk_bf16_f32 v10, v22, v23')
    if pl and om:
        A('s_mov_b32 exec_hi, 0', 's_cmp_lg_u32 s99, 0', 's_cbranch_scc1 L_pl', 'buffer_store_dwordx4 v[8:11], v14, s[20:23], s53 offen sc1', 's_branch L_pnl')
        A.lab('L_pl')
        A('buffer_store_dwordx4 v[8:11], v14, s[20:23], s53 offen')
        A.lab('L_pnl')
        A('s_mov_b32 exec_hi, -1')
    elif pl:
        A('s_mov_b32 exec_hi, 0', 's_not_b32 exec_lo, s99', 'buffer_store_dwordx4 v[8:11], v14, s[20:23], s53 offen sc1')
        A('s_cmp_eq_u32 s99, 0', 's_cbranch_scc1 L_pnl', 's_mov_b32 exec_lo, s99', 'buffer_store_dwordx4 v[8:11], v14, s[20:23], s53 offen')
        A.lab('L_pnl')
        A('s_mov_b64 exec, -1')
    else:
        A('s_mov_b32 exec_hi, 0', 'buffer_store_dwordx4 v[8:11], v14, s[20:23], s53 offen ' + pst.replace('_', ' '), 's_mov_b32 exec_hi, -1')
    stamp(9)
    if cut == 3:
        A('s_waitcnt vmcnt(0)', 's_cmp_lg_u32 s6, 0', 's_cbranch_scc1 L_end', 's_branch L_fin')
    A('s_cmp_lg_u32 s6, 0', 's_cbranch_scc1 L_gate')
    if ackfirst == 1: A('s_waitcnt vmcnt(0)')
    A(f's_mov_b32 s59, {spin}')
    def poll2(r):
        for k in range(2): A(f'buffer_load_dwordx4 v[{r+4*k}:{r+3+4*k}], v212, s[20:23], s{97+k} offen ' + ppl.replace('_', ' '))
    if ackfirst == 2:
        A('s_lshl_b32 s56, s42, 3', 's_lshl_b64 s[32:33], 0xff, s56', 's_not_b64 exec, s[32:33]')
        poll2(20)
        A('s_waitcnt vmcnt(0)')
        tagcheck([20, 24])
        A('s_or_b64 exec, vcc, s[32:33]')
    if h2 < 2:
        A.lab('L_poll2')
        poll2(20)
        A('s_waitcnt vmcnt(0)')
        tagcheck([20, 24])
        A('s_cbranch_vccz L_got2', 's_sub_u32 s59, s59, 1', 's_cbranch_scc1 L_got2')
        if sleep2: A(f's_sleep {sleep2}')
        if h2 == 1: A('s_mov_b64 exec, vcc')
        A('s_branch L_poll2')
    else:
        poll2(44)
        A('s_mov_b64 s[32:33], -1', 's_mov_b64 s[34:35], -1', 's_mov_b64 s[36:37], -1', 's_mov_b64 s[38:39], 0')
        if stag: A(f's_sleep {stag}')
        poll2(52)
        A.lab('L_poll2')
        A('s_mov_b64 exec, s[32:33]', 's_waitcnt vmcnt(2)')
        tagcheck([44, 48])
        A('s_andn2_b64 s[40:41], exec, vcc', 's_or_b64 s[38:39], s[38:39], s[40:41]', 's_andn2_b64 s[36:37], s[36:37], s[40:41]', 's_cbranch_scc0 L_got2')
        A('s_mov_b64 exec, s[36:37]', 's_mov_b64 s[32:33], s[36:37]')
        poll2(44)
        A('s_mov_b64 exec, s[34:35]', 's_waitcnt vmcnt(2)')
        tagcheck([52, 56])
        A('s_andn2_b64 s[40:41], exec, vcc', 's_andn2_b64 s[36:37], s[36:37], s[40:41]', 's_cbranch_scc0 L_got2')
        A('s_mov_b64 exec, s[36:37]', 's_mov_b64 s[34:35], s[36:37]')
        poll2(52)
        A('s_sub_u32 s59, s59, 1', 's_cbranch_scc0 L_poll2')
    A.lab('L_got2')
    if h2: A('s_mov_b64 exec, -1')
    if h2 == 2:
        for i in range(4): A(f'v_cndmask_b32 v{20+2*i}, v{52+2*i}, v{44+2*i}, s[38:39]')
    stamp(10)
    A('ds_read_b64 v[214:215], v226', f's_mov_b32 s59, {spin}')
    A('v_mov_b32 v21, v22', 'v_mov_b32 v22, v24', 'v_mov_b32 v23, v26', 's_nop 1')
    A('v_mfma_f32_16x16x32_bf16 v[28:31], v[20:23], v[232:235], 0', 's_nop 7')
    A('v_pk_add_f32 v[28:29], v[28:29], v[30:31]', 's_waitcnt lgkmcnt(0)', 'v_or_b32 v7, v214, v215')
    A('v_permlane32_swap_b32 v28, v29', 'v_cmp_eq_u32 vcc, 0, v7', 'v_add_f32 v28, v28, v29')
    A('v_mov_b32 v29, v28', 's_nop 1', 'v_permlane16_swap_b32 v28, v29', 's_nop 0', 'v_add_f32 v20, v28, v29')
    A('s_nop 1', 'v_mov_b32_dpp v21, v20 row_ror:12 row_mask:0xf bank_mask:0xf')
    A('v_cvt_pk_bf16_f32 v20, v20, v21')
    A('v_lshlrev_b32 v21, 16, v20', 'v_and_b32 v22, 0xffff0000, v20')
    A('s_cbranch_vccnz L_glate')
    A.lab('L_gok')
    A('v_mul_f32 v21, v21, v214', 'v_mul_f32 v22, v22, v215')
    A('v_cvt_pk_bf16_f32 v20, v21, v22')
    A('v_lshlrev_b32 v21, 16, v20', 'v_and_b32 v22, 0xffff0000, v20', 'v_add_f32 v21, v21, v22')
    A('v_cvt_pk_bf16_f32 v20, v21, v21')
    A('s_mov_b32 exec_lo, 15', 's_mov_b32 exec_hi, 15', 'buffer_store_short v20, v213, s[24:27], 0 offen' + (' ' + ost.replace('_', ' ') if ost else ''))
    A('s_cmp_lg_u32 s2, 0', 's_cbranch_scc1 L_fin')
    A('s_mov_b64 exec, 1', 'v_mov_b32 v6, s7', f'buffer_store_dword v6, v14, s[20:23], 0 offen offset:{WS_EPOCH}')
    A.lab('L_fin')
    if echo >= 0:
        stamp(11)
        A('s_memrealtime s[30:31]', 's_waitcnt lgkmcnt(0)')
        if eneg >= 0: A(f's_sub_u32 s28, s{64+2*eneg}, s{64+2*echo}', 's_add_u32 s28, s28, 300', 's_max_i32 s28, s28, 0')
        else: A(f's_sub_u32 s28, s{64+2*echo}, s64')
        A(f's_lshl_b32 s28, s28, {esh}', 's_add_u32 s28, s28, s30')
        if echog >= 0: A('s_lshr_b32 s29, s3, 3', f's_cmp_lg_u32 s29, {echog}', 's_cbranch_scc1 L_end')
        if ex >= 0: A(f's_cmp_lg_u32 s12, {ex}', 's_cbranch_scc1 L_end')
        A.lab('L_echo')
        A('s_memrealtime s[30:31]', 's_waitcnt lgkmcnt(0)', 's_sub_u32 s29, s30, s28', 's_cmp_lt_i32 s29, 0', 's_cbranch_scc1 L_echo')
    if stamps:
        stamp(11)
        A('s_mov_b64 exec, -1')
        if xdbg: A('s_waitcnt lgkmcnt(0)', 's_mul_i32 s94, s12, 100', 's_add_u32 s94, s94, s64', 's_addc_u32 s95, s65, 0')
        dump_stamps([0, 11] if dmin else [0, 1, 2, 3, 4, 5, 8, 9, 10, 11, 15])
    A('s_endpgm')
    A.lab('L_glate')
    A('ds_read_b64 v[214:215], v226', 's_waitcnt lgkmcnt(0)', 'v_or_b32 v7, v214, v215', 'v_cmp_eq_u32 vcc, 0, v7')
    A('s_cbranch_vccz L_gok', 's_sub_u32 s59, s59, 1', 's_cbranch_scc0 L_glate', 's_branch L_gok')
    A.lab('L_gate')
    A.c('waves 1 and 2: the gates of the two batches this workgroup finishes')
    XG = 128; GA = XG + 8
    if wb:
        A('s_cmp_lg_u32 s6, 3', 's_cbranch_scc1 L_g2')
        if wb == 2: A('s_cmp_lg_u32 s5, 15', 's_cbranch_scc1 L_end')
        A('s_waitcnt vmcnt(0)', 'buffer_wbl2 sc1', 's_endpgm')
        A.lab('L_g2')
    else: A('s_cmp_eq_u32 s6, 3', 's_cbranch_scc1 L_end')
    A('s_bfe_u32 s56, s2, 0x10003', 's_lshl1_add_u32 s56, s56, s6', 's_sub_u32 s56, s56, 1', 's_lshl_b32 s53, s56, 10')
    A('s_mov_b64 s[24:25], s[40:41]', 's_mov_b64 s[28:29], s[44:45]', 's_mov_b32 s30, 1024', 's_mov_b32 s31, 0x20000')
    A(f'buffer_load_dwordx4 {vr(XG,4)}, v14, s[24:27], s53 offen')
    A(f'buffer_load_dwordx4 {vr(XG+4,4)}, v14, s[28:31], 0 offen')
    A('s_waitcnt vmcnt(0)')
    for i in range(4):
        x = XG + i; g = XG + 4 + i
        unpack(36, x, g)
        A('v_mul_f32 v36, v36, v38', 'v_mul_f32 v37, v37, v39', 'v_cvt_pk_bf16_f32 v36, v36, v37')
        if i == 0:
            A(f'v_lshlrev_b32 v{GA}, 16, v36', f'v_and_b32 v{GA+1}, 0xffff0000, v36')
        else:
            A('v_lshlrev_b32 v38, 16, v36', 'v_and_b32 v39, 0xffff0000, v36', f'v_add_f32 v{GA}, v{GA}, v38', f'v_add_f32 v{GA+1}, v{GA+1}, v39')
    A(f'v_add_f32 v{GA}, v{GA}, v{GA+1}')
    allred('v_add_f32', GA, GA + 1, quad=True)
    A(f'v_cvt_pk_bf16_f32 v{GA}, v{GA}, v{GA}', f'v_lshlrev_b32 v{GA}, 16, v{GA}')
    A(f'v_mul_f32 v{GA}, 0x{LOG2E ^ 0x80000000:x}, v{GA}', f'v_exp_f32 v{GA}, v{GA}', 's_nop 0')
    A(f'v_add_f32 v{GA}, 1.0, v{GA}', f'v_rcp_f32 v{GA}, v{GA}', 's_nop 0')
    A(f'v_cvt_pk_bf16_f32 v{GA}, v{GA}, v{GA}', f'v_lshlrev_b32 v{GA}, 16, v{GA}')
    A(f'v_sub_f32 v{GA+1}, 1.0, v{GA}', f'v_cvt_pk_bf16_f32 v{GA+1}, v{GA+1}, v{GA+1}', f'v_lshlrev_b32 v{GA+1}, 16, v{GA+1}')
    A('s_lshl_b32 s59, s56, 3', f's_add_u32 s59, s59, {GL}', 'v_mov_b32 v6, s59', f'ds_write_b64 v6, v[{GA}:{GA+1}]')
    A('s_endpgm')

    V0 = 128; PB = 64; T = 32; ACC = 24
    WQ = 64; XB = 96
    A('.p2align 6')
    A.lab('L_vwave')
    if vprio: A(f's_setprio {vprio}')
    A('s_and_b32 s6, s6, 3')
    if prefetch:
        A.c("warm L2 with this kernel's own code: one dword per 64 bytes")
        A('s_getpc_b64 s[56:57]')
        A.lab('L_pc')
        A(f's_sub_u32 s56, s56, L_pc-{KN}_kernel', 's_subb_u32 s57, s57, 0')
        A('s_lshl_b32 s59, s6, 12', 'v_lshl_add_u32 v2, v14, 2, s59')
        A(f'v_min_u32 v2, L_code_end-{KN}_kernel-4, v2')
        A('v_mov_b32 v3, s57', 'v_add_co_u32 v2, vcc, s56, v2', 's_nop 1', 'v_addc_co_u32 v3, vcc, 0, v3, vcc')
        A('global_load_dword v40, v[2:3], off')
    kvbase()
    if LV: level()
    common()
    assert kb0 >= 0 and (pd == 3 or not pl)
    QA = 112; XR = 104
    A('s_lshl_b32 s57, s6, 8', f's_add_u32 s57, s57, {ZL}', 'v_lshlrev_b32 v4, 2, v0', 'v_add_u32 v7, s57, v4')
    A('v_mov_b32 v6, 0', 'v_and_b32 v4, 0x7c, v4', f'v_add_u32 v4, {CNT}, v4')
    A('ds_write_b32 v7, v6', 'ds_write_b32 v4, v6')
    A('v_lshrrev_b32 v8, 3, v0', 'v_and_b32 v7, 7, v0', 'v_lshlrev_b32 v9, 16, v8', 'v_lshl_add_u32 v9, v7, 4, v9')
    if qperm: A(f's_xor_b32 s5, s5, {qperm}')
    A('s_and_b32 s57, s5, 1', 's_lshl2_add_u32 s57, s57, s6')
    A('s_lshl_b32 s56, s57, 12', 's_lshr_b32 s59, s5, 1', 's_lshl3_add_u32 s59, s4, s59', 's_add_u32 s56, s56, s59', 's_lshl_b32 s56, s56, 7')
    A('s_lshl_b32 s57, s57, 7')
    A('v_lshlrev_b32 v8, 4, v8', 'v_lshl_add_u32 v8, v16, 10, v8')
    A('s_waitcnt lgkmcnt(0)')
    A('s_mov_b64 s[16:17], s[36:37]', 's_mov_b64 s[24:25], s[40:41]')
    if spk:
        A('s_cmp_lg_u32 s98, 1', 's_cbranch_scc1 L_w0', 's_barrier')
        A.lab('L_w0')
    if st0: stamp(12)
    for i in range(8):
        A(f'buffer_load_dwordx4 {vr(WQ+4*i,4)}, v9, s[16:19], s56 offen{WP}')
        if i < 7: A('s_addk_i32 s56, 0x2000')
    A(f'buffer_load_dwordx4 {vr(XR,4)}, v8, s[24:27], s57 offen')
    if b0w >= 0:
        A('s_add_u32 s59, s16, s56', 's_bfe_u32 s59, s59, 0x30007', 's_cmp_eq_u32 s59, 3', 's_cbranch_scc1 L_b0', f's_waitcnt vmcnt({b0w})')
        A.lab('L_b0')
    if spk: A('s_cmp_eq_u32 s98, 1', 's_cbranch_scc1 L_w1')
    A('s_barrier')
    if spk: A.lab('L_w1')
    A('s_load_dword s7, s[50:51], 0x%x' % WS_EPOCH)
    A('s_mov_b64 s[20:21], s[50:51]', 's_mov_b64 s[8:9], s[34:35]')
    A('s_lshl_b32 s59, s6, 11', f's_add_u32 s59, s59, {OL}', 'v_add_u32 v19, s59, v14')
    A('v_lshlrev_b32 v17, 9, v1', 'v_lshl_add_u32 v17, v7, 4, v17', 'v_add_u32 v17, s59, v17')
    A('v_bfe_u32 v12, v0, 1, 4', 'v_lshlrev_b32 v12, 6, v12', 'v_and_b32 v8, 1, v0', 'v_lshl_add_u32 v12, v8, 10, v12')
    A('s_lshl_b32 s59, s6, 4', f's_add_u32 s59, s59, {OL}', 'v_add_u32 v12, s59, v12')
    A('v_lshlrev_b32 v18, 11, v1', 'v_lshl_add_u32 v18, v2, 6, v18', 'v_add_u32 v18, s59, v18')
    A('v_add_u32 v15, s54, v14')
    A(f'v_mov_b32 v10, {CNT}', 'v_mov_b32 v11, 1')
    A('s_lshl2_add_u32 s57, s3, s6', 's_lshl4_add_u32 s57, s57, s5', 's_lshl_b32 s57, s57, 8', f's_add_u32 s57, s57, 0x{WS_Q:x}')
    if prq: A('s_mov_b64 exec, 0xffff', f'buffer_load_dword v68, v14, s[20:23], s57 offen{PR}', 's_mov_b64 exec, -1')
    A('v_and_b32 v8, 4, v0', 'v_cmp_eq_u32 vcc, 0, v8')
    A('s_waitcnt vmcnt(0) lgkmcnt(0)')
    A(f's_add_u32 s7, s7, 0x{TAGC:x}')
    if st0: stamp(13)
    for i in range(4): A(f'v_cndmask_b32 v{XB+i}, 0, v{XR+i}, vcc', f'v_cndmask_b32 v{XB+4+i}, v{XR+i}, 0, vcc')
    def mfq(e):
        c = '0' if (e & 1) == 0 else vr(QA + 4 * (e >> 1), 4)
        A(f'v_mfma_f32_16x16x32_bf16 {vr(QA+4*(e>>1),4)}, {vr(T+4*e,4)}, {vr(XB+4*(e&1),4)}, {c}')
    perm_mfma(WQ, T, mfq)
    A('s_mov_b32 exec_lo, 0x00ff00ff', 's_mov_b32 exec_hi, 0xff00ff00', 's_nop 6')
    for a_ in range(4): A(f'ds_write_b128 v17, {vr(QA+4*a_,4)} offset:{128*a_}')
    A('s_mov_b64 exec, 1', 'ds_add_u32 v10, v11', 's_mov_b64 exec, -1')
    A('s_add_u32 s59, s7, s12', 's_mov_b32 s56, 0x07060503', 's_mov_b32 s58, 0x07060502', 's_mov_b32 s62, 0x07060501')
    A('v_mov_b32 v67, s59', f's_mov_b32 s59, {spin}')
    A.lab('L_xspin')
    A('ds_read_b32 v4, v10')
    for w in range(2): A(f'ds_read_b128 {vr(T+4*w,4)}, v18 offset:{1024*w}')
    A('s_waitcnt lgkmcnt(2)')
    A('v_readfirstlane_b32 s53, v4', 's_cmp_eq_u32 s53, 4', 's_cbranch_scc1 L_xall')
    A('s_sub_u32 s59, s59, 1', 's_cbranch_scc0 L_xspin')
    A.lab('L_xall')
    A.c("add the partials of batch cw and publish them; the tag also carries the XCD number")
    A('s_waitcnt lgkmcnt(0)')
    for i in range(4): A(f'v_add_f32 v{T+i}, v{T+i}, v{T+4+i}')
    swapadd32(T, T + 4); swapadd16(T, T + 4)
    A(f'v_perm_b32 v64, v{T}, v{T+3}, s56', f'v_perm_b32 v65, v{T+1}, v{T+3}, s58', f'v_perm_b32 v66, v{T+2}, v{T+3}, s62')
    A('s_mov_b64 exec, 0xffff')
    if nost: A('s_branch L_qd')
    if qloc:
        A.c('on the XCD that round-robin placement gives the team the shared L2 carries it; anywhere else it is written through')
        A('s_cmp_eq_u32 s12, s42', 's_cbranch_scc1 L_ql')
    A('buffer_store_dwordx4 v[64:67], v14, s[20:23], s57 offen sc1')
    if qloc:
        A('s_branch L_qd')
        A.lab('L_ql'); A('buffer_store_dwordx4 v[64:67], v14, s[20:23], s57 offen'); A.lab('L_qd')
    A('s_mov_b64 exec, -1')
    A('v_lshl_add_u32 v8, v1, 2, v16', 's_lshl_b32 s57, s6, 10', f's_add_u32 s57, s57, {PX}')
    A('v_lshlrev_b32 v8, 4, v8', 'v_add_u32 v8, s57, v8', f'v_mov_b32 v9, {ZL}')
    versions(20, 8, 9)
    A('s_lshl_b32 s59, s6, 4', f's_add_u32 s59, s59, {ML}', 'v_mov_b32 v13, s59')
    A('s_lshl_b32 s57, s63, 11', 's_lshl_b32 s59, s6, 9', 's_add_u32 s57, s57, s59', f's_add_u32 s57, s57, 0x{WS_O:x}')
    A(f'v_mov_b32 v2, {CNT+8}', 'v_mov_b32 v3, 1', 'v_mov_b32 v9, s7', 'v_mov_b32 v11, s7')
    if vprio: A('s_setprio 0')
    A('s_barrier')
    def vseq(thr):
        for n in range(32):
            if n % 4 == 0: A(f's_lshr_b32 s56, s96, {ISH}', 's_add_u32 s96, s96, s97')
            if thr and n >= thr: A(f's_waitcnt vmcnt({thr-1})')
            A(f'buffer_load_dwordx4 {vr(V0+4*n,4)}, v15, s[8:11], s56 offen offset:{(n%4)*1024}{P}')
    if orc:
        th = [int(z) for z in orc.split('-')]
        A('s_memrealtime s[92:93]', 's_waitcnt lgkmcnt(0)', 's_sub_u32 s92, s92, s64', f's_cmp_ge_u32 s92, {th[1]}', 's_cbranch_scc1 L_vo2', f's_cmp_ge_u32 s92, {th[0]}', 's_cbranch_scc1 L_vo1')
        for i in range(3):
            A.lab(f'L_vo{i}'); vseq(th[2 + i])
            if i < 2: A('s_branch L_vod')
        A.lab('L_vod')
    elif LV:
        for i in range(1, len(LV)): A(f's_cmp_eq_u32 s98, {i}', f's_cbranch_scc1 L_vs{i}')
        for i, (kt, vt) in enumerate(LV):
            A.lab(f'L_vs{i}'); vseq(vt)
            if i + 1 < len(LV): A('s_branch L_vsd')
        A.lab('L_vsd')
    else: vseq(vthr)
    stamp(14)
    if vp2: A(f's_setprio {vp2}')
    A('s_barrier')
    A('ds_read_b128 v[4:7], v13', 'ds_read_b32 v8, v10 offset:4')
    for G_ in range(4):
        for e in range(4): A(f'ds_read_b128 {vr(PB+16*G_+4*e,4)}, v{20+e} offset:{256*G_}')
        if G_ == 1: A('s_waitcnt lgkmcnt(0)')
    A('v_readfirstlane_b32 s13, v8')
    A('v_max3_f32 v8, v4, v5, v6', 'v_max_f32 v8, v8, v7')
    for w in range(4): A(f'v_sub_f32 v{4+w}, v{4+w}, v8')
    for w in range(4): A(f'v_exp_f32 v{4+w}, v{4+w}')
    A('s_lshr_b32 s13, s13, 8')
    for G_ in range(4):
        xo = int(0 <= pro <= 24 and pro >= 8 * (G_ + 1))
        if G_ == 2: A(f's_waitcnt vmcnt({8*(3-G_)+xo}) lgkmcnt(0)')
        elif trim and G_ == 3: A('s_nop 4')
        else: A(f's_waitcnt vmcnt({8*(3-G_)+xo})')
        if G_ == 3 and not trim: stamp(6)
        def mf(e):
            idx = e >> 2
            c = '0' if (G_ == 0 and (e & 3) == 0) else vr(ACC + 4 * idx, 4)
            A(f'v_mfma_f32_16x16x32_bf16 {vr(ACC+4*idx,4)}, {vr(T+4*e,4)}, {vr(PB+16*G_+4*(e&3),4)}, {c}')
        if trim and G_ == 3:
            src = V0 + 96
            for d in range(4):
                A(f's_waitcnt vmcnt({6-2*d})')
                if d == 3: stamp(6)
                for dp in range(4):
                    A(f'v_perm_b32 v{T+8*dp+d}, v{src+4*(2*d+1)+dp}, v{src+8*d+dp}, {SLO}', f'v_perm_b32 v{T+8*dp+4+d}, v{src+4*(2*d+1)+dp}, v{src+8*d+dp}, {SHI}')
            for e in (0, 4, 1, 5, 2, 6, 3, 7): mf(e)
        else:
            perm_mfma(V0 + 32 * G_, T, mf)
    if not st0: stamp(12)
    A(f's_mov_b32 s59, {spin}', 's_nop 5')
    A(f'ds_write_b128 v19, {vr(ACC,4)}', f'ds_write_b128 v19, {vr(ACC+4,4)} offset:1024')
    A('s_mov_b64 exec, 1', 'ds_add_u32 v2, v3', 's_mov_b64 exec, -1')
    A.lab('L_ospin')
    A('ds_read_b32 v3, v2')
    for w in range(4): A(f'ds_read_b128 v[{64+4*w}:{67+4*w}], v12 offset:{2048*w}')
    A('s_waitcnt lgkmcnt(4)')
    A('v_readfirstlane_b32 s56, v3', 's_cmp_eq_u32 s56, 4', 's_cbranch_scc1 L_oall')
    A('s_sub_u32 s59, s59, 1', 's_cbranch_scc0 L_ospin')
    A.lab('L_oall')
    if not st0: stamp(13)
    A('s_waitcnt lgkmcnt(3)')
    if trim:
        for r in range(2): A(f'v_pk_mul_f32 v[{24+2*r}:{25+2*r}], v[{64+2*r}:{65+2*r}], v[4:5] op_sel_hi:[1,0]')
        for w in range(1, 4):
            A(f's_waitcnt lgkmcnt({3-w})')
            o = w & 1
            for r in range(2): A(f'v_pk_fma_f32 v[{24+2*r}:{25+2*r}], v[{64+4*w+2*r}:{65+4*w+2*r}], v[{4+(w&2)}:{5+(w&2)}], v[{24+2*r}:{25+2*r}] op_sel:[0,{o},0] op_sel_hi:[1,{o},1]')
    else:
        for r in range(4): A(f'v_mul_f32 v{24+r}, v4, v{64+r}')
        for w in range(1, 4):
            A(f's_waitcnt lgkmcnt({3-w})')
            for r in range(4): A(f'v_fmac_f32 v{24+r}, v{4+w}, v{64+4*w+r}')
    A('v_cvt_pk_bf16_f32 v8, v24, v25', 'v_cvt_pk_bf16_f32 v10, v26, v27')
    A('s_mov_b32 exec_hi, 0')
    if oat:
        f = '' if oat == 'p' else ' ' + oat
        A('s_cmp_eq_u32 s13, 0', 's_cbranch_scc1 L_oa', 'buffer_store_dwordx4 v[8:11], v14, s[20:23], s57 offen sc1', 's_branch L_ob')
        A.lab('L_oa')
        A(f'buffer_atomic_swap_x2 v[8:9], v14, s[20:23], s57 offen{f}', f'buffer_atomic_swap_x2 v[10:11], v14, s[20:23], s57 offen offset:8{f}')
        A.lab('L_ob')
    elif cut != 2: team_store('buffer_store_dwordx4 v[8:11], v14, s[20:23], s57 offen')
    if stamps and not dmin:
        A('s_mov_b32 exec_hi, -1')
        stamp(7)
        A(f's_cmp_lg_u32 s6, {vw}', 's_cbranch_scc1 L_end')
        dump_stamps([6, 7, 12, 13, 14])
    A('s_endpgm')

    A.lab('L_end')
    A('s_endpgm')
    A.lab('L_code_end')
    out += A.L
    out += ['.section .rodata,"a"', '.p2align 6', f'.amdhsa_kernel {KN}_kernel',
            '  .amdhsa_next_free_vgpr 256', '  .amdhsa_next_free_sgpr 102', '  .amdhsa_accum_offset 256',
            '  .amdhsa_group_segment_fixed_size 0', '  .amdhsa_kernarg_size 112', '  .amdhsa_user_sgpr_count 2',
            '  .amdhsa_user_sgpr_kernarg_segment_ptr 1', '  .amdhsa_system_sgpr_workgroup_id_x 1', '.end_amdhsa_kernel']
    return '\n'.join(out) + '\n'

if __name__ == '__main__':
    ap = argparse.ArgumentParser()
    ap.add_argument('-o', default='k.s')
    ap.add_argument('--set', action='append', default=[])
    a = ap.parse_args()
    kw = {}
    for s in a.set:
        k, v = s.split('=')
        try: v = int(v)
        except ValueError: pass
        kw[k] = v
    open(a.o, 'w').write(gen(**kw))
```

```python
import sys, argparse
KN = 'gated_mix__sliding_block_cached__sliding_block_cached__decode'
HEADER = open('cdna_kernels/' + KN + '.s.ref').read().split('; Override launch')[0]

WS_EPOCH = 0x0
WS_ML = 0x1000
WS_O = 0x40000
WS_P = 0xC0000
WS_Q = 0x140000
WS_BYTES = 285221888
STAMP_OFF = 64 << 20
TAGC = 0x9E3779B1
KL = 0
QL = 131072
ZL = QL + 1024
PX = ZL + 1024
ML = PX + 4096
LL = ML + 64
CNT = LL + 64
GL = CNT + 64
OX = GL + 64
OL = OX + 1024
LDS_BYTES = OL + 8192
LOG2E = 0x3FB8AA3B
SCALE = 0x3DB504F3

class G:
    def __init__(s): s.L = []
    def __call__(s, *ts):
        for t in ts: s.L.append('  ' + t)
    def lab(s, t): s.L.append(t + ':')
    def c(s, t): s.L.append('  ; ' + t)

def vr(a, n=1):
    return f'v{a}' if n == 1 else f'v[{a}:{a+n-1}]'

def gen(stamps=False, pol='nt', wpol='nt', spin=200000, prefetch=0, sleep=0, touch=0, kprio=1, vprio=3,
        gran=4, rotmul=4, ackfirst=1, local=1, echo=-1, sleep2=-1, echog=-1, pre=0, mask1=1, h2=1, stag=6, qplain=0, st0=0, kb0=0, pat=1, rot=1, qloc=1, xdbg=0, trim=1, pd=3, mlp=0, qd=0, vw=0, bvst=0, ost='', ppl='sc1', pst='sc1', pl=0, cut=0, skip=0, esh=0, b0st=0, kthr=6, vthr=8, kgrp=2, kx=0, qperm=0, b0w=-1, xq=0, qv=0, nost=0, qf='sc1_nt', mf='sc1_nt', of='sc1_nt', pr='nt', prq=0, prm=0, pro=-1, prp=0, eneg=-1, ex=-1, lv='7.8-12.12', wo_=0, ws_=1, orc='', om=1, wb=0, vp2=0, spk=0, oat='', dmin=0, tv=0, eack=0, ge=1):
    if sleep2 < 0: sleep2 = sleep
    A = G()
    P = (' ' + pol) if pol else ''
    WP = (' ' + wpol) if wpol else ''
    PR = (' ' + pr) if pr != 'p' else ''
    out = [HEADER.rstrip('\n'),
           '; Override launch geometry by editing the next line (default: block=256,',
           '; grid=ceil(out_elems/256), lds=0). Harness parses it; keep it on one line.',
           f'; @launch grid=(256,1,1) block=(512,1,1) lds={LDS_BYTES}',
           '.amdgcn_target "amdgcn-amd-amdhsa--gfx950"', '.text', f'.globl {KN}_kernel', '.p2align 8',
           f'.type {KN}_kernel,@function', f'{KN}_kernel:']
    SLO, SHI = 's60', 's61'
    def stamp(i):
        if (stamps and (not dmin or i in (0, 11))) or (echo >= 0 and i in (0, echo, eneg)): A(f's_memrealtime s[{64+2*i}:{65+2*i}]')
    def allred(op, r, t, quad=False):
        if quad:
            A('s_nop 1', f'{op}_dpp v{r}, v{r}, v{r} quad_perm:[1,0,3,2] row_mask:0xf bank_mask:0xf')
            A('s_nop 1', f'{op}_dpp v{r}, v{r}, v{r} quad_perm:[2,3,0,1] row_mask:0xf bank_mask:0xf')
        A('s_nop 1', f'{op}_dpp v{r}, v{r}, v{r} row_ror:4 row_mask:0xf bank_mask:0xf')
        A('s_nop 1', f'{op}_dpp v{r}, v{r}, v{r} row_ror:8 row_mask:0xf bank_mask:0xf')
        A(f'v_mov_b32 v{t}, v{r}', 's_nop 1', f'v_permlane16_swap_b32 v{r}, v{t}', 's_nop 1', f'{op} v{r}, v{r}, v{t}')
        A(f'v_mov_b32 v{t}, v{r}', 's_nop 1', f'v_permlane32_swap_b32 v{r}, v{t}', 's_nop 1', f'{op} v{r}, v{r}, v{t}')
    def perm_mfma(src, T, mf):
        for dp in range(4):
            for d in range(4):
                A(f'v_perm_b32 v{T+4*(2*dp)+d}, v{src+4*(2*d+1)+dp}, v{src+4*(2*d)+dp}, {SLO}')
            if dp > 0 and mf: mf(2 * dp - 1)
            for d in range(4):
                A(f'v_perm_b32 v{T+4*(2*dp+1)+d}, v{src+4*(2*d+1)+dp}, v{src+4*(2*d)+dp}, {SHI}')
            if mf: mf(2 * dp)
        if mf:
            A('s_nop 1'); mf(7)
    def tagcheck(regs):
        A(f'v_xor_b32 v6, s7, v{regs[0]+1}', f'v_xor_b32 v7, s7, v{regs[0]+3}')
        for r in regs[1:]:
            A(f'v_bitop3_b32 v6, v{r+1}, s7, v6 bitop3:0xbe', f'v_bitop3_b32 v7, v{r+3}, s7, v7 bitop3:0xbe')
        A('v_or_b32 v6, v6, v7', 'v_cmp_ne_u32 vcc, 0, v6')
    def versions(dst, good, bad):
        for e in range(4):
            A(f'v_cmp_eq_u32 vcc, {e}, v5', 's_nop 1', f'v_cndmask_b32 v{dst+e}, v{bad}, v{good}, vcc')
    def unpack(dst, a, b):
        A(f'v_lshlrev_b32 v{dst}, 16, v{a}', f'v_and_b32 v{dst+1}, 0xffff0000, v{a}', f'v_lshlrev_b32 v{dst+2}, 16, v{b}', f'v_and_b32 v{dst+3}, 0xffff0000, v{b}')
    def swapadd32(r, t):
        for i in range(4): A(f'v_mov_b32 v{t+i}, v{r+i}')
        A('s_nop 0')
        for i in range(4): A(f'v_permlane32_swap_b32 v{r+i}, v{t+i}')
        A('s_nop 0')
        for i in range(4): A(f'v_add_f32 v{r+i}, v{r+i}, v{t+i}')
    def swapadd16(r, t):
        for i in range(4): A(f'v_mov_b32 v{t+i}, v{r+i}')
        A('s_nop 0')
        for i in range(4): A(f'v_permlane16_swap_b32 v{r+i}, v{t+i}')
        A('s_nop 0')
        for i in range(4): A(f'v_add_f32 v{r+i}, v{r+i}, v{t+i}')
    nteam = [0]
    def team_store(txt):
        if not local:
            A(txt + ' sc1'); return
        n = nteam[0]; nteam[0] += 1
        A('s_cmp_eq_u32 s13, 0', f's_cbranch_scc1 L_tl{n}', txt + ' sc1', f's_branch L_td{n}')
        A.lab(f'L_tl{n}'); A(txt); A.lab(f'L_td{n}')
    def dump_stamps(idx):
        A('s_waitcnt lgkmcnt(0)')
        A('s_lshl_b32 s59, s2, 7', f's_add_u32 s59, s59, 0x{STAMP_OFF:x}', 'v_mov_b32 v7, 0')
        for i in idx:
            A(f'v_mov_b32 v8, s{64+2*i}', f'v_mov_b32 v9, s{65+2*i}')
            A(f'buffer_store_dwordx2 v[8:9], v7, s[20:23], s59 offen offset:{8*i}', 's_nop 1')

    A('s_cmpk_ge_u32 s2, 0x100', 's_cbranch_scc1 L_end')
    stamp(0)
    A('s_and_b32 s52, s2, 8', 's_mul_i32 s52, s52, 5')
    A('s_load_dwordx8 s[32:39], s[0:1], s52 offset:8')
    A('s_load_dwordx2 s[40:41], s[0:1], 0')
    A('s_load_dwordx8 s[44:51], s[0:1], 80')
    A('v_lshrrev_b32 v1, 6, v0', 'v_and_b32 v0, 63, v0', 'v_readfirstlane_b32 s6, v1', 'v_lshlrev_b32 v14, 4, v0')
    A('s_bitcmp1_b32 s6, 2', 's_cbranch_scc1 L_vwave')
    ISH = 13 if pat else 15
    def kvbase():
        if kx: A('s_lshr_b32 s58, s2, 6', 's_lshr_b32 s4, s52, 5', 's_xor_b32 s4, s4, s2', 's_and_b32 s4, s4, 7', 's_lshl3_add_u32 s54, s58, s4', 's_lshr_b32 s5, s2, 4')
        else: A('s_lshr_b32 s58, s2, 6', 's_and_b32 s4, s2, 7', 's_lshl3_add_u32 s54, s58, s4', 's_lshr_b32 s5, s2, 4')
        if pat:
            A('s_and_b32 s59, s5, 3', 's_lshl2_add_u32 s54, s54, 3', 's_lshl_b32 s54, s54, 7', 's_lshl2_add_u32 s59, s59, s6', 's_add_u32 s54, s54, s59', 's_lshl_b32 s54, s54, 12')
        else:
            A('s_or_b32 s59, s5, 12', 's_lshl4_add_u32 s54, s54, s59', 's_lshl_b32 s54, s54, 5', 's_add_u32 s54, s54, s6', 's_lshl_b32 s54, s54, 12')
        A('s_lshl_b32 s96, s2, 29' if rot else 's_mov_b32 s96, 0', 's_lshl_b32 s97, 1, 29')
        A('s_lshl_b32 s10, 1, 26', 's_mov_b32 s11, 0x20000')
    LV = [tuple(int(z) for z in p.split('.')) for p in lv.split('-')] if lv else []
    def level():
        if wo_:
            A('s_getreg_b32 s98, hwreg(HW_REG_XCC_ID, 0, 1)', f's_mul_i32 s98, s98, {wo_}', 's_lshr_b32 s59, s5, 1', 's_cmp_eq_u32 s59, 3', f's_cselect_b32 s59, {ws_}, 0')
            A('s_add_u32 s98, s98, s59', f's_min_u32 s98, s98, {len(LV) - 1}')
        else: A('s_lshr_b32 s59, s5, 1', 's_cmp_eq_u32 s59, 3', f's_cselect_b32 s98, {min(ws_, len(LV) - 1)}, 0')
    kvbase()
    if LV: level()
    A('v_and_b32 v3, 48, v0', 'v_lshlrev_b32 v3, 2, v3', 'v_xor_b32 v10, v14, v3', 'v_add_u32 v10, s54, v10')
    for n in range(1, 4): A(f'v_xor_b32 v{10+n}, {16*n}, v10')
    A('s_lshl_b32 m0, s6, 15', 's_mov_b32 s59, 7')
    if kprio: A(f's_setprio {kprio}')
    A('s_waitcnt lgkmcnt(0)', 's_mov_b64 s[8:9], s[32:33]')
    if st0: stamp(5)
    def kloop(tag, thr, grp, kb0=kb0):
        A.lab(f'L_kloop{tag}')
        A(f's_lshr_b32 s56, s96, {ISH}')
        if kb0 > 0:
            A(f's_cmp_lg_u32 s59, {7-kb0}', f's_cbranch_scc1 L_knob{tag}', 's_barrier')
            A.lab(f'L_knob{tag}')
        for n in range(4):
            if thr and (not grp or n % grp == 0): A(f's_waitcnt vmcnt({thr - max(grp, 1)})')
            A(f'buffer_load_dwordx4 v{10+n}, s[8:11], s56 offen offset:{n*1024}{P} lds')
        A('s_add_u32 s96, s96, s97', 's_addk_i32 m0, 0x1000', 's_sub_u32 s59, s59, 1', f's_cbranch_scc0 L_kloop{tag}')
    if spk: A('s_cmp_eq_u32 s98, 1', 's_cbranch_scc1 L_kloop1')
    if kb0 == 0:
        A('s_barrier')
        if b0st: stamp(5)
    if LV:
        for i in range(1, len(LV)):
            if not spk: A(f's_cmp_eq_u32 s98, {i}', f's_cbranch_scc1 L_kloop{i}')
        for i, (kt, vt) in enumerate(LV):
            kloop(i, kt, 0, spk if (spk and i == 1) else kb0)
            if i + 1 < len(LV): A('s_branch L_entry_end')
    else: kloop('', kthr, kgrp)
    A.lab('L_entry_end')
    def common():
        A('s_and_b32 s3, s2, 15', 's_and_b32 s59, s5, 3', 's_and_b32 s42, s2, 7')
        A(f's_mov_b32 {SLO}, 0x05040100', f's_mov_b32 {SHI}, 0x07060302')
        A('s_mov_b32 s18, 0x400000', 's_mov_b32 s19, 0x20000')
        A(f's_mov_b32 s22, {WS_BYTES}', 's_mov_b32 s23, 0x20000')
        A('s_mov_b32 s26, 4096', 's_mov_b32 s27, 0x20000')
        A('s_lshl_b32 s55, s6, 15')
        A('s_lshl2_add_u32 s63, s59, s58', 's_lshl4_add_u32 s63, s3, s63')
        A('s_getreg_b32 s12, hwreg(HW_REG_XCC_ID, 0, 3)')
        A('v_lshrrev_b32 v1, 4, v0')
        A('v_and_b32 v2, 15, v0')
        A('v_bfe_u32 v5, v0, 2, 2')
        A('v_and_b32 v16, 3, v0')

    R1 = 64; PB = 48; ACC = 40; WO = 128; WT = 160
    stamp(1)
    A('s_barrier')
    A('s_load_dword s7, s[50:51], 0x%x' % WS_EPOCH)
    common()
    A('s_mov_b64 s[20:21], s[50:51]')
    A('s_lshl2_add_u32 s57, s3, s58', 's_lshl2_add_u32 s57, s57, s6', 's_lshl_b32 s57, s57, 10', f's_add_u32 s57, s57, 0x{WS_Q:x}')
    QP = 64
    def pollq(f=' sc1'): A(f'buffer_load_dwordx4 {vr(QP,4)}, v14, s[20:23], s57 offen{f}')
    if qv in (0, 5): pollq(' ' + qf.replace('_', ' '))
    if qv == 2: A('s_mov_b64 s[24:25], s[40:41]', 's_lshl_b32 s56, s6, 10', f'buffer_load_dwordx4 {vr(QP,4)}, v14, s[24:27], s56 offen sc1')
    if qv == 3: A('s_add_u32 s56, s57, 0x200000', f'buffer_load_dwordx4 {vr(QP,4)}, v14, s[20:23], s56 offen nt')
    if qv == 4: A('s_add_u32 s56, s57, 0x40000', f'buffer_load_dwordx4 {vr(QP,4)}, v14, s[20:23], s56 offen nt')
    for e in range(xq): A(f's_xor_b32 s56, s57, {4096 * (e + 1)}', f'buffer_load_dwordx4 v[{232}:{235}], v14, s[20:23], s56 offen' + ('' if qplain else ' sc1'))
    A('s_mov_b32 s24, s46', 's_mov_b32 s25, s47', 's_mov_b32 s16, s38', 's_mov_b32 s17, s39')
    NT = 0
    if touch == 1:
        A.c('first touch of the output page')
        A('s_mov_b64 exec, 1', 'buffer_load_dword v237, v14, s[24:27], 0 offen', 's_mov_b64 exec, -1'); NT = 1
    if prm:
        A('s_lshl_b32 s56, s3, 10', f's_add_u32 s56, s56, 0x{WS_ML:x}', 'v_lshlrev_b32 v7, 7, v0', 's_mov_b64 exec, 0xff', f'buffer_load_dword v236, v7, s[20:23], s56 offen{PR}', 's_mov_b64 exec, -1')
    A('v_lshlrev_b32 v15, 10, v1', 'v_lshl_add_u32 v15, v2, 4, v15')
    A('v_lshl_add_u32 v4, v16, 2, v5', 'v_lshlrev_b32 v4, 8, v4', 'v_add_u32 v4, s55, v4')
    A('v_xor_b32 v6, v1, v2', 'v_lshlrev_b32 v6, 4, v6')
    for t in range(4): A(f'v_xor_b32 v7, {64*t}, v6', f'v_add_u32 v{20+t}, v4, v7')
    A('v_lshlrev_b32 v7, 8, v16', 'v_lshl_add_u32 v7, v1, 4, v7', f'v_add_u32 v7, {QL}, v7', f'v_mov_b32 v8, {ZL}')
    versions(32, 7, 8)
    A('s_lshl_b32 s59, s6, 8', f's_add_u32 s59, s59, {QL}')
    A('v_lshrrev_b32 v9, 5, v0', 'v_lshlrev_b32 v9, 7, v9', 'v_bfe_u32 v8, v0, 3, 1', 'v_lshl_add_u32 v9, v8, 6, v9')
    A('v_and_b32 v8, 7, v0', 'v_lshl_add_u32 v9, v8, 1, v9', 'v_add_u32 v9, s59, v9')
    A('v_lshlrev_b32 v18, 4, v16', 's_lshl_b32 s59, s6, 2', f's_add_u32 s59, s59, {ML}', 'v_add_u32 v18, s59, v18')
    A('v_lshl_add_u32 v17, v1, 2, v16', 'v_lshlrev_b32 v17, 4, v17')
    A('v_lshrrev_b32 v8, 1, v5', 'v_lshl_add_u32 v17, v8, 8, v17', 'v_and_b32 v8, 1, v5', 'v_lshl_add_u32 v17, v8, 3, v17')
    A('s_lshl_b32 s59, s6, 10', f's_add_u32 s59, s59, {PX}', 'v_add_u32 v17, s59, v17')
    A('s_waitcnt lgkmcnt(0)')
    A(f's_add_u32 s7, s7, 0x{TAGC:x}')
    A(f's_mov_b32 s59, {spin}', 's_add_u32 s62, s7, s12')
    if qv: A('s_waitcnt vmcnt(0)', 's_mov_b32 s13, 0', 's_branch L_noml')
    A.lab('L_pollq')
    A('s_waitcnt vmcnt(0)')
    A(f'v_subrev_u32 v6, s7, v{QP+3}', 'v_cmp_lt_u32 vcc, 7, v6')
    A('s_cbranch_vccz L_gotq', 's_sub_u32 s59, s59, 1', 's_cbranch_scc1 L_gotq')
    pollq()
    A('s_branch L_pollq')
    A.lab('L_gotq')
    stamp(3)
    A(f'v_cmp_ne_u32 vcc, s62, v{QP+3}')
    A('s_mov_b32 s56, 0x04000c0c', 's_mov_b32 s57, 0x0706000c')
    A(f'v_perm_b32 v27, v{QP}, v{QP+1}, s56', f'v_perm_b32 v27, v27, v{QP+2}, s57')
    A('s_cmp_eq_u64 vcc, 0', 's_cselect_b32 s59, 1, 0x101')
    for i in range(3): A(f'v_mov_b32 v{24+i}, v{QP+i}')
    swapadd16(24, 28)
    A('v_cvt_pk_bf16_f32 v24, v24, v25', 'v_cvt_pk_bf16_f32 v25, v26, v27')
    A(f'v_mov_b32 v6, {CNT+4}', 'v_mov_b32 v7, s59')
    A('ds_write_b16 v9, v24', 'ds_write_b16_d16_hi v9, v24 offset:16', 'ds_write_b16 v9, v25 offset:32', 'ds_write_b16_d16_hi v9, v25 offset:48')
    A('s_mov_b64 exec, 1', 'ds_add_u32 v6, v7', 's_mov_b64 exec, -1')
    Qb = [R1, R1 + 16]; Kb = [R1 + 32, R1 + 48]
    def rdq(x):
        for t in range(4): A(f'ds_read_b128 {vr(Qb[x&1]+4*t,4)}, v{32+x} offset:{64*t}')
    def rdk(T_, buf):
        for t in range(4): A(f'ds_read_b128 {vr(Kb[buf]+4*t,4)}, v{20+t} offset:{4096*T_}')
    def mm(T_, buf):
        x = T_ & 3; a = T_ >> 2
        for t in range(4):
            c = '0' if (x == 0 and t == 0) else vr(ACC+4*a, 4)
            A(f'v_mfma_f32_16x16x32_bf16 {vr(ACC+4*a,4)}, {vr(Kb[buf]+4*t,4)}, {vr(Qb[x&1]+4*t,4)}, {c}')
    rdk(0, 0); rdk(4, 1)
    A(f's_mov_b32 s59, {spin}', f's_mov_b32 s62, 0x{SCALE:x}', f's_mov_b32 s14, 0x{LOG2E:x}')
    A.lab('L_qspin')
    A('ds_read_b32 v7, v6', 's_waitcnt lgkmcnt(0)', 'v_readfirstlane_b32 s13, v7', 's_and_b32 s56, s13, 255', 's_cmp_eq_u32 s56, 4', 's_cbranch_scc1 L_qall')
    A('s_sub_u32 s59, s59, 1', 's_cbranch_scc0 L_qspin')
    A.lab('L_qall')
    rdq(0)
    A('s_lshr_b32 s13, s13, 8')
    if qloc:
        A('s_cbranch_scc0 L_norep')
        A.c("some member sits on another XCD: write this workgroup's q partials through for it")
        A('s_lshl2_add_u32 s57, s3, s6', 's_lshl4_add_u32 s57, s57, s5', 's_lshl_b32 s57, s57, 8', f's_add_u32 s57, s57, 0x{WS_Q:x}')
        A('s_add_u32 s56, s7, s12', f's_mov_b32 s59, {spin}', 's_mov_b64 exec, 0xffff')
        A.lab('L_rep')
        A('buffer_load_dwordx4 v[24:27], v14, s[20:23], s57 offen sc1', 's_waitcnt vmcnt(0)', 'v_cmp_ne_u32 vcc, s56, v27')
        A('s_cbranch_vccz L_rep2', 's_sub_u32 s59, s59, 1', 's_cbranch_scc0 L_rep')
        A.lab('L_rep2')
        A('buffer_store_dwordx4 v[24:27], v14, s[20:23], s57 offen sc1', 's_mov_b64 exec, -1')
        A.lab('L_norep')
    for x in range(4):
        A('s_waitcnt lgkmcnt(%d)' % (0 if x == 0 else 4))
        mm(x, 0)
        if x < 3:
            rdq(x + 1)
            A('s_waitcnt lgkmcnt(4)')
        else:
            A('s_waitcnt lgkmcnt(0)')
        mm(x + 4, 1)
        if x < 3:
            rdk(x + 1, 0); rdk(x + 5, 1)
    A('s_nop 7')
    S = ACC
    for p in range(4): A(f'v_cvt_pk_bf16_f32 v{28+p}, v{S+2*p}, v{S+2*p+1}')
    for p in range(4): A(f'v_lshlrev_b32 v{S+2*p}, 16, v{28+p}', f'v_and_b32 v{S+2*p+1}, 0xffff0000, v{28+p}')
    for i in range(8): A(f'v_mul_f32 v{S+i}, s62, v{S+i}')
    for p in range(4): A(f'v_cvt_pk_bf16_f32 v{28+p}, v{S+2*p}, v{S+2*p+1}')
    for p in range(4): A(f'v_lshlrev_b32 v{S+2*p}, 16, v{28+p}', f'v_and_b32 v{S+2*p+1}, 0xffff0000, v{28+p}')
    A(f'v_max3_f32 v28, v{S}, v{S+1}, v{S+2}', f'v_max3_f32 v29, v{S+3}, v{S+4}, v{S+5}', f'v_max3_f32 v28, v28, v{S+6}, v{S+7}', 'v_max_f32 v28, v28, v29')
    allred('v_max_f32', 28, 29)
    A('v_mul_f32 v36, s14, v28')
    for i in range(8): A(f'v_fma_f32 v{S+i}, v{S+i}, s14, -v36')
    for i in range(8): A(f'v_exp_f32 v{S+i}, v{S+i}')
    A('ds_write_b32 v18, v36')
    for p in range(4): A(f'v_cvt_pk_bf16_f32 v{32+p}, v{S+2*p}, v{S+2*p+1}')
    A('ds_write_b64 v17, v[32:33]', 'ds_write_b64 v17, v[34:35] offset:512')
    A(f'v_add_f32 v28, v{S}, v{S+1}', f'v_add_f32 v29, v{S+2}, v{S+3}', f'v_add_f32 v30, v{S+4}, v{S+5}', f'v_add_f32 v31, v{S+6}, v{S+7}')
    A('v_add_f32 v28, v28, v29', 'v_add_f32 v30, v30, v31', 'v_add_f32 v28, v28, v30')
    allred('v_add_f32', 28, 29)
    A('ds_write_b32 v18, v28 offset:64')
    A('v_lshlrev_b32 v7, 4, v16', f'v_add_u32 v7, {ML}, v7', f'v_mov_b32 v6, {CNT+12}', 'v_mov_b32 v8, 1')
    A('s_mov_b64 exec, 1', 'ds_add_rtn_u32 v8, v6, v8', 's_mov_b64 exec, -1')
    A('ds_read_b128 v[20:23], v7', 'ds_read_b128 v[24:27], v7 offset:64')
    A('s_add_u32 s15, s7, s12', 'v_mov_b32 v37, s7', 'v_mov_b32 v39, s15')
    A('s_and_b32 s56, s63, 15', 's_lshl_b32 s59, s3, 6', 's_add_u32 s56, s56, s59', 's_lshl_b32 s56, s56, 4', f's_add_u32 s56, s56, 0x{WS_ML:x}', 'v_lshlrev_b32 v7, 8, v0')
    A('s_waitcnt lgkmcnt(0)')
    A('v_readfirstlane_b32 s59, v8', 's_cmp_lg_u32 s59, 3', 's_cbranch_scc1 L_noml')
    A.c('last K wave to finish its softmax publishes (m, l) of this workgroup, lane = head')
    A('v_max3_f32 v36, v20, v21, v22', 'v_max_f32 v36, v36, v23')
    for w in range(4): A(f'v_sub_f32 v{20+w}, v{20+w}, v36')
    for w in range(4): A(f'v_exp_f32 v{20+w}, v{20+w}')
    A('s_nop 0', 'v_mul_f32 v38, v20, v24')
    for w in range(1, 4): A(f'v_fmac_f32 v38, v{20+w}, v{24+w}')
    A('s_mov_b64 exec, 15')
    team_store('buffer_store_dwordx4 v[36:39], v7, s[20:23], s56 offen')
    A('s_mov_b64 exec, -1')
    A.lab('L_noml')
    A('v_lshrrev_b32 v13, 3, v0', 'v_lshlrev_b32 v12, 11, v13', 'v_and_b32 v8, 7, v0', 'v_lshl_add_u32 v12, v8, 4, v12', 'v_lshlrev_b32 v13, 4, v13')
    A('s_lshl_b32 s59, s6, 8', f's_add_u32 s59, s59, {OX}')
    A('v_and_b32 v17, 31, v0', 'v_lshlrev_b32 v17, 3, v17', 'v_add_u32 v17, s59, v17')
    if trim: A('v_lshrrev_b32 v8, 5, v0', 'v_lshl_add_u32 v17, v8, 2, v17')
    A('v_lshlrev_b32 v8, 6, v16', 'v_lshl_add_u32 v8, v1, 4, v8', 'v_add_u32 v8, s59, v8', f'v_mov_b32 v9, {ZL}')
    versions(208, 8, 9)
    A('s_lshl_b32 s59, s6, 11', 'v_add_u32 v19, s59, v14')
    A('s_lshl_b32 s59, s6, 9', 'v_and_b32 v18, 31, v0', 'v_lshlrev_b32 v18, 4, v18', 'v_add_u32 v18, s59, v18')
    A('v_mov_b32 v9, s7', 'v_mov_b32 v11, s7')
    A('s_lshr_b32 s58, s5, 2', 's_and_b32 s59, s5, 3')
    A('s_lshl2_add_u32 s52, s3, s58', 's_lshl_b32 s52, s52, 8', f's_add_u32 s52, s52, 0x{WS_ML:x}')
    A('s_lshl_b32 s50, s3, 15', 's_lshl_b32 s53, s58, 9', 's_add_u32 s50, s50, s53', 's_lshl_b32 s53, s6, 7', 's_add_u32 s50, s50, s53')
    A(f's_add_u32 s50, s50, 0x{WS_O:x}', 's_add_u32 s51, s50, 16384')
    A('s_lshl_b32 s57, s3, 2', 's_add_u32 s57, s57, s58')
    A('s_lshl_b32 s53, s59, 6', 's_add_u32 s53, s53, s57', 's_lshl_b32 s53, s53, 11')
    A('s_lshl_b32 s56, s6, 9', 's_add_u32 s53, s53, s56', f's_add_u32 s53, s53, 0x{WS_P:x}')
    A('s_lshl2_add_u32 s58, s4, s58', 's_lshl_b32 s58, s58, 17', 's_add_u32 s58, s58, s55', 's_lshl_b32 s59, s59, 8', 's_add_u32 s58, s58, s59')
    if om:
        A('s_lshr_b32 s57, s42, 1', 's_and_b32 s56, s2, 1', 's_lshr_b32 s59, s2, 7', 's_lshl1_add_u32 s56, s59, s56', 's_bfe_u32 s59, s2, 0x20005', 's_lshl2_add_u32 s56, s56, s59')
        A('s_bfe_u32 s59, s2, 0x20003', 's_lshl2_add_u32 s56, s56, s59', 's_lshl_b32 s56, s56, 1')
    else:
        A('s_and_b32 s56, s2, 7', 's_lshr_b32 s59, s2, 5', 's_lshl_b32 s59, s59, 3', 's_add_u32 s56, s56, s59', 's_lshr_b32 s57, s56, 4')
        A('s_and_b32 s56, s56, 15', 's_lshl_b32 s56, s56, 3', 's_bfe_u32 s59, s2, 0x20003', 's_lshl_b32 s59, s59, 1', 's_add_u32 s56, s56, s59')
    A('s_lshl_b32 s97, s57, 17', 's_lshl_b32 s59, s56, 4', 's_add_u32 s97, s97, s59', f's_add_u32 s97, s97, 0x{WS_P:x}')
    A('s_add_u32 s98, s97, 65536')
    A('v_lshrrev_b32 v212, 1, v0', 'v_lshlrev_b32 v212, 11, v212', 'v_and_b32 v7, 1, v0', 'v_lshl_add_u32 v212, v7, 4, v212')
    A('v_lshrrev_b32 v7, 5, v0', 'v_add_u32 v4, s56, v7', 'v_and_b32 v7, 3, v4', 'v_lshlrev_b32 v226, 3, v7', f'v_add_u32 v226, {GL}, v226')
    A('v_lshlrev_b32 v213, 9, v7', 's_lshl_b32 s57, s57, 7', 'v_add_u32 v213, s57, v213')
    A('v_bfe_u32 v7, v4, 4, 2', 'v_lshl_add_u32 v213, v7, 5, v213', 'v_lshrrev_b32 v7, 6, v4', 'v_lshl_add_u32 v213, v7, 2, v213')
    A('v_bfe_u32 v7, v4, 2, 2', 'v_add_u32 v213, v213, v7', 'v_lshl_add_u32 v213, v16, 3, v213')
    A('v_lshlrev_b32 v213, 1, v213')
    A('v_and_b32 v7, 1, v0', 'v_lshlrev_b32 v7, 4, v7', 'v_mov_b32 v6, 0x3f80', 'v_lshlrev_b32 v6, v7, v6', 'v_lshrrev_b32 v7, 1, v2')
    for d in range(4): A(f'v_cmp_eq_u32 vcc, {d}, v7', 's_nop 1', f'v_cndmask_b32 v{232+d}, 0, v6, vcc')
    if pl:
        A.c('s99: lanes of the line that workgroups of this XCD will read, when the team sits where round-robin placement puts it')
        if om: A('s_mov_b32 s99, -1', 's_and_b32 s56, s5, 3', 's_and_b32 s59, s6, 1', 's_lshl1_add_u32 s56, s56, s59', 's_xor_b32 s56, s56, s12')
        else: A('s_and_b32 s56, s12, 3', 's_lshl_b32 s56, s56, 3', 's_lshl_b32 s99, 0xff, s56', 's_lshr_b32 s56, s12, 2', 's_and_b32 s59, s6, 1', 's_xor_b32 s56, s56, s59')
        A('s_xor_b32 s59, s12, s42', 's_or_b32 s56, s56, s59', 's_or_b32 s56, s56, s13', 's_cbranch_scc0 L_ppl0', 's_mov_b32 s99, 0', 's_branch L_ppl')
        A.lab('L_ppl0')
        A.c('put that line into the L2 now, untagged, so that early polls stay inside the L2')
        A('s_mov_b32 exec_hi, 0', 's_mov_b32 exec_lo, s99', 'v_not_b32 v21, v9', 'v_not_b32 v23, v9')
        A(f'buffer_load_dword v236, v14, s[20:23], s53 offen{PR}' if prp else 'buffer_store_dwordx4 v[20:23], v14, s[20:23], s53 offen', 's_mov_b64 exec, -1')
        A.lab('L_ppl')
        A('s_xor_b32 s43, s3, 8', 's_lshl_b32 s43, s43, 10', f's_add_u32 s43, s43, 0x{WS_ML:x}', 'v_lshlrev_b32 v228, 4, v2')
    if touch == 2:
        A('s_cmp_lg_u32 s6, 0', 's_cbranch_scc1 L_nt', 's_mov_b64 exec, 3', 'buffer_load_ushort v237, v213, s[24:27], 0 offen', 's_mov_b64 exec, -1')
        A.lab('L_nt')
    if ge:
        A('s_bfe_u32 s34, s2, 0x10003', 's_lshl1_add_u32 s34, s34, s6', 's_sub_u32 s34, s34, 1', 's_lshl_b32 s35, s34, 10')
        A('s_mov_b64 s[36:37], s[40:41]', 's_mov_b32 s38, 4096', 's_mov_b32 s39, 0x20000', 's_mov_b64 s[28:29], s[44:45]', 's_mov_b32 s30, 1024', 's_mov_b32 s31, 0x20000')
        A('s_add_u32 s33, s6, 1')
    stamp(4)
    A('s_barrier')
    if bvst: stamp(15)
    MLR = 216; FA = 224
    def pollml():
        A(f'buffer_load_dwordx4 v[{MLR}:{MLR+3}], v13, s[20:23], s52 offen ' + mf.replace('_', ' '))
        A(f'buffer_load_dwordx4 v[{MLR+4}:{MLR+7}], v13, s[20:23], s52 offen offset:128 ' + mf.replace('_', ' '))
    def mlfactors():
        A(f'v_max_f32 v6, v{MLR}, v{MLR+4}')
        A('v_mov_b32 v7, v6', 's_nop 1', 'v_permlane32_swap_b32 v6, v7', 's_nop 1', 'v_max_f32 v6, v6, v7')
        A(f'v_sub_f32 v{FA}, v{MLR}, v6', f'v_sub_f32 v{FA+1}, v{MLR+4}, v6', f'v_exp_f32 v{FA}, v{FA}', f'v_exp_f32 v{FA+1}, v{FA+1}', 's_nop 0')
        A(f'v_mul_f32 v6, v{FA}, v{MLR+2}', f'v_fmac_f32 v6, v{FA+1}, v{MLR+6}')
        A('v_mov_b32 v7, v6', 's_nop 1', 'v_permlane32_swap_b32 v6, v7', 's_nop 1', 'v_add_f32 v6, v6, v7')
        A('v_rcp_f32 v6, v6', 's_nop 0', f'v_mul_f32 v{FA}, v{FA}, v6', f'v_mul_f32 v{FA+1}, v{FA+1}, v6')
    def mlcheck():
        A(f'v_xor_b32 v6, s7, v{MLR+1}', f'v_bitop3_b32 v6, v{MLR+5}, s7, v6 bitop3:0xbe', 'v_cmp_ne_u32 vcc, 0, v6')
    def poll1():
        A('buffer_load_dwordx4 v[20:23], v12, s[20:23], s50 offen ' + of.replace('_', ' '), 'buffer_load_dwordx4 v[24:27], v12, s[20:23], s51 offen ' + of.replace('_', ' '))
    if mlp == 0 and cut != 2: pollml()
    for n in range(8):
        ro = 8 * (n & 3) + 4 * (n >> 2)
        A(f's_add_u32 s59, s58, {ro*1024}', f'buffer_load_dwordx4 {vr(WO+4*n,4)}, v15, s[16:19], s59 offen{WP}')
    if pd < 0: poll1()
    if not st0 and not b0st: stamp(5)
    if mlp == 0:
        A(f's_waitcnt vmcnt({10 if pd < 0 else 8})')
        mlcheck()
        A('s_mov_b32 s62, 0', 's_cbranch_vccnz L_mllate')
        mlfactors()
        A('s_mov_b32 s62, 1')
        A.lab('L_mllate')
    else: A('s_mov_b32 s62, 0')
    for d in range(4):
        A(f's_waitcnt vmcnt({(8 if d > pd else 6)-2*d})')
        if d == pd and cut not in (1, 2):
            poll1()
            if pl: A('buffer_load_dword v227, v228, s[20:23], s43 offen offset:12 sc1')
        for dp in range(4):
            A(f'v_perm_b32 v{WT+8*dp+d}, v{WO+4*(2*d+1)+dp}, v{WO+8*d+dp}, {SLO}', f'v_perm_b32 v{WT+8*dp+4+d}, v{WO+4*(2*d+1)+dp}, v{WO+8*d+dp}, {SHI}')
    stamp(2)
    if cut in (1, 2):
        A('s_waitcnt vmcnt(0)', 's_cmp_lg_u32 s6, 0', 's_cbranch_scc1 L_end', 's_branch L_fin')
    A(f's_mov_b32 s59, {spin}', 's_cmp_eq_u32 s62, 1', 's_cbranch_scc1 L_poll1')
    A.lab('L_pollml')
    pollml()
    A('s_waitcnt vmcnt(0)')
    mlcheck()
    A('s_cbranch_vccz L_gotml', 's_sub_u32 s59, s59, 1', 's_cbranch_scc0 L_pollml')
    A.lab('L_gotml')
    mlfactors()
    A.lab('L_poll1')
    A('s_waitcnt vmcnt(0)')
    tagcheck([20, 24])
    A('s_cbranch_vccz L_got1', 's_sub_u32 s59, s59, 1', 's_cbranch_scc1 L_got1')
    if sleep: A(f's_sleep {sleep}')
    if mask1: A('s_mov_b64 exec, vcc')
    poll1()
    A('s_branch L_poll1')
    A.lab('L_got1')
    if mask1: A('s_mov_b64 exec, -1')
    stamp(8)
    unpack(28, 20, 22); unpack(36, 24, 26)
    if trim:
        for r in range(2): A(f'v_pk_mul_f32 v[{28+2*r}:{29+2*r}], v[{28+2*r}:{29+2*r}], v[{FA}:{FA+1}] op_sel_hi:[1,0]')
        for r in range(2): A(f'v_pk_fma_f32 v[{28+2*r}:{29+2*r}], v[{36+2*r}:{37+2*r}], v[{FA}:{FA+1}], v[{28+2*r}:{29+2*r}] op_sel:[0,1,0] op_sel_hi:[1,1,1]')
        A('s_nop 1', 'v_permlane32_swap_b32 v28, v30', 'v_permlane32_swap_b32 v29, v31', 's_nop 0')
        A('v_pk_add_f32 v[28:29], v[28:29], v[30:31]')
        A('v_cvt_pk_bf16_f32 v20, v28, v29', 'ds_write_b32 v17, v20')
    else:
        for r in range(4): A(f'v_mul_f32 v{28+r}, v{FA}, v{28+r}')
        for r in range(4): A(f'v_fmac_f32 v{28+r}, v{FA+1}, v{36+r}')
        swapadd32(28, 36)
        A('v_cvt_pk_bf16_f32 v20, v28, v29', 'v_cvt_pk_bf16_f32 v21, v30, v31')
        A('ds_write_b64 v17, v[20:21]')
    for e in range(4): A(f'ds_read_b128 {vr(PB+4*e,4)}, v{208+e}')
    for e in range(4):
        A(f's_waitcnt lgkmcnt({3-e})')
        for idx in range(2):
            c = '0' if e == 0 else vr(ACC + 4 * idx, 4)
            A(f'v_mfma_f32_16x16x32_bf16 {vr(ACC+4*idx,4)}, {vr(WT+4*(4*idx+e),4)}, {vr(PB+4*e,4)}, {c}')
    if pl: A('v_cmp_ne_u32 vcc, s15, v227', 's_nop 3', 's_cmp_eq_u64 vcc, 0', 's_cselect_b32 s99, s99, 0')
    elif ge:
        A('s_bitcmp1_b32 s33, 1', 's_cbranch_scc0 L_ng')
        A('buffer_load_dwordx4 v[128:131], v14, s[36:39], s35 offen', 'buffer_load_dwordx4 v[132:135], v14, s[28:31], 0 offen')
        A.lab('L_ng')
        A('s_nop 4')
    else: A('s_nop 6')
    A(f'ds_write_b128 v19, {vr(ACC,4)}', f'ds_write_b128 v19, {vr(ACC+4,4)} offset:1024')
    A('s_waitcnt lgkmcnt(0)')
    if not st0 and not bvst: stamp(15)
    A('s_barrier')
    for w in range(4): A(f'ds_read_b128 {vr(20+4*w,4)}, v18 offset:{2048*w}')
    def pkadd(d, a):
        for i in range(2): A(f'v_pk_add_f32 v[{d+2*i}:{d+2*i+1}], v[{d+2*i}:{d+2*i+1}], v[{a+2*i}:{a+2*i+1}]')
    A('s_waitcnt lgkmcnt(2)'); pkadd(20, 24)
    A('s_waitcnt lgkmcnt(1)'); pkadd(20, 28)
    A('s_waitcnt lgkmcnt(0)'); pkadd(20, 32)
    A('v_cvt_pk_bf16_f32 v8, v20, v21', 'v_cvt_pk_bf16_f32 v10, v22, v23')
    if pl and om:
        A('s_mov_b32 exec_hi, 0', 's_cmp_lg_u32 s99, 0', 's_cbranch_scc1 L_pl', 'buffer_store_dwordx4 v[8:11], v14, s[20:23], s53 offen sc1', 's_branch L_pnl')
        A.lab('L_pl')
        A('buffer_store_dwordx4 v[8:11], v14, s[20:23], s53 offen')
        A.lab('L_pnl')
        A('s_mov_b32 exec_hi, -1')
    elif pl:
        A('s_mov_b32 exec_hi, 0', 's_not_b32 exec_lo, s99', 'buffer_store_dwordx4 v[8:11], v14, s[20:23], s53 offen sc1')
        A('s_cmp_eq_u32 s99, 0', 's_cbranch_scc1 L_pnl', 's_mov_b32 exec_lo, s99', 'buffer_store_dwordx4 v[8:11], v14, s[20:23], s53 offen')
        A.lab('L_pnl')
        A('s_mov_b64 exec, -1')
    else:
        A('s_mov_b32 exec_hi, 0', 'buffer_store_dwordx4 v[8:11], v14, s[20:23], s53 offen ' + pst.replace('_', ' '), 's_mov_b32 exec_hi, -1')
    stamp(9)
    if cut == 3:
        A('s_waitcnt vmcnt(0)', 's_cmp_lg_u32 s6, 0', 's_cbranch_scc1 L_end', 's_branch L_fin')
    A('s_cmp_lg_u32 s6, 0', 's_cbranch_scc1 L_gate')
    if ackfirst == 1: A('s_waitcnt vmcnt(0)')
    A(f's_mov_b32 s59, {spin}')
    def poll2(r):
        for k in range(2): A(f'buffer_load_dwordx4 v[{r+4*k}:{r+3+4*k}], v212, s[20:23], s{97+k} offen ' + ppl.replace('_', ' '))
    if ackfirst == 2:
        A('s_lshl_b32 s56, s42, 3', 's_lshl_b64 s[32:33], 0xff, s56', 's_not_b64 exec, s[32:33]')
        poll2(20)
        A('s_waitcnt vmcnt(0)')
        tagcheck([20, 24])
        A('s_or_b64 exec, vcc, s[32:33]')
    if h2 < 2:
        A.lab('L_poll2')
        poll2(20)
        A('s_waitcnt vmcnt(0)')
        tagcheck([20, 24])
        A('s_cbranch_vccz L_got2', 's_sub_u32 s59, s59, 1', 's_cbranch_scc1 L_got2')
        if sleep2: A(f's_sleep {sleep2}')
        if h2 == 1: A('s_mov_b64 exec, vcc')
        A('s_branch L_poll2')
    else:
        poll2(44)
        A('s_mov_b64 s[32:33], -1', 's_mov_b64 s[34:35], -1', 's_mov_b64 s[36:37], -1', 's_mov_b64 s[38:39], 0')
        if stag: A(f's_sleep {stag}')
        poll2(52)
        A.lab('L_poll2')
        A('s_mov_b64 exec, s[32:33]', 's_waitcnt vmcnt(2)')
        tagcheck([44, 48])
        A('s_andn2_b64 s[40:41], exec, vcc', 's_or_b64 s[38:39], s[38:39], s[40:41]', 's_andn2_b64 s[36:37], s[36:37], s[40:41]', 's_cbranch_scc0 L_got2')
        A('s_mov_b64 exec, s[36:37]', 's_mov_b64 s[32:33], s[36:37]')
        poll2(44)
        A('s_mov_b64 exec, s[34:35]', 's_waitcnt vmcnt(2)')
        tagcheck([52, 56])
        A('s_andn2_b64 s[40:41], exec, vcc', 's_andn2_b64 s[36:37], s[36:37], s[40:41]', 's_cbranch_scc0 L_got2')
        A('s_mov_b64 exec, s[36:37]', 's_mov_b64 s[34:35], s[36:37]')
        poll2(52)
        A('s_sub_u32 s59, s59, 1', 's_cbranch_scc0 L_poll2')
    A.lab('L_got2')
    if h2: A('s_mov_b64 exec, -1')
    if h2 == 2:
        for i in range(4): A(f'v_cndmask_b32 v{20+2*i}, v{52+2*i}, v{44+2*i}, s[38:39]')
    stamp(10)
    A('ds_read_b64 v[214:215], v226', f's_mov_b32 s59, {spin}')
    A('v_mov_b32 v21, v22', 'v_mov_b32 v22, v24', 'v_mov_b32 v23, v26', 's_nop 1')
    A('v_mfma_f32_16x16x32_bf16 v[28:31], v[20:23], v[232:235], 0', 's_nop 7')
    A('v_pk_add_f32 v[28:29], v[28:29], v[30:31]', 's_waitcnt lgkmcnt(0)', 'v_or_b32 v7, v214, v215')
    A('v_permlane32_swap_b32 v28, v29', 'v_cmp_eq_u32 vcc, 0, v7', 'v_add_f32 v28, v28, v29')
    A('v_mov_b32 v29, v28', 's_nop 1', 'v_permlane16_swap_b32 v28, v29', 's_nop 0', 'v_add_f32 v20, v28, v29')
    A('s_nop 1', 'v_mov_b32_dpp v21, v20 row_ror:12 row_mask:0xf bank_mask:0xf')
    A('v_cvt_pk_bf16_f32 v20, v20, v21')
    A('v_lshlrev_b32 v21, 16, v20', 'v_and_b32 v22, 0xffff0000, v20')
    A('s_cbranch_vccnz L_glate')
    A.lab('L_gok')
    A('v_mul_f32 v21, v21, v214', 'v_mul_f32 v22, v22, v215')
    A('v_cvt_pk_bf16_f32 v20, v21, v22')
    A('v_lshlrev_b32 v21, 16, v20', 'v_and_b32 v22, 0xffff0000, v20', 'v_add_f32 v21, v21, v22')
    A('v_cvt_pk_bf16_f32 v20, v21, v21')
    A('s_mov_b32 exec_lo, 15', 's_mov_b32 exec_hi, 15', 'buffer_store_short v20, v213, s[24:27], 0 offen' + (' ' + ost.replace('_', ' ') if ost else ''))
    A('s_cmp_lg_u32 s2, 0', 's_cbranch_scc1 L_fin')
    A('s_mov_b64 exec, 1', 'v_mov_b32 v6, s7', f'buffer_store_dword v6, v14, s[20:23], 0 offen offset:{WS_EPOCH}')
    A.lab('L_fin')
    if echo >= 0:
        stamp(11)
        A('s_memrealtime s[30:31]', 's_waitcnt lgkmcnt(0)')
        if eack: A('s_waitcnt vmcnt(0)', 's_memrealtime s[30:31]', 's_waitcnt lgkmcnt(0)', f's_sub_u32 s28, s30, s{64+2*echo}')
        elif eneg >= 0: A(f's_sub_u32 s28, s{64+2*eneg}, s{64+2*echo}', 's_add_u32 s28, s28, 300', 's_max_i32 s28, s28, 0')
        else: A(f's_sub_u32 s28, s{64+2*echo}, s64')
        A(f's_lshl_b32 s28, s28, {esh}', 's_add_u32 s28, s28, s30')
        if echog >= 0: A('s_lshr_b32 s29, s3, 3', f's_cmp_lg_u32 s29, {echog}', 's_cbranch_scc1 L_end')
        if ex >= 0: A(f's_cmp_lg_u32 s12, {ex}', 's_cbranch_scc1 L_end')
        A.lab('L_echo')
        A('s_memrealtime s[30:31]', 's_waitcnt lgkmcnt(0)', 's_sub_u32 s29, s30, s28', 's_cmp_lt_i32 s29, 0', 's_cbranch_scc1 L_echo')
    if stamps:
        stamp(11)
        A('s_mov_b64 exec, -1')
        if xdbg: A('s_waitcnt lgkmcnt(0)', 's_mul_i32 s94, s12, 100', 's_add_u32 s94, s94, s64', 's_addc_u32 s95, s65, 0')
        dump_stamps([0, 11] if dmin else [0, 1, 2, 3, 4, 5, 8, 9, 10, 11, 15])
    A('s_endpgm')
    A.lab('L_glate')
    A('ds_read_b64 v[214:215], v226', 's_waitcnt lgkmcnt(0)', 'v_or_b32 v7, v214, v215', 'v_cmp_eq_u32 vcc, 0, v7')
    A('s_cbranch_vccz L_gok', 's_sub_u32 s59, s59, 1', 's_cbranch_scc0 L_glate', 's_branch L_gok')
    A.lab('L_gate')
    A.c('waves 1 and 2: the gates of the two batches this workgroup finishes')
    XG = 128; GA = XG + 8
    if wb:
        A('s_cmp_lg_u32 s6, 3', 's_cbranch_scc1 L_g2')
        if wb == 2: A('s_cmp_lg_u32 s5, 15', 's_cbranch_scc1 L_end')
        A('s_waitcnt vmcnt(0)', 'buffer_wbl2 sc1', 's_endpgm')
        A.lab('L_g2')
    else: A('s_cmp_eq_u32 s6, 3', 's_cbranch_scc1 L_end')
    if ge: A('s_mov_b32 s56, s34', 's_waitcnt vmcnt(1)')
    else:
        A('s_bfe_u32 s56, s2, 0x10003', 's_lshl1_add_u32 s56, s56, s6', 's_sub_u32 s56, s56, 1', 's_lshl_b32 s53, s56, 10')
        A('s_mov_b64 s[24:25], s[40:41]', 's_mov_b64 s[28:29], s[44:45]', 's_mov_b32 s30, 1024', 's_mov_b32 s31, 0x20000')
        A(f'buffer_load_dwordx4 {vr(XG,4)}, v14, s[24:27], s53 offen')
        A(f'buffer_load_dwordx4 {vr(XG+4,4)}, v14, s[28:31], 0 offen')
        A('s_waitcnt vmcnt(0)')
    for i in range(4):
        x = XG + i; g = XG + 4 + i
        unpack(36, x, g)
        A('v_mul_f32 v36, v36, v38', 'v_mul_f32 v37, v37, v39', 'v_cvt_pk_bf16_f32 v36, v36, v37')
        if i == 0:
            A(f'v_lshlrev_b32 v{GA}, 16, v36', f'v_and_b32 v{GA+1}, 0xffff0000, v36')
        else:
            A('v_lshlrev_b32 v38, 16, v36', 'v_and_b32 v39, 0xffff0000, v36', f'v_add_f32 v{GA}, v{GA}, v38', f'v_add_f32 v{GA+1}, v{GA+1}, v39')
    A(f'v_add_f32 v{GA}, v{GA}, v{GA+1}')
    allred('v_add_f32', GA, GA + 1, quad=True)
    A(f'v_cvt_pk_bf16_f32 v{GA}, v{GA}, v{GA}', f'v_lshlrev_b32 v{GA}, 16, v{GA}')
    A(f'v_mul_f32 v{GA}, 0x{LOG2E ^ 0x80000000:x}, v{GA}', f'v_exp_f32 v{GA}, v{GA}', 's_nop 0')
    A(f'v_add_f32 v{GA}, 1.0, v{GA}', f'v_rcp_f32 v{GA}, v{GA}', 's_nop 0')
    A(f'v_cvt_pk_bf16_f32 v{GA}, v{GA}, v{GA}', f'v_lshlrev_b32 v{GA}, 16, v{GA}')
    A(f'v_sub_f32 v{GA+1}, 1.0, v{GA}', f'v_cvt_pk_bf16_f32 v{GA+1}, v{GA+1}, v{GA+1}', f'v_lshlrev_b32 v{GA+1}, 16, v{GA+1}')
    A('s_lshl_b32 s59, s56, 3', f's_add_u32 s59, s59, {GL}', 'v_mov_b32 v6, s59', f'ds_write_b64 v6, v[{GA}:{GA+1}]')
    A('s_endpgm')

    V0 = 128; PB = 64; T = 32; ACC = 24
    WQ = 64; XB = 96
    A('.p2align 6')
    A.lab('L_vwave')
    if vprio: A(f's_setprio {vprio}')
    A('s_and_b32 s6, s6, 3')
    if prefetch:
        A.c("warm L2 with this kernel's own code: one dword per 64 bytes")
        A('s_getpc_b64 s[56:57]')
        A.lab('L_pc')
        A(f's_sub_u32 s56, s56, L_pc-{KN}_kernel', 's_subb_u32 s57, s57, 0')
        A('s_lshl_b32 s59, s6, 12', 'v_lshl_add_u32 v2, v14, 2, s59')
        A(f'v_min_u32 v2, L_code_end-{KN}_kernel-4, v2')
        A('v_mov_b32 v3, s57', 'v_add_co_u32 v2, vcc, s56, v2', 's_nop 1', 'v_addc_co_u32 v3, vcc, 0, v3, vcc')
        A('global_load_dword v40, v[2:3], off')
    kvbase()
    if LV: level()
    common()
    assert kb0 >= 0 and (pd == 3 or not pl)
    QA = 112; XR = 104
    A('s_lshl_b32 s57, s6, 8', f's_add_u32 s57, s57, {ZL}', 'v_lshlrev_b32 v4, 2, v0', 'v_add_u32 v7, s57, v4')
    A('v_mov_b32 v6, 0', 'v_and_b32 v4, 0x7c, v4', f'v_add_u32 v4, {CNT}, v4')
    A('ds_write_b32 v7, v6', 'ds_write_b32 v4, v6')
    A('v_lshrrev_b32 v8, 3, v0', 'v_and_b32 v7, 7, v0', 'v_lshlrev_b32 v9, 16, v8', 'v_lshl_add_u32 v9, v7, 4, v9')
    if qperm: A(f's_xor_b32 s5, s5, {qperm}')
    A('s_and_b32 s57, s5, 1', 's_lshl2_add_u32 s57, s57, s6')
    A('s_lshl_b32 s56, s57, 12', 's_lshr_b32 s59, s5, 1', 's_lshl3_add_u32 s59, s4, s59', 's_add_u32 s56, s56, s59', 's_lshl_b32 s56, s56, 7')
    A('s_lshl_b32 s57, s57, 7')
    A('v_lshlrev_b32 v8, 4, v8', 'v_lshl_add_u32 v8, v16, 10, v8')
    A('s_waitcnt lgkmcnt(0)')
    A('s_mov_b64 s[16:17], s[36:37]', 's_mov_b64 s[24:25], s[40:41]')
    if spk:
        A('s_cmp_lg_u32 s98, 1', 's_cbranch_scc1 L_w0', 's_barrier')
        A.lab('L_w0')
    if st0: stamp(12)
    for i in range(8):
        A(f'buffer_load_dwordx4 {vr(WQ+4*i,4)}, v9, s[16:19], s56 offen{WP}')
        if i < 7: A('s_addk_i32 s56, 0x2000')
    A(f'buffer_load_dwordx4 {vr(XR,4)}, v8, s[24:27], s57 offen')
    if b0w >= 0:
        A('s_add_u32 s59, s16, s56', 's_bfe_u32 s59, s59, 0x30007', 's_cmp_eq_u32 s59, 3', 's_cbranch_scc1 L_b0', f's_waitcnt vmcnt({b0w})')
        A.lab('L_b0')
    if spk: A('s_cmp_eq_u32 s98, 1', 's_cbranch_scc1 L_w1')
    A('s_barrier')
    if spk: A.lab('L_w1')
    A('s_load_dword s7, s[50:51], 0x%x' % WS_EPOCH)
    A('s_mov_b64 s[20:21], s[50:51]', 's_mov_b64 s[8:9], s[34:35]')
    A('s_lshl_b32 s59, s6, 11', f's_add_u32 s59, s59, {OL}', 'v_add_u32 v19, s59, v14')
    A('v_lshlrev_b32 v17, 9, v1', 'v_lshl_add_u32 v17, v7, 4, v17', 'v_add_u32 v17, s59, v17')
    A('v_bfe_u32 v12, v0, 1, 4', 'v_lshlrev_b32 v12, 6, v12', 'v_and_b32 v8, 1, v0', 'v_lshl_add_u32 v12, v8, 10, v12')
    A('s_lshl_b32 s59, s6, 4', f's_add_u32 s59, s59, {OL}', 'v_add_u32 v12, s59, v12')
    A('v_lshlrev_b32 v18, 11, v1', 'v_lshl_add_u32 v18, v2, 6, v18', 'v_add_u32 v18, s59, v18')
    A('v_add_u32 v15, s54, v14')
    if tv:
        A.c('first touch of the V, wo and gate pages')
        A('s_cmp_lg_u32 s6, 0', 's_cbranch_scc1 L_ntv', 's_mov_b64 exec, 1')
        A('buffer_load_dword v110, v15, s[8:11], 0 offen nt')
        A('s_mov_b64 s[28:29], s[38:39]', 's_mov_b32 s30, 0x400000', 's_mov_b32 s31, 0x20000', 's_lshl_b32 s59, s4, 19', 'buffer_load_dword v111, v14, s[28:31], s59 offen nt')
        if tv > 1: A('s_mov_b64 s[28:29], s[44:45]', 's_mov_b32 s30, 1024', 'buffer_load_dword v108, v14, s[28:31], 0 offen', 'buffer_load_dword v109, v14, s[20:23], 0 offen offset:64')
        A('s_mov_b64 exec, -1')
        A.lab('L_ntv')
    A(f'v_mov_b32 v10, {CNT}', 'v_mov_b32 v11, 1')
    A('s_lshl2_add_u32 s57, s3, s6', 's_lshl4_add_u32 s57, s57, s5', 's_lshl_b32 s57, s57, 8', f's_add_u32 s57, s57, 0x{WS_Q:x}')
    if prq: A('s_mov_b64 exec, 0xffff', f'buffer_load_dword v68, v14, s[20:23], s57 offen{PR}', 's_mov_b64 exec, -1')
    A('v_and_b32 v8, 4, v0', 'v_cmp_eq_u32 vcc, 0, v8')
    A('s_waitcnt vmcnt(0) lgkmcnt(0)')
    A(f's_add_u32 s7, s7, 0x{TAGC:x}')
    if st0: stamp(13)
    for i in range(4): A(f'v_cndmask_b32 v{XB+i}, 0, v{XR+i}, vcc', f'v_cndmask_b32 v{XB+4+i}, v{XR+i}, 0, vcc')
    def mfq(e):
        c = '0' if (e & 1) == 0 else vr(QA + 4 * (e >> 1), 4)
        A(f'v_mfma_f32_16x16x32_bf16 {vr(QA+4*(e>>1),4)}, {vr(T+4*e,4)}, {vr(XB+4*(e&1),4)}, {c}')
    perm_mfma(WQ, T, mfq)
    A('s_mov_b32 exec_lo, 0x00ff00ff', 's_mov_b32 exec_hi, 0xff00ff00', 's_nop 6')
    for a_ in range(4): A(f'ds_write_b128 v17, {vr(QA+4*a_,4)} offset:{128*a_}')
    A('s_mov_b64 exec, 1', 'ds_add_u32 v10, v11', 's_mov_b64 exec, -1')
    A('s_add_u32 s59, s7, s12', 's_mov_b32 s56, 0x07060503', 's_mov_b32 s58, 0x07060502', 's_mov_b32 s62, 0x07060501')
    A('v_mov_b32 v67, s59', f's_mov_b32 s59, {spin}')
    A.lab('L_xspin')
    A('ds_read_b32 v4, v10')
    for w in range(2): A(f'ds_read_b128 {vr(T+4*w,4)}, v18 offset:{1024*w}')
    A('s_waitcnt lgkmcnt(2)')
    A('v_readfirstlane_b32 s53, v4', 's_cmp_eq_u32 s53, 4', 's_cbranch_scc1 L_xall')
    A('s_sub_u32 s59, s59, 1', 's_cbranch_scc0 L_xspin')
    A.lab('L_xall')
    A.c("add the partials of batch cw and publish them; the tag also carries the XCD number")
    A('s_waitcnt lgkmcnt(0)')
    for i in range(4): A(f'v_add_f32 v{T+i}, v{T+i}, v{T+4+i}')
    swapadd32(T, T + 4); swapadd16(T, T + 4)
    A(f'v_perm_b32 v64, v{T}, v{T+3}, s56', f'v_perm_b32 v65, v{T+1}, v{T+3}, s58', f'v_perm_b32 v66, v{T+2}, v{T+3}, s62')
    A('s_mov_b64 exec, 0xffff')
    if nost: A('s_branch L_qd')
    if qloc:
        A.c('on the XCD that round-robin placement gives the team the shared L2 carries it; anywhere else it is written through')
        A('s_cmp_eq_u32 s12, s42', 's_cbranch_scc1 L_ql')
    A('buffer_store_dwordx4 v[64:67], v14, s[20:23], s57 offen sc1')
    if qloc:
        A('s_branch L_qd')
        A.lab('L_ql'); A('buffer_store_dwordx4 v[64:67], v14, s[20:23], s57 offen'); A.lab('L_qd')
    A('s_mov_b64 exec, -1')
    A('v_lshl_add_u32 v8, v1, 2, v16', 's_lshl_b32 s57, s6, 10', f's_add_u32 s57, s57, {PX}')
    A('v_lshlrev_b32 v8, 4, v8', 'v_add_u32 v8, s57, v8', f'v_mov_b32 v9, {ZL}')
    versions(20, 8, 9)
    A('s_lshl_b32 s59, s6, 4', f's_add_u32 s59, s59, {ML}', 'v_mov_b32 v13, s59')
    A('s_lshl_b32 s57, s63, 11', 's_lshl_b32 s59, s6, 9', 's_add_u32 s57, s57, s59', f's_add_u32 s57, s57, 0x{WS_O:x}')
    A(f'v_mov_b32 v2, {CNT+8}', 'v_mov_b32 v3, 1', 'v_mov_b32 v9, s7', 'v_mov_b32 v11, s7')
    if vprio: A('s_setprio 0')
    A('s_barrier')
    def vseq(thr):
        for n in range(32):
            if n % 4 == 0: A(f's_lshr_b32 s56, s96, {ISH}', 's_add_u32 s96, s96, s97')
            if thr and n >= thr: A(f's_waitcnt vmcnt({thr-1})')
            A(f'buffer_load_dwordx4 {vr(V0+4*n,4)}, v15, s[8:11], s56 offen offset:{(n%4)*1024}{P}')
    if orc:
        th = [int(z) for z in orc.split('-')]
        A('s_memrealtime s[92:93]', 's_waitcnt lgkmcnt(0)', 's_sub_u32 s92, s92, s64', f's_cmp_ge_u32 s92, {th[1]}', 's_cbranch_scc1 L_vo2', f's_cmp_ge_u32 s92, {th[0]}', 's_cbranch_scc1 L_vo1')
        for i in range(3):
            A.lab(f'L_vo{i}'); vseq(th[2 + i])
            if i < 2: A('s_branch L_vod')
        A.lab('L_vod')
    elif LV:
        for i in range(1, len(LV)): A(f's_cmp_eq_u32 s98, {i}', f's_cbranch_scc1 L_vs{i}')
        for i, (kt, vt) in enumerate(LV):
            A.lab(f'L_vs{i}'); vseq(vt)
            if i + 1 < len(LV): A('s_branch L_vsd')
        A.lab('L_vsd')
    else: vseq(vthr)
    stamp(14)
    if vp2: A(f's_setprio {vp2}')
    A('s_barrier')
    A('ds_read_b128 v[4:7], v13', 'ds_read_b32 v8, v10 offset:4')
    for G_ in range(4):
        for e in range(4): A(f'ds_read_b128 {vr(PB+16*G_+4*e,4)}, v{20+e} offset:{256*G_}')
        if G_ == 1: A('s_waitcnt lgkmcnt(0)')
    A('v_readfirstlane_b32 s13, v8')
    A('v_max3_f32 v8, v4, v5, v6', 'v_max_f32 v8, v8, v7')
    for w in range(4): A(f'v_sub_f32 v{4+w}, v{4+w}, v8')
    for w in range(4): A(f'v_exp_f32 v{4+w}, v{4+w}')
    A('s_lshr_b32 s13, s13, 8')
    for G_ in range(4):
        xo = int(0 <= pro <= 24 and pro >= 8 * (G_ + 1))
        if G_ == 2: A(f's_waitcnt vmcnt({8*(3-G_)+xo}) lgkmcnt(0)')
        elif trim and G_ == 3: A('s_nop 4')
        else: A(f's_waitcnt vmcnt({8*(3-G_)+xo})')
        if G_ == 3 and not trim: stamp(6)
        def mf(e):
            idx = e >> 2
            c = '0' if (G_ == 0 and (e & 3) == 0) else vr(ACC + 4 * idx, 4)
            A(f'v_mfma_f32_16x16x32_bf16 {vr(ACC+4*idx,4)}, {vr(T+4*e,4)}, {vr(PB+16*G_+4*(e&3),4)}, {c}')
        if trim and G_ == 3:
            src = V0 + 96
            for d in range(4):
                A(f's_waitcnt vmcnt({6-2*d})')
                if d == 3: stamp(6)
                for dp in range(4):
                    A(f'v_perm_b32 v{T+8*dp+d}, v{src+4*(2*d+1)+dp}, v{src+8*d+dp}, {SLO}', f'v_perm_b32 v{T+8*dp+4+d}, v{src+4*(2*d+1)+dp}, v{src+8*d+dp}, {SHI}')
            for e in (0, 4, 1, 5, 2, 6, 3, 7): mf(e)
        else:
            perm_mfma(V0 + 32 * G_, T, mf)
    if not st0: stamp(12)
    A(f's_mov_b32 s59, {spin}', 's_nop 5')
    A(f'ds_write_b128 v19, {vr(ACC,4)}', f'ds_write_b128 v19, {vr(ACC+4,4)} offset:1024')
    A('s_mov_b64 exec, 1', 'ds_add_u32 v2, v3', 's_mov_b64 exec, -1')
    A.lab('L_ospin')
    A('ds_read_b32 v3, v2')
    for w in range(4): A(f'ds_read_b128 v[{64+4*w}:{67+4*w}], v12 offset:{2048*w}')
    A('s_waitcnt lgkmcnt(4)')
    A('v_readfirstlane_b32 s56, v3', 's_cmp_eq_u32 s56, 4', 's_cbranch_scc1 L_oall')
    A('s_sub_u32 s59, s59, 1', 's_cbranch_scc0 L_ospin')
    A.lab('L_oall')
    if not st0: stamp(13)
    A('s_waitcnt lgkmcnt(3)')
    if trim:
        for r in range(2): A(f'v_pk_mul_f32 v[{24+2*r}:{25+2*r}], v[{64+2*r}:{65+2*r}], v[4:5] op_sel_hi:[1,0]')
        for w in range(1, 4):
            A(f's_waitcnt lgkmcnt({3-w})')
            o = w & 1
            for r in range(2): A(f'v_pk_fma_f32 v[{24+2*r}:{25+2*r}], v[{64+4*w+2*r}:{65+4*w+2*r}], v[{4+(w&2)}:{5+(w&2)}], v[{24+2*r}:{25+2*r}] op_sel:[0,{o},0] op_sel_hi:[1,{o},1]')
    else:
        for r in range(4): A(f'v_mul_f32 v{24+r}, v4, v{64+r}')
        for w in range(1, 4):
            A(f's_waitcnt lgkmcnt({3-w})')
            for r in range(4): A(f'v_fmac_f32 v{24+r}, v{4+w}, v{64+4*w+r}')
    A('v_cvt_pk_bf16_f32 v8, v24, v25', 'v_cvt_pk_bf16_f32 v10, v26, v27')
    A('s_mov_b32 exec_hi, 0')
    if oat:
        f = '' if oat == 'p' else ' ' + oat
        A('s_cmp_eq_u32 s13, 0', 's_cbranch_scc1 L_oa', 'buffer_store_dwordx4 v[8:11], v14, s[20:23], s57 offen sc1', 's_branch L_ob')
        A.lab('L_oa')
        A(f'buffer_atomic_swap_x2 v[8:9], v14, s[20:23], s57 offen{f}', f'buffer_atomic_swap_x2 v[10:11], v14, s[20:23], s57 offen offset:8{f}')
        A.lab('L_ob')
    elif cut != 2: team_store('buffer_store_dwordx4 v[8:11], v14, s[20:23], s57 offen')
    if stamps and not dmin:
        A('s_mov_b32 exec_hi, -1')
        stamp(7)
        A(f's_cmp_lg_u32 s6, {vw}', 's_cbranch_scc1 L_end')
        dump_stamps([6, 7, 12, 13, 14])
    A('s_endpgm')

    A.lab('L_end')
    A('s_endpgm')
    A.lab('L_code_end')
    out += A.L
    out += ['.section .rodata,"a"', '.p2align 6', f'.amdhsa_kernel {KN}_kernel',
            '  .amdhsa_next_free_vgpr 256', '  .amdhsa_next_free_sgpr 102', '  .amdhsa_accum_offset 256',
            '  .amdhsa_group_segment_fixed_size 0', '  .amdhsa_kernarg_size 112', '  .amdhsa_user_sgpr_count 2',
            '  .amdhsa_user_sgpr_kernarg_segment_ptr 1', '  .amdhsa_system_sgpr_workgroup_id_x 1', '.end_amdhsa_kernel']
    return '\n'.join(out) + '\n'

if __name__ == '__main__':
    ap = argparse.ArgumentParser()
    ap.add_argument('-o', default='k.s')
    ap.add_argument('--set', action='append', default=[])
    a = ap.parse_args()
    kw = {}
    for s in a.set:
        k, v = s.split('=')
        try: v = int(v)
        except ValueError: pass
        kw[k] = v
    open(a.o, 'w').write(gen(**kw))
```

```python
import sys, argparse
KN = 'gated_mix__sliding_block_cached__sliding_block_cached__decode'
HEADER = open('cdna_kernels/' + KN + '.s.ref').read().split('; Override launch')[0]

WS_EPOCH = 0x0
WS_ML = 0x1000
WS_O = 0x40000
WS_P = 0xC0000
WS_Q = 0x140000
WS_BYTES = 285221888
STAMP_OFF = 64 << 20
TAGC = 0x9E3779B1
KL = 0
QL = 131072
ZL = QL + 1024
PX = ZL + 1024
ML = PX + 4096
LL = ML + 64
CNT = LL + 64
GL = CNT + 64
OX = GL + 64
OL = OX + 1024
LDS_BYTES = OL + 8192
LOG2E = 0x3FB8AA3B
SCALE = 0x3DB504F3

class G:
    def __init__(s): s.L = []
    def __call__(s, *ts):
        for t in ts: s.L.append('  ' + t)
    def lab(s, t): s.L.append(t + ':')
    def c(s, t): s.L.append('  ; ' + t)

def vr(a, n=1):
    return f'v{a}' if n == 1 else f'v[{a}:{a+n-1}]'

def gen(stamps=False, pol='nt', wpol='nt', spin=200000, prefetch=0, sleep=0, touch=0, kprio=1, vprio=3,
        gran=4, rotmul=4, ackfirst=1, local=1, echo=-1, sleep2=-1, echog=-1, pre=0, mask1=1, h2=1, stag=6, qplain=0, st0=0, kb0=0, pat=1, rot=1, qloc=1, xdbg=0, trim=1, pd=3, mlp=0, qd=0, vw=0, bvst=0, ost='', ppl='sc1', pst='sc1', pl=0, cut=0, skip=0, esh=0, b0st=0, kthr=6, vthr=8, kgrp=2, kx=0, qperm=0, b0w=-1, xq=0, qv=0, nost=0, qf='sc1_nt', mf='sc1_nt', of='sc1_nt', pr='nt', prq=0, prm=0, pro=-1, prp=0, eneg=-1, ex=-1, lv='5.7-12.12', wo_=0, ws_=1, orc='', om=1, wb=0, vp2=0, spk=0, oat='', dmin=0, tv=0, eack=0, ge=1, sq='', so='', xf='', wsb=0):
    if sleep2 < 0: sleep2 = sleep
    A = G()
    P = (' ' + pol) if pol else ''
    WP = (' ' + wpol) if wpol else ''
    PR = (' ' + pr) if pr != 'p' else ''
    out = [HEADER.rstrip('\n'),
           '; Override launch geometry by editing the next line (default: block=256,',
           '; grid=ceil(out_elems/256), lds=0). Harness parses it; keep it on one line.',
           f'; @launch grid=(256,1,1) block=(512,1,1) lds={LDS_BYTES}',
           '.amdgcn_target "amdgcn-amd-amdhsa--gfx950"', '.text', f'.globl {KN}_kernel', '.p2align 8',
           f'.type {KN}_kernel,@function', f'{KN}_kernel:']
    SLO, SHI = 's60', 's61'
    def stamp(i):
        if (stamps and (not dmin or i in (0, 11))) or (echo >= 0 and i in (0, echo, eneg)): A(f's_memrealtime s[{64+2*i}:{65+2*i}]')
    def allred(op, r, t, quad=False):
        if quad:
            A('s_nop 1', f'{op}_dpp v{r}, v{r}, v{r} quad_perm:[1,0,3,2] row_mask:0xf bank_mask:0xf')
            A('s_nop 1', f'{op}_dpp v{r}, v{r}, v{r} quad_perm:[2,3,0,1] row_mask:0xf bank_mask:0xf')
        A('s_nop 1', f'{op}_dpp v{r}, v{r}, v{r} row_ror:4 row_mask:0xf bank_mask:0xf')
        A('s_nop 1', f'{op}_dpp v{r}, v{r}, v{r} row_ror:8 row_mask:0xf bank_mask:0xf')
        A(f'v_mov_b32 v{t}, v{r}', 's_nop 1', f'v_permlane16_swap_b32 v{r}, v{t}', 's_nop 1', f'{op} v{r}, v{r}, v{t}')
        A(f'v_mov_b32 v{t}, v{r}', 's_nop 1', f'v_permlane32_swap_b32 v{r}, v{t}', 's_nop 1', f'{op} v{r}, v{r}, v{t}')
    def perm_mfma(src, T, mf):
        for dp in range(4):
            for d in range(4):
                A(f'v_perm_b32 v{T+4*(2*dp)+d}, v{src+4*(2*d+1)+dp}, v{src+4*(2*d)+dp}, {SLO}')
            if dp > 0 and mf: mf(2 * dp - 1)
            for d in range(4):
                A(f'v_perm_b32 v{T+4*(2*dp+1)+d}, v{src+4*(2*d+1)+dp}, v{src+4*(2*d)+dp}, {SHI}')
            if mf: mf(2 * dp)
        if mf:
            A('s_nop 1'); mf(7)
    def tagcheck(regs):
        A(f'v_xor_b32 v6, s7, v{regs[0]+1}', f'v_xor_b32 v7, s7, v{regs[0]+3}')
        for r in regs[1:]:
            A(f'v_bitop3_b32 v6, v{r+1}, s7, v6 bitop3:0xbe', f'v_bitop3_b32 v7, v{r+3}, s7, v7 bitop3:0xbe')
        A('v_or_b32 v6, v6, v7', 'v_cmp_ne_u32 vcc, 0, v6')
    def versions(dst, good, bad):
        for e in range(4):
            A(f'v_cmp_eq_u32 vcc, {e}, v5', 's_nop 1', f'v_cndmask_b32 v{dst+e}, v{bad}, v{good}, vcc')
    def unpack(dst, a, b):
        A(f'v_lshlrev_b32 v{dst}, 16, v{a}', f'v_and_b32 v{dst+1}, 0xffff0000, v{a}', f'v_lshlrev_b32 v{dst+2}, 16, v{b}', f'v_and_b32 v{dst+3}, 0xffff0000, v{b}')
    def swapadd32(r, t):
        for i in range(4): A(f'v_mov_b32 v{t+i}, v{r+i}')
        A('s_nop 0')
        for i in range(4): A(f'v_permlane32_swap_b32 v{r+i}, v{t+i}')
        A('s_nop 0')
        for i in range(4): A(f'v_add_f32 v{r+i}, v{r+i}, v{t+i}')
    def swapadd16(r, t):
        for i in range(4): A(f'v_mov_b32 v{t+i}, v{r+i}')
        A('s_nop 0')
        for i in range(4): A(f'v_permlane16_swap_b32 v{r+i}, v{t+i}')
        A('s_nop 0')
        for i in range(4): A(f'v_add_f32 v{r+i}, v{r+i}, v{t+i}')
    nteam = [0]
    def team_store(txt):
        if not local:
            A(txt + ' sc1'); return
        n = nteam[0]; nteam[0] += 1
        A('s_cmp_eq_u32 s13, 0', f's_cbranch_scc1 L_tl{n}', txt + ' sc1', f's_branch L_td{n}')
        A.lab(f'L_tl{n}'); A(txt + (' ' + so if so else '')); A.lab(f'L_td{n}')
    def dump_stamps(idx):
        A('s_waitcnt lgkmcnt(0)')
        A('s_lshl_b32 s59, s2, 7', f's_add_u32 s59, s59, 0x{STAMP_OFF:x}', 'v_mov_b32 v7, 0')
        for i in idx:
            A(f'v_mov_b32 v8, s{64+2*i}', f'v_mov_b32 v9, s{65+2*i}')
            A(f'buffer_store_dwordx2 v[8:9], v7, s[20:23], s59 offen offset:{8*i}', 's_nop 1')

    A('s_cmpk_ge_u32 s2, 0x100', 's_cbranch_scc1 L_end')
    stamp(0)
    A('s_and_b32 s52, s2, 8', 's_mul_i32 s52, s52, 5')
    A('s_load_dwordx8 s[32:39], s[0:1], s52 offset:8')
    A('s_load_dwordx2 s[40:41], s[0:1], 0')
    A('s_load_dwordx8 s[44:51], s[0:1], 80')
    A('v_lshrrev_b32 v1, 6, v0', 'v_and_b32 v0, 63, v0', 'v_readfirstlane_b32 s6, v1', 'v_lshlrev_b32 v14, 4, v0')
    A('s_bitcmp1_b32 s6, 2', 's_cbranch_scc1 L_vwave')
    ISH = 13 if pat else 15
    def kvbase():
        if kx: A('s_lshr_b32 s58, s2, 6', 's_lshr_b32 s4, s52, 5', 's_xor_b32 s4, s4, s2', 's_and_b32 s4, s4, 7', 's_lshl3_add_u32 s54, s58, s4', 's_lshr_b32 s5, s2, 4')
        else: A('s_lshr_b32 s58, s2, 6', 's_and_b32 s4, s2, 7', 's_lshl3_add_u32 s54, s58, s4', 's_lshr_b32 s5, s2, 4')
        if pat:
            A('s_and_b32 s59, s5, 3', 's_lshl2_add_u32 s54, s54, 3', 's_lshl_b32 s54, s54, 7', 's_lshl2_add_u32 s59, s59, s6', 's_add_u32 s54, s54, s59', 's_lshl_b32 s54, s54, 12')
        else:
            A('s_or_b32 s59, s5, 12', 's_lshl4_add_u32 s54, s54, s59', 's_lshl_b32 s54, s54, 5', 's_add_u32 s54, s54, s6', 's_lshl_b32 s54, s54, 12')
        A('s_lshl_b32 s96, s2, 29' if rot else 's_mov_b32 s96, 0', 's_lshl_b32 s97, 1, 29')
        A('s_lshl_b32 s10, 1, 26', 's_mov_b32 s11, 0x20000')
    LV = [tuple(int(z) for z in p.split('.')) for p in lv.split('-')] if lv else []
    def level():
        if wo_:
            A('s_getreg_b32 s98, hwreg(HW_REG_XCC_ID, 0, 1)', f's_mul_i32 s98, s98, {wo_}', 's_lshr_b32 s59, s5, 1', 's_cmp_eq_u32 s59, 3', f's_cselect_b32 s59, {ws_}, 0')
            A('s_add_u32 s98, s98, s59', f's_min_u32 s98, s98, {len(LV) - 1}')
        else: A('s_lshr_b32 s59, s5, 1', 's_cmp_eq_u32 s59, 3', f's_cselect_b32 s98, {min(ws_, len(LV) - 1)}, 0')
    kvbase()
    if LV: level()
    A('v_and_b32 v3, 48, v0', 'v_lshlrev_b32 v3, 2, v3', 'v_xor_b32 v10, v14, v3', 'v_add_u32 v10, s54, v10')
    for n in range(1, 4): A(f'v_xor_b32 v{10+n}, {16*n}, v10')
    A('s_lshl_b32 m0, s6, 15', 's_mov_b32 s59, 7')
    if kprio: A(f's_setprio {kprio}')
    A('s_waitcnt lgkmcnt(0)', 's_mov_b64 s[8:9], s[32:33]')
    if wsb: A(f's_add_u32 s50, s50, 0x{wsb:x}', 's_addc_u32 s51, s51, 0')
    if st0: stamp(5)
    def kloop(tag, thr, grp, kb0=kb0):
        A.lab(f'L_kloop{tag}')
        A(f's_lshr_b32 s56, s96, {ISH}')
        if kb0 > 0:
            A(f's_cmp_lg_u32 s59, {7-kb0}', f's_cbranch_scc1 L_knob{tag}', 's_barrier')
            A.lab(f'L_knob{tag}')
        for n in range(4):
            if thr and (not grp or n % grp == 0): A(f's_waitcnt vmcnt({thr - max(grp, 1)})')
            A(f'buffer_load_dwordx4 v{10+n}, s[8:11], s56 offen offset:{n*1024}{P} lds')
        A('s_add_u32 s96, s96, s97', 's_addk_i32 m0, 0x1000', 's_sub_u32 s59, s59, 1', f's_cbranch_scc0 L_kloop{tag}')
    if spk: A('s_cmp_eq_u32 s98, 1', 's_cbranch_scc1 L_kloop1')
    if kb0 == 0:
        A('s_barrier')
        if b0st: stamp(5)
    if LV:
        for i in range(1, len(LV)):
            if not spk: A(f's_cmp_eq_u32 s98, {i}', f's_cbranch_scc1 L_kloop{i}')
        for i, (kt, vt) in enumerate(LV):
            kloop(i, kt, 0, spk if (spk and i == 1) else kb0)
            if i + 1 < len(LV): A('s_branch L_entry_end')
    else: kloop('', kthr, kgrp)
    A.lab('L_entry_end')
    def common():
        A('s_and_b32 s3, s2, 15', 's_and_b32 s59, s5, 3', 's_and_b32 s42, s2, 7')
        A(f's_mov_b32 {SLO}, 0x05040100', f's_mov_b32 {SHI}, 0x07060302')
        A('s_mov_b32 s18, 0x400000', 's_mov_b32 s19, 0x20000')
        A(f's_mov_b32 s22, {WS_BYTES - wsb}', 's_mov_b32 s23, 0x20000')
        A('s_mov_b32 s26, 4096', 's_mov_b32 s27, 0x20000')
        A('s_lshl_b32 s55, s6, 15')
        A('s_lshl2_add_u32 s63, s59, s58', 's_lshl4_add_u32 s63, s3, s63')
        A('s_getreg_b32 s12, hwreg(HW_REG_XCC_ID, 0, 3)')
        A('v_lshrrev_b32 v1, 4, v0')
        A('v_and_b32 v2, 15, v0')
        A('v_bfe_u32 v5, v0, 2, 2')
        A('v_and_b32 v16, 3, v0')

    R1 = 64; PB = 48; ACC = 40; WO = 128; WT = 160
    stamp(1)
    A('s_barrier')
    A('s_load_dword s7, s[50:51], 0x%x' % WS_EPOCH)
    common()
    A('s_mov_b64 s[20:21], s[50:51]')
    A('s_lshl2_add_u32 s57, s3, s58', 's_lshl2_add_u32 s57, s57, s6', 's_lshl_b32 s57, s57, 10', f's_add_u32 s57, s57, 0x{WS_Q:x}')
    QP = 64
    def pollq(f=' sc1'): A(f'buffer_load_dwordx4 {vr(QP,4)}, v14, s[20:23], s57 offen{f}')
    if qv in (0, 5): pollq(' ' + qf.replace('_', ' '))
    if qv == 2: A('s_mov_b64 s[24:25], s[40:41]', 's_lshl_b32 s56, s6, 10', f'buffer_load_dwordx4 {vr(QP,4)}, v14, s[24:27], s56 offen sc1')
    if qv == 3: A('s_add_u32 s56, s57, 0x200000', f'buffer_load_dwordx4 {vr(QP,4)}, v14, s[20:23], s56 offen nt')
    if qv == 4: A('s_add_u32 s56, s57, 0x40000', f'buffer_load_dwordx4 {vr(QP,4)}, v14, s[20:23], s56 offen nt')
    for e in range(xq): A(f's_xor_b32 s56, s57, {4096 * (e + 1)}', f'buffer_load_dwordx4 v[{232}:{235}], v14, s[20:23], s56 offen' + ('' if qplain else ' sc1'))
    A('s_mov_b32 s24, s46', 's_mov_b32 s25, s47', 's_mov_b32 s16, s38', 's_mov_b32 s17, s39')
    NT = 0
    if touch == 1:
        A.c('first touch of the output page')
        A('s_mov_b64 exec, 1', 'buffer_load_dword v237, v14, s[24:27], 0 offen', 's_mov_b64 exec, -1'); NT = 1
    if prm:
        A('s_lshl_b32 s56, s3, 10', f's_add_u32 s56, s56, 0x{WS_ML:x}', 'v_lshlrev_b32 v7, 7, v0', 's_mov_b64 exec, 0xff', f'buffer_load_dword v236, v7, s[20:23], s56 offen{PR}', 's_mov_b64 exec, -1')
    A('v_lshlrev_b32 v15, 10, v1', 'v_lshl_add_u32 v15, v2, 4, v15')
    A('v_lshl_add_u32 v4, v16, 2, v5', 'v_lshlrev_b32 v4, 8, v4', 'v_add_u32 v4, s55, v4')
    A('v_xor_b32 v6, v1, v2', 'v_lshlrev_b32 v6, 4, v6')
    for t in range(4): A(f'v_xor_b32 v7, {64*t}, v6', f'v_add_u32 v{20+t}, v4, v7')
    A('v_lshlrev_b32 v7, 8, v16', 'v_lshl_add_u32 v7, v1, 4, v7', f'v_add_u32 v7, {QL}, v7', f'v_mov_b32 v8, {ZL}')
    versions(32, 7, 8)
    A('s_lshl_b32 s59, s6, 8', f's_add_u32 s59, s59, {QL}')
    A('v_lshrrev_b32 v9, 5, v0', 'v_lshlrev_b32 v9, 7, v9', 'v_bfe_u32 v8, v0, 3, 1', 'v_lshl_add_u32 v9, v8, 6, v9')
    A('v_and_b32 v8, 7, v0', 'v_lshl_add_u32 v9, v8, 1, v9', 'v_add_u32 v9, s59, v9')
    A('v_lshlrev_b32 v18, 4, v16', 's_lshl_b32 s59, s6, 2', f's_add_u32 s59, s59, {ML}', 'v_add_u32 v18, s59, v18')
    A('v_lshl_add_u32 v17, v1, 2, v16', 'v_lshlrev_b32 v17, 4, v17')
    A('v_lshrrev_b32 v8, 1, v5', 'v_lshl_add_u32 v17, v8, 8, v17', 'v_and_b32 v8, 1, v5', 'v_lshl_add_u32 v17, v8, 3, v17')
    A('s_lshl_b32 s59, s6, 10', f's_add_u32 s59, s59, {PX}', 'v_add_u32 v17, s59, v17')
    A('s_waitcnt lgkmcnt(0)')
    A(f's_add_u32 s7, s7, 0x{TAGC:x}')
    A(f's_mov_b32 s59, {spin}', 's_add_u32 s62, s7, s12')
    if qv: A('s_waitcnt vmcnt(0)', 's_mov_b32 s13, 0', 's_branch L_noml')
    A.lab('L_pollq')
    A('s_waitcnt vmcnt(0)')
    A(f'v_subrev_u32 v6, s7, v{QP+3}', 'v_cmp_lt_u32 vcc, 7, v6')
    A('s_cbranch_vccz L_gotq', 's_sub_u32 s59, s59, 1', 's_cbranch_scc1 L_gotq')
    pollq()
    A('s_branch L_pollq')
    A.lab('L_gotq')
    stamp(3)
    A(f'v_cmp_ne_u32 vcc, s62, v{QP+3}')
    A('s_mov_b32 s56, 0x04000c0c', 's_mov_b32 s57, 0x0706000c')
    A(f'v_perm_b32 v27, v{QP}, v{QP+1}, s56', f'v_perm_b32 v27, v27, v{QP+2}, s57')
    A('s_cmp_eq_u64 vcc, 0', 's_cselect_b32 s59, 1, 0x101')
    for i in range(3): A(f'v_mov_b32 v{24+i}, v{QP+i}')
    swapadd16(24, 28)
    A('v_cvt_pk_bf16_f32 v24, v24, v25', 'v_cvt_pk_bf16_f32 v25, v26, v27')
    A(f'v_mov_b32 v6, {CNT+4}', 'v_mov_b32 v7, s59')
    A('ds_write_b16 v9, v24', 'ds_write_b16_d16_hi v9, v24 offset:16', 'ds_write_b16 v9, v25 offset:32', 'ds_write_b16_d16_hi v9, v25 offset:48')
    A('s_mov_b64 exec, 1', 'ds_add_u32 v6, v7', 's_mov_b64 exec, -1')
    Qb = [R1, R1 + 16]; Kb = [R1 + 32, R1 + 48]
    def rdq(x):
        for t in range(4): A(f'ds_read_b128 {vr(Qb[x&1]+4*t,4)}, v{32+x} offset:{64*t}')
    def rdk(T_, buf):
        for t in range(4): A(f'ds_read_b128 {vr(Kb[buf]+4*t,4)}, v{20+t} offset:{4096*T_}')
    def mm(T_, buf):
        x = T_ & 3; a = T_ >> 2
        for t in range(4):
            c = '0' if (x == 0 and t == 0) else vr(ACC+4*a, 4)
            A(f'v_mfma_f32_16x16x32_bf16 {vr(ACC+4*a,4)}, {vr(Kb[buf]+4*t,4)}, {vr(Qb[x&1]+4*t,4)}, {c}')
    rdk(0, 0); rdk(4, 1)
    A(f's_mov_b32 s59, {spin}', f's_mov_b32 s62, 0x{SCALE:x}', f's_mov_b32 s14, 0x{LOG2E:x}')
    A.lab('L_qspin')
    A('ds_read_b32 v7, v6', 's_waitcnt lgkmcnt(0)', 'v_readfirstlane_b32 s13, v7', 's_and_b32 s56, s13, 255', 's_cmp_eq_u32 s56, 4', 's_cbranch_scc1 L_qall')
    A('s_sub_u32 s59, s59, 1', 's_cbranch_scc0 L_qspin')
    A.lab('L_qall')
    rdq(0)
    A('s_lshr_b32 s13, s13, 8')
    if qloc:
        A('s_cbranch_scc0 L_norep')
        A.c("some member sits on another XCD: write this workgroup's q partials through for it")
        A('s_lshl2_add_u32 s57, s3, s6', 's_lshl4_add_u32 s57, s57, s5', 's_lshl_b32 s57, s57, 8', f's_add_u32 s57, s57, 0x{WS_Q:x}')
        A('s_add_u32 s56, s7, s12', f's_mov_b32 s59, {spin}', 's_mov_b64 exec, 0xffff')
        A.lab('L_rep')
        A('buffer_load_dwordx4 v[24:27], v14, s[20:23], s57 offen sc1', 's_waitcnt vmcnt(0)', 'v_cmp_ne_u32 vcc, s56, v27')
        A('s_cbranch_vccz L_rep2', 's_sub_u32 s59, s59, 1', 's_cbranch_scc0 L_rep')
        A.lab('L_rep2')
        A('buffer_store_dwordx4 v[24:27], v14, s[20:23], s57 offen sc1', 's_mov_b64 exec, -1')
        A.lab('L_norep')
    for x in range(4):
        A('s_waitcnt lgkmcnt(%d)' % (0 if x == 0 else 4))
        mm(x, 0)
        if x < 3:
            rdq(x + 1)
            A('s_waitcnt lgkmcnt(4)')
        else:
            A('s_waitcnt lgkmcnt(0)')
        mm(x + 4, 1)
        if x < 3:
            rdk(x + 1, 0); rdk(x + 5, 1)
    A('s_nop 7')
    S = ACC
    for p in range(4): A(f'v_cvt_pk_bf16_f32 v{28+p}, v{S+2*p}, v{S+2*p+1}')
    for p in range(4): A(f'v_lshlrev_b32 v{S+2*p}, 16, v{28+p}', f'v_and_b32 v{S+2*p+1}, 0xffff0000, v{28+p}')
    for i in range(8): A(f'v_mul_f32 v{S+i}, s62, v{S+i}')
    for p in range(4): A(f'v_cvt_pk_bf16_f32 v{28+p}, v{S+2*p}, v{S+2*p+1}')
    for p in range(4): A(f'v_lshlrev_b32 v{S+2*p}, 16, v{28+p}', f'v_and_b32 v{S+2*p+1}, 0xffff0000, v{28+p}')
    A(f'v_max3_f32 v28, v{S}, v{S+1}, v{S+2}', f'v_max3_f32 v29, v{S+3}, v{S+4}, v{S+5}', f'v_max3_f32 v28, v28, v{S+6}, v{S+7}', 'v_max_f32 v28, v28, v29')
    allred('v_max_f32', 28, 29)
    A('v_mul_f32 v36, s14, v28')
    for i in range(8): A(f'v_fma_f32 v{S+i}, v{S+i}, s14, -v36')
    for i in range(8): A(f'v_exp_f32 v{S+i}, v{S+i}')
    A('ds_write_b32 v18, v36')
    for p in range(4): A(f'v_cvt_pk_bf16_f32 v{32+p}, v{S+2*p}, v{S+2*p+1}')
    A('ds_write_b64 v17, v[32:33]', 'ds_write_b64 v17, v[34:35] offset:512')
    A(f'v_add_f32 v28, v{S}, v{S+1}', f'v_add_f32 v29, v{S+2}, v{S+3}', f'v_add_f32 v30, v{S+4}, v{S+5}', f'v_add_f32 v31, v{S+6}, v{S+7}')
    A('v_add_f32 v28, v28, v29', 'v_add_f32 v30, v30, v31', 'v_add_f32 v28, v28, v30')
    allred('v_add_f32', 28, 29)
    A('ds_write_b32 v18, v28 offset:64')
    A('v_lshlrev_b32 v7, 4, v16', f'v_add_u32 v7, {ML}, v7', f'v_mov_b32 v6, {CNT+12}', 'v_mov_b32 v8, 1')
    A('s_mov_b64 exec, 1', 'ds_add_rtn_u32 v8, v6, v8', 's_mov_b64 exec, -1')
    A('ds_read_b128 v[20:23], v7', 'ds_read_b128 v[24:27], v7 offset:64')
    A('s_add_u32 s15, s7, s12', 'v_mov_b32 v37, s7', 'v_mov_b32 v39, s15')
    A('s_and_b32 s56, s63, 15', 's_lshl_b32 s59, s3, 6', 's_add_u32 s56, s56, s59', 's_lshl_b32 s56, s56, 4', f's_add_u32 s56, s56, 0x{WS_ML:x}', 'v_lshlrev_b32 v7, 8, v0')
    A('s_waitcnt lgkmcnt(0)')
    A('v_readfirstlane_b32 s59, v8', 's_cmp_lg_u32 s59, 3', 's_cbranch_scc1 L_noml')
    A.c('last K wave to finish its softmax publishes (m, l) of this workgroup, lane = head')
    A('v_max3_f32 v36, v20, v21, v22', 'v_max_f32 v36, v36, v23')
    for w in range(4): A(f'v_sub_f32 v{20+w}, v{20+w}, v36')
    for w in range(4): A(f'v_exp_f32 v{20+w}, v{20+w}')
    A('s_nop 0', 'v_mul_f32 v38, v20, v24')
    for w in range(1, 4): A(f'v_fmac_f32 v38, v{20+w}, v{24+w}')
    A('s_mov_b64 exec, 15')
    team_store('buffer_store_dwordx4 v[36:39], v7, s[20:23], s56 offen')
    A('s_mov_b64 exec, -1')
    A.lab('L_noml')
    A('v_lshrrev_b32 v13, 3, v0', 'v_lshlrev_b32 v12, 11, v13', 'v_and_b32 v8, 7, v0', 'v_lshl_add_u32 v12, v8, 4, v12', 'v_lshlrev_b32 v13, 4, v13')
    A('s_lshl_b32 s59, s6, 8', f's_add_u32 s59, s59, {OX}')
    A('v_and_b32 v17, 31, v0', 'v_lshlrev_b32 v17, 3, v17', 'v_add_u32 v17, s59, v17')
    if trim: A('v_lshrrev_b32 v8, 5, v0', 'v_lshl_add_u32 v17, v8, 2, v17')
    A('v_lshlrev_b32 v8, 6, v16', 'v_lshl_add_u32 v8, v1, 4, v8', 'v_add_u32 v8, s59, v8', f'v_mov_b32 v9, {ZL}')
    versions(208, 8, 9)
    A('s_lshl_b32 s59, s6, 11', 'v_add_u32 v19, s59, v14')
    A('s_lshl_b32 s59, s6, 9', 'v_and_b32 v18, 31, v0', 'v_lshlrev_b32 v18, 4, v18', 'v_add_u32 v18, s59, v18')
    A('v_mov_b32 v9, s7', 'v_mov_b32 v11, s7')
    A('s_lshr_b32 s58, s5, 2', 's_and_b32 s59, s5, 3')
    A('s_lshl2_add_u32 s52, s3, s58', 's_lshl_b32 s52, s52, 8', f's_add_u32 s52, s52, 0x{WS_ML:x}')
    A('s_lshl_b32 s50, s3, 15', 's_lshl_b32 s53, s58, 9', 's_add_u32 s50, s50, s53', 's_lshl_b32 s53, s6, 7', 's_add_u32 s50, s50, s53')
    A(f's_add_u32 s50, s50, 0x{WS_O:x}', 's_add_u32 s51, s50, 16384')
    A('s_lshl_b32 s57, s3, 2', 's_add_u32 s57, s57, s58')
    A('s_lshl_b32 s53, s59, 6', 's_add_u32 s53, s53, s57', 's_lshl_b32 s53, s53, 11')
    A('s_lshl_b32 s56, s6, 9', 's_add_u32 s53, s53, s56', f's_add_u32 s53, s53, 0x{WS_P:x}')
    A('s_lshl2_add_u32 s58, s4, s58', 's_lshl_b32 s58, s58, 17', 's_add_u32 s58, s58, s55', 's_lshl_b32 s59, s59, 8', 's_add_u32 s58, s58, s59')
    if om:
        A('s_lshr_b32 s57, s42, 1', 's_and_b32 s56, s2, 1', 's_lshr_b32 s59, s2, 7', 's_lshl1_add_u32 s56, s59, s56', 's_bfe_u32 s59, s2, 0x20005', 's_lshl2_add_u32 s56, s56, s59')
        A('s_bfe_u32 s59, s2, 0x20003', 's_lshl2_add_u32 s56, s56, s59', 's_lshl_b32 s56, s56, 1')
    else:
        A('s_and_b32 s56, s2, 7', 's_lshr_b32 s59, s2, 5', 's_lshl_b32 s59, s59, 3', 's_add_u32 s56, s56, s59', 's_lshr_b32 s57, s56, 4')
        A('s_and_b32 s56, s56, 15', 's_lshl_b32 s56, s56, 3', 's_bfe_u32 s59, s2, 0x20003', 's_lshl_b32 s59, s59, 1', 's_add_u32 s56, s56, s59')
    A('s_lshl_b32 s97, s57, 17', 's_lshl_b32 s59, s56, 4', 's_add_u32 s97, s97, s59', f's_add_u32 s97, s97, 0x{WS_P:x}')
    A('s_add_u32 s98, s97, 65536')
    A('v_lshrrev_b32 v212, 1, v0', 'v_lshlrev_b32 v212, 11, v212', 'v_and_b32 v7, 1, v0', 'v_lshl_add_u32 v212, v7, 4, v212')
    A('v_lshrrev_b32 v7, 5, v0', 'v_add_u32 v4, s56, v7', 'v_and_b32 v7, 3, v4', 'v_lshlrev_b32 v226, 3, v7', f'v_add_u32 v226, {GL}, v226')
    A('v_lshlrev_b32 v213, 9, v7', 's_lshl_b32 s57, s57, 7', 'v_add_u32 v213, s57, v213')
    A('v_bfe_u32 v7, v4, 4, 2', 'v_lshl_add_u32 v213, v7, 5, v213', 'v_lshrrev_b32 v7, 6, v4', 'v_lshl_add_u32 v213, v7, 2, v213')
    A('v_bfe_u32 v7, v4, 2, 2', 'v_add_u32 v213, v213, v7', 'v_lshl_add_u32 v213, v16, 3, v213')
    A('v_lshlrev_b32 v213, 1, v213')
    A('v_and_b32 v7, 1, v0', 'v_lshlrev_b32 v7, 4, v7', 'v_mov_b32 v6, 0x3f80', 'v_lshlrev_b32 v6, v7, v6', 'v_lshrrev_b32 v7, 1, v2')
    for d in range(4): A(f'v_cmp_eq_u32 vcc, {d}, v7', 's_nop 1', f'v_cndmask_b32 v{232+d}, 0, v6, vcc')
    if pl:
        A.c('s99: lanes of the line that workgroups of this XCD will read, when the team sits where round-robin placement puts it')
        if om: A('s_mov_b32 s99, -1', 's_and_b32 s56, s5, 3', 's_and_b32 s59, s6, 1', 's_lshl1_add_u32 s56, s56, s59', 's_xor_b32 s56, s56, s12')
        else: A('s_and_b32 s56, s12, 3', 's_lshl_b32 s56, s56, 3', 's_lshl_b32 s99, 0xff, s56', 's_lshr_b32 s56, s12, 2', 's_and_b32 s59, s6, 1', 's_xor_b32 s56, s56, s59')
        A('s_xor_b32 s59, s12, s42', 's_or_b32 s56, s56, s59', 's_or_b32 s56, s56, s13', 's_cbranch_scc0 L_ppl0', 's_mov_b32 s99, 0', 's_branch L_ppl')
        A.lab('L_ppl0')
        A.c('put that line into the L2 now, untagged, so that early polls stay inside the L2')
        A('s_mov_b32 exec_hi, 0', 's_mov_b32 exec_lo, s99', 'v_not_b32 v21, v9', 'v_not_b32 v23, v9')
        A(f'buffer_load_dword v236, v14, s[20:23], s53 offen{PR}' if prp else 'buffer_store_dwordx4 v[20:23], v14, s[20:23], s53 offen', 's_mov_b64 exec, -1')
        A.lab('L_ppl')
        A('s_xor_b32 s43, s3, 8', 's_lshl_b32 s43, s43, 10', f's_add_u32 s43, s43, 0x{WS_ML:x}', 'v_lshlrev_b32 v228, 4, v2')
    if touch == 2:
        A('s_cmp_lg_u32 s6, 0', 's_cbranch_scc1 L_nt', 's_mov_b64 exec, 3', 'buffer_load_ushort v237, v213, s[24:27], 0 offen', 's_mov_b64 exec, -1')
        A.lab('L_nt')
    if ge:
        A('s_bfe_u32 s34, s2, 0x10003', 's_lshl1_add_u32 s34, s34, s6', 's_sub_u32 s34, s34, 1', 's_lshl_b32 s35, s34, 10')
        A('s_mov_b64 s[36:37], s[40:41]', 's_mov_b32 s38, 4096', 's_mov_b32 s39, 0x20000', 's_mov_b64 s[28:29], s[44:45]', 's_mov_b32 s30, 1024', 's_mov_b32 s31, 0x20000')
        A('s_add_u32 s33, s6, 1')
    stamp(4)
    A('s_barrier')
    if bvst: stamp(15)
    MLR = 216; FA = 224
    def pollml():
        A(f'buffer_load_dwordx4 v[{MLR}:{MLR+3}], v13, s[20:23], s52 offen ' + mf.replace('_', ' '))
        A(f'buffer_load_dwordx4 v[{MLR+4}:{MLR+7}], v13, s[20:23], s52 offen offset:128 ' + mf.replace('_', ' '))
    def mlfactors():
        A(f'v_max_f32 v6, v{MLR}, v{MLR+4}')
        A('v_mov_b32 v7, v6', 's_nop 1', 'v_permlane32_swap_b32 v6, v7', 's_nop 1', 'v_max_f32 v6, v6, v7')
        A(f'v_sub_f32 v{FA}, v{MLR}, v6', f'v_sub_f32 v{FA+1}, v{MLR+4}, v6', f'v_exp_f32 v{FA}, v{FA}', f'v_exp_f32 v{FA+1}, v{FA+1}', 's_nop 0')
        A(f'v_mul_f32 v6, v{FA}, v{MLR+2}', f'v_fmac_f32 v6, v{FA+1}, v{MLR+6}')
        A('v_mov_b32 v7, v6', 's_nop 1', 'v_permlane32_swap_b32 v6, v7', 's_nop 1', 'v_add_f32 v6, v6, v7')
        A('v_rcp_f32 v6, v6', 's_nop 0', f'v_mul_f32 v{FA}, v{FA}, v6', f'v_mul_f32 v{FA+1}, v{FA+1}, v6')
    def mlcheck():
        A(f'v_xor_b32 v6, s7, v{MLR+1}', f'v_bitop3_b32 v6, v{MLR+5}, s7, v6 bitop3:0xbe', 'v_cmp_ne_u32 vcc, 0, v6')
    def poll1():
        A('buffer_load_dwordx4 v[20:23], v12, s[20:23], s50 offen ' + of.replace('_', ' '), 'buffer_load_dwordx4 v[24:27], v12, s[20:23], s51 offen ' + of.replace('_', ' '))
    if mlp == 0 and cut != 2: pollml()
    for n in range(8):
        ro = 8 * (n & 3) + 4 * (n >> 2)
        A(f's_add_u32 s59, s58, {ro*1024}', f'buffer_load_dwordx4 {vr(WO+4*n,4)}, v15, s[16:19], s59 offen{WP}')
    if pd < 0: poll1()
    if not st0 and not b0st: stamp(5)
    if mlp == 0:
        A(f's_waitcnt vmcnt({10 if pd < 0 else 8})')
        mlcheck()
        A('s_mov_b32 s62, 0', 's_cbranch_vccnz L_mllate')
        mlfactors()
        A('s_mov_b32 s62, 1')
        A.lab('L_mllate')
    else: A('s_mov_b32 s62, 0')
    for d in range(4):
        A(f's_waitcnt vmcnt({(8 if d > pd else 6)-2*d})')
        if d == pd and cut not in (1, 2):
            poll1()
            if pl: A('buffer_load_dword v227, v228, s[20:23], s43 offen offset:12 sc1')
        for dp in range(4):
            A(f'v_perm_b32 v{WT+8*dp+d}, v{WO+4*(2*d+1)+dp}, v{WO+8*d+dp}, {SLO}', f'v_perm_b32 v{WT+8*dp+4+d}, v{WO+4*(2*d+1)+dp}, v{WO+8*d+dp}, {SHI}')
    stamp(2)
    if cut in (1, 2):
        A('s_waitcnt vmcnt(0)', 's_cmp_lg_u32 s6, 0', 's_cbranch_scc1 L_end', 's_branch L_fin')
    A(f's_mov_b32 s59, {spin}', 's_cmp_eq_u32 s62, 1', 's_cbranch_scc1 L_poll1')
    A.lab('L_pollml')
    pollml()
    A('s_waitcnt vmcnt(0)')
    mlcheck()
    A('s_cbranch_vccz L_gotml', 's_sub_u32 s59, s59, 1', 's_cbranch_scc0 L_pollml')
    A.lab('L_gotml')
    mlfactors()
    A.lab('L_poll1')
    A('s_waitcnt vmcnt(0)')
    tagcheck([20, 24])
    A('s_cbranch_vccz L_got1', 's_sub_u32 s59, s59, 1', 's_cbranch_scc1 L_got1')
    if sleep: A(f's_sleep {sleep}')
    if mask1: A('s_mov_b64 exec, vcc')
    poll1()
    A('s_branch L_poll1')
    A.lab('L_got1')
    if mask1: A('s_mov_b64 exec, -1')
    stamp(8)
    unpack(28, 20, 22); unpack(36, 24, 26)
    if trim:
        for r in range(2): A(f'v_pk_mul_f32 v[{28+2*r}:{29+2*r}], v[{28+2*r}:{29+2*r}], v[{FA}:{FA+1}] op_sel_hi:[1,0]')
        for r in range(2): A(f'v_pk_fma_f32 v[{28+2*r}:{29+2*r}], v[{36+2*r}:{37+2*r}], v[{FA}:{FA+1}], v[{28+2*r}:{29+2*r}] op_sel:[0,1,0] op_sel_hi:[1,1,1]')
        A('s_nop 1', 'v_permlane32_swap_b32 v28, v30', 'v_permlane32_swap_b32 v29, v31', 's_nop 0')
        A('v_pk_add_f32 v[28:29], v[28:29], v[30:31]')
        A('v_cvt_pk_bf16_f32 v20, v28, v29', 'ds_write_b32 v17, v20')
    else:
        for r in range(4): A(f'v_mul_f32 v{28+r}, v{FA}, v{28+r}')
        for r in range(4): A(f'v_fmac_f32 v{28+r}, v{FA+1}, v{36+r}')
        swapadd32(28, 36)
        A('v_cvt_pk_bf16_f32 v20, v28, v29', 'v_cvt_pk_bf16_f32 v21, v30, v31')
        A('ds_write_b64 v17, v[20:21]')
    for e in range(4): A(f'ds_read_b128 {vr(PB+4*e,4)}, v{208+e}')
    for e in range(4):
        A(f's_waitcnt lgkmcnt({3-e})')
        for idx in range(2):
            c = '0' if e == 0 else vr(ACC + 4 * idx, 4)
            A(f'v_mfma_f32_16x16x32_bf16 {vr(ACC+4*idx,4)}, {vr(WT+4*(4*idx+e),4)}, {vr(PB+4*e,4)}, {c}')
    if pl: A('v_cmp_ne_u32 vcc, s15, v227', 's_nop 3', 's_cmp_eq_u64 vcc, 0', 's_cselect_b32 s99, s99, 0')
    elif ge:
        A('s_bitcmp1_b32 s33, 1', 's_cbranch_scc0 L_ng')
        A('buffer_load_dwordx4 v[128:131], v14, s[36:39], s35 offen', 'buffer_load_dwordx4 v[132:135], v14, s[28:31], 0 offen')
        A.lab('L_ng')
        A('s_nop 4')
    else: A('s_nop 6')
    A(f'ds_write_b128 v19, {vr(ACC,4)}', f'ds_write_b128 v19, {vr(ACC+4,4)} offset:1024')
    A('s_waitcnt lgkmcnt(0)')
    if not st0 and not bvst: stamp(15)
    A('s_barrier')
    for w in range(4): A(f'ds_read_b128 {vr(20+4*w,4)}, v18 offset:{2048*w}')
    def pkadd(d, a):
        for i in range(2): A(f'v_pk_add_f32 v[{d+2*i}:{d+2*i+1}], v[{d+2*i}:{d+2*i+1}], v[{a+2*i}:{a+2*i+1}]')
    A('s_waitcnt lgkmcnt(2)'); pkadd(20, 24)
    A('s_waitcnt lgkmcnt(1)'); pkadd(20, 28)
    A('s_waitcnt lgkmcnt(0)'); pkadd(20, 32)
    A('v_cvt_pk_bf16_f32 v8, v20, v21', 'v_cvt_pk_bf16_f32 v10, v22, v23')
    if pl and om:
        A('s_mov_b32 exec_hi, 0', 's_cmp_lg_u32 s99, 0', 's_cbranch_scc1 L_pl', 'buffer_store_dwordx4 v[8:11], v14, s[20:23], s53 offen sc1', 's_branch L_pnl')
        A.lab('L_pl')
        A('buffer_store_dwordx4 v[8:11], v14, s[20:23], s53 offen')
        A.lab('L_pnl')
        A('s_mov_b32 exec_hi, -1')
    elif pl:
        A('s_mov_b32 exec_hi, 0', 's_not_b32 exec_lo, s99', 'buffer_store_dwordx4 v[8:11], v14, s[20:23], s53 offen sc1')
        A('s_cmp_eq_u32 s99, 0', 's_cbranch_scc1 L_pnl', 's_mov_b32 exec_lo, s99', 'buffer_store_dwordx4 v[8:11], v14, s[20:23], s53 offen')
        A.lab('L_pnl')
        A('s_mov_b64 exec, -1')
    else:
        A('s_mov_b32 exec_hi, 0', 'buffer_store_dwordx4 v[8:11], v14, s[20:23], s53 offen ' + pst.replace('_', ' '), 's_mov_b32 exec_hi, -1')
    stamp(9)
    if cut == 3:
        A('s_waitcnt vmcnt(0)', 's_cmp_lg_u32 s6, 0', 's_cbranch_scc1 L_end', 's_branch L_fin')
    A('s_cmp_lg_u32 s6, 0', 's_cbranch_scc1 L_gate')
    if ackfirst == 1: A('s_waitcnt vmcnt(0)')
    A(f's_mov_b32 s59, {spin}')
    def poll2(r):
        for k in range(2): A(f'buffer_load_dwordx4 v[{r+4*k}:{r+3+4*k}], v212, s[20:23], s{97+k} offen ' + ppl.replace('_', ' '))
    if ackfirst == 2:
        A('s_lshl_b32 s56, s42, 3', 's_lshl_b64 s[32:33], 0xff, s56', 's_not_b64 exec, s[32:33]')
        poll2(20)
        A('s_waitcnt vmcnt(0)')
        tagcheck([20, 24])
        A('s_or_b64 exec, vcc, s[32:33]')
    if h2 < 2:
        A.lab('L_poll2')
        poll2(20)
        A('s_waitcnt vmcnt(0)')
        tagcheck([20, 24])
        A('s_cbranch_vccz L_got2', 's_sub_u32 s59, s59, 1', 's_cbranch_scc1 L_got2')
        if sleep2: A(f's_sleep {sleep2}')
        if h2 == 1: A('s_mov_b64 exec, vcc')
        A('s_branch L_poll2')
    else:
        poll2(44)
        A('s_mov_b64 s[32:33], -1', 's_mov_b64 s[34:35], -1', 's_mov_b64 s[36:37], -1', 's_mov_b64 s[38:39], 0')
        if stag: A(f's_sleep {stag}')
        poll2(52)
        A.lab('L_poll2')
        A('s_mov_b64 exec, s[32:33]', 's_waitcnt vmcnt(2)')
        tagcheck([44, 48])
        A('s_andn2_b64 s[40:41], exec, vcc', 's_or_b64 s[38:39], s[38:39], s[40:41]', 's_andn2_b64 s[36:37], s[36:37], s[40:41]', 's_cbranch_scc0 L_got2')
        A('s_mov_b64 exec, s[36:37]', 's_mov_b64 s[32:33], s[36:37]')
        poll2(44)
        A('s_mov_b64 exec, s[34:35]', 's_waitcnt vmcnt(2)')
        tagcheck([52, 56])
        A('s_andn2_b64 s[40:41], exec, vcc', 's_andn2_b64 s[36:37], s[36:37], s[40:41]', 's_cbranch_scc0 L_got2')
        A('s_mov_b64 exec, s[36:37]', 's_mov_b64 s[34:35], s[36:37]')
        poll2(52)
        A('s_sub_u32 s59, s59, 1', 's_cbranch_scc0 L_poll2')
    A.lab('L_got2')
    if h2: A('s_mov_b64 exec, -1')
    if h2 == 2:
        for i in range(4): A(f'v_cndmask_b32 v{20+2*i}, v{52+2*i}, v{44+2*i}, s[38:39]')
    stamp(10)
    A('ds_read_b64 v[214:215], v226', f's_mov_b32 s59, {spin}')
    A('v_mov_b32 v21, v22', 'v_mov_b32 v22, v24', 'v_mov_b32 v23, v26', 's_nop 1')
    A('v_mfma_f32_16x16x32_bf16 v[28:31], v[20:23], v[232:235], 0', 's_nop 7')
    A('v_pk_add_f32 v[28:29], v[28:29], v[30:31]', 's_waitcnt lgkmcnt(0)', 'v_or_b32 v7, v214, v215')
    A('v_permlane32_swap_b32 v28, v29', 'v_cmp_eq_u32 vcc, 0, v7', 'v_add_f32 v28, v28, v29')
    A('v_mov_b32 v29, v28', 's_nop 1', 'v_permlane16_swap_b32 v28, v29', 's_nop 0', 'v_add_f32 v20, v28, v29')
    A('s_nop 1', 'v_mov_b32_dpp v21, v20 row_ror:12 row_mask:0xf bank_mask:0xf')
    A('v_cvt_pk_bf16_f32 v20, v20, v21')
    A('v_lshlrev_b32 v21, 16, v20', 'v_and_b32 v22, 0xffff0000, v20')
    A('s_cbranch_vccnz L_glate')
    A.lab('L_gok')
    A('v_mul_f32 v21, v21, v214', 'v_mul_f32 v22, v22, v215')
    A('v_cvt_pk_bf16_f32 v20, v21, v22')
    A('v_lshlrev_b32 v21, 16, v20', 'v_and_b32 v22, 0xffff0000, v20', 'v_add_f32 v21, v21, v22')
    A('v_cvt_pk_bf16_f32 v20, v21, v21')
    A('s_mov_b32 exec_lo, 15', 's_mov_b32 exec_hi, 15', 'buffer_store_short v20, v213, s[24:27], 0 offen' + (' ' + ost.replace('_', ' ') if ost else ''))
    A('s_cmp_lg_u32 s2, 0', 's_cbranch_scc1 L_fin')
    A('s_mov_b64 exec, 1', 'v_mov_b32 v6, s7', f'buffer_store_dword v6, v14, s[20:23], 0 offen offset:{WS_EPOCH}')
    A.lab('L_fin')
    if echo >= 0:
        stamp(11)
        A('s_memrealtime s[30:31]', 's_waitcnt lgkmcnt(0)')
        if eack: A('s_waitcnt vmcnt(0)', 's_memrealtime s[30:31]', 's_waitcnt lgkmcnt(0)', f's_sub_u32 s28, s30, s{64+2*echo}')
        elif eneg >= 0: A(f's_sub_u32 s28, s{64+2*eneg}, s{64+2*echo}', 's_add_u32 s28, s28, 300', 's_max_i32 s28, s28, 0')
        else: A(f's_sub_u32 s28, s{64+2*echo}, s64')
        A(f's_lshl_b32 s28, s28, {esh}', 's_add_u32 s28, s28, s30')
        if echog >= 0: A('s_lshr_b32 s29, s3, 3', f's_cmp_lg_u32 s29, {echog}', 's_cbranch_scc1 L_end')
        if ex >= 0: A(f's_cmp_lg_u32 s12, {ex}', 's_cbranch_scc1 L_end')
        A.lab('L_echo')
        A('s_memrealtime s[30:31]', 's_waitcnt lgkmcnt(0)', 's_sub_u32 s29, s30, s28', 's_cmp_lt_i32 s29, 0', 's_cbranch_scc1 L_echo')
    if stamps:
        stamp(11)
        A('s_mov_b64 exec, -1')
        if xdbg: A('s_waitcnt lgkmcnt(0)', 's_mul_i32 s94, s12, 100', 's_add_u32 s94, s94, s64', 's_addc_u32 s95, s65, 0')
        dump_stamps([0, 11] if dmin else [0, 1, 2, 3, 4, 5, 8, 9, 10, 11, 15])
    A('s_endpgm')
    A.lab('L_glate')
    A('ds_read_b64 v[214:215], v226', 's_waitcnt lgkmcnt(0)', 'v_or_b32 v7, v214, v215', 'v_cmp_eq_u32 vcc, 0, v7')
    A('s_cbranch_vccz L_gok', 's_sub_u32 s59, s59, 1', 's_cbranch_scc0 L_glate', 's_branch L_gok')
    A.lab('L_gate')
    A.c('waves 1 and 2: the gates of the two batches this workgroup finishes')
    XG = 128; GA = XG + 8
    if wb:
        A('s_cmp_lg_u32 s6, 3', 's_cbranch_scc1 L_g2')
        if wb == 2: A('s_cmp_lg_u32 s5, 15', 's_cbranch_scc1 L_end')
        A('s_waitcnt vmcnt(0)', 'buffer_wbl2 sc1', 's_endpgm')
        A.lab('L_g2')
    else: A('s_cmp_eq_u32 s6, 3', 's_cbranch_scc1 L_end')
    if ge: A('s_mov_b32 s56, s34', 's_waitcnt vmcnt(1)')
    else:
        A('s_bfe_u32 s56, s2, 0x10003', 's_lshl1_add_u32 s56, s56, s6', 's_sub_u32 s56, s56, 1', 's_lshl_b32 s53, s56, 10')
        A('s_mov_b64 s[24:25], s[40:41]', 's_mov_b64 s[28:29], s[44:45]', 's_mov_b32 s30, 1024', 's_mov_b32 s31, 0x20000')
        A(f'buffer_load_dwordx4 {vr(XG,4)}, v14, s[24:27], s53 offen')
        A(f'buffer_load_dwordx4 {vr(XG+4,4)}, v14, s[28:31], 0 offen')
        A('s_waitcnt vmcnt(0)')
    for i in range(4):
        x = XG + i; g = XG + 4 + i
        unpack(36, x, g)
        A('v_mul_f32 v36, v36, v38', 'v_mul_f32 v37, v37, v39', 'v_cvt_pk_bf16_f32 v36, v36, v37')
        if i == 0:
            A(f'v_lshlrev_b32 v{GA}, 16, v36', f'v_and_b32 v{GA+1}, 0xffff0000, v36')
        else:
            A('v_lshlrev_b32 v38, 16, v36', 'v_and_b32 v39, 0xffff0000, v36', f'v_add_f32 v{GA}, v{GA}, v38', f'v_add_f32 v{GA+1}, v{GA+1}, v39')
    A(f'v_add_f32 v{GA}, v{GA}, v{GA+1}')
    allred('v_add_f32', GA, GA + 1, quad=True)
    A(f'v_cvt_pk_bf16_f32 v{GA}, v{GA}, v{GA}', f'v_lshlrev_b32 v{GA}, 16, v{GA}')
    A(f'v_mul_f32 v{GA}, 0x{LOG2E ^ 0x80000000:x}, v{GA}', f'v_exp_f32 v{GA}, v{GA}', 's_nop 0')
    A(f'v_add_f32 v{GA}, 1.0, v{GA}', f'v_rcp_f32 v{GA}, v{GA}', 's_nop 0')
    A(f'v_cvt_pk_bf16_f32 v{GA}, v{GA}, v{GA}', f'v_lshlrev_b32 v{GA}, 16, v{GA}')
    A(f'v_sub_f32 v{GA+1}, 1.0, v{GA}', f'v_cvt_pk_bf16_f32 v{GA+1}, v{GA+1}, v{GA+1}', f'v_lshlrev_b32 v{GA+1}, 16, v{GA+1}')
    A('s_lshl_b32 s59, s56, 3', f's_add_u32 s59, s59, {GL}', 'v_mov_b32 v6, s59', f'ds_write_b64 v6, v[{GA}:{GA+1}]')
    A('s_endpgm')

    V0 = 128; PB = 64; T = 32; ACC = 24
    WQ = 64; XB = 96
    A('.p2align 6')
    A.lab('L_vwave')
    if vprio: A(f's_setprio {vprio}')
    A('s_and_b32 s6, s6, 3')
    if prefetch:
        A.c("warm L2 with this kernel's own code: one dword per 64 bytes")
        A('s_getpc_b64 s[56:57]')
        A.lab('L_pc')
        A(f's_sub_u32 s56, s56, L_pc-{KN}_kernel', 's_subb_u32 s57, s57, 0')
        A('s_lshl_b32 s59, s6, 12', 'v_lshl_add_u32 v2, v14, 2, s59')
        A(f'v_min_u32 v2, L_code_end-{KN}_kernel-4, v2')
        A('v_mov_b32 v3, s57', 'v_add_co_u32 v2, vcc, s56, v2', 's_nop 1', 'v_addc_co_u32 v3, vcc, 0, v3, vcc')
        A('global_load_dword v40, v[2:3], off')
    kvbase()
    if LV: level()
    common()
    assert kb0 >= 0 and (pd == 3 or not pl)
    QA = 112; XR = 104
    A('s_lshl_b32 s57, s6, 8', f's_add_u32 s57, s57, {ZL}', 'v_lshlrev_b32 v4, 2, v0', 'v_add_u32 v7, s57, v4')
    A('v_mov_b32 v6, 0', 'v_and_b32 v4, 0x7c, v4', f'v_add_u32 v4, {CNT}, v4')
    A('ds_write_b32 v7, v6', 'ds_write_b32 v4, v6')
    A('v_lshrrev_b32 v8, 3, v0', 'v_and_b32 v7, 7, v0', 'v_lshlrev_b32 v9, 16, v8', 'v_lshl_add_u32 v9, v7, 4, v9')
    if qperm: A(f's_xor_b32 s5, s5, {qperm}')
    A('s_and_b32 s57, s5, 1', 's_lshl2_add_u32 s57, s57, s6')
    A('s_lshl_b32 s56, s57, 12', 's_lshr_b32 s59, s5, 1', 's_lshl3_add_u32 s59, s4, s59', 's_add_u32 s56, s56, s59', 's_lshl_b32 s56, s56, 7')
    A('s_lshl_b32 s57, s57, 7')
    A('v_lshlrev_b32 v8, 4, v8', 'v_lshl_add_u32 v8, v16, 10, v8')
    A('s_waitcnt lgkmcnt(0)')
    A('s_mov_b64 s[16:17], s[36:37]', 's_mov_b64 s[24:25], s[40:41]')
    if wsb: A(f's_add_u32 s50, s50, 0x{wsb:x}', 's_addc_u32 s51, s51, 0')
    if spk:
        A('s_cmp_lg_u32 s98, 1', 's_cbranch_scc1 L_w0', 's_barrier')
        A.lab('L_w0')
    if st0: stamp(12)
    for i in range(8):
        A(f'buffer_load_dwordx4 {vr(WQ+4*i,4)}, v9, s[16:19], s56 offen{WP}')
        if i < 7: A('s_addk_i32 s56, 0x2000')
    A(f'buffer_load_dwordx4 {vr(XR,4)}, v8, s[24:27], s57 offen' + (' ' + xf if xf else ''))
    if b0w >= 0:
        A('s_add_u32 s59, s16, s56', 's_bfe_u32 s59, s59, 0x30007', 's_cmp_eq_u32 s59, 3', 's_cbranch_scc1 L_b0', f's_waitcnt vmcnt({b0w})')
        A.lab('L_b0')
    if spk: A('s_cmp_eq_u32 s98, 1', 's_cbranch_scc1 L_w1')
    A('s_barrier')
    if spk: A.lab('L_w1')
    A('s_load_dword s7, s[50:51], 0x%x' % WS_EPOCH)
    A('s_mov_b64 s[20:21], s[50:51]', 's_mov_b64 s[8:9], s[34:35]')
    A('s_lshl_b32 s59, s6, 11', f's_add_u32 s59, s59, {OL}', 'v_add_u32 v19, s59, v14')
    A('v_lshlrev_b32 v17, 9, v1', 'v_lshl_add_u32 v17, v7, 4, v17', 'v_add_u32 v17, s59, v17')
    A('v_bfe_u32 v12, v0, 1, 4', 'v_lshlrev_b32 v12, 6, v12', 'v_and_b32 v8, 1, v0', 'v_lshl_add_u32 v12, v8, 10, v12')
    A('s_lshl_b32 s59, s6, 4', f's_add_u32 s59, s59, {OL}', 'v_add_u32 v12, s59, v12')
    A('v_lshlrev_b32 v18, 11, v1', 'v_lshl_add_u32 v18, v2, 6, v18', 'v_add_u32 v18, s59, v18')
    A('v_add_u32 v15, s54, v14')
    if tv:
        A.c('first touch of the V, wo and gate pages')
        A('s_cmp_lg_u32 s6, 0', 's_cbranch_scc1 L_ntv', 's_mov_b64 exec, 1')
        A('buffer_load_dword v110, v15, s[8:11], 0 offen nt')
        A('s_mov_b64 s[28:29], s[38:39]', 's_mov_b32 s30, 0x400000', 's_mov_b32 s31, 0x20000', 's_lshl_b32 s59, s4, 19', 'buffer_load_dword v111, v14, s[28:31], s59 offen nt')
        if tv > 1: A('s_mov_b64 s[28:29], s[44:45]', 's_mov_b32 s30, 1024', 'buffer_load_dword v108, v14, s[28:31], 0 offen', 'buffer_load_dword v109, v14, s[20:23], 0 offen offset:64')
        A('s_mov_b64 exec, -1')
        A.lab('L_ntv')
    A(f'v_mov_b32 v10, {CNT}', 'v_mov_b32 v11, 1')
    A('s_lshl2_add_u32 s57, s3, s6', 's_lshl4_add_u32 s57, s57, s5', 's_lshl_b32 s57, s57, 8', f's_add_u32 s57, s57, 0x{WS_Q:x}')
    if prq: A('s_mov_b64 exec, 0xffff', f'buffer_load_dword v68, v14, s[20:23], s57 offen{PR}', 's_mov_b64 exec, -1')
    A('v_and_b32 v8, 4, v0', 'v_cmp_eq_u32 vcc, 0, v8')
    A('s_waitcnt vmcnt(0) lgkmcnt(0)')
    A(f's_add_u32 s7, s7, 0x{TAGC:x}')
    if st0: stamp(13)
    for i in range(4): A(f'v_cndmask_b32 v{XB+i}, 0, v{XR+i}, vcc', f'v_cndmask_b32 v{XB+4+i}, v{XR+i}, 0, vcc')
    def mfq(e):
        c = '0' if (e & 1) == 0 else vr(QA + 4 * (e >> 1), 4)
        A(f'v_mfma_f32_16x16x32_bf16 {vr(QA+4*(e>>1),4)}, {vr(T+4*e,4)}, {vr(XB+4*(e&1),4)}, {c}')
    perm_mfma(WQ, T, mfq)
    A('s_mov_b32 exec_lo, 0x00ff00ff', 's_mov_b32 exec_hi, 0xff00ff00', 's_nop 6')
    for a_ in range(4): A(f'ds_write_b128 v17, {vr(QA+4*a_,4)} offset:{128*a_}')
    A('s_mov_b64 exec, 1', 'ds_add_u32 v10, v11', 's_mov_b64 exec, -1')
    A('s_add_u32 s59, s7, s12', 's_mov_b32 s56, 0x07060503', 's_mov_b32 s58, 0x07060502', 's_mov_b32 s62, 0x07060501')
    A('v_mov_b32 v67, s59', f's_mov_b32 s59, {spin}')
    A.lab('L_xspin')
    A('ds_read_b32 v4, v10')
    for w in range(2): A(f'ds_read_b128 {vr(T+4*w,4)}, v18 offset:{1024*w}')
    A('s_waitcnt lgkmcnt(2)')
    A('v_readfirstlane_b32 s53, v4', 's_cmp_eq_u32 s53, 4', 's_cbranch_scc1 L_xall')
    A('s_sub_u32 s59, s59, 1', 's_cbranch_scc0 L_xspin')
    A.lab('L_xall')
    A.c("add the partials of batch cw and publish them; the tag also carries the XCD number")
    A('s_waitcnt lgkmcnt(0)')
    for i in range(4): A(f'v_add_f32 v{T+i}, v{T+i}, v{T+4+i}')
    swapadd32(T, T + 4); swapadd16(T, T + 4)
    A(f'v_perm_b32 v64, v{T}, v{T+3}, s56', f'v_perm_b32 v65, v{T+1}, v{T+3}, s58', f'v_perm_b32 v66, v{T+2}, v{T+3}, s62')
    A('s_mov_b64 exec, 0xffff')
    if nost: A('s_branch L_qd')
    if qloc:
        A.c('on the XCD that round-robin placement gives the team the shared L2 carries it; anywhere else it is written through')
        A('s_cmp_eq_u32 s12, s42', 's_cbranch_scc1 L_ql')
    A('buffer_store_dwordx4 v[64:67], v14, s[20:23], s57 offen sc1')
    if qloc:
        A('s_branch L_qd')
        A.lab('L_ql'); A('buffer_store_dwordx4 v[64:67], v14, s[20:23], s57 offen' + (' ' + sq if sq else '')); A.lab('L_qd')
    A('s_mov_b64 exec, -1')
    A('v_lshl_add_u32 v8, v1, 2, v16', 's_lshl_b32 s57, s6, 10', f's_add_u32 s57, s57, {PX}')
    A('v_lshlrev_b32 v8, 4, v8', 'v_add_u32 v8, s57, v8', f'v_mov_b32 v9, {ZL}')
    versions(20, 8, 9)
    A('s_lshl_b32 s59, s6, 4', f's_add_u32 s59, s59, {ML}', 'v_mov_b32 v13, s59')
    A('s_lshl_b32 s57, s63, 11', 's_lshl_b32 s59, s6, 9', 's_add_u32 s57, s57, s59', f's_add_u32 s57, s57, 0x{WS_O:x}')
    A(f'v_mov_b32 v2, {CNT+8}', 'v_mov_b32 v3, 1', 'v_mov_b32 v9, s7', 'v_mov_b32 v11, s7')
    if vprio: A('s_setprio 0')
    A('s_barrier')
    def vseq(thr):
        for n in range(32):
            if n % 4 == 0: A(f's_lshr_b32 s56, s96, {ISH}', 's_add_u32 s96, s96, s97')
            if thr and n >= thr: A(f's_waitcnt vmcnt({thr-1})')
            A(f'buffer_load_dwordx4 {vr(V0+4*n,4)}, v15, s[8:11], s56 offen offset:{(n%4)*1024}{P}')
    if orc:
        th = [int(z) for z in orc.split('-')]
        A('s_memrealtime s[92:93]', 's_waitcnt lgkmcnt(0)', 's_sub_u32 s92, s92, s64', f's_cmp_ge_u32 s92, {th[1]}', 's_cbranch_scc1 L_vo2', f's_cmp_ge_u32 s92, {th[0]}', 's_cbranch_scc1 L_vo1')
        for i in range(3):
            A.lab(f'L_vo{i}'); vseq(th[2 + i])
            if i < 2: A('s_branch L_vod')
        A.lab('L_vod')
    elif LV:
        for i in range(1, len(LV)): A(f's_cmp_eq_u32 s98, {i}', f's_cbranch_scc1 L_vs{i}')
        for i, (kt, vt) in enumerate(LV):
            A.lab(f'L_vs{i}'); vseq(vt)
            if i + 1 < len(LV): A('s_branch L_vsd')
        A.lab('L_vsd')
    else: vseq(vthr)
    stamp(14)
    if vp2: A(f's_setprio {vp2}')
    A('s_barrier')
    A('ds_read_b128 v[4:7], v13', 'ds_read_b32 v8, v10 offset:4')
    for G_ in range(4):
        for e in range(4): A(f'ds_read_b128 {vr(PB+16*G_+4*e,4)}, v{20+e} offset:{256*G_}')
        if G_ == 1: A('s_waitcnt lgkmcnt(0)')
    A('v_readfirstlane_b32 s13, v8')
    A('v_max3_f32 v8, v4, v5, v6', 'v_max_f32 v8, v8, v7')
    for w in range(4): A(f'v_sub_f32 v{4+w}, v{4+w}, v8')
    for w in range(4): A(f'v_exp_f32 v{4+w}, v{4+w}')
    A('s_lshr_b32 s13, s13, 8')
    for G_ in range(4):
        xo = int(0 <= pro <= 24 and pro >= 8 * (G_ + 1))
        if G_ == 2: A(f's_waitcnt vmcnt({8*(3-G_)+xo}) lgkmcnt(0)')
        elif trim and G_ == 3: A('s_nop 4')
        else: A(f's_waitcnt vmcnt({8*(3-G_)+xo})')
        if G_ == 3 and not trim: stamp(6)
        def mf(e):
            idx = e >> 2
            c = '0' if (G_ == 0 and (e & 3) == 0) else vr(ACC + 4 * idx, 4)
            A(f'v_mfma_f32_16x16x32_bf16 {vr(ACC+4*idx,4)}, {vr(T+4*e,4)}, {vr(PB+16*G_+4*(e&3),4)}, {c}')
        if trim and G_ == 3:
            src = V0 + 96
            for d in range(4):
                A(f's_waitcnt vmcnt({6-2*d})')
                if d == 3: stamp(6)
                for dp in range(4):
                    A(f'v_perm_b32 v{T+8*dp+d}, v{src+4*(2*d+1)+dp}, v{src+8*d+dp}, {SLO}', f'v_perm_b32 v{T+8*dp+4+d}, v{src+4*(2*d+1)+dp}, v{src+8*d+dp}, {SHI}')
            for e in (0, 4, 1, 5, 2, 6, 3, 7): mf(e)
        else:
            perm_mfma(V0 + 32 * G_, T, mf)
    if not st0: stamp(12)
    A(f's_mov_b32 s59, {spin}', 's_nop 5')
    A(f'ds_write_b128 v19, {vr(ACC,4)}', f'ds_write_b128 v19, {vr(ACC+4,4)} offset:1024')
    A('s_mov_b64 exec, 1', 'ds_add_u32 v2, v3', 's_mov_b64 exec, -1')
    A.lab('L_ospin')
    A('ds_read_b32 v3, v2')
    for w in range(4): A(f'ds_read_b128 v[{64+4*w}:{67+4*w}], v12 offset:{2048*w}')
    A('s_waitcnt lgkmcnt(4)')
    A('v_readfirstlane_b32 s56, v3', 's_cmp_eq_u32 s56, 4', 's_cbranch_scc1 L_oall')
    A('s_sub_u32 s59, s59, 1', 's_cbranch_scc0 L_ospin')
    A.lab('L_oall')
    if not st0: stamp(13)
    A('s_waitcnt lgkmcnt(3)')
    if trim:
        for r in range(2): A(f'v_pk_mul_f32 v[{24+2*r}:{25+2*r}], v[{64+2*r}:{65+2*r}], v[4:5] op_sel_hi:[1,0]')
        for w in range(1, 4):
            A(f's_waitcnt lgkmcnt({3-w})')
            o = w & 1
            for r in range(2): A(f'v_pk_fma_f32 v[{24+2*r}:{25+2*r}], v[{64+4*w+2*r}:{65+4*w+2*r}], v[{4+(w&2)}:{5+(w&2)}], v[{24+2*r}:{25+2*r}] op_sel:[0,{o},0] op_sel_hi:[1,{o},1]')
    else:
        for r in range(4): A(f'v_mul_f32 v{24+r}, v4, v{64+r}')
        for w in range(1, 4):
            A(f's_waitcnt lgkmcnt({3-w})')
            for r in range(4): A(f'v_fmac_f32 v{24+r}, v{4+w}, v{64+4*w+r}')
    A('v_cvt_pk_bf16_f32 v8, v24, v25', 'v_cvt_pk_bf16_f32 v10, v26, v27')
    A('s_mov_b32 exec_hi, 0')
    if oat:
        f = '' if oat == 'p' else ' ' + oat
        A('s_cmp_eq_u32 s13, 0', 's_cbranch_scc1 L_oa', 'buffer_store_dwordx4 v[8:11], v14, s[20:23], s57 offen sc1', 's_branch L_ob')
        A.lab('L_oa')
        A(f'buffer_atomic_swap_x2 v[8:9], v14, s[20:23], s57 offen{f}', f'buffer_atomic_swap_x2 v[10:11], v14, s[20:23], s57 offen offset:8{f}')
        A.lab('L_ob')
    elif cut != 2: team_store('buffer_store_dwordx4 v[8:11], v14, s[20:23], s57 offen')
    if stamps and not dmin:
        A('s_mov_b32 exec_hi, -1')
        stamp(7)
        A(f's_cmp_lg_u32 s6, {vw}', 's_cbranch_scc1 L_end')
        dump_stamps([6, 7, 12, 13, 14])
    A('s_endpgm')

    A.lab('L_end')
    A('s_endpgm')
    A.lab('L_code_end')
    out += A.L
    out += ['.section .rodata,"a"', '.p2align 6', f'.amdhsa_kernel {KN}_kernel',
            '  .amdhsa_next_free_vgpr 256', '  .amdhsa_next_free_sgpr 102', '  .amdhsa_accum_offset 256',
            '  .amdhsa_group_segment_fixed_size 0', '  .amdhsa_kernarg_size 112', '  .amdhsa_user_sgpr_count 2',
            '  .amdhsa_user_sgpr_kernarg_segment_ptr 1', '  .amdhsa_system_sgpr_workgroup_id_x 1', '.end_amdhsa_kernel']
    return '\n'.join(out) + '\n'

if __name__ == '__main__':
    ap = argparse.ArgumentParser()
    ap.add_argument('-o', default='k.s')
    ap.add_argument('--set', action='append', default=[])
    a = ap.parse_args()
    kw = {}
    for s in a.set:
        k, v = s.split('=')
        try: v = int(v)
        except ValueError: pass
        kw[k] = v
    open(a.o, 'w').write(gen(**kw))
```
